```python
import torch

def _softmax(x, axis=-1):
    return torch.softmax(x, dim=axis)

def _gelu(x):
    return torch.nn.functional.gelu(x, approximate='tanh')

def _silu(x):
    return torch.nn.functional.silu(x)

def _sigmoid(x):
    return torch.sigmoid(x)

def _layernorm(x, axis=-1, eps=1e-05):
    m = x.mean(dim=axis, keepdim=True)
    v = x.var(dim=axis, keepdim=True, unbiased=False)
    return (x - m) / torch.sqrt(v + eps)

def _scatter_add(tgt, idx, src, axis=0):
    return tgt.clone().index_add_(axis, idx, src)

def _segment_sum(src, seg, n):
    out = torch.zeros((n,) + src.shape[1:], dtype=src.dtype)
    return out.index_add_(0, seg, src)

def _pad(x, pw):
    flat = tuple((v for pair in reversed(pw) for v in pair))
    return torch.nn.functional.pad(x, flat)
kernel_name = 'gather_scatter__molecular_angular_painn__graph'

def setup_inputs():

    _w = lambda a: (lambda t: t.to(torch.bfloat16) if t.is_floating_point() else t)(torch.as_tensor(a))
    N, deg, D = (10000, 16, 128)
    n_rbf = max(16, 4)
    E = N * deg
    cutoff = 5.0
    freqs = (torch.arange(1, n_rbf + 1) * torch.pi / cutoff).to(float)
    return {'sv': _w((lambda *s: torch.randn(*s, dtype=torch.bfloat16) * 0.4)(N, 4, D) * 0.3), 'pos': _w((lambda *s: torch.randn(*s, dtype=torch.bfloat16) * 1.6)(N, 3) * 1.2), 'src': _w((lambda lo, hi, *s: torch.randint(lo, hi, s))(0, N, E).to(torch.int64)), 'dst': _w((lambda lo, hi, *s: torch.randint(lo, hi, s))(0, N, E).to(torch.int64)), 'freqs': _w(freqs), 'w_phi1': _w((lambda *s: torch.randn(*s, dtype=torch.bfloat16) * 3.2)(D, D) / D ** 0.5), 'w_phi2': _w((lambda *s: torch.randn(*s, dtype=torch.bfloat16) * 1.6)(D, 3 * D) / D ** 0.5), 'w_rbf': _w((lambda *s: torch.randn(*s, dtype=torch.bfloat16) * 1.6)(n_rbf, 3 * D) / n_rbf ** 0.5)}

def reference(sv, pos, src, dst, freqs, w_phi1, w_phi2, w_rbf):
    N, _, D = sv.shape
    E = src.shape[0]
    PI, cutoff = (3.141592653589793, 5.0)
    s, v = (sv[:, 0, :].clone(), sv[:, 1:, :].clone())
    r_vec = pos[src] - pos[dst]
    d = torch.sqrt((r_vec * r_vec).sum(-1) + 1e-08)
    r_hat = r_vec / d[:, None]
    rbf = torch.sin(d[:, None] * freqs[None, :]) / d[:, None]
    fcut = 0.5 * (torch.cos(PI * d / cutoff) + 1.0)
    fcut = torch.where(d < cutoff, fcut, 0.0 * d)
    Wf = rbf @ w_rbf * fcut[:, None]
    phi = (_silu(s @ w_phi1) @ w_phi2)[src]
    m = phi * Wf
    m_s, m_vv, m_vr = (m[:, :D].clone(), m[:, D:2 * D].clone(), m[:, 2 * D:].clone())
    ds = _segment_sum(m_s, dst, N)
    dv_e = m_vv[:, None, :] * v[src] + m_vr[:, None, :] * r_hat[:, :, None]
    dv = _segment_sum(dv_e.reshape(E, 3 * D), dst, N).reshape(N, 3, D)
    return sv + torch.concatenate([ds[:, None, :], dv], axis=1)
```

```python
import re

class Asm:
    def __init__(self):
        self.L = []
    def __call__(self, s):
        for ln in s.split('\n'):
            ln = ln.strip()
            if ln: self.L.append('    ' + ln)
    def lab(self, s): self.L.append(s + ':')
    def c(self, s): self.L.append('    ; ' + s)
    def raw(self, s): self.L.append(s)
    def nop(self, n):
        while n > 0:
            k = min(n, 8); self('s_nop %d' % (k - 1)); n -= k
    def text(self): return '\n'.join(self.L) + '\n'

def vr(a, n=1):
    return 'v%d' % a if n == 1 else 'v[%d:%d]' % (a, a + n - 1)
def sr(a, n=1):
    return 's%d' % a if n == 1 else 's[%d:%d]' % (a, a + n - 1)

def _regs(tok):
    tok = tok.strip()
    m = re.fullmatch(r'(-|abs\()?([vsa])\[(\d+):(\d+)\]\)?', tok)
    if m: return [(m.group(2), i) for i in range(int(m.group(3)), int(m.group(4)) + 1)]
    m = re.fullmatch(r'-?([vsa])(\d+)', tok)
    if m: return [(m.group(1), int(m.group(2)))]
    if tok == 'vcc': return [('s', 'vcc')]
    if tok == 'exec': return [('s', 'exec')]
    if tok == 'm0': return [('s', 'm0')]
    return []

TRANS = ('v_exp_f32', 'v_log_f32', 'v_rcp_f32', 'v_rsq_f32', 'v_sqrt_f32', 'v_sin_f32', 'v_cos_f32')

def parse(line):
    s = line.split(';')[0].strip()
    if not s or s.endswith(':') or s.startswith('.'): return None
    parts = s.split(None, 1)
    op = parts[0]
    ops = []
    if len(parts) > 1:
        cur = ''; depth = 0
        for ch in parts[1]:
            if ch == '[': depth += 1
            if ch == ']': depth -= 1
            if ch == ',' and depth == 0: ops.append(cur.strip()); cur = ''
            else: cur += ch
        ops.append(cur.strip())
    last_mods = ''
    if ops:
        sp = ops[-1].split(None, 1)
        ops[-1] = sp[0]
        if len(sp) > 1: last_mods = sp[1]
    return op, ops, last_mods

def defs_uses(op, ops, mods):
    kind = 'other'
    d = []; u = []
    if op.startswith('v_mfma'):
        kind = 'mfma'; d = _regs(ops[0]); u = sum((_regs(o) for o in ops[1:]), [])
    elif op.startswith('v_cmp'):
        kind = 'valu'; d = _regs(ops[0]); u = sum((_regs(o) for o in ops[1:]), [])
    elif op.startswith('v_readfirstlane') or op.startswith('v_readlane'):
        kind = 'valu'; d = _regs(ops[0]); u = sum((_regs(o) for o in ops[1:]), [])
    elif op.startswith('v_'):
        kind = 'valu'; d = _regs(ops[0]); u = sum((_regs(o) for o in ops[1:]), [])
        if op.startswith(('v_add_co', 'v_sub_co', 'v_addc_co', 'v_subb_co', 'v_subrev_co')):
            d += _regs(ops[1]); u = sum((_regs(o) for o in ops[2:]), [])
        if op.startswith(('v_fmac', 'v_dot2c')) or '_dpp' in op or 'v_writelane' in op or op.startswith('v_permlane'): u += _regs(ops[0])
        if op.startswith('v_permlane') and 'swap' in op: d += _regs(ops[1])
        if op.startswith('v_cndmask') and len(ops) == 3: u.append(('s', 'vcc'))
    elif op.startswith('buffer_load') or op.startswith('global_load'):
        kind = 'vmem'
        if 'lds' in mods.split() or ops[-1] == 'lds':
            u = sum((_regs(o) for o in ops), []) + [('s', 'm0')]
        else:
            d = _regs(ops[0]); u = sum((_regs(o) for o in ops[1:]), [])
    elif op.startswith('buffer_store') or op.startswith('global_store') or op.startswith('buffer_atomic'):
        kind = 'vmem'; u = sum((_regs(o) for o in ops), [])
    elif op.startswith('ds_'):
        kind = 'ds'
        if op.startswith(('ds_read', 'ds_bpermute', 'ds_swizzle')) or '_rtn' in op:
            d = _regs(ops[0]); u = sum((_regs(o) for o in ops[1:]), [])
        else:
            u = sum((_regs(o) for o in ops), [])
    elif op.startswith('s_'):
        kind = 'salu'
        if op.startswith(('s_cmp', 's_cbranch', 's_branch', 's_waitcnt', 's_nop', 's_barrier', 's_endpgm', 's_setprio', 's_sleep')):
            u = sum((_regs(o) for o in ops), [])
        else:
            d = _regs(ops[0]) if ops else []; u = sum((_regs(o) for o in ops[1:]), [])
            if 'saveexec' in op: d.append(('s', 'exec')); u.append(('s', 'exec'))
    return d, u, kind

def nstates(op, ops):
    if op == 's_nop': return int(ops[0], 0) + 1
    return 1

def check(lines, verbose=True):
    hist = []
    pos = 0
    probs = []
    for ln_no, ln in enumerate(lines):
        p = parse(ln)
        if p is None: continue
        op, ops, mods = p
        d, u, kind = defs_uses(op, ops, mods)
        mo = re.search(r'offset:(\d+)', ln.split(';')[0])
        if mo:
            lim = 4096 if kind == 'vmem' else 65536
            if int(mo.group(1)) >= lim: probs.append((ln_no, ln.strip(), ln_no, 'OFFSET TOO LARGE', 0, 0))
        for (pno, pop, pd, pu, pk, ppos) in reversed(hist[-40:]):
            dist = pos - ppos - 1
            if dist > 20: break
            need = 0
            pdv = set(pd)
            inter = pdv & set(u)
            interw = pdv & set(d)
            if pk == 'valu':
                vinter = [r for r in inter if r[0] == 'v']
                sinter = [r for r in inter if r[0] == 's']
                if vinter and (op.startswith('v_readfirstlane') or op.startswith('v_readlane')): need = max(need, 1)
                if vinter and kind == 'mfma': need = max(need, 2)
                if vinter and '_dpp' in op: need = max(need, 2)
                if vinter and op.startswith('v_permlane'): need = max(need, 2)
                if vinter and pop.split('_e')[0] in TRANS and kind in ('valu', 'mfma') : need = max(need, 1)
                if vinter and pop in TRANS and kind in ('valu',): need = max(need, 1)
                if sinter and kind == 'valu': need = max(need, 2)
                if sinter and kind == 'vmem': need = max(need, 5)
                if sinter and (op.startswith('v_readlane') or op.startswith('v_writelane')): need = max(need, 4)
            if pk == 'mfma':
                big = '32x32' in pop
                n = 12 if big else 8
                if kind == 'mfma':
                    srcc = set(_regs(ops[3])) if len(ops) > 3 else set()
                    ab = set(_regs(ops[1]) + _regs(ops[2]))
                    if pdv & ab: need = max(need, n)
                    if pdv & srcc and srcc != pdv: need = max(need, 10 if big else 6)
                    if (pdv & set(d)) and set(d) != pdv and srcc != pdv: need = max(need, n)
                elif (inter or interw) and kind in ('valu', 'vmem', 'ds'):
                    need = max(need, n)
            if pk == 'mfma' and kind == 'valu':
                pops = parse(lines[pno])[1]
                srcc = set(_regs(pops[3])) if len(pops) > 3 else set()
                if srcc & set(d): need = max(need, 7 if '32x32' in pop else 3)
            if pk == 'salu' and ('s', 'm0') in pd and kind == 'vmem' and ('s', 'm0') in u: need = max(need, 1)
            if pk == 'vmem' and pop.startswith('buffer_store') and ('x4' in pop or 'x3' in pop) and kind == 'valu':
                pops = parse(lines[pno])[1]
                if set(_regs(pops[0])) & set(d): need = max(need, 2)
            if need > dist:
                probs.append((ln_no, ln.strip(), pno, lines[pno].strip(), need, dist))
        hist.append((ln_no, op, d, u, kind, pos))
        pos += nstates(op, ops)
    if verbose:
        for pr in probs: print('HAZARD line %d [%s] after line %d [%s]: need %d have %d' % pr)
    return probs
```

```python
from asmlib import *

N = 10000; E = 160000
NBIN = 46; CHUNK = 3480; NG = 768
WS_TA = 0; WS_TB = 10240000; WS_ATAB = 0xC80000; WS_HDR = 0xCA0000; WS_TAILS = 0xD00000
DBASE = 0x38C0; DTHR = 0x409D
K1_LDS = 155648
S_BASE = 131072; HS_OFF = 12288

def srd(a, s, base, nbytes, off=0, stride=0):
    if off:
        a(f's_add_u32 s{s}, s{base}, 0x{off:x}')
        a(f's_addc_u32 s{s+1}, s{base+1}, 0')
    else:
        a(f's_mov_b32 s{s}, s{base}')
        a(f's_mov_b32 s{s+1}, s{base+1}')
    if stride:
        a(f's_or_b32 s{s+1}, s{s+1}, 0x{stride<<16:x}')
    a(f's_mov_b32 s{s+2}, {nbytes}')
    a(f's_mov_b32 s{s+3}, 0x00020000')

def gen_mlp(a):
    a.lab('K1_MLP')
    a('s_sub_u32 s24, s2, 47')
    a('s_mul_i32 s24, s24, 48          ; node0')
    a('s_lshr_b32 s22, s3, 2           ; nt')
    a('s_and_b32 s23, s3, 3            ; sl')
    srd(a, 28, 4, 10240000)
    srd(a, 32, 14, 32768)
    srd(a, 36, 16, 98304)
    a('s_mul_i32 s25, s23, 2560000')
    a('s_add_u32 s40, s20, s25')
    a('s_addc_u32 s41, s21, 0')
    a('s_mov_b32 s42, 2560000')
    a('s_mov_b32 s43, 0x00020000')
    a('s_mul_i32 s25, s23, 640000')
    a(f's_add_u32 s25, s25, {WS_TB}')
    a('s_add_u32 s44, s20, s25')
    a('s_addc_u32 s45, s21, 0')
    a('s_mov_b32 s46, 640000')
    a('s_mov_b32 s47, 0x00020000')
    a('v_lshrrev_b32 v3, 4, v2          ; L>>4')
    a('v_and_b32 v4, 15, v2             ; L&15')
    a('s_lshl_b32 s25, s3, 2')
    a('v_add_u32 v5, s25, v3')
    a('v_and_b32 v6, 15, v5')
    a('v_xor_b32 v6, v4, v6             ; lchunk')
    a('v_add_u32 v5, s24, v5            ; node')
    a('v_lshlrev_b32 v5, 10, v5')
    a('v_lshl_add_u32 v5, v6, 4, v5')
    a('s_lshl_b32 s25, s3, 10')
    a(f's_add_u32 s25, s25, {S_BASE}')
    a('s_mov_b32 m0, s25')
    a('s_and_b32 s26, s3, 1')
    a('s_lshl_b32 s26, s26, 2           ; 4*(wv&1)')
    a('buffer_load_dwordx4 v5, s[28:31], 0 offen lds')
    a('v_add_u32 v6, s26, v3            ; kl7')
    a('v_lshrrev_b32 v7, 1, v4          ; p>>1')
    a('v_xor_b32 v7, v7, v6')
    a('v_and_b32 v8, 1, v4')
    a('v_lshl_or_b32 v7, v7, 1, v8      ; lchunk')
    a('v_lshlrev_b32 v7, 4, v7          ; *16')
    a('v_lshl_add_u32 v6, v3, 8, v7')
    a('v_mul_u32_u24 v8, 768, v3')
    a('v_add_u32 v7, v8, v7             ; vW2')
    for m in range(4):
        for j in range(3):
            lab = f'K1_DMA_SKIP_{m}'
            if j == 2:
                a('s_cmp_ge_u32 s3, 8')
                a(f's_cbranch_scc1 {lab}')
            a(f's_add_u32 s25, s3, {12*j}        ; i')
            if m == 0:
                a('s_lshl_b32 s26, s25, 10        ; soffset = i*1024')
                a('s_mov_b32 m0, s26')
                a('s_nop 0')
                a('buffer_load_dwordx4 v6, s[32:35], s26 offen lds')
            else:
                a('s_lshl_b32 s26, s25, 10')
                a(f's_add_u32 s26, s26, {m*32768}')
                a('s_mov_b32 m0, s26')
                a('s_mul_i32 s27, s25, 3072')
                a(f's_add_u32 s27, s27, {(m-1)*256}')
                a('buffer_load_dwordx4 v7, s[36:39], s27 offen lds')
            if j == 2:
                a.lab(lab)
    a('s_lshl_b32 s25, s22, 4')
    a('s_add_u32 s25, s25, s24           ; node0+16nt')
    a('s_mov_b32 s48, s25')
    a('v_add_u32 v8, s25, v4')
    a('v_lshlrev_b32 v8, 10, v8')
    a('v_lshl_add_u32 v8, v3, 3, v8')
    a('s_lshl_b32 s26, s23, 6')
    a('s_add_u32 s26, s26, 256')
    a('v_add_u32 v8, s26, v8')
    VV = 10
    for j in range(3):
        for hf in range(2):
            r = VV + (j*2+hf)*2
            a(f'buffer_load_dwordx2 v[{r}:{r+1}], v8, s[28:31], 0 offen offset:{j*256+32*hf}')
    a('v_lshrrev_b32 v22, 2, v4           ; r\'')
    a('v_lshl_add_u32 v22, v3, 2, v22     ; 4kq + r\'')
    a('v_and_b32 v23, 7, v22              ; kl7')
    a('v_lshlrev_b32 v22, 8, v22')
    a('v_lshl_add_u32 v22, v23, 5, v22')
    a('v_and_b32 v23, 3, v4')
    a('v_lshl_add_u32 v22, v23, 3, v22    ; aBase')
    a('s_lshl_b32 s25, s23, 6             ; 2*sl*32')
    a('v_xor_b32 v24, s25, v22')
    a('v_xor_b32 v25, 32, v24             ; aW[hf=1]')
    a('v_add_u32 v26, 0x10000, v24        ; aW2[0] (+65536)')
    a('v_add_u32 v27, 0x10000, v25        ; aW2[1]')
    a('v_lshrrev_b32 v23, 1, v3')
    a('v_xor_b32 v23, v23, v4')
    a('v_lshlrev_b32 v23, 4, v23')
    a('v_and_b32 v28, 1, v3')
    a('v_lshl_add_u32 v23, v28, 3, v23')
    a('v_lshl_add_u32 v23, v4, 8, v23')
    a('s_lshl_b32 s25, s22, 12            ; 16nt*256')
    a(f's_add_u32 s25, s25, {S_BASE}')
    a('v_add_u32 v23, s25, v23            ; bBase')
    VB = 28
    for st in range(4):
        for rd in range(2):
            k = (4*st + 2*rd)*16
            r = VB + st*2 + rd
            if k == 0: a(f'v_mov_b32 v{r}, v23')
            else: a(f'v_xor_b32 v{r}, {k}, v23')
    a('s_lshl_b32 s25, s23, 6')
    a('v_xor_b32 v36, s25, v23')
    a('v_xor_b32 v37, 32, v36')
    a('s_waitcnt vmcnt(0)')
    a('s_barrier')
    BS = 40
    AF = 56
    D1 = 88
    for st in range(4):
        for rd in range(2):
            r = BS + st*4 + rd*2
            a(f'ds_read_b64 v[{r}:{r+1}], v{VB+st*2+rd}')
    for h in range(2):
        for st in range(4):
            for rd in range(2):
                r = AF + (h*4+st)*4 + rd*2
                a(f'ds_read_b64_tr_b16 v[{r}:{r+1}], v{24+h} offset:{st*8192+rd*4096}')
    for r in range(D1, D1+8): a(f'v_mov_b32 v{r}, 0')
    a('s_waitcnt lgkmcnt(0)')
    for st in range(4):
        for h in range(2):
            A_ = AF + (h*4+st)*4; B_ = BS + st*4; D_ = D1 + h*4
            a(f'v_mfma_f32_16x16x32_bf16 v[{D_}:{D_+3}], v[{A_}:{A_+3}], v[{B_}:{B_+3}], v[{D_}:{D_+3}]')
    a.nop(8)
    T = 56
    a('v_mov_b32 v38, 0xffff0000')
    for p in range(4):
        a(f'v_cvt_pk_bf16_f32 v{T+p}, v{D1+2*p}, v{D1+2*p+1}')
    for p in range(4):
        a(f'v_lshlrev_b32 v{D1+2*p}, 16, v{T+p}')
        a(f'v_and_b32 v{D1+2*p+1}, v38, v{T+p}')
    for i in range(8):
        a(f'v_mul_f32 v{T+i}, 0xbfb8aa3b, v{D1+i}     ; -log2e*h')
    for i in range(8):
        a(f'v_exp_f32 v{T+i}, v{T+i}')
    a('s_nop 0')
    for i in range(8):
        a(f'v_add_f32 v{T+i}, 1.0, v{T+i}')
    for i in range(8):
        a(f'v_rcp_f32 v{T+i}, v{T+i}')
    a('s_nop 0')
    for i in range(8):
        a(f'v_mul_f32 v{T+i}, v{D1+i}, v{T+i}')
    for p in range(4):
        a(f'v_cvt_pk_bf16_f32 v{D1+p}, v{T+2*p}, v{T+2*p+1}')
    a(f'ds_write_b64 v36, v[{D1}:{D1+1}] offset:{HS_OFF}')
    a(f'ds_write_b64 v37, v[{D1+2}:{D1+3}] offset:{HS_OFF}')
    a('s_waitcnt lgkmcnt(0)')
    a('s_barrier')
    for st in range(4):
        for rd in range(2):
            r = BS + st*4 + rd*2
            a(f'ds_read_b64 v[{r}:{r+1}], v{VB+st*2+rd} offset:{HS_OFF}')
    D2 = 96
    for r in range(D2, D2+24): a(f'v_mov_b32 v{r}, 0')
    tiles = [(seg, hf) for seg in range(3) for hf in range(2)]
    def issueA(idx):
        seg, hf = tiles[idx]
        buf = AF + (idx & 1)*16
        if seg == 0: areg = 24+hf; base = 32768
        else: areg = 26+hf; base = (seg-1)*32768
        for st in range(4):
            for rd in range(2):
                r = buf + st*4 + rd*2
                a(f'ds_read_b64_tr_b16 v[{r}:{r+1}], v{areg} offset:{base+st*8192+rd*4096}')
    issueA(0)
    for idx in range(6):
        if idx + 1 < 6:
            if idx == 0: a('s_waitcnt lgkmcnt(0)')
            else: a('s_waitcnt lgkmcnt(0)')
            issueA(idx+1)
        else:
            a('s_waitcnt lgkmcnt(0)')
        seg, hf = tiles[idx]
        buf = AF + (idx & 1)*16
        D_ = D2 + (seg*2+hf)*4
        for st in range(4):
            a(f'v_mfma_f32_16x16x32_bf16 v[{D_}:{D_+3}], v[{buf+st*4}:{buf+st*4+3}], v[{BS+st*4}:{BS+st*4+3}], v[{D_}:{D_+3}]')
    a('s_barrier')
    a.nop(8)
    a('s_mul_i32 s25, s3, 5120')
    a('v_lshlrev_b32 v28, 1, v3           ; 2q')
    a('v_xor_b32 v28, v28, v4             ; (2q)^node')
    a('v_lshlrev_b32 v28, 4, v28')
    a('v_lshl_add_u32 v28, v4, 8, v28')
    a('v_add_u32 v28, s25, v28')
    a('v_xor_b32 v29, 16, v28             ; chunk 2q+1')
    a('v_xor_b32 v30, 0x80, v28           ; chunk 8+2q')
    a('v_xor_b32 v31, 0x80, v29           ; chunk 8+2q+1')
    a('v_lshlrev_b32 v32, 6, v4')
    a('v_lshl_add_u32 v32, v3, 3, v32')
    a('v_add_u32 v32, s25, v32')
    O1 = 40; O2 = 44; OB = 48; PV = 50; TT = 56
    for hf in range(2):
        Ds = D2 + (0*2+hf)*4; Dv = D2 + (1*2+hf)*4; Dr = D2 + (2*2+hf)*4
        a(f'v_cvt_pk_bf16_f32 v{OB}, v{Ds}, v{Ds+1}')
        a(f'v_cvt_pk_bf16_f32 v{OB+1}, v{Ds+2}, v{Ds+3}')
        a(f'v_cvt_pk_bf16_f32 v{O1+3}, v{Dr}, v{Dr+1}')
        a(f'v_cvt_pk_bf16_f32 v{O2+3}, v{Dr+2}, v{Dr+3}')
        a(f'v_cvt_pk_bf16_f32 v{TT}, v{Dv}, v{Dv+1}')
        a(f'v_cvt_pk_bf16_f32 v{TT+1}, v{Dv+2}, v{Dv+3}')
        a(f'v_lshlrev_b32 v{PV}, 16, v{TT}')
        a(f'v_and_b32 v{PV+1}, v38, v{TT}')
        a(f'v_lshlrev_b32 v{PV+2}, 16, v{TT+1}')
        a(f'v_and_b32 v{PV+3}, v38, v{TT+1}')
        for j in range(3):
            r = VV + (j*2+hf)*2
            t = TT + 4 + j*4
            a(f'v_lshlrev_b32 v{t}, 16, v{r}')
            a(f'v_and_b32 v{t+1}, v38, v{r}')
            a(f'v_lshlrev_b32 v{t+2}, 16, v{r+1}')
            a(f'v_and_b32 v{t+3}, v38, v{r+1}')
            a(f'v_pk_mul_f32 v[{t}:{t+1}], v[{t}:{t+1}], v[{PV}:{PV+1}]')
            a(f'v_pk_mul_f32 v[{t+2}:{t+3}], v[{t+2}:{t+3}], v[{PV+2}:{PV+3}]')
            a(f'v_cvt_pk_bf16_f32 v{O1+j}, v{t}, v{t+1}')
            a(f'v_cvt_pk_bf16_f32 v{O2+j}, v{t+2}, v{t+3}')
        a(f'ds_write_b128 v{28+2*hf}, v[{O1}:{O1+3}]')
        a(f'ds_write_b128 v{29+2*hf}, v[{O2}:{O2+3}]')
        a(f'ds_write_b64 v32, v[{OB}:{OB+1}] offset:{4096+32*hf}')
        if hf == 0: a('s_nop 1')
    a('v_lshlrev_b32 v33, 4, v2           ; L*16')
    a('v_add_u32 v33, s25, v33')
    R0 = 64
    a('s_waitcnt lgkmcnt(0)')
    for i in range(4):
        a(f'ds_read_b128 v[{R0+4*i}:{R0+4*i+3}], v33 offset:{1024*i}')
    a(f'ds_read_b128 v[{R0+16}:{R0+19}], v33 offset:4096')
    a('v_xor_b32 v34, v4, v3              ; p ^ (L>>4)')
    a('v_lshlrev_b32 v34, 4, v34')
    a('v_lshl_add_u32 v34, v3, 8, v34')
    a('s_lshl_b32 s25, s48, 8')
    a('v_add_u32 v34, s25, v34')
    for i in range(1, 4):
        a(f'v_xor_b32 v{34+i}, {64*i}, v34')
    a('s_lshl_b32 s25, s48, 6')
    a('v_lshlrev_b32 v39, 4, v2')
    a('v_add_u32 v39, s25, v39')
    for i in range(4):
        a(f's_waitcnt lgkmcnt({4-i})')
        a(f'buffer_store_dwordx4 v[{R0+4*i}:{R0+4*i+3}], v{34+i}, s[40:43], 0 offen offset:{1024*i}')
    a('s_waitcnt lgkmcnt(0)')
    a(f'buffer_store_dwordx4 v[{R0+16}:{R0+19}], v39, s[44:47], 0 offen')
    a('s_endpgm')

def bf16_round_pair(a, dst, x, y):
    a(f'v_cvt_pk_bf16_f32 v{dst}, v{x}, v{y}')

def gen_bin(a):
    a.lab('K1_BIN')
    srd(a, 28, 8, E*4)
    srd(a, 32, 10, E*4)
    srd(a, 36, 6, N*6)
    srd(a, 40, 20, NG*64*4, off=WS_HDR)
    srd(a, 44, 20, NBIN*65536, off=WS_TAILS)
    a(f's_mul_i32 s24, s2, {CHUNK}           ; e0')
    a(f's_sub_u32 s25, {E}, s24')
    a(f's_min_u32 s25, s25, {CHUNK}          ; lim')
    a('v_lshlrev_b32 v1, 2, v0')
    a('v_mov_b32 v3, 0')
    a('ds_write_b32 v1, v3')
    SRC = 10; DST = 15; PS = 20; PD = 30; REC = 40; GG = 60; RK = 65
    a('v_add_u32 v4, s24, v0')
    a('v_lshlrev_b32 v4, 2, v4              ; e*4 (round 0)')
    for j in range(5):
        a(f's_mov_b32 s26, {j*3072}')
        a(f'buffer_load_dword v{SRC+j}, v4, s[28:31], s26 offen')
        a(f'buffer_load_dword v{DST+j}, v4, s[32:35], s26 offen')
    for j in range(5):
        a(f'v_add_u32 v5, {j*768}, v0')
        a(f'v_cmp_gt_u32 s[{50+2*j}:{51+2*j}], s25, v5')
    a('v_mov_b32 v6, 0xffff0000')
    a('s_waitcnt lgkmcnt(0)')
    a('s_barrier')
    for j in range(5):
        a('s_waitcnt vmcnt(8)')
        for (idx, dstp) in ((SRC+j, PS+2*j), (DST+j, PD+2*j)):
            a(f'v_mul_u32_u24 v5, 6, v{idx}')
            a('v_and_b32 v5, -4, v5')
            a(f'buffer_load_dwordx2 v[{dstp}:{dstp+1}], v5, s[36:39], 0 offen')
    a('s_mov_b32 s26, 5033')
    a('s_mov_b32 s27, 853362')
    a('s_mov_b32 s60, 65000')
    a('v_mov_b32 v7, 1')
    for j in range(5):
        a(f's_waitcnt vmcnt({8-2*j})')
        ps = PS+2*j; pd = PD+2*j; rec = REC+4*j
        t = 70
        a(f'v_and_b32 v{t}, 1, v{SRC+j}')
        a(f'v_lshlrev_b32 v{t}, 4, v{t}')
        a(f'v_lshrrev_b64 v[{ps}:{ps+1}], v{t}, v[{ps}:{ps+1}]')
        a(f'v_and_b32 v{t+1}, 1, v{DST+j}')
        a(f'v_lshlrev_b32 v{t+1}, 4, v{t+1}')
        a(f'v_lshrrev_b64 v[{pd}:{pd+1}], v{t+1}, v[{pd}:{pd+1}]')
        a(f'v_lshlrev_b32 v{t}, 16, v{ps}')
        a(f'v_lshlrev_b32 v{t+1}, 16, v{pd}')
        a(f'v_sub_f32 v{t}, v{t}, v{t+1}          ; rx')
        a(f'v_and_b32 v{t+1}, v6, v{ps}')
        a(f'v_and_b32 v{t+2}, v6, v{pd}')
        a(f'v_sub_f32 v{t+1}, v{t+1}, v{t+2}      ; ry')
        a(f'v_lshlrev_b32 v{t+2}, 16, v{ps+1}')
        a(f'v_lshlrev_b32 v{t+3}, 16, v{pd+1}')
        a(f'v_sub_f32 v{t+2}, v{t+2}, v{t+3}      ; rz')
        a(f'v_cvt_pk_bf16_f32 v{t+3}, v{t}, v{t+1}')
        a(f'v_cvt_pk_bf16_f32 v{t+4}, v{t+2}, v{t+2}')
        a(f'v_lshlrev_b32 v{t}, 16, v{t+3}')
        a(f'v_and_b32 v{t+1}, v6, v{t+3}')
        a(f'v_lshlrev_b32 v{t+2}, 16, v{t+4}')
        a(f'v_mul_f32 v{t+3}, v{t}, v{t}')
        a(f'v_mul_f32 v{t+4}, v{t+1}, v{t+1}')
        a(f'v_mul_f32 v{t+5}, v{t+2}, v{t+2}')
        a(f'v_cvt_pk_bf16_f32 v{t+3}, v{t+3}, v{t+4}')
        a(f'v_cvt_pk_bf16_f32 v{t+5}, v{t+5}, v{t+5}')
        a(f'v_lshlrev_b32 v{t+4}, 16, v{t+3}')
        a(f'v_and_b32 v{t+3}, v6, v{t+3}')
        a(f'v_lshlrev_b32 v{t+5}, 16, v{t+5}')
        a(f'v_add_f32 v{t+3}, v{t+4}, v{t+3}')
        a(f'v_add_f32 v{t+3}, v{t+3}, v{t+5}')
        a(f'v_cvt_pk_bf16_f32 v{t+3}, v{t+3}, v{t+3}')
        a(f'v_and_b32 v{t+3}, v6, v{t+3}')
        a(f'v_add_f32 v{t+3}, 0x322bcc77, v{t+3}   ; +1e-8')
        a(f'v_cvt_pk_bf16_f32 v{t+3}, v{t+3}, v{t+3}')
        a(f'v_and_b32 v{t+3}, v6, v{t+3}')
        a(f'v_sqrt_f32 v{t+3}, v{t+3}')
        a(f'v_mul_u32_u24 v{GG+j}, s26, v{DST+j}')
        a(f'v_cvt_pk_bf16_f32 v{t+3}, v{t+3}, v{t+3}')
        a(f'v_and_b32 v{t+3}, v6, v{t+3}           ; d (f32 bits)')
        a(f'v_rcp_f32 v{t+4}, v{t+3}')
        a(f'v_lshrrev_b32 v{GG+j}, 16, v{GG+j}       ; g')
        a(f'v_mul_f32 v{t}, v{t}, v{t+4}')
        a(f'v_mul_f32 v{t+1}, v{t+1}, v{t+4}')
        a(f'v_mul_f32 v{t+2}, v{t+2}, v{t+4}')
        a(f'v_cvt_pk_bf16_f32 v{rec+1}, v{t}, v{t+1}   ; rx|ry')
        a(f'v_cvt_pk_bf16_f32 v{rec+2}, v{t+2}, v{t+2}')
        a(f'v_cmp_gt_u32 vcc, 0x{DTHR<<16:x}, v{t+3}')
        a(f's_and_b64 s[{50+2*j}:{51+2*j}], s[{50+2*j}:{51+2*j}], vcc')
        a(f'v_lshrrev_b32 v{rec+3}, 16, v{t+3}')
        a(f'v_subrev_u32 v{rec+3}, 0x{DBASE:x}, v{rec+3}')
        a(f'v_lshlrev_b32 v{rec+3}, 5, v{rec+3}')
        a(f'v_mov_b32 v{t}, s60')
        a(f'v_mad_u32_u24 v{t}, v{GG+j}, s27, v{t}')
        a(f'v_lshrrev_b32 v{t}, 16, v{t}')
        a(f'v_sub_u32 v{t}, v{DST+j}, v{t}          ; dloc')
        a(f'v_add_u32 v{t}, 16, v{t}')
        a(f'v_lshlrev_b32 v{t}, v{t}, v7            ; 1<<(16+dloc)')
        a(f'v_and_b32 v{rec+2}, 0xffff, v{rec+2}')
        a(f'v_or_b32 v{rec+2}, v{t}, v{rec+2}')
        a(f'v_lshlrev_b32 v{rec}, 4, v{SRC+j}')
        a(f'v_or_b32 v{rec}, 0x80000000, v{rec}')
        a(f'v_lshlrev_b32 v{t+1}, 2, v{GG+j}')
        a(f's_mov_b64 exec, s[{50+2*j}:{51+2*j}]')
        a(f'ds_add_rtn_u32 v{RK+j}, v{t+1}, v7')
        a('s_mov_b64 exec, -1')
    a('s_waitcnt lgkmcnt(0)')
    a('s_barrier')
    a('ds_read_b32 v3, v1                    ; cnt')
    a('s_waitcnt lgkmcnt(0)')
    a('v_mov_b32 v4, v3')
    a('s_nop 1')
    for sh in (1, 2, 4, 8):
        a(f'v_add_u32_dpp v4, v4, v4 row_shr:{sh} row_mask:0xf bank_mask:0xf')
        a('s_nop 1')
    a('v_add_u32_dpp v4, v4, v4 row_bcast:15 row_mask:0xa bank_mask:0xf')
    a('s_nop 1')
    a('v_add_u32_dpp v4, v4, v4 row_bcast:31 row_mask:0xc bank_mask:0xf')
    a('s_nop 1')
    a('v_readlane_b32 s26, v4, 63')
    a('s_lshl_b32 s27, s3, 2')
    a('v_mov_b32 v5, s27')
    a('v_mov_b32 v8, s26')
    a('ds_write_b32 v5, v8 offset:4096')
    a('s_waitcnt lgkmcnt(0)')
    a('s_barrier')
    a('v_mov_b32 v5, 0')
    a('ds_read_b128 v[70:73], v5 offset:4096')
    a('ds_read_b128 v[74:77], v5 offset:4112')
    a('ds_read_b128 v[78:81], v5 offset:4128')
    a('v_sub_u32 v4, v4, v3')
    a('s_waitcnt lgkmcnt(0)')
    for k in range(11):
        a(f's_cmp_gt_u32 s3, {k}')
        a('s_cselect_b32 s26, -1, 0')
        a(f'v_and_b32 v{70+k}, s26, v{70+k}')
        a(f'v_add_u32 v4, v4, v{70+k}')
    a('ds_write_b32 v1, v4 offset:8192         ; start[bin]')
    a('v_lshl_or_b32 v3, v3, 16, v4')
    a('v_lshlrev_b32 v5, 8, v0')
    a('s_lshl_b32 s26, s2, 2')
    a('v_add_u32 v5, s26, v5')
    a('buffer_store_dword v3, v5, s[40:43], 0 offen')
    a('s_waitcnt lgkmcnt(0)')
    a('s_barrier')
    a('s_lshl_b32 s26, s2, 12                  ; w*4096')
    for j in range(5):
        a(f'v_lshlrev_b32 v{GG+j}, 2, v{GG+j}')
        a(f'ds_read_b32 v{GG+j}, v{GG+j} offset:8192')
    for j in range(5):
        a(f's_waitcnt lgkmcnt({4-j})')
        a(f'v_add_u32 v{GG+j}, v{GG+j}, v{RK+j}')
        a(f'v_add_u32 v{GG+j}, s26, v{GG+j}')
        a(f'v_lshlrev_b32 v{GG+j}, 4, v{GG+j}')
        a(f's_mov_b64 exec, s[{50+2*j}:{51+2*j}]')
        a(f'buffer_store_dwordx4 v[{REC+4*j}:{REC+4*j+3}], v{GG+j}, s[44:47], 0 offen')
        a('s_mov_b64 exec, -1')
    a('s_endpgm')

def gen_tab(a):
    a.lab('K1_TAB')
    srd(a, 28, 20, 65536, off=WS_ATAB)
    a('s_load_dwordx8 s[36:43], s[12:13], 0')
    a('v_mov_b32 v6, 0xffff0000')
    a('s_waitcnt lgkmcnt(0)')
    for k in range(8):
        a(f's_lshl_b32 s{44+2*k}, s{36+k}, 16')
        a(f's_and_b32 s{45+2*k}, s{36+k}, 0xffff0000')
    a('s_mov_b32 s60, 0x3e22f983')
    a('s_mov_b32 s61, 0x31dc9c88')
    a('s_mov_b32 s62, 0')
    a.lab('K1_TAB_LOOP')
    a('v_add_u32 v3, s62, v0             ; entry')
    a(f'v_add_u32 v4, 0x{DBASE:x}, v3')
    a('v_lshlrev_b32 v4, 16, v4           ; d')
    a('v_mul_f32 v5, 0x40490fdb, v4       ; pi*d')
    a('v_cvt_pk_bf16_f32 v5, v5, v5')
    a('v_and_b32 v5, v6, v5')
    a('v_mul_f32 v5, 0x3e4ccccd, v5       ; /5')
    a('v_cvt_pk_bf16_f32 v5, v5, v5')
    a('v_and_b32 v5, v6, v5')
    a('v_mul_f32 v5, s60, v5')
    a('v_cos_f32 v5, v5')
    a('v_rcp_f32 v7, v4                   ; 1/d')
    a('v_cvt_pk_bf16_f32 v5, v5, v5')
    a('v_and_b32 v5, v6, v5')
    a('v_add_f32 v5, 1.0, v5')
    a('v_cvt_pk_bf16_f32 v5, v5, v5')
    a('v_and_b32 v5, v6, v5')
    a('v_mul_f32 v5, 0.5, v5              ; fcut')
    a('v_cmp_gt_u32 vcc, 0x40a00000, v4')
    a('v_cmp_ne_u32 s[64:65], 0, v3')
    a('s_and_b64 vcc, vcc, s[64:65]')
    a('s_nop 1')
    a('v_cndmask_b32 v5, 0, v5, vcc')
    for k in range(16):
        t = 10 + k
        a(f'v_mul_f32 v{t}, s{44+k}, v4')
    for k in range(0, 16, 2):
        t = 10 + k
        a(f'v_cvt_pk_bf16_f32 v{30+k//2}, v{t}, v{t+1}')
    for k in range(0, 16, 2):
        t = 10 + k
        a(f'v_lshlrev_b32 v{t}, 16, v{30+k//2}')
        a(f'v_and_b32 v{t+1}, v6, v{30+k//2}')
    for k in range(16):
        t = 10 + k
        a(f'v_mul_f32 v40, s60, v{t}')
        a(f'v_fma_f32 v41, v{t}, s60, -v40')
        a(f'v_fma_f32 v41, v{t}, s61, v41')
        a(f'v_fract_f32 v40, v40')
        a(f'v_add_f32 v40, v40, v41')
        a(f'v_sin_f32 v{t}, v40')
    a('s_nop 0')
    for k in range(0, 16, 2):
        t = 10 + k
        a(f'v_cvt_pk_bf16_f32 v40, v{t}, v{t+1}')
        a(f'v_lshlrev_b32 v{t}, 16, v40')
        a(f'v_and_b32 v{t+1}, v6, v40')
        a(f'v_mul_f32 v{t}, v{t}, v7')
        a(f'v_mul_f32 v{t+1}, v{t+1}, v7')
        a(f'v_cvt_pk_bf16_f32 v40, v{t}, v{t+1}')
        a(f'v_lshlrev_b32 v{t}, 16, v40')
        a(f'v_and_b32 v{t+1}, v6, v40')
        a(f'v_mul_f32 v{t}, v{t}, v5')
        a(f'v_mul_f32 v{t+1}, v{t+1}, v5')
        a(f'v_cvt_pk_bf16_f32 v{30+k//2}, v{t}, v{t+1}')
    a('v_lshlrev_b32 v8, 5, v3')
    a('buffer_store_dwordx4 v[30:33], v8, s[28:31], 0 offen')
    a('buffer_store_dwordx4 v[34:37], v8, s[28:31], 0 offen offset:16')
    a('s_add_u32 s62, s62, 768')
    a('s_cmp_lt_u32 s62, 2048')
    a('s_nop 1')
    a('s_cbranch_scc1 K1_TAB_LOOP')
    a('s_endpgm')

def gen_k1(a):
    a.raw('.p2align 8')
    a.raw('.type prep_kernel,@function')
    a.lab('prep_kernel')
    a('s_cmp_ge_u32 s2, 256')
    a('s_cbranch_scc1 K1_END')
    a('s_load_dwordx4 s[4:7], s[0:1], 0')
    a('s_load_dwordx4 s[8:11], s[0:1], 16')
    a('s_load_dwordx4 s[12:15], s[0:1], 32')
    a('s_load_dwordx4 s[16:19], s[0:1], 48')
    a('s_load_dwordx2 s[20:21], s[0:1], 80')
    a('v_lshrrev_b32 v1, 6, v0')
    a('v_and_b32 v2, 63, v0')
    a('s_nop 0')
    a('v_readfirstlane_b32 s3, v1')
    a('s_waitcnt lgkmcnt(0)')
    a(f's_cmp_lt_u32 s2, {NBIN}')
    a('s_cbranch_scc1 K1_BIN')
    a(f's_cmp_eq_u32 s2, {NBIN}')
    a('s_cbranch_scc1 K1_TAB')
    gen_mlp(a)
    gen_bin(a)
    gen_tab(a)
    a.lab('K1_END')
    a('s_endpgm')
```

```python
from asmlib import *
from k1 import *

KNAME = 'gather_scatter__molecular_angular_painn__graph_kernel'
TAB_LDS = 65536
WREG = 5120
O_SRC = 0; O_AOF = 1280; O_OH = 2560; O_RX = 3200; O_RY = 3840; O_RZ = 4480
K2_LDS = TAB_LDS + 12*WREG

V_LANE = 1; V_C = 2; V_SHL = 3; V_MHI = 4; V_KQ8 = 5
V_A1 = 6; V_A2 = 7; V_A3 = 8
V_T0 = 9
WB = 10
ACC = 22
GA = 54
GB = 86
WF = 94
MSG = 118
SM = 138
AOP = 154
TMP = 162
NV = 168

def wb(seg, t): return WB + (seg*2+t)*2
def acc(comp, t): return ACC + (comp*2+t)*4
def gA(i, c): return GA + 4*i + c
def wf(seg, R, r=0): return WF + seg*8 + R*4 + r
def msg(comp, j=0): return MSG + comp*4 + j

def gen_k2(a):
    a.raw('.p2align 8')
    a.raw(f'.type {KNAME},@function')
    a.lab(KNAME)
    a('s_cmp_ge_u32 s2, 256')
    a('s_cbranch_scc1 K2_END')
    a('s_load_dwordx2 s[4:5], s[0:1], 0       ; sv')
    a('s_load_dwordx2 s[6:7], s[0:1], 56      ; w_rbf')
    a('s_load_dwordx2 s[8:9], s[0:1], 64      ; out')
    a('s_load_dwordx2 s[10:11], s[0:1], 80    ; ws')
    a('v_lshrrev_b32 v9, 6, v0')
    a(f'v_and_b32 v{V_LANE}, 63, v0')
    a('s_and_b32 s12, s2, 7                   ; x')
    a('v_readfirstlane_b32 s3, v9             ; wave')
    a('s_lshr_b32 s13, s12, 1                 ; slice')
    a('s_lshr_b32 s14, s2, 3')
    a('s_lshl_b32 s14, s14, 1')
    a('s_and_b32 s12, s12, 1')
    a('s_add_u32 s14, s14, s12                ; rank (0..63)')
    a('s_mul_i32 s14, s14, 12')
    a('s_add_u32 s14, s14, s3                 ; g')
    a('s_mul_i32 s15, s14, 853362')
    a('s_add_u32 s16, s15, 65000')
    a('s_lshr_b32 s15, s16, 16                ; start')
    a('s_add_u32 s16, s16, 853362')
    a('s_lshr_b32 s16, s16, 16')
    a(f's_min_u32 s16, s16, {N}')
    a('s_sub_u32 s16, s16, s15                ; size')
    a(f'v_and_b32 v{V_C}, 15, v{V_LANE}          ; c / n / rho')
    a(f'v_lshrrev_b32 v9, 4, v{V_LANE}          ; q')
    a('s_waitcnt lgkmcnt(0)')
    srd(a, 20, 10, NG*64*4, off=WS_HDR)
    srd(a, 24, 10, NBIN*65536, off=WS_TAILS)
    srd(a, 28, 10, 65536, off=WS_ATAB)
    srd(a, 32, 4, 10240000)
    srd(a, 36, 8, 10240000)
    srd(a, 40, 6, 16*768)
    a('s_mul_i32 s17, s13, 2560000')
    a('s_add_u32 s44, s10, s17')
    a('s_addc_u32 s45, s11, 0')
    a('s_or_b32 s45, s45, 0x100000            ; stride 16')
    a('s_mov_b32 s46, 160000')
    a('s_mov_b32 s47, 0x00020000')
    a('s_mul_i32 s17, s13, 640000')
    a(f's_add_u32 s17, s17, {WS_TB}')
    a('s_add_u32 s48, s10, s17')
    a('s_addc_u32 s49, s11, 0')
    a('s_or_b32 s49, s49, 0x40000             ; stride 4')
    a('s_mov_b32 s50, 160000')
    a('s_mov_b32 s51, 0x00020000')
    a('s_lshl_b32 s17, s14, 8')
    a(f'v_lshlrev_b32 v{TMP}, 2, v{V_LANE}')
    a(f'buffer_load_dword v{TMP+1}, v{TMP}, s[20:23], s17 offen')
    a(f'v_lshlrev_b32 v{TMP+2}, 4, v{V_LANE}')
    for k in range(6):
        if k == 5:
            a('s_cmp_ge_u32 s3, 4')
            a('s_cbranch_scc1 K2_DMA_DONE')
        a(f's_add_u32 s17, s3, {12*k}')
        a('s_lshl_b32 s17, s17, 10')
        a('s_mov_b32 m0, s17')
        a('s_nop 0')
        a(f'buffer_load_dwordx4 v{TMP+2}, s[28:31], s17 offen lds')
    a.lab('K2_DMA_DONE')
    a(f'v_lshlrev_b32 v{TMP+2}, 2, v9            ; 4kq')
    a(f'v_mul_u32_u24 v{TMP+2}, 768, v{TMP+2}')
    a(f'v_lshl_add_u32 v{TMP+2}, v{V_C}, 2, v{TMP+2}')
    a('s_lshl_b32 s17, s13, 6')
    WT = GA
    for seg in range(3):
        for i in range(4):
            a(f'buffer_load_dword v{WT+seg*4+i}, v{TMP+2}, s[40:43], s17 offen offset:{i*768+seg*256}')
    a(f'v_lshlrev_b32 v{TMP+3}, 2, v9            ; 4q')
    a(f'v_add_u32 v{TMP+3}, s15, v{TMP+3}         ; node(r=0)')
    a(f'v_lshlrev_b32 v{TMP+3}, 10, v{TMP+3}')
    a(f'v_lshl_add_u32 v{TMP+3}, v{V_C}, 2, v{TMP+3}')
    a(f'v_add_u32 v{TMP+3}, s17, v{TMP+3}')
    a(f'v_mov_b32 v0, v{TMP+3}')
    for r in range(4):
        for comp in range(4):
            a(f'buffer_load_dword v{MSG+r*4+comp}, v0, s[32:35], 0 offen offset:{r*1024+comp*256}')
    a(f'v_sub_u32 v{V_SHL}, 15, v{V_C}')
    a(f'v_lshl_or_b32 v{V_SHL}, v{V_SHL}, 16, v{V_SHL}')
    a(f'v_mov_b32 v{V_MHI}, 0xffff0000')
    a(f'v_lshlrev_b32 v{V_KQ8}, 3, v9            ; 8*kq')
    a(f's_mul_i32 s18, s3, {WREG}')
    a(f's_add_u32 s18, s18, {TAB_LDS}')
    a('s_waitcnt vmcnt(28)')
    H = TMP+1
    a(f'v_cmp_gt_u32 vcc, {NBIN}, v{V_LANE}')
    a('s_nop 1')
    a(f'v_cndmask_b32 v{H}, 0, v{H}, vcc')
    CNT = AOP; ST = AOP+1; P = AOP+2; LOCB = AOP+3; KK = AOP+4; POS = AOP+5; KHI = AOP+6
    a(f'v_lshrrev_b32 v{CNT}, 16, v{H}')
    a(f'v_and_b32 v{ST}, 0xffff, v{H}')
    a(f'v_mov_b32 v{P}, v{CNT}')
    a('s_nop 1')
    for sh in (1, 2, 4, 8):
        a(f'v_add_u32_dpp v{P}, v{P}, v{P} row_shr:{sh} row_mask:0xf bank_mask:0xf')
        a('s_nop 1')
    a(f'v_add_u32_dpp v{P}, v{P}, v{P} row_bcast:15 row_mask:0xa bank_mask:0xf')
    a('s_nop 1')
    a(f'v_add_u32_dpp v{P}, v{P}, v{P} row_bcast:31 row_mask:0xc bank_mask:0xf')
    a('s_nop 1')
    a(f'v_readlane_b32 s19, v{P}, 63             ; M')
    a(f'v_sub_u32 v{P}, v{P}, v{CNT}')
    a(f'v_lshl_add_u32 v{LOCB}, v{V_LANE}, 12, v{ST}   ; w*4096 + start')
    a('s_mov_b32 s52, 0                          ; base')
    a('s_waitcnt vmcnt(16)')
    a('s_mov_b32 s53, 0x05040100')
    a('s_mov_b32 s54, 0x07060302')
    for seg in range(3):
        r = WT + seg*4
        a(f'v_perm_b32 v{wb(seg,0)}, v{r+1}, v{r}, s53')
        a(f'v_perm_b32 v{wb(seg,0)+1}, v{r+3}, v{r+2}, s53')
        a(f'v_perm_b32 v{wb(seg,1)}, v{r+1}, v{r}, s54')
        a(f'v_perm_b32 v{wb(seg,1)+1}, v{r+3}, v{r+2}, s54')
    a('s_waitcnt vmcnt(0)')
    for r in range(4):
        for comp in range(4):
            a(f'v_lshlrev_b32 v{acc(comp,0)+r}, 16, v{MSG+r*4+comp}')
            a(f'v_and_b32 v{acc(comp,1)+r}, v{V_MHI}, v{MSG+r*4+comp}')
    a.lab('K2_CHUNK')
    a(f'v_sub_u32 v{KK}, s52, v{P}')
    a(f'v_max_i32 v{KK}, 0, v{KK}')
    a.lab('K2_FILL')
    a(f'v_add_u32 v{POS}, v{P}, v{KK}')
    a(f'v_subrev_u32 v{POS}, s52, v{POS}')
    a(f'v_cmp_lt_u32 s[56:57], v{KK}, v{CNT}')
    a(f'v_cmp_gt_u32 vcc, 256, v{POS}')
    a('s_and_b64 vcc, vcc, s[56:57]')
    a('s_cbranch_vccz K2_FILL_DONE')
    a(f'v_lshlrev_b32 v{POS}, 2, v{POS}')
    a(f'v_add_u32 v{POS}, s18, v{POS}')
    a(f'v_add_u32 v{KHI}, v{LOCB}, v{KK}')
    a('s_mov_b64 exec, vcc')
    a(f'ds_write_b32 v{POS}, v{KHI}')
    a('s_mov_b64 exec, -1')
    a(f'v_add_u32 v{KK}, 1, v{KK}')
    a('s_branch K2_FILL')
    a.lab('K2_FILL_DONE')
    a('s_sub_u32 s55, s19, s52')
    a('s_min_u32 s55, s55, 256                   ; n_c')
    a('s_add_u32 s58, s55, 31')
    a('s_lshr_b32 s58, s58, 5                    ; ntiles')
    a('s_lshl_b32 s59, s58, 5')
    a('s_add_u32 s59, s59, 32                    ; npad')
    RC = GA
    LA = GB
    a(f'v_lshlrev_b32 v{TMP}, 2, v{V_LANE}')
    a(f'v_add_u32 v{TMP}, s18, v{TMP}')
    for j in range(5):
        if j >= 1:
            a(f's_cmp_le_u32 s59, {64*j}')
            a('s_cbranch_scc1 K2_REC_ISSUED')
        a(f'ds_read_b32 v{LA+j}, v{TMP} offset:{256*j}')
        a(f'v_add_u32 v{TMP+1}, {64*j}, v{V_LANE}')
        a(f'v_cmp_gt_u32 vcc, s55, v{TMP+1}')
        a('s_waitcnt lgkmcnt(0)')
        a(f'v_lshlrev_b32 v{LA+j}, 4, v{LA+j}')
        a(f'v_mov_b32 v{TMP+1}, 0x80000000')
        a(f'v_cndmask_b32 v{LA+j}, v{TMP+1}, v{LA+j}, vcc')
        a(f'buffer_load_dwordx4 v[{RC+4*j}:{RC+4*j+3}], v{LA+j}, s[24:27], 0 offen')
    a.lab('K2_REC_ISSUED')
    a(f'v_lshlrev_b32 v{TMP+1}, 1, v{V_LANE}')
    a(f'v_add_u32 v{TMP+1}, s18, v{TMP+1}')
    a(f'v_mov_b32 v{TMP+2}, 0x80000000')
    a('s_waitcnt vmcnt(0)')
    for j in range(5):
        if j >= 1:
            a(f's_cmp_le_u32 s59, {64*j}')
            a('s_cbranch_scc1 K2_SOA_DONE')
        r = RC+4*j
        a(f'v_xor_b32 v{r}, v{TMP+2}, v{r}')
        a(f'ds_write_b32 v{TMP}, v{r} offset:{O_SRC+256*j}')
        a(f'ds_write_b32 v{TMP}, v{r+3} offset:{O_AOF+256*j}')
        a(f'ds_write_b16 v{TMP+1}, v{r+1} offset:{O_RX+128*j}')
        a(f'ds_write_b16_d16_hi v{TMP+1}, v{r+1} offset:{O_RY+128*j}')
        a(f'ds_write_b16 v{TMP+1}, v{r+2} offset:{O_RZ+128*j}')
        a(f'ds_write_b16_d16_hi v{TMP+1}, v{r+2} offset:{O_OH+128*j}')
    a.lab('K2_SOA_DONE')
    a('s_cmp_lg_u32 s52, 0')
    a('s_cbranch_scc1 K2_NOBAR')
    a('s_waitcnt lgkmcnt(0)')
    a('s_barrier')
    a.lab('K2_NOBAR')
    a(f'v_lshrrev_b32 v{TMP}, 4, v{V_LANE}          ; q')
    a(f'v_lshlrev_b32 v{V_A1}, 5, v{TMP}            ; q*8*4')
    a(f'v_add_u32 v{V_A1}, s18, v{V_A1}')
    a(f'v_lshlrev_b32 v{V_A2}, 4, v{TMP}            ; q*8*2')
    a(f'v_add_u32 v{V_A2}, s18, v{V_A2}')
    a(f'v_lshrrev_b32 v{TMP}, 2, v{V_C}             ; rho>>2')
    a(f'v_and_b32 v{TMP+1}, 3, v{V_C}')
    a(f'v_lshl_add_u32 v{TMP}, v{TMP}, 3, v{TMP+1}   ; 8*(rho>>2)+(rho&3)')
    a(f'v_lshlrev_b32 v{V_A3}, 2, v{TMP}')
    a(f'v_add_u32 v{V_A3}, s18, v{V_A3}')
    a('s_cmp_eq_u32 s58, 0')
    a('s_cbranch_scc1 K2_TILES_DONE')
    def issue_row(i):
        a(f'v_add_u32 v{TMP+4+(i&1)}, v{AOP+i}, v{V_C}')
        a(f'buffer_load_dwordx4 v[{gA(i,0)}:{gA(i,3)}], v{TMP+4+(i&1)}, s[44:47], 0 idxen')
        a(f'buffer_load_dword v{GB+i}, v{TMP+4+(i&1)}, s[48:51], 0 idxen')
    a(f'ds_read_b128 v[{AOP}:{AOP+3}], v{V_A1} offset:{O_SRC}')
    a(f'ds_read_b128 v[{AOP+4}:{AOP+7}], v{V_A1} offset:{O_SRC+16}')
    a('s_waitcnt lgkmcnt(0)')
    for i in range(8): issue_row(i)
    a.lab('K2_TILE')
    AO = AOP+4
    a(f'ds_read_b32 v{AO}, v{V_A3} offset:{O_AOF}')
    a(f'ds_read_b32 v{AO+1}, v{V_A3} offset:{O_AOF+16}')
    a(f'ds_read_b128 v[{SM}:{SM+3}], v{V_A2} offset:{O_OH}')
    a(f'ds_read_b128 v[{SM+4}:{SM+7}], v{V_A2} offset:{O_RX}')
    a(f'ds_read_b128 v[{SM+8}:{SM+11}], v{V_A2} offset:{O_RY}')
    a(f'ds_read_b128 v[{SM+12}:{SM+15}], v{V_A2} offset:{O_RZ}')
    a('s_waitcnt lgkmcnt(4)')
    a(f'v_add_u32 v{AO}, v{AO}, v{V_KQ8}')
    a(f'v_add_u32 v{AO+1}, v{AO+1}, v{V_KQ8}')
    a(f'ds_read_b64 v[{AOP}:{AOP+1}], v{AO}')
    a(f'ds_read_b64 v[{AOP+2}:{AOP+3}], v{AO+1}')
    a('s_waitcnt lgkmcnt(0)')
    def wf_mfma(t, R):
        for seg in range(3):
            a(f'v_mfma_f32_16x16x16_bf16 v[{wf(seg,R)}:{wf(seg,R)+3}], v[{AOP+2*R}:{AOP+2*R+1}], v[{wb(seg,t)}:{wb(seg,t)+1}], 0')
    wf_mfma(0, 0); wf_mfma(0, 1)
    for j in range(4):
        a(f'v_pk_lshlrev_b16 v{SM+j}, v{V_SHL}, v{SM+j}')
    for j in range(4):
        a(f'v_pk_ashrrev_i16 v{SM+j}, 15, v{SM+j} op_sel_hi:[0,1]')
    for m in (1, 2, 3):
        for j in range(4):
            a(f'v_and_b32 v{SM+4*m+j}, v{SM+j}, v{SM+4*m+j}')
    for j in range(4):
        a(f'v_and_b32 v{SM+j}, 0x3f803f80, v{SM+j}')
    tmpi = [0]
    def prod(t, i):
        R = i >> 2; r = i & 3
        for comp in range(5):
            seg = [1, 1, 1, 2, 0][comp]
            s0 = gA(i, comp) if comp < 4 else GB+i
            s1 = gA(i+1, comp) if comp < 4 else GB+i+1
            u = TMP + 2*(tmpi[0] % 2); tmpi[0] += 1
            if t == 0:
                a(f'v_lshlrev_b32 v{u}, 16, v{s0}'); a(f'v_lshlrev_b32 v{u+1}, 16, v{s1}')
            else:
                a(f'v_and_b32 v{u}, v{V_MHI}, v{s0}'); a(f'v_and_b32 v{u+1}, v{V_MHI}, v{s1}')
            a(f'v_pk_mul_f32 v[{u}:{u+1}], v[{u}:{u+1}], v[{wf(seg,R,r)}:{wf(seg,R,r+1)}]')
            a(f'v_cvt_pk_bf16_f32 v{msg(comp,i//2)}, v{u}, v{u+1}')
    def segsum(t):
        for (ac, m, mc) in [(0, 0, 4), (1, 0, 0), (2, 0, 1), (3, 0, 2), (1, 1, 3), (2, 2, 3), (3, 3, 3)]:
            a(f'v_mfma_f32_16x16x32_bf16 v[{acc(ac,t)}:{acc(ac,t)+3}], v[{SM+4*m}:{SM+4*m+3}], v[{msg(mc)}:{msg(mc)+3}], v[{acc(ac,t)}:{acc(ac,t)+3}]')
    for i in (0, 2):
        a(f's_waitcnt vmcnt({12-2*i})')
        prod(0, i)
    wf_mfma(1, 0)
    for i in (4, 6):
        a(f's_waitcnt vmcnt({12-2*i})')
        prod(0, i)
    wf_mfma(1, 1)
    segsum(0)
    a(f'ds_read_b128 v[{AOP}:{AOP+3}], v{V_A1} offset:{O_SRC+128}')
    a(f'ds_read_b128 v[{AOP+4}:{AOP+7}], v{V_A1} offset:{O_SRC+128+16}')
    for i in (0, 2, 4, 6):
        prod(1, i)
        if i == 0: a('s_waitcnt lgkmcnt(0)')
        issue_row(i); issue_row(i+1)
    segsum(1)
    a(f'v_add_u32 v{V_A1}, 128, v{V_A1}')
    a(f'v_add_u32 v{V_A2}, 64, v{V_A2}')
    a(f'v_add_u32 v{V_A3}, 128, v{V_A3}')
    a('s_sub_u32 s58, s58, 1')
    a('s_cmp_lg_u32 s58, 0')
    a('s_cbranch_scc1 K2_TILE')
    a('s_waitcnt vmcnt(0)')
    a.lab('K2_TILES_DONE')
    a('s_add_u32 s52, s52, 256')
    a('s_cmp_ge_u32 s52, s19')
    a('s_cbranch_scc1 K2_EPI')
    a('s_lshl_b32 s17, s14, 8')
    a(f'v_lshlrev_b32 v{TMP}, 2, v{V_LANE}')
    a(f'buffer_load_dword v{TMP+1}, v{TMP}, s[20:23], s17 offen')
    a('s_waitcnt vmcnt(0)')
    a(f'v_cmp_gt_u32 vcc, {NBIN}, v{V_LANE}')
    a('s_nop 1')
    a(f'v_cndmask_b32 v{H}, 0, v{H}, vcc')
    a(f'v_lshrrev_b32 v{CNT}, 16, v{H}')
    a(f'v_and_b32 v{ST}, 0xffff, v{H}')
    a(f'v_mov_b32 v{P}, v{CNT}')
    a('s_nop 1')
    for sh in (1, 2, 4, 8):
        a(f'v_add_u32_dpp v{P}, v{P}, v{P} row_shr:{sh} row_mask:0xf bank_mask:0xf')
        a('s_nop 1')
    a(f'v_add_u32_dpp v{P}, v{P}, v{P} row_bcast:15 row_mask:0xa bank_mask:0xf')
    a('s_nop 1')
    a(f'v_add_u32_dpp v{P}, v{P}, v{P} row_bcast:31 row_mask:0xc bank_mask:0xf')
    a('s_nop 1')
    a(f'v_sub_u32 v{P}, v{P}, v{CNT}')
    a(f'v_lshl_add_u32 v{LOCB}, v{V_LANE}, 12, v{ST}')
    a('s_branch K2_CHUNK')
    a.lab('K2_EPI')
    a.nop(8)
    a(f'v_lshrrev_b32 v{TMP}, 4, v{V_LANE}')
    a(f'v_lshlrev_b32 v{TMP}, 2, v{TMP}            ; 4q')
    a(f'v_mov_b32 v{TMP+1}, 0x80000000')
    for r in range(4):
        a(f'v_add_u32 v{TMP+2}, {r}, v{TMP}')
        a(f'v_cmp_gt_u32 vcc, s16, v{TMP+2}')
        a('s_nop 1')
        a(f'v_cndmask_b32 v{AOP+r}, v{TMP+1}, v0, vcc')
    for r in range(4):
        for comp in range(4):
            o = MSG + r*4 + comp
            a(f'v_cvt_pk_bf16_f32 v{o}, v{acc(comp,0)+r}, v{acc(comp,1)+r}')
    for r in range(4):
        for comp in range(4):
            o = MSG + r*4 + comp
            a(f'buffer_store_dword v{o}, v{AOP+r}, s[36:39], 0 offen offset:{r*1024+comp*256}')
    a.lab('K2_END')
    a('s_endpgm')
```

```python
import sys
sys.path.insert(0, 'gen')
from asmlib import *
import k1, k2

def kd(name, vgpr, sgpr):
    return f'''.amdhsa_kernel {name}
  .amdhsa_next_free_vgpr {vgpr}
  .amdhsa_next_free_sgpr {sgpr}
  .amdhsa_accum_offset {(vgpr+3)//4*4}
  .amdhsa_group_segment_fixed_size 0
  .amdhsa_kernarg_size 88
  .amdhsa_user_sgpr_count 2
  .amdhsa_user_sgpr_kernarg_segment_ptr 1
  .amdhsa_system_sgpr_workgroup_id_x 1
  .amdhsa_float_denorm_mode_32 3
.end_amdhsa_kernel
'''

hdr = f'''; PaiNN message passing (gather/scatter) for gfx950 -- generated by hand-written generator scripts
; @launch kernel=prep_kernel grid=(256,1,1) block=(768,1,1) lds={k1.K1_LDS}
; @launch kernel={k2.KNAME} grid=(256,1,1) block=(768,1,1) lds={k2.K2_LDS}
.amdgcn_target "amdgcn-amd-amdhsa--gfx950"
.text
.globl prep_kernel
.globl {k2.KNAME}
'''
a1 = Asm(); k1.gen_k1(a1)
a2 = Asm(); k2.gen_k2(a2)
p1 = check(a1.L); p2 = check(a2.L)
txt = hdr + a1.text() + a2.text() + '.section .rodata,"a"\n.p2align 6\n' + kd('prep_kernel', 128, 80) + '.p2align 6\n' + kd(k2.KNAME, k2.NV, 80)
out = sys.argv[1] if len(sys.argv) > 1 else 'gather_scatter__molecular_angular_painn__graph.s'
open(out, 'w').write(txt)
print('written', out, len(txt), 'bytes; hazards:', len(p1), len(p2))
```

```python
import re

class Asm:
    def __init__(self):
        self.L = []
    def __call__(self, s):
        for ln in s.split('\n'):
            ln = ln.strip()
            if ln: self.L.append('    ' + ln)
    def lab(self, s): self.L.append(s + ':')
    def c(self, s): self.L.append('    ; ' + s)
    def raw(self, s): self.L.append(s)
    def nop(self, n):
        while n > 0:
            k = min(n, 8); self('s_nop %d' % (k - 1)); n -= k
    STAMPS = False
    def stamp(self, i):
        if Asm.STAMPS:
            self(f's_memrealtime s[{70+2*i}:{71+2*i}]')
    def stamp_flush(self, kern, wsreg, nst, wave_s):
        if not Asm.STAMPS: return
        self('s_waitcnt vmcnt(0) lgkmcnt(0)')
        self(f's_memrealtime s[{70+2*nst}:{71+2*nst}]')
        self('s_waitcnt lgkmcnt(0)')
        self(f's_add_u32 s64, s{wsreg}, 0x{0x1800000+kern*0x100000:x}')
        self(f's_addc_u32 s65, s{wsreg+1}, 0')
        self('s_mov_b32 s66, 0x100000')
        self('s_mov_b32 s67, 0x00020000')
        self('s_lshl_b32 s68, s2, 4')
        self(f's_add_u32 s68, s68, s{wave_s}')
        self('s_lshl_b32 s68, s68, 6')
        self('s_mov_b64 exec, 1')
        for i in range(nst+1):
            self(f'v_mov_b32 v1, s{70+2*i}')
            self(f'v_mov_b32 v2, {4*i}')
            self('buffer_store_dword v1, v2, s[64:67], s68 offen')
            self('s_nop 1')
        self('s_waitcnt vmcnt(0)')
    def text(self): return '\n'.join(self.L) + '\n'

def vr(a, n=1):
    return 'v%d' % a if n == 1 else 'v[%d:%d]' % (a, a + n - 1)
def sr(a, n=1):
    return 's%d' % a if n == 1 else 's[%d:%d]' % (a, a + n - 1)

def _regs(tok):
    tok = tok.strip()
    m = re.fullmatch(r'(-|abs\()?([vsa])\[(\d+):(\d+)\]\)?', tok)
    if m: return [(m.group(2), i) for i in range(int(m.group(3)), int(m.group(4)) + 1)]
    m = re.fullmatch(r'-?([vsa])(\d+)', tok)
    if m: return [(m.group(1), int(m.group(2)))]
    if tok == 'vcc': return [('s', 'vcc')]
    if tok == 'exec': return [('s', 'exec')]
    if tok == 'm0': return [('s', 'm0')]
    return []

TRANS = ('v_exp_f32', 'v_log_f32', 'v_rcp_f32', 'v_rsq_f32', 'v_sqrt_f32', 'v_sin_f32', 'v_cos_f32')

def parse(line):
    s = line.split(';')[0].strip()
    if not s or s.endswith(':') or s.startswith('.'): return None
    parts = s.split(None, 1)
    op = parts[0]
    ops = []
    if len(parts) > 1:
        cur = ''; depth = 0
        for ch in parts[1]:
            if ch == '[': depth += 1
            if ch == ']': depth -= 1
            if ch == ',' and depth == 0: ops.append(cur.strip()); cur = ''
            else: cur += ch
        ops.append(cur.strip())
    last_mods = ''
    if ops:
        sp = ops[-1].split(None, 1)
        ops[-1] = sp[0]
        if len(sp) > 1: last_mods = sp[1]
    return op, ops, last_mods

def defs_uses(op, ops, mods):
    kind = 'other'
    d = []; u = []
    if op.startswith('v_mfma'):
        kind = 'mfma'; d = _regs(ops[0]); u = sum((_regs(o) for o in ops[1:]), [])
    elif op.startswith('v_cmp'):
        kind = 'valu'; d = _regs(ops[0]); u = sum((_regs(o) for o in ops[1:]), [])
    elif op.startswith('v_readfirstlane') or op.startswith('v_readlane'):
        kind = 'valu'; d = _regs(ops[0]); u = sum((_regs(o) for o in ops[1:]), [])
    elif op.startswith('v_'):
        kind = 'valu'; d = _regs(ops[0]); u = sum((_regs(o) for o in ops[1:]), [])
        if op.startswith(('v_add_co', 'v_sub_co', 'v_addc_co', 'v_subb_co', 'v_subrev_co')):
            d += _regs(ops[1]); u = sum((_regs(o) for o in ops[2:]), [])
        if op.startswith(('v_fmac', 'v_dot2c')) or '_dpp' in op or 'v_writelane' in op or op.startswith('v_permlane'): u += _regs(ops[0])
        if op.startswith('v_permlane') and 'swap' in op: d += _regs(ops[1])
        if op.startswith('v_cndmask') and len(ops) == 3: u.append(('s', 'vcc'))
    elif op.startswith('buffer_load') or op.startswith('global_load'):
        kind = 'vmem'
        if 'lds' in mods.split() or ops[-1] == 'lds':
            u = sum((_regs(o) for o in ops), []) + [('s', 'm0')]
        else:
            d = _regs(ops[0]); u = sum((_regs(o) for o in ops[1:]), [])
    elif op.startswith('buffer_store') or op.startswith('global_store') or op.startswith('buffer_atomic'):
        kind = 'vmem'; u = sum((_regs(o) for o in ops), [])
    elif op.startswith('ds_'):
        kind = 'ds'
        if op.startswith(('ds_read', 'ds_bpermute', 'ds_swizzle')) or '_rtn' in op:
            d = _regs(ops[0]); u = sum((_regs(o) for o in ops[1:]), [])
        else:
            u = sum((_regs(o) for o in ops), [])
    elif op.startswith('s_'):
        kind = 'salu'
        if op.startswith(('s_cmp', 's_cbranch', 's_branch', 's_waitcnt', 's_nop', 's_barrier', 's_endpgm', 's_setprio', 's_sleep')):
            u = sum((_regs(o) for o in ops), [])
        else:
            d = _regs(ops[0]) if ops else []; u = sum((_regs(o) for o in ops[1:]), [])
            if 'saveexec' in op: d.append(('s', 'exec')); u.append(('s', 'exec'))
    return d, u, kind

def nstates(op, ops):
    if op == 's_nop': return int(ops[0], 0) + 1
    return 1

def check(lines, verbose=True):
    hist = []
    pos = 0
    probs = []
    for ln_no, ln in enumerate(lines):
        p = parse(ln)
        if p is None: continue
        op, ops, mods = p
        d, u, kind = defs_uses(op, ops, mods)
        mo = re.search(r'offset:(\d+)', ln.split(';')[0])
        if mo:
            lim = 4096 if kind == 'vmem' else 65536
            if int(mo.group(1)) >= lim: probs.append((ln_no, ln.strip(), ln_no, 'OFFSET TOO LARGE', 0, 0))
        for (pno, pop, pd, pu, pk, ppos) in reversed(hist[-40:]):
            dist = pos - ppos - 1
            if dist > 20: break
            need = 0
            pdv = set(pd)
            inter = pdv & set(u)
            interw = pdv & set(d)
            if pk == 'valu':
                vinter = [r for r in inter if r[0] == 'v']
                sinter = [r for r in inter if r[0] == 's']
                if vinter and (op.startswith('v_readfirstlane') or op.startswith('v_readlane')): need = max(need, 1)
                if vinter and kind == 'mfma': need = max(need, 2)
                if vinter and '_dpp' in op: need = max(need, 2)
                if vinter and op.startswith('v_permlane'): need = max(need, 2)
                if vinter and pop.split('_e')[0] in TRANS and kind in ('valu', 'mfma') : need = max(need, 1)
                if vinter and pop in TRANS and kind in ('valu',): need = max(need, 1)
                if sinter and kind == 'valu': need = max(need, 2)
                if sinter and kind == 'vmem': need = max(need, 5)
                if sinter and (op.startswith('v_readlane') or op.startswith('v_writelane')): need = max(need, 4)
            if pk == 'mfma':
                big = '32x32' in pop
                n = 12 if big else 8
                if kind == 'mfma':
                    srcc = set(_regs(ops[3])) if len(ops) > 3 else set()
                    ab = set(_regs(ops[1]) + _regs(ops[2]))
                    if pdv & ab: need = max(need, n)
                    if pdv & srcc and srcc != pdv: need = max(need, 10 if big else 6)
                    if (pdv & set(d)) and set(d) != pdv and srcc != pdv: need = max(need, n)
                elif (inter or interw) and kind in ('valu', 'vmem', 'ds'):
                    need = max(need, n)
            if pk == 'mfma' and kind == 'valu':
                pops = parse(lines[pno])[1]
                srcc = set(_regs(pops[3])) if len(pops) > 3 else set()
                if srcc & set(d): need = max(need, 7 if '32x32' in pop else 3)
            if pk == 'salu' and ('s', 'm0') in pd and kind == 'vmem' and ('s', 'm0') in u: need = max(need, 1)
            if pk == 'vmem' and pop.startswith('buffer_store') and ('x4' in pop or 'x3' in pop) and kind == 'valu':
                pops = parse(lines[pno])[1]
                if set(_regs(pops[0])) & set(d): need = max(need, 2)
            if need > dist:
                probs.append((ln_no, ln.strip(), pno, lines[pno].strip(), need, dist))
        hist.append((ln_no, op, d, u, kind, pos))
        pos += nstates(op, ops)
    if verbose:
        for pr in probs: print('HAZARD line %d [%s] after line %d [%s]: need %d have %d' % pr)
    return probs
```

```python
from asmlib import *
import os
STT = os.environ.get('STT','sc1')
STO = os.environ.get('STO','sc1')
LDN = os.environ.get('LDN','nt')

N = 10000; E = 160000
NBIN = 46; CHUNK = 3480; NG = 768
WS_TA = 0; WS_TB = 10240000; WS_ATAB = 0xC80000; WS_WB = 0xC90000; WS_HDR = 0xCA0000; WS_TAILS = 0xD00000
HOT0 = 1472; NHOT_KB = 17
COMP = bool(os.environ.get('COMP'))
DBASE = 0x38C0; DTHR = 0x409D
K1_LDS = 155648
S_BASE = 131072; HS_OFF = 12288

def srd(a, s, base, nbytes, off=0, stride=0):
    if off:
        a(f's_add_u32 s{s}, s{base}, 0x{off:x}')
        a(f's_addc_u32 s{s+1}, s{base+1}, 0')
    else:
        a(f's_mov_b32 s{s}, s{base}')
        a(f's_mov_b32 s{s+1}, s{base+1}')
    if stride:
        a(f's_or_b32 s{s+1}, s{s+1}, 0x{stride<<16:x}')
    a(f's_mov_b32 s{s+2}, {nbytes}')
    a(f's_mov_b32 s{s+3}, 0x00020000')

def gen_mlp(a):
    a.lab('K1_MLP')
    a.stamp(0)
    a('s_sub_u32 s24, s2, 47')
    a('s_mul_i32 s24, s24, 48          ; node0')
    a('s_lshr_b32 s22, s3, 2           ; nt')
    a('s_and_b32 s23, s3, 3            ; sl')
    srd(a, 28, 4, 10240000)
    srd(a, 32, 14, 32768)
    srd(a, 36, 16, 98304)
    a('s_mul_i32 s25, s23, 2560000')
    a('s_add_u32 s40, s20, s25')
    a('s_addc_u32 s41, s21, 0')
    a('s_mov_b32 s42, 2560000')
    a('s_mov_b32 s43, 0x00020000')
    a('s_mul_i32 s25, s23, 640000')
    a(f's_add_u32 s25, s25, {WS_TB}')
    a('s_add_u32 s44, s20, s25')
    a('s_addc_u32 s45, s21, 0')
    a('s_mov_b32 s46, 640000')
    a('s_mov_b32 s47, 0x00020000')
    a('v_lshrrev_b32 v3, 4, v2          ; L>>4')
    a('v_and_b32 v4, 15, v2             ; L&15')
    a('s_lshl_b32 s25, s3, 2')
    a('v_add_u32 v5, s25, v3')
    a('v_and_b32 v6, 15, v5')
    a('v_xor_b32 v6, v4, v6             ; lchunk')
    a('v_add_u32 v5, s24, v5            ; node')
    a('v_lshlrev_b32 v5, 10, v5')
    a('v_lshl_add_u32 v5, v6, 4, v5')
    a('s_lshl_b32 s25, s3, 10')
    a(f's_add_u32 s25, s25, {S_BASE}')
    a('s_mov_b32 m0, s25')
    a('s_and_b32 s26, s3, 1')
    a('s_lshl_b32 s26, s26, 2           ; 4*(wv&1)')
    a(f'buffer_load_dwordx4 v5, s[28:31], 0 offen {LDN} lds')
    a('v_add_u32 v6, s26, v3            ; kl7')
    a('v_lshrrev_b32 v7, 1, v4          ; p>>1')
    a('v_xor_b32 v7, v7, v6')
    a('v_and_b32 v8, 1, v4')
    a('v_lshl_or_b32 v7, v7, 1, v8      ; lchunk')
    a('v_lshlrev_b32 v7, 4, v7          ; *16')
    a('v_lshl_add_u32 v6, v3, 8, v7')
    a('v_mul_u32_u24 v8, 768, v3')
    a('v_add_u32 v7, v8, v7             ; vW2')
    for m in range(4):
        for j in range(3):
            lab = f'K1_DMA_SKIP_{m}'
            if j == 2:
                a('s_cmp_ge_u32 s3, 8')
                a(f's_cbranch_scc1 {lab}')
            a(f's_add_u32 s25, s3, {12*j}        ; i')
            if m == 0:
                a('s_lshl_b32 s26, s25, 10        ; soffset = i*1024')
                a('s_mov_b32 m0, s26')
                a('s_nop 0')
                a('buffer_load_dwordx4 v6, s[32:35], s26 offen lds')
            else:
                a('s_lshl_b32 s26, s25, 10')
                a(f's_add_u32 s26, s26, {m*32768}')
                a('s_mov_b32 m0, s26')
                a('s_mul_i32 s27, s25, 3072')
                a(f's_add_u32 s27, s27, {(m-1)*256}')
                a('buffer_load_dwordx4 v7, s[36:39], s27 offen lds')
            if j == 2:
                a.lab(lab)
    a('s_lshl_b32 s25, s22, 4')
    a('s_add_u32 s25, s25, s24           ; node0+16nt')
    a('s_mov_b32 s48, s25')
    a('v_add_u32 v8, s25, v4')
    a('v_lshlrev_b32 v8, 10, v8')
    a('v_lshl_add_u32 v8, v3, 3, v8')
    a('s_lshl_b32 s26, s23, 6')
    a('s_add_u32 s26, s26, 256')
    a('v_add_u32 v8, s26, v8')
    VV = 10
    for j in range(3):
        for hf in range(2):
            r = VV + (j*2+hf)*2
            a(f'buffer_load_dwordx2 v[{r}:{r+1}], v8, s[28:31], 0 offen offset:{j*256+32*hf} {LDN}')
    a('v_lshrrev_b32 v22, 2, v4           ; r\'')
    a('v_lshl_add_u32 v22, v3, 2, v22     ; 4kq + r\'')
    a('v_and_b32 v23, 7, v22              ; kl7')
    a('v_lshlrev_b32 v22, 8, v22')
    a('v_lshl_add_u32 v22, v23, 5, v22')
    a('v_and_b32 v23, 3, v4')
    a('v_lshl_add_u32 v22, v23, 3, v22    ; aBase')
    a('s_lshl_b32 s25, s23, 6             ; 2*sl*32')
    a('v_xor_b32 v24, s25, v22')
    a('v_xor_b32 v25, 32, v24             ; aW[hf=1]')
    a('v_add_u32 v26, 0x10000, v24        ; aW2[0] (+65536)')
    a('v_add_u32 v27, 0x10000, v25        ; aW2[1]')
    a('v_lshrrev_b32 v23, 1, v3')
    a('v_xor_b32 v23, v23, v4')
    a('v_lshlrev_b32 v23, 4, v23')
    a('v_and_b32 v28, 1, v3')
    a('v_lshl_add_u32 v23, v28, 3, v23')
    a('v_lshl_add_u32 v23, v4, 8, v23')
    a('s_lshl_b32 s25, s22, 12            ; 16nt*256')
    a(f's_add_u32 s25, s25, {S_BASE}')
    a('v_add_u32 v23, s25, v23            ; bBase')
    VB = 28
    for st in range(4):
        for rd in range(2):
            k = (4*st + 2*rd)*16
            r = VB + st*2 + rd
            if k == 0: a(f'v_mov_b32 v{r}, v23')
            else: a(f'v_xor_b32 v{r}, {k}, v23')
    a('s_lshl_b32 s25, s23, 6')
    a('v_xor_b32 v36, s25, v23')
    a('v_xor_b32 v37, 32, v36')
    a.stamp(1)
    a('s_cmp_lt_u32 s3, 8')
    a('s_cbranch_scc1 K1_W15')
    a('s_waitcnt vmcnt(12)')
    a('s_branch K1_WDONE')
    a.lab('K1_W15')
    a('s_waitcnt vmcnt(15)')
    a.lab('K1_WDONE')
    a.stamp(2)
    a('s_barrier')
    a.stamp(3)
    BS = 40
    AF = 56
    D1 = 88
    for st in range(4):
        for rd in range(2):
            r = BS + st*4 + rd*2
            a(f'ds_read_b64 v[{r}:{r+1}], v{VB+st*2+rd}')
    for h in range(2):
        for st in range(4):
            for rd in range(2):
                r = AF + (h*4+st)*4 + rd*2
                a(f'ds_read_b64_tr_b16 v[{r}:{r+1}], v{24+h} offset:{st*8192+rd*4096}')
    for r in range(D1, D1+8): a(f'v_mov_b32 v{r}, 0')
    a('s_waitcnt lgkmcnt(0)')
    for st in range(4):
        for h in range(2):
            A_ = AF + (h*4+st)*4; B_ = BS + st*4; D_ = D1 + h*4
            a(f'v_mfma_f32_16x16x32_bf16 v[{D_}:{D_+3}], v[{A_}:{A_+3}], v[{B_}:{B_+3}], v[{D_}:{D_+3}]')
    a.nop(8)
    T = 56
    a('v_mov_b32 v38, 0xffff0000')
    for p in range(4):
        a(f'v_cvt_pk_bf16_f32 v{T+p}, v{D1+2*p}, v{D1+2*p+1}')
    for p in range(4):
        a(f'v_lshlrev_b32 v{D1+2*p}, 16, v{T+p}')
        a(f'v_and_b32 v{D1+2*p+1}, v38, v{T+p}')
    for i in range(8):
        a(f'v_mul_f32 v{T+i}, 0xbfb8aa3b, v{D1+i}     ; -log2e*h')
    for i in range(8):
        a(f'v_exp_f32 v{T+i}, v{T+i}')
    a('s_nop 0')
    for i in range(8):
        a(f'v_add_f32 v{T+i}, 1.0, v{T+i}')
    for i in range(8):
        a(f'v_rcp_f32 v{T+i}, v{T+i}')
    a('s_nop 0')
    for i in range(8):
        a(f'v_mul_f32 v{T+i}, v{D1+i}, v{T+i}')
    for p in range(4):
        a(f'v_cvt_pk_bf16_f32 v{D1+p}, v{T+2*p}, v{T+2*p+1}')
    a(f'ds_write_b64 v36, v[{D1}:{D1+1}] offset:{HS_OFF}')
    a(f'ds_write_b64 v37, v[{D1+2}:{D1+3}] offset:{HS_OFF}')
    a('s_waitcnt vmcnt(6) lgkmcnt(0)')
    a('s_barrier')
    a.stamp(4)
    for st in range(4):
        for rd in range(2):
            r = BS + st*4 + rd*2
            a(f'ds_read_b64 v[{r}:{r+1}], v{VB+st*2+rd} offset:{HS_OFF}')
    D2 = 96
    for r in range(D2, D2+24): a(f'v_mov_b32 v{r}, 0')
    tiles = [(seg, hf) for seg in range(3) for hf in range(2)]
    def issueA(idx):
        seg, hf = tiles[idx]
        buf = AF + (idx & 1)*16
        if seg == 0: areg = 24+hf; base = 32768
        else: areg = 26+hf; base = (seg-1)*32768
        for st in range(4):
            for rd in range(2):
                r = buf + st*4 + rd*2
                a(f'ds_read_b64_tr_b16 v[{r}:{r+1}], v{areg} offset:{base+st*8192+rd*4096}')
    issueA(0)
    for idx in range(6):
        if idx + 1 < 6:
            if idx == 0: a('s_waitcnt lgkmcnt(0)')
            else: a('s_waitcnt lgkmcnt(0)')
            issueA(idx+1)
        else:
            a('s_waitcnt lgkmcnt(0)')
        seg, hf = tiles[idx]
        buf = AF + (idx & 1)*16
        D_ = D2 + (seg*2+hf)*4
        for st in range(4):
            a(f'v_mfma_f32_16x16x32_bf16 v[{D_}:{D_+3}], v[{buf+st*4}:{buf+st*4+3}], v[{BS+st*4}:{BS+st*4+3}], v[{D_}:{D_+3}]')
    a('s_waitcnt vmcnt(0)')
    a('s_barrier')
    a.stamp(5)
    a.nop(8)
    a('s_mul_i32 s25, s3, 5120')
    a('v_lshlrev_b32 v28, 1, v3           ; 2q')
    a('v_xor_b32 v28, v28, v4             ; (2q)^node')
    a('v_lshlrev_b32 v28, 4, v28')
    a('v_lshl_add_u32 v28, v4, 8, v28')
    a('v_add_u32 v28, s25, v28')
    a('v_xor_b32 v29, 16, v28             ; chunk 2q+1')
    a('v_xor_b32 v30, 0x80, v28           ; chunk 8+2q')
    a('v_xor_b32 v31, 0x80, v29           ; chunk 8+2q+1')
    a('v_lshlrev_b32 v32, 6, v4')
    a('v_lshl_add_u32 v32, v3, 3, v32')
    a('v_add_u32 v32, s25, v32')
    O1 = 40; O2 = 44; OB = 48; PV = 50; TT = 56
    for hf in range(2):
        Ds = D2 + (0*2+hf)*4; Dv = D2 + (1*2+hf)*4; Dr = D2 + (2*2+hf)*4
        a(f'v_cvt_pk_bf16_f32 v{OB}, v{Ds}, v{Ds+1}')
        a(f'v_cvt_pk_bf16_f32 v{OB+1}, v{Ds+2}, v{Ds+3}')
        a(f'v_cvt_pk_bf16_f32 v{O1+3}, v{Dr}, v{Dr+1}')
        a(f'v_cvt_pk_bf16_f32 v{O2+3}, v{Dr+2}, v{Dr+3}')
        a(f'v_cvt_pk_bf16_f32 v{TT}, v{Dv}, v{Dv+1}')
        a(f'v_cvt_pk_bf16_f32 v{TT+1}, v{Dv+2}, v{Dv+3}')
        a(f'v_lshlrev_b32 v{PV}, 16, v{TT}')
        a(f'v_and_b32 v{PV+1}, v38, v{TT}')
        a(f'v_lshlrev_b32 v{PV+2}, 16, v{TT+1}')
        a(f'v_and_b32 v{PV+3}, v38, v{TT+1}')
        for j in range(3):
            r = VV + (j*2+hf)*2
            t = TT + 4 + j*4
            a(f'v_lshlrev_b32 v{t}, 16, v{r}')
            a(f'v_and_b32 v{t+1}, v38, v{r}')
            a(f'v_lshlrev_b32 v{t+2}, 16, v{r+1}')
            a(f'v_and_b32 v{t+3}, v38, v{r+1}')
            a(f'v_pk_mul_f32 v[{t}:{t+1}], v[{t}:{t+1}], v[{PV}:{PV+1}]')
            a(f'v_pk_mul_f32 v[{t+2}:{t+3}], v[{t+2}:{t+3}], v[{PV+2}:{PV+3}]')
            a(f'v_cvt_pk_bf16_f32 v{O1+j}, v{t}, v{t+1}')
            a(f'v_cvt_pk_bf16_f32 v{O2+j}, v{t+2}, v{t+3}')
        a(f'ds_write_b128 v{28+2*hf}, v[{O1}:{O1+3}]')
        a(f'ds_write_b128 v{29+2*hf}, v[{O2}:{O2+3}]')
        a(f'ds_write_b64 v32, v[{OB}:{OB+1}] offset:{4096+32*hf}')
        if hf == 0: a('s_nop 1')
    R0 = 64
    a('v_xor_b32 v33, v4, v3              ; p ^ (L>>4)')
    a('v_lshlrev_b32 v33, 4, v33')
    a('v_lshl_add_u32 v33, v3, 8, v33')
    a('v_add_u32 v33, s25, v33')
    for i in range(1, 4):
        a(f'v_xor_b32 v{33+i}, {64*i}, v33')
    a('v_lshlrev_b32 v39, 4, v2           ; L*16')
    a('v_add_u32 v37, s25, v39')
    a('s_waitcnt lgkmcnt(0)')
    for i in range(4):
        a(f'ds_read_b128 v[{R0+4*i}:{R0+4*i+3}], v{33+i} offset:{1024*i}')
    a(f'ds_read_b128 v[{R0+16}:{R0+19}], v37 offset:4096')
    a('s_lshl_b32 s26, s48, 8')
    a('s_lshl_b32 s27, s48, 6')
    a('v_add_u32 v38, s26, v39')
    a('v_add_u32 v39, s27, v39')
    for i in range(4):
        a(f's_waitcnt lgkmcnt({4-i})')
        a(f'buffer_store_dwordx4 v[{R0+4*i}:{R0+4*i+3}], v38, s[40:43], 0 offen offset:{1024*i} {STT}')
    a('s_waitcnt lgkmcnt(0)')
    a(f'buffer_store_dwordx4 v[{R0+16}:{R0+19}], v39, s[44:47], 0 offen {STT}')
    a.stamp(6)
    a.stamp_flush(0, 20, 7, 3)
    a('s_endpgm')

def bf16_round_pair(a, dst, x, y):
    a(f'v_cvt_pk_bf16_f32 v{dst}, v{x}, v{y}')

def gen_bin(a):
    a.lab('K1_BIN')
    a.stamp(0)
    srd(a, 28, 8, E*4)
    srd(a, 32, 10, E*4)
    srd(a, 36, 6, N*6)
    srd(a, 40, 20, NBIN*NG*4, off=WS_HDR)
    srd(a, 44, 20, NBIN*65536, off=WS_TAILS)
    a(f's_mul_i32 s24, s2, {CHUNK}           ; e0')
    a(f's_sub_u32 s25, {E}, s24')
    a(f's_min_u32 s25, s25, {CHUNK}          ; lim')
    a('v_lshlrev_b32 v1, 2, v0')
    a('v_mov_b32 v3, 0')
    a('ds_write_b32 v1, v3')
    SRC = 10; DST = 15; PS = 20; PD = 30; REC = 40; GG = 60; RK = 65
    a('v_add_u32 v4, s24, v0')
    a('v_lshlrev_b32 v4, 2, v4              ; e*4 (round 0)')
    for j in range(5):
        a(f's_mov_b32 s26, {j*3072}')
        a(f'buffer_load_dword v{SRC+j}, v4, s[28:31], s26 offen {LDN}')
        a(f'buffer_load_dword v{DST+j}, v4, s[32:35], s26 offen {LDN}')
    for j in range(5):
        a(f'v_add_u32 v5, {j*768}, v0')
        a(f'v_cmp_gt_u32 s[{50+2*j}:{51+2*j}], s25, v5')
    a('v_mov_b32 v6, 0xffff0000')
    a('s_waitcnt lgkmcnt(0)')
    a('s_barrier')
    a.stamp(1)
    for j in range(5):
        a('s_waitcnt vmcnt(8)')
        for (idx, dstp) in ((SRC+j, PS+2*j), (DST+j, PD+2*j)):
            a(f'v_mul_u32_u24 v5, 6, v{idx}')
            a('v_and_b32 v5, -4, v5')
            a(f'buffer_load_dwordx2 v[{dstp}:{dstp+1}], v5, s[36:39], 0 offen')
    a.stamp(2)
    a('s_mov_b32 s26, 5033')
    a('s_mov_b32 s27, 853362')
    a('s_mov_b32 s60, 65000')
    a('v_mov_b32 v7, 1')
    for j in range(5):
        a(f's_waitcnt vmcnt({8-2*j})')
        ps = PS+2*j; pd = PD+2*j; rec = REC+4*j
        t = 70
        a(f'v_and_b32 v{t}, 1, v{SRC+j}')
        a(f'v_lshlrev_b32 v{t}, 4, v{t}')
        a(f'v_lshrrev_b64 v[{ps}:{ps+1}], v{t}, v[{ps}:{ps+1}]')
        a(f'v_and_b32 v{t+1}, 1, v{DST+j}')
        a(f'v_lshlrev_b32 v{t+1}, 4, v{t+1}')
        a(f'v_lshrrev_b64 v[{pd}:{pd+1}], v{t+1}, v[{pd}:{pd+1}]')
        a(f'v_lshlrev_b32 v{t}, 16, v{ps}')
        a(f'v_lshlrev_b32 v{t+1}, 16, v{pd}')
        a(f'v_sub_f32 v{t}, v{t}, v{t+1}          ; rx')
        a(f'v_and_b32 v{t+1}, v6, v{ps}')
        a(f'v_and_b32 v{t+2}, v6, v{pd}')
        a(f'v_sub_f32 v{t+1}, v{t+1}, v{t+2}      ; ry')
        a(f'v_lshlrev_b32 v{t+2}, 16, v{ps+1}')
        a(f'v_lshlrev_b32 v{t+3}, 16, v{pd+1}')
        a(f'v_sub_f32 v{t+2}, v{t+2}, v{t+3}      ; rz')
        a(f'v_cvt_pk_bf16_f32 v{t+3}, v{t}, v{t+1}')
        a(f'v_cvt_pk_bf16_f32 v{t+4}, v{t+2}, v{t+2}')
        a(f'v_lshlrev_b32 v{t}, 16, v{t+3}')
        a(f'v_and_b32 v{t+1}, v6, v{t+3}')
        a(f'v_lshlrev_b32 v{t+2}, 16, v{t+4}')
        a(f'v_mul_f32 v{t+3}, v{t}, v{t}')
        a(f'v_mul_f32 v{t+4}, v{t+1}, v{t+1}')
        a(f'v_mul_f32 v{t+5}, v{t+2}, v{t+2}')
        a(f'v_cvt_pk_bf16_f32 v{t+3}, v{t+3}, v{t+4}')
        a(f'v_cvt_pk_bf16_f32 v{t+5}, v{t+5}, v{t+5}')
        a(f'v_lshlrev_b32 v{t+4}, 16, v{t+3}')
        a(f'v_and_b32 v{t+3}, v6, v{t+3}')
        a(f'v_lshlrev_b32 v{t+5}, 16, v{t+5}')
        a(f'v_add_f32 v{t+3}, v{t+4}, v{t+3}')
        a(f'v_add_f32 v{t+3}, v{t+3}, v{t+5}')
        a(f'v_cvt_pk_bf16_f32 v{t+3}, v{t+3}, v{t+3}')
        a(f'v_and_b32 v{t+3}, v6, v{t+3}')
        a(f'v_add_f32 v{t+3}, 0x322bcc77, v{t+3}   ; +1e-8')
        a(f'v_cvt_pk_bf16_f32 v{t+3}, v{t+3}, v{t+3}')
        a(f'v_and_b32 v{t+3}, v6, v{t+3}')
        a(f'v_sqrt_f32 v{t+3}, v{t+3}')
        a(f'v_mul_u32_u24 v{GG+j}, s26, v{DST+j}')
        a(f'v_cvt_pk_bf16_f32 v{t+3}, v{t+3}, v{t+3}')
        a(f'v_and_b32 v{t+3}, v6, v{t+3}           ; d (f32 bits)')
        a(f'v_rcp_f32 v{t+4}, v{t+3}')
        a(f'v_lshrrev_b32 v{GG+j}, 16, v{GG+j}       ; g')
        a(f'v_mul_f32 v{t}, v{t}, v{t+4}')
        a(f'v_mul_f32 v{t+1}, v{t+1}, v{t+4}')
        a(f'v_mul_f32 v{t+2}, v{t+2}, v{t+4}')
        a(f'v_cvt_pk_bf16_f32 v{rec+1}, v{t}, v{t+1}   ; rx|ry')
        a(f'v_cvt_pk_bf16_f32 v{rec+2}, v{t+2}, v{t+2}')
        a(f'v_cmp_gt_u32 vcc, 0x{DTHR<<16:x}, v{t+3}')
        a(f's_and_b64 s[{50+2*j}:{51+2*j}], s[{50+2*j}:{51+2*j}], vcc')
        a(f'v_lshrrev_b32 v{rec+3}, 16, v{t+3}')
        a(f'v_subrev_u32 v{rec+3}, 0x{DBASE:x}, v{rec+3}')
        a(f'v_cmp_le_u32 vcc, {HOT0}, v{rec+3}')
        a(f'v_lshlrev_b32 v{rec+3}, 5, v{rec+3}')
        a(f'v_subrev_u32 v{t+4}, {HOT0*32-1024}, v{rec+3}')
        a(f'v_or_b32 v{rec+3}, 0x80000000, v{rec+3}')
        a(f'v_cndmask_b32 v{rec+3}, v{rec+3}, v{t+4}, vcc')
        a(f'v_mov_b32 v{t}, s60')
        a(f'v_mad_u32_u24 v{t}, v{GG+j}, s27, v{t}')
        a(f'v_lshrrev_b32 v{t}, 16, v{t}')
        a(f'v_sub_u32 v{t}, v{DST+j}, v{t}          ; dloc')
        a(f'v_add_u32 v{t}, 16, v{t}')
        a(f'v_lshlrev_b32 v{t}, v{t}, v7            ; 1<<(16+dloc)')
        a(f'v_and_b32 v{rec+2}, 0xffff, v{rec+2}')
        a(f'v_or_b32 v{rec+2}, v{t}, v{rec+2}')
        a(f'v_lshlrev_b32 v{rec}, 4, v{SRC+j}')
        a(f'v_or_b32 v{rec}, 0x80000000, v{rec}')
        a(f'v_lshlrev_b32 v{t+1}, 2, v{GG+j}')
        a(f's_mov_b64 exec, s[{50+2*j}:{51+2*j}]')
        a(f'ds_add_rtn_u32 v{RK+j}, v{t+1}, v7')
        a('s_mov_b64 exec, -1')
    a.stamp(3)
    a('s_waitcnt lgkmcnt(0)')
    a('s_barrier')
    a.stamp(4)
    a('ds_read_b32 v3, v1                    ; cnt')
    a('s_waitcnt lgkmcnt(0)')
    a('v_mov_b32 v4, v3')
    a('s_nop 1')
    for sh in (1, 2, 4, 8):
        a(f'v_add_u32_dpp v4, v4, v4 row_shr:{sh} row_mask:0xf bank_mask:0xf')
        a('s_nop 1')
    a('v_add_u32_dpp v4, v4, v4 row_bcast:15 row_mask:0xa bank_mask:0xf')
    a('s_nop 1')
    a('v_add_u32_dpp v4, v4, v4 row_bcast:31 row_mask:0xc bank_mask:0xf')
    a('s_nop 1')
    a('v_readlane_b32 s26, v4, 63')
    a('s_lshl_b32 s27, s3, 2')
    a('v_mov_b32 v5, s27')
    a('v_mov_b32 v8, s26')
    a('ds_write_b32 v5, v8 offset:4096')
    a('s_waitcnt lgkmcnt(0)')
    a('s_barrier')
    a('v_mov_b32 v5, 0')
    a('ds_read_b128 v[70:73], v5 offset:4096')
    a('ds_read_b128 v[74:77], v5 offset:4112')
    a('ds_read_b128 v[78:81], v5 offset:4128')
    a('v_sub_u32 v4, v4, v3')
    a('s_waitcnt lgkmcnt(0)')
    a('v_mov_b32 v9, 0')
    for k in range(12):
        a(f'v_add_u32 v9, v9, v{70+k}')
    for k in range(11):
        a(f's_cmp_gt_u32 s3, {k}')
        a('s_cselect_b32 s26, -1, 0')
        a(f'v_and_b32 v{70+k}, s26, v{70+k}')
        a(f'v_add_u32 v4, v4, v{70+k}')
    a('ds_write_b32 v1, v4 offset:8192         ; start[bin]')
    a('v_lshl_or_b32 v3, v3, 16, v4')
    a(f's_mul_i32 s26, s2, {NG*4}')
    a(f'buffer_store_dword v3, v1, s[40:43], s26 offen {STO}')
    a('s_waitcnt lgkmcnt(0)')
    a('s_barrier')
    a.stamp(5)
    RST = 12288
    for j in range(5):
        a(f'v_lshlrev_b32 v{GG+j}, 2, v{GG+j}')
        a(f'ds_read_b32 v{GG+j}, v{GG+j} offset:8192')
    for j in range(5):
        a(f's_waitcnt lgkmcnt({4-j})')
        a(f'v_add_u32 v{GG+j}, v{GG+j}, v{RK+j}')
        a(f'v_lshlrev_b32 v{GG+j}, 4, v{GG+j}')
    for j in range(5):
        a(f's_mov_b64 exec, s[{50+2*j}:{51+2*j}]')
        a(f'ds_write_b128 v{GG+j}, v[{REC+4*j}:{REC+4*j+3}] offset:{RST}')
    a('s_mov_b64 exec, -1')
    a('s_waitcnt lgkmcnt(0)')
    a('s_barrier')
    a('v_lshlrev_b32 v5, 4, v0                   ; tid*16')
    for j in range(5):
        a(f'ds_read_b128 v[{REC+4*j}:{REC+4*j+3}], v5 offset:{RST+j*12288}')
    a('s_lshl_b32 s26, s2, 16                    ; w*65536')
    for j in range(5):
        a(f'v_add_u32 v6, {j*768}, v0')
        a(f'v_cmp_gt_u32 vcc, v9, v6')
        a(f'v_add_u32 v7, {j*12288}, v5')
        a(f's_waitcnt lgkmcnt({4-j})')
        a('s_mov_b64 exec, vcc')
        a(f'buffer_store_dwordx4 v[{REC+4*j}:{REC+4*j+3}], v7, s[44:47], s26 offen {STO}')
        a('s_mov_b64 exec, -1')
    a.stamp(6)
    a.stamp_flush(0, 20, 7, 3)
    a('s_endpgm')

def gen_tab(a):
    a.lab('K1_TAB')
    a.stamp(0)
    srd(a, 28, 20, 65536, off=WS_ATAB)
    srd(a, 24, 18, 16*768)
    srd(a, 32, 20, 12288, off=WS_WB)
    a('v_lshrrev_b32 v10, 4, v2               ; kq')
    a('v_and_b32 v11, 15, v2                  ; c')
    a('v_mul_u32_u24 v10, 3072, v10           ; 4kq*768')
    a('v_lshl_add_u32 v10, v11, 2, v10')
    a('s_and_b32 s52, s3, 3')
    a('s_lshr_b32 s53, s3, 2')
    a('s_lshl_b32 s54, s52, 6')
    a('s_lshl_b32 s55, s53, 8')
    a('s_add_u32 s54, s54, s55')
    for i in range(4):
        a(f'buffer_load_dword v{12+i}, v10, s[24:27], s54 offen offset:{i*768}')
    a('s_mov_b32 s62, 0x05040100')
    a('s_mov_b32 s63, 0x07060302')
    a('s_mul_i32 s54, s52, 3')
    a('s_add_u32 s54, s54, s53')
    a('s_lshl_b32 s54, s54, 10                ; (slice*3+seg)*1024')
    a('v_lshlrev_b32 v11, 4, v2')
    a('s_waitcnt vmcnt(0)')
    a('v_perm_b32 v16, v13, v12, s62')
    a('v_perm_b32 v17, v15, v14, s62')
    a('v_perm_b32 v18, v13, v12, s63')
    a('v_perm_b32 v19, v15, v14, s63')
    a(f'buffer_store_dwordx4 v[16:19], v11, s[32:35], s54 offen {STO}')
    a('s_load_dwordx8 s[36:43], s[12:13], 0')
    a('v_mov_b32 v6, 0xffff0000')
    a('s_waitcnt lgkmcnt(0)')
    for k in range(8):
        a(f's_lshl_b32 s{44+2*k}, s{36+k}, 16')
        a(f's_and_b32 s{45+2*k}, s{36+k}, 0xffff0000')
    a('s_mov_b32 s60, 0x3e22f983')
    a('s_mov_b32 s61, 0x31dc9c88')
    a('s_mov_b32 s62, 0')
    a.lab('K1_TAB_LOOP')
    a('v_add_u32 v3, s62, v0             ; entry')
    a(f'v_add_u32 v4, 0x{DBASE:x}, v3')
    a('v_lshlrev_b32 v4, 16, v4           ; d')
    a('v_mul_f32 v5, 0x40490fdb, v4       ; pi*d')
    a('v_cvt_pk_bf16_f32 v5, v5, v5')
    a('v_and_b32 v5, v6, v5')
    a('v_mul_f32 v5, 0x3e4ccccd, v5       ; /5')
    a('v_cvt_pk_bf16_f32 v5, v5, v5')
    a('v_and_b32 v5, v6, v5')
    a('v_mul_f32 v5, s60, v5')
    a('v_cos_f32 v5, v5')
    a('v_rcp_f32 v7, v4                   ; 1/d')
    a('v_cvt_pk_bf16_f32 v5, v5, v5')
    a('v_and_b32 v5, v6, v5')
    a('v_add_f32 v5, 1.0, v5')
    a('v_cvt_pk_bf16_f32 v5, v5, v5')
    a('v_and_b32 v5, v6, v5')
    a('v_mul_f32 v5, 0.5, v5              ; fcut')
    a('v_cmp_gt_u32 vcc, 0x40a00000, v4')
    a('v_cmp_ne_u32 s[64:65], 0, v3')
    a('s_and_b64 vcc, vcc, s[64:65]')
    a('s_nop 1')
    a('v_cndmask_b32 v5, 0, v5, vcc')
    for k in range(16):
        t = 10 + k
        a(f'v_mul_f32 v{t}, s{44+k}, v4')
    for k in range(0, 16, 2):
        t = 10 + k
        a(f'v_cvt_pk_bf16_f32 v{30+k//2}, v{t}, v{t+1}')
    for k in range(0, 16, 2):
        t = 10 + k
        a(f'v_lshlrev_b32 v{t}, 16, v{30+k//2}')
        a(f'v_and_b32 v{t+1}, v6, v{30+k//2}')
    for k in range(16):
        t = 10 + k
        a(f'v_mul_f32 v40, s60, v{t}')
        a(f'v_fma_f32 v41, v{t}, s60, -v40')
        a(f'v_fma_f32 v41, v{t}, s61, v41')
        a(f'v_fract_f32 v40, v40')
        a(f'v_add_f32 v40, v40, v41')
        a(f'v_sin_f32 v{t}, v40')
    a('s_nop 0')
    for k in range(0, 16, 2):
        t = 10 + k
        a(f'v_cvt_pk_bf16_f32 v40, v{t}, v{t+1}')
        a(f'v_lshlrev_b32 v{t}, 16, v40')
        a(f'v_and_b32 v{t+1}, v6, v40')
        a(f'v_mul_f32 v{t}, v{t}, v7')
        a(f'v_mul_f32 v{t+1}, v{t+1}, v7')
        a(f'v_cvt_pk_bf16_f32 v40, v{t}, v{t+1}')
        a(f'v_lshlrev_b32 v{t}, 16, v40')
        a(f'v_and_b32 v{t+1}, v6, v40')
        a(f'v_mul_f32 v{t}, v{t}, v5')
        a(f'v_mul_f32 v{t+1}, v{t+1}, v5')
        a(f'v_cvt_pk_bf16_f32 v{30+k//2}, v{t}, v{t+1}')
    a('v_lshlrev_b32 v8, 5, v3')
    a(f'buffer_store_dwordx4 v[30:33], v8, s[28:31], 0 offen {STO}')
    a(f'buffer_store_dwordx4 v[34:37], v8, s[28:31], 0 offen offset:16 {STO}')
    a('s_add_u32 s62, s62, 768')
    a('s_cmp_lt_u32 s62, 2048')
    a('s_nop 1')
    a('s_cbranch_scc1 K1_TAB_LOOP')
    for i in range(1,7): a.stamp(i)
    a.stamp_flush(0, 20, 7, 3)
    a('s_endpgm')

def gen_k1(a):
    a.raw('.p2align 8')
    a.raw('.type prep_kernel,@function')
    a.lab('prep_kernel')
    a('s_cmp_ge_u32 s2, 256')
    a('s_cbranch_scc1 K1_END')
    a('s_load_dwordx4 s[4:7], s[0:1], 0')
    a('s_load_dwordx4 s[8:11], s[0:1], 16')
    a('s_load_dwordx4 s[12:15], s[0:1], 32')
    a('s_load_dwordx4 s[16:19], s[0:1], 48')
    a('s_load_dwordx2 s[20:21], s[0:1], 80')
    a('v_lshrrev_b32 v1, 6, v0')
    a('v_and_b32 v2, 63, v0')
    a('s_nop 0')
    a('v_readfirstlane_b32 s3, v1')
    a('s_waitcnt lgkmcnt(0)')
    a(f's_cmp_lt_u32 s2, {NBIN}')
    a('s_cbranch_scc1 K1_BIN')
    a(f's_cmp_eq_u32 s2, {NBIN}')
    a('s_cbranch_scc1 K1_TAB')
    gen_mlp(a)
    gen_bin(a)
    gen_tab(a)
    a.lab('K1_END')
    a('s_endpgm')
```

```python
from asmlib import *
from k1 import *

KNAME = 'gather_scatter__molecular_angular_painn__graph_kernel'
OUTST = os.environ.get('OUTST', 'sc1')
RESLD = os.environ.get('RESLD', 'nt')
WBASE = 18432
WREG = 5120
RES0 = WBASE + 12*WREG
O_SRC = 0; O_AOF = 1280; O_OH = 2560; O_RX = 3200; O_RY = 3840; O_RZ = 4480
K2_LDS = RES0 + 12*4096

V_C = 0; V_SHL = 1; V_KQ8 = 2; V_A1 = 3; V_A2 = 4; V_A3 = 5
TMP = 6
WB = 10; ACC = 22; GA = 54; GB = 86; WF = 94; MSG = 118; SM = 138; SRC = 154; AOP = 162
T4 = 166; T5 = 167
NV = 168

def wb(seg, t): return WB + (seg*2+t)*2
def acc(comp, t): return ACC + (comp*2+t)*4
def gA(i, c): return GA + 4*i + c
def wf(seg, R, r=0): return WF + seg*8 + R*4 + r
def msg(comp, j=0): return MSG + comp*4 + j

def scan64(a, P):
    a('s_nop 1')
    for sh in (1, 2, 4, 8):
        a(f'v_add_u32_dpp v{P}, v{P}, v{P} row_shr:{sh} row_mask:0xf bank_mask:0xf')
        a('s_nop 1')
    a(f'v_add_u32_dpp v{P}, v{P}, v{P} row_bcast:15 row_mask:0xa bank_mask:0xf')
    a('s_nop 1')
    a(f'v_add_u32_dpp v{P}, v{P}, v{P} row_bcast:31 row_mask:0xc bank_mask:0xf')
    a('s_nop 1')

def gen_k2(a):
    LANE = T4
    a.raw('.p2align 8')
    a.raw(f'.type {KNAME},@function')
    a.lab(KNAME)
    a('s_cmp_ge_u32 s2, 256')
    a('s_cbranch_scc1 K2_END')
    a('s_load_dwordx2 s[4:5], s[0:1], 0       ; sv')
    a('s_load_dwordx2 s[8:9], s[0:1], 64      ; out')
    a('s_load_dwordx2 s[10:11], s[0:1], 80    ; ws')
    a(f'v_lshrrev_b32 v{T5}, 6, v0')
    a(f'v_and_b32 v{LANE}, 63, v0')
    a('s_and_b32 s12, s2, 7                   ; x')
    a(f'v_readfirstlane_b32 s3, v{T5}             ; wave')
    a('s_lshr_b32 s13, s12, 1                 ; slice')
    a('s_lshr_b32 s14, s2, 3')
    a('s_lshl_b32 s14, s14, 1')
    a('s_and_b32 s12, s12, 1')
    a('s_add_u32 s14, s14, s12                ; rank (0..63)')
    a('s_mul_i32 s14, s14, 12')
    a('s_add_u32 s14, s14, s3                 ; g')
    a('s_mul_i32 s15, s14, 853362')
    a('s_add_u32 s16, s15, 65000')
    a('s_lshr_b32 s15, s16, 16                ; start')
    a('s_add_u32 s16, s16, 853362')
    a('s_lshr_b32 s16, s16, 16')
    a(f's_min_u32 s16, s16, {N}')
    a('s_sub_u32 s16, s16, s15                ; size')
    a.stamp(0)
    if Asm.STAMPS: a('s_memtime s[92:93]')
    a(f'v_mul_u32_u24 v{TMP}, {NG*4}, v{LANE}        ; lane*3072')
    a('s_lshl_b32 s17, s14, 2')
    a('s_waitcnt lgkmcnt(0)')
    srd(a, 20, 10, NBIN*NG*4, off=WS_HDR)
    a(f'buffer_load_dword v{TMP+1}, v{TMP}, s[20:23], s17 offen')
    srd(a, 24, 10, NBIN*65536, off=WS_TAILS)
    srd(a, 28, 10, 65536, off=WS_ATAB)
    srd(a, 40, 10, 12288, off=WS_WB)
    a(f'v_lshlrev_b32 v{TMP+2}, 4, v{LANE}')
    a('s_mul_i32 s17, s13, 3072')
    for seg in range(3):
        a(f'buffer_load_dwordx4 v[{wb(seg,0)}:{wb(seg,0)+3}], v{TMP+2}, s[40:43], s17 offen offset:{seg*1024}')
    a('s_lshl_b32 s17, s3, 10')
    a('s_add_u32 s18, s17, 1024')
    a('s_mov_b32 m0, s18')
    a(f's_add_u32 s17, s17, {HOT0*32}')
    a(f'buffer_load_dwordx4 v{TMP+2}, s[28:31], s17 offen lds')
    a(f's_cmp_ge_u32 s3, {NHOT_KB-12}')
    a('s_cbranch_scc1 K2_DMA_DONE')
    a('s_add_u32 s18, s18, 12288')
    a('s_mov_b32 m0, s18')
    a('s_add_u32 s17, s17, 12288')
    a(f'buffer_load_dwordx4 v{TMP+2}, s[28:31], s17 offen lds')
    a.lab('K2_DMA_DONE')
    srd(a, 32, 4, 10240000)
    srd(a, 36, 8, 10240000)
    a('s_mul_i32 s17, s13, 2560000')
    a('s_add_u32 s44, s10, s17')
    a('s_addc_u32 s45, s11, 0')
    a('s_or_b32 s45, s45, 0x100000            ; stride 16')
    a('s_mov_b32 s46, 160000')
    a('s_mov_b32 s47, 0x00020000')
    a('s_mul_i32 s17, s13, 640000')
    a(f's_add_u32 s17, s17, {WS_TB}')
    a('s_add_u32 s48, s10, s17')
    a('s_addc_u32 s49, s11, 0')
    a('s_or_b32 s49, s49, 0x40000             ; stride 4')
    a('s_mov_b32 s50, 160000')
    a('s_mov_b32 s51, 0x00020000')
    a(f'v_and_b32 v{V_C}, 15, v{LANE}')
    a(f'v_lshrrev_b32 v{T5}, 4, v{LANE}           ; q')
    a(f'v_sub_u32 v{V_SHL}, 15, v{V_C}')
    a(f'v_lshl_or_b32 v{V_SHL}, v{V_SHL}, 16, v{V_SHL}')
    a(f'v_lshlrev_b32 v{V_KQ8}, 3, v{T5}')
    a(f'v_lshlrev_b32 v{TMP+2}, 2, v{LANE}')
    a(f'v_mov_b32 v{TMP+3}, 0')
    a(f'ds_write_b32 v{TMP+2}, v{TMP+3}')
    for r in range(ACC, ACC+32): a(f'v_mov_b32 v{r}, 0')
    for r in range(MSG, MSG+20): a(f'v_mov_b32 v{r}, 0')
    for r in range(SM, SM+16): a(f'v_mov_b32 v{r}, 0')
    a(f's_mul_i32 s18, s3, {WREG}')
    a(f's_add_u32 s18, s18, {WBASE}')
    a('s_mov_b32 s52, 0                          ; base')
    a('s_mov_b32 s60, 0')
    CNT = SRC; ST = SRC+1; P = SRC+2; LOCB = SRC+3; KK = SRC+4; POS = SRC+5; KHI = SRC+6
    H = TMP+1
    def header():
        a(f'v_lshrrev_b32 v{CNT}, 16, v{H}')
        a(f'v_and_b32 v{ST}, 0xffff, v{H}')
        a(f'v_mov_b32 v{P}, v{CNT}')
        scan64(a, P)
    a('s_waitcnt vmcnt(4)')
    a.stamp(1)
    header()
    a(f'v_readlane_b32 s19, v{P}, 63             ; M')
    a(f'v_sub_u32 v{P}, v{P}, v{CNT}')
    a(f'v_lshl_add_u32 v{LOCB}, v{LANE}, 12, v{ST}   ; w*4096 + start')
    a.stamp(2)
    a.lab('K2_CHUNK')
    a(f'v_sub_u32 v{KK}, s52, v{P}')
    a(f'v_max_i32 v{KK}, 0, v{KK}')
    a.lab('K2_FILL')
    a(f'v_add_u32 v{POS}, v{P}, v{KK}')
    a(f'v_subrev_u32 v{POS}, s52, v{POS}')
    a(f'v_cmp_lt_u32 s[56:57], v{KK}, v{CNT}')
    a(f'v_cmp_gt_u32 vcc, 256, v{POS}')
    a('s_and_b64 vcc, vcc, s[56:57]')
    a('s_cbranch_vccz K2_FILL_DONE')
    a(f'v_lshlrev_b32 v{POS}, 2, v{POS}')
    a(f'v_add_u32 v{POS}, s18, v{POS}')
    a(f'v_add_u32 v{KHI}, v{LOCB}, v{KK}')
    a('s_mov_b64 exec, vcc')
    a(f'ds_write_b32 v{POS}, v{KHI}')
    a('s_mov_b64 exec, -1')
    a(f'v_add_u32 v{KK}, 1, v{KK}')
    a('s_branch K2_FILL')
    a.lab('K2_FILL_DONE')
    a.stamp(3)
    a('s_sub_u32 s55, s19, s52')
    a('s_min_u32 s55, s55, 256                   ; n_c')
    a('s_add_u32 s58, s55, 31')
    a('s_lshr_b32 s58, s58, 5                    ; ntiles')
    a('s_lshl_b32 s59, s58, 5')
    a('s_add_u32 s59, s59, 32                    ; npad')
    RC = GA; LA = GB
    a(f'v_lshlrev_b32 v{TMP}, 2, v{LANE}')
    a(f'v_add_u32 v{TMP}, s18, v{TMP}')
    for j in range(5):
        a(f'ds_read_b32 v{LA+j}, v{TMP} offset:{256*j}')
    a(f'v_mov_b32 v{TMP+2}, 0x80000000')
    for j in range(5):
        if j >= 1:
            a(f's_cmp_le_u32 s59, {64*j}')
            a('s_cbranch_scc1 K2_REC_ISSUED')
        a(f'v_add_u32 v{TMP+1}, {64*j}, v{LANE}')
        a(f'v_cmp_gt_u32 vcc, s55, v{TMP+1}')
        a(f's_waitcnt lgkmcnt({4-j})')
        a(f'v_lshlrev_b32 v{LA+j}, 4, v{LA+j}')
        a(f'v_cndmask_b32 v{LA+j}, v{TMP+2}, v{LA+j}, vcc')
        a(f'buffer_load_dwordx4 v[{RC+4*j}:{RC+4*j+3}], v{LA+j}, s[24:27], 0 offen')
    a.lab('K2_REC_ISSUED')
    a(f'v_lshlrev_b32 v{TMP+1}, 1, v{LANE}')
    a(f'v_add_u32 v{TMP+1}, s18, v{TMP+1}')
    a('s_waitcnt vmcnt(0) lgkmcnt(0)')
    a.stamp(4)
    for j in range(5):
        if j >= 1:
            a(f's_cmp_le_u32 s59, {64*j}')
            a('s_cbranch_scc1 K2_SOA_DONE')
        r = RC+4*j
        a(f'v_xor_b32 v{r}, v{TMP+2}, v{r}')
        a(f'ds_write_b32 v{TMP}, v{r} offset:{O_SRC+256*j}')
        a(f'ds_write_b32 v{TMP}, v{r+3} offset:{O_AOF+256*j}')
        a(f'ds_write_b16 v{TMP+1}, v{r+1} offset:{O_RX+128*j}')
        a(f'ds_write_b16_d16_hi v{TMP+1}, v{r+1} offset:{O_RY+128*j}')
        a(f'ds_write_b16 v{TMP+1}, v{r+2} offset:{O_RZ+128*j}')
        a(f'ds_write_b16_d16_hi v{TMP+1}, v{r+2} offset:{O_OH+128*j}')
    a.lab('K2_SOA_DONE')
    a(f'v_lshrrev_b32 v{TMP}, 4, v{LANE}          ; q')
    a(f'v_lshlrev_b32 v{V_A1}, 5, v{TMP}            ; q*8*4')
    a(f'v_add_u32 v{V_A1}, s18, v{V_A1}')
    a(f'v_lshlrev_b32 v{V_A2}, 4, v{TMP}            ; q*8*2')
    a(f'v_add_u32 v{V_A2}, s18, v{V_A2}')
    a(f'v_lshrrev_b32 v{TMP}, 2, v{V_C}             ; rho>>2')
    a(f'v_and_b32 v{TMP+1}, 3, v{V_C}')
    a(f'v_lshl_add_u32 v{TMP}, v{TMP}, 3, v{TMP+1}   ; 8*(rho>>2)+(rho&3)')
    a(f'v_lshlrev_b32 v{V_A3}, 2, v{TMP}')
    a(f'v_add_u32 v{V_A3}, s18, v{V_A3}')
    a('s_cmp_eq_u32 s58, 0')
    a('s_cbranch_scc1 K2_NOTILES')
    def issue_row(i):
        t = T4 + (i & 1)
        a(f'v_add_u32 v{t}, v{SRC+i}, v{V_C}')
        a(f'buffer_load_dwordx4 v[{gA(i,0)}:{gA(i,3)}], v{t}, s[44:47], 0 idxen')
        a(f'buffer_load_dword v{GB+i}, v{t}, s[48:51], 0 idxen')
    def read_src(off):
        a(f'ds_read_b128 v[{SRC}:{SRC+3}], v{V_A1} offset:{O_SRC+off}')
        a(f'ds_read_b128 v[{SRC+4}:{SRC+7}], v{V_A1} offset:{O_SRC+off+16}')
    rare_id = [0]
    def load_A(ao0, ao1):
        k = rare_id[0]; rare_id[0] += 1
        a(f'v_or_b32 v{TMP}, v{ao0}, v{ao1}')
        a(f'v_cmp_gt_i32 vcc, 0, v{TMP}')
        a(f's_cbranch_vccnz K2_RARE{k}')
        a(f'v_add_u32 v{ao0}, v{ao0}, v{V_KQ8}')
        a(f'v_add_u32 v{ao1}, v{ao1}, v{V_KQ8}')
        a(f'ds_read_b64 v[{AOP}:{AOP+1}], v{ao0}')
        a(f'ds_read_b64 v[{AOP+2}:{AOP+3}], v{ao1}')
        a.lab(f'K2_RARE_BACK{k}')
        return (k, ao0, ao1)
    rares = []
    read_src(0)
    a(f'ds_read_b32 v{TMP+2}, v{V_A3} offset:{O_AOF}')
    a(f'ds_read_b32 v{TMP+3}, v{V_A3} offset:{O_AOF+16}')
    a('s_waitcnt lgkmcnt(2)')
    for i in range(8): issue_row(i)
    a('s_cmp_lg_u32 s52, 0')
    a('s_cbranch_scc1 K2_NOBAR')
    a('s_barrier')
    a.lab('K2_NOBAR')
    a.stamp(5)
    a('s_waitcnt lgkmcnt(0)')
    rares.append(load_A(TMP+2, TMP+3))
    a('s_waitcnt lgkmcnt(0)')
    def wf1(t, R, seg):
        a(f'v_mfma_f32_16x16x16_bf16 v[{wf(seg,R)}:{wf(seg,R)+3}], v[{AOP+2*R}:{AOP+2*R+1}], v[{wb(seg,t)}:{wb(seg,t)+1}], 0')
    for seg in range(3): wf1(0, 0, seg)
    a.nop(4)
    if Asm.STAMPS:
        a('s_lshl_b32 s69, s3, 6')
        a(f's_add_u32 s69, s69, {K2_LDS}')
    a.lab('K2_TILE')
    if Asm.STAMPS:
        a('s_memrealtime s[90:91]')
        a('s_waitcnt lgkmcnt(0)')
        a(f'v_mov_b32 v{T4}, s90')
        a(f'v_mov_b32 v{T5}, s69')
        a(f'ds_write_b32 v{T5}, v{T4}')
        a('s_add_u32 s69, s69, 4')
    tmpi = [0]
    SEG = [1, 1, 1, 2, 0]
    def prod1(t, i, comp):
        R = i >> 2; r = i & 3
        seg = SEG[comp]
        s0 = gA(i, comp) if comp < 4 else GB+i
        s1 = gA(i+1, comp) if comp < 4 else GB+i+1
        u = TMP + 2*(tmpi[0] % 2); tmpi[0] += 1
        if t == 0:
            a(f'v_lshlrev_b32 v{u}, 16, v{s0}'); a(f'v_lshlrev_b32 v{u+1}, 16, v{s1}')
        else:
            a(f'v_and_b32 v{u}, 0xffff0000, v{s0}'); a(f'v_and_b32 v{u+1}, 0xffff0000, v{s1}')
        a(f'v_pk_mul_f32 v[{u}:{u+1}], v[{u}:{u+1}], v[{wf(seg,R,r)}:{wf(seg,R,r+1)}]')
        a(f'v_cvt_pk_bf16_f32 v{msg(comp,i//2)}, v{u}, v{u+1}')
    def seg1(t, ac, m, mc):
        a(f'v_mfma_f32_16x16x32_bf16 v[{acc(ac,t)}:{acc(ac,t)+3}], v[{SM+4*m}:{SM+4*m+3}], v[{msg(mc)}:{msg(mc)+3}], v[{acc(ac,t)}:{acc(ac,t)+3}]')
    SEGS = {0: [(1, 0, 0)], 1: [(2, 0, 1)], 2: [(3, 0, 2)], 3: [(1, 1, 3), (2, 2, 3), (3, 3, 3)], 4: [(0, 0, 4)]}
    def pair_with_segsum(t_prod, i, t_seg):
        order = [0, 1, 2, 4, 3]
        for comp in order:
            ms = SEGS[comp]
            if comp == 3:
                seg1(t_seg, *ms[0]); seg1(t_seg, *ms[1]); seg1(t_seg, *ms[2])
            else:
                seg1(t_seg, *ms[0])
            prod1(t_prod, i, comp)
    def pair_with_segsum2(t_prod, i, t_seg):
        seg1(t_seg, 1, 0, 0); seg1(t_seg, 1, 1, 3)
        prod1(t_prod, i, 0)
        seg1(t_seg, 2, 0, 1)
        prod1(t_prod, i, 1)
        seg1(t_seg, 3, 0, 2);
        prod1(t_prod, i, 2)
        seg1(t_seg, 0, 0, 4); seg1(t_seg, 2, 2, 3)
        prod1(t_prod, i, 4)
        seg1(t_seg, 3, 3, 3)
        prod1(t_prod, i, 3)
    a('s_waitcnt vmcnt(12)')
    pair_with_segsum2(0, 0, 1)
    a(f'ds_read_b128 v[{SM}:{SM+3}], v{V_A2} offset:{O_OH}')
    a(f'ds_read_b128 v[{SM+4}:{SM+7}], v{V_A2} offset:{O_RX}')
    a(f'ds_read_b128 v[{SM+8}:{SM+11}], v{V_A2} offset:{O_RY}')
    a(f'ds_read_b128 v[{SM+12}:{SM+15}], v{V_A2} offset:{O_RZ}')
    read_src(128)
    a('s_waitcnt vmcnt(8)')
    for comp in range(5):
        if comp < 3: wf1(0, 1, [1, 2, 0][comp])
        prod1(0, 2, comp)
    a('s_waitcnt vmcnt(4)')
    for comp in range(5):
        prod1(0, 4, comp)
        if comp in (0, 1, 2): wf1(1, 0, [1, 2, 0][comp])
    a('s_waitcnt lgkmcnt(2)')
    for j in range(4):
        a(f'v_pk_lshlrev_b16 v{SM+j}, v{V_SHL}, v{SM+j}')
    for j in range(4):
        a(f'v_pk_ashrrev_i16 v{SM+j}, 15, v{SM+j} op_sel_hi:[0,1]')
    for m in (1, 2, 3):
        for j in range(4):
            a(f'v_and_b32 v{SM+4*m+j}, v{SM+j}, v{SM+4*m+j}')
    for j in range(4):
        a(f'v_and_b32 v{SM+j}, 0x3f803f80, v{SM+j}')
    a('s_waitcnt vmcnt(0)')
    for comp in range(5):
        prod1(0, 6, comp)
    wf1(1, 1, 1)
    a('s_waitcnt lgkmcnt(0)')
    wf1(1, 1, 2)
    pair_with_segsum2(1, 0, 0)
    wf1(1, 1, 0)
    issue_row(0); issue_row(1)
    a(f'ds_read_b32 v{SRC}, v{V_A3} offset:{O_AOF+128}')
    a(f'ds_read_b32 v{SRC+1}, v{V_A3} offset:{O_AOF+128+16}')
    for comp in range(5): prod1(1, 2, comp)
    issue_row(2); issue_row(3)
    a('s_waitcnt lgkmcnt(0)')
    rares.append(load_A(SRC, SRC+1))
    for comp in range(5): prod1(1, 4, comp)
    issue_row(4); issue_row(5)
    a('s_waitcnt lgkmcnt(0)')
    for comp in range(5):
        if comp < 3: wf1(0, 0, [1, 2, 0][comp])
        prod1(1, 6, comp)
    issue_row(6); issue_row(7)
    a(f'v_add_u32 v{V_A1}, 128, v{V_A1}')
    a(f'v_add_u32 v{V_A2}, 64, v{V_A2}')
    a(f'v_add_u32 v{V_A3}, 128, v{V_A3}')
    def res_dma(tag):
        a('s_cmp_lg_u32 s60, 0')
        a(f's_cbranch_scc1 K2_RESDONE{tag}')
        a('s_mov_b32 s60, 1')
        a(f'v_mbcnt_lo_u32_b32 v{T4}, -1, 0')
        a(f'v_mbcnt_hi_u32_b32 v{T4}, -1, v{T4}')
        a(f'v_lshrrev_b32 v{T5}, 4, v{T4}')
        a(f'v_lshlrev_b32 v{T5}, 10, v{T5}')
        a(f'v_bfe_u32 v{TMP}, v{T4}, 2, 2')
        a(f'v_lshl_add_u32 v{T5}, v{TMP}, 8, v{T5}')
        a(f'v_and_b32 v{T4}, 3, v{T4}')
        a(f'v_lshl_add_u32 v{T5}, v{T4}, 4, v{T5}')
        a('s_lshl_b32 s61, s15, 10')
        a('s_lshl_b32 s62, s13, 6')
        a('s_add_u32 s61, s61, s62')
        a('s_lshl_b32 s62, s3, 12')
        a(f's_add_u32 s62, s62, {RES0}')
        for j in range(4):
            a('s_mov_b32 m0, s62')
            a('s_add_u32 s62, s62, 1024')
            a(f'buffer_load_dwordx4 v{T5}, s[32:35], s61 offen {RESLD} lds')
            a('s_add_u32 s61, s61, 4096')
        a.lab(f'K2_RESDONE{tag}')
    res_dma('A')
    a('s_sub_u32 s58, s58, 1')
    a('s_cmp_lg_u32 s58, 0')
    a('s_cbranch_scc1 K2_TILE')
    for (ac, m, mc) in [(0, 0, 4), (1, 0, 0), (2, 0, 1), (3, 0, 2), (1, 1, 3), (2, 2, 3), (3, 3, 3)]:
        seg1(1, ac, m, mc)
    a('s_waitcnt vmcnt(0) lgkmcnt(0)')
    a('s_branch K2_TILES_DONE')
    a.lab('K2_NOTILES')
    a('s_cmp_lg_u32 s52, 0')
    a('s_cbranch_scc1 K2_TILES_DONE')
    a('s_barrier')
    a.lab('K2_TILES_DONE')
    a.stamp(6)
    a('s_add_u32 s52, s52, 256')
    a('s_cmp_ge_u32 s52, s19')
    a('s_cbranch_scc1 K2_EPI')
    for r in range(SM, SM+16): a(f'v_mov_b32 v{r}, 0')
    a(f'v_mbcnt_lo_u32_b32 v{LANE}, -1, 0')
    a(f'v_mbcnt_hi_u32_b32 v{LANE}, -1, v{LANE}')
    a(f'v_mul_u32_u24 v{TMP}, {NG*4}, v{LANE}')
    a('s_lshl_b32 s17, s14, 2')
    a(f'buffer_load_dword v{TMP+1}, v{TMP}, s[20:23], s17 offen')
    a('s_waitcnt vmcnt(0)')
    header()
    a(f'v_sub_u32 v{P}, v{P}, v{CNT}')
    a(f'v_lshl_add_u32 v{LOCB}, v{LANE}, 12, v{ST}')
    a('s_branch K2_CHUNK')
    for (k, ao0, ao1) in rares:
        a.lab(f'K2_RARE{k}')
        a(f'v_max_i32 v{TMP}, 0, v{ao0}')
        a(f'v_max_i32 v{TMP+1}, 0, v{ao1}')
        a(f'v_add_u32 v{TMP}, v{TMP}, v{V_KQ8}')
        a(f'v_add_u32 v{TMP+1}, v{TMP+1}, v{V_KQ8}')
        a(f'ds_read_b64 v[{AOP}:{AOP+1}], v{TMP}')
        a(f'ds_read_b64 v[{AOP+2}:{AOP+3}], v{TMP+1}')
        a('s_waitcnt lgkmcnt(0)')
        for h, ao in ((0, ao0), (1, ao1)):
            a(f'v_cmp_gt_i32 vcc, 0, v{ao}')
            a(f'v_and_b32 v{TMP}, 0x7fffffff, v{ao}')
            a(f'v_add_u32 v{TMP}, v{TMP}, v{V_KQ8}')
            a('s_and_saveexec_b64 s[62:63], vcc')
            a(f's_cbranch_execz K2_RSK{k}_{h}')
            a(f'buffer_load_dwordx2 v[{AOP+2*h}:{AOP+2*h+1}], v{TMP}, s[28:31], 0 offen')
            a('s_waitcnt vmcnt(0)')
            a.lab(f'K2_RSK{k}_{h}')
            a('s_mov_b64 exec, s[62:63]')
        a(f's_branch K2_RARE_BACK{k}')
    a.lab('K2_EPI')
    res_dma('B')
    a('s_waitcnt vmcnt(0)')
    LN = T4
    a(f'v_mbcnt_lo_u32_b32 v{LN}, -1, 0')
    a(f'v_mbcnt_hi_u32_b32 v{LN}, -1, v{LN}')
    a('s_lshl_b32 s62, s3, 12')
    a(f's_add_u32 s62, s62, {RES0}')
    a(f'v_lshrrev_b32 v{T5}, 4, v{LN}')
    a(f'v_lshlrev_b32 v{T5}, 10, v{T5}')
    a(f'v_lshl_add_u32 v{T5}, v{V_C}, 2, v{T5}')
    a(f'v_add_u32 v{T5}, s62, v{T5}')
    for r in range(4):
        for comp in range(4):
            a(f'ds_read_b32 v{GA+r*4+comp}, v{T5} offset:{r*256+comp*64}')
    a('s_waitcnt lgkmcnt(0)')
    for r in range(4):
        for comp in range(4):
            x = GA+r*4+comp
            a(f'v_lshlrev_b32 v{TMP}, 16, v{x}')
            a(f'v_and_b32 v{TMP+1}, 0xffff0000, v{x}')
            a(f'v_add_f32 v{TMP}, v{TMP}, v{acc(comp,0)+r}')
            a(f'v_add_f32 v{TMP+1}, v{TMP+1}, v{acc(comp,1)+r}')
            a(f'v_cvt_pk_bf16_f32 v{x}, v{TMP}, v{TMP+1}')
            a(f'ds_write_b32 v{T5}, v{x} offset:{r*256+comp*64}')
    a(f'v_lshlrev_b32 v{TMP}, 4, v{LN}')
    a(f'v_add_u32 v{TMP}, s62, v{TMP}')
    for j in range(4):
        a(f'ds_read_b128 v[{MSG+4*j}:{MSG+4*j+3}], v{TMP} offset:{1024*j}')
    a(f'v_lshrrev_b32 v{T5}, 4, v{LN}')
    a(f'v_lshlrev_b32 v{TMP+1}, 10, v{T5}')
    a(f'v_bfe_u32 v{TMP+2}, v{LN}, 2, 2')
    a(f'v_lshl_add_u32 v{TMP+1}, v{TMP+2}, 8, v{TMP+1}')
    a(f'v_and_b32 v{TMP+2}, 3, v{LN}')
    a(f'v_lshl_add_u32 v{TMP+1}, v{TMP+2}, 4, v{TMP+1}')
    a('s_lshl_b32 s61, s15, 10')
    a('s_lshl_b32 s62, s13, 6')
    a('s_add_u32 s61, s61, s62')
    a(f'v_mov_b32 v{TMP+2}, 0x80000000')
    for j in range(4):
        a(f'v_add_u32 v{TMP+3}, {4*j}, v{T5}')
        a(f'v_cmp_gt_u32 vcc, s16, v{TMP+3}')
        a('s_nop 1')
        a(f'v_cndmask_b32 v{WF+j}, v{TMP+2}, v{TMP+1}, vcc')
    for j in range(4):
        a(f's_waitcnt lgkmcnt({3-j})')
        a(f'buffer_store_dwordx4 v[{MSG+4*j}:{MSG+4*j+3}], v{WF+j}, s[36:39], s61 offen {OUTST}')
        a('s_add_u32 s61, s61, 4096')
    a.stamp(7)
    if Asm.STAMPS:
        a('s_memtime s[94:95]')
        a('s_waitcnt lgkmcnt(0)')
        a('s_sub_u32 s84, s94, s92')
        a('s_lshl_b32 s68, s3, 6')
        a(f's_add_u32 s68, s68, {K2_LDS}')
        a(f'v_lshlrev_b32 v2, 2, v{LN}')
        a('v_add_u32 v3, s68, v2')
        a('ds_read_b32 v4, v3')
        a('s_add_u32 s64, s10, 0x1A00000')
        a('s_addc_u32 s65, s11, 0')
        a('s_mov_b32 s66, 0x100000')
        a('s_mov_b32 s67, 0x00020000')
        a('s_lshl_b32 s68, s2, 4')
        a('s_add_u32 s68, s68, s3')
        a('s_lshl_b32 s68, s68, 6')
        a('s_waitcnt lgkmcnt(0)')
        a('s_mov_b64 exec, 0xffff')
        a('buffer_store_dword v4, v2, s[64:67], s68 offen')
        a('s_mov_b64 exec, -1')
    a.stamp_flush(1, 10, 8, 3)
    a.lab('K2_END')
    a('s_endpgm')
```

```python
import sys, os
sys.path.insert(0, 'gen')
from asmlib import *
import k1, k2

def kd(name, vgpr, sgpr):
    return f'''.amdhsa_kernel {name}
  .amdhsa_next_free_vgpr {vgpr}
  .amdhsa_next_free_sgpr {sgpr}
  .amdhsa_accum_offset {(vgpr+3)//4*4}
  .amdhsa_group_segment_fixed_size 0
  .amdhsa_kernarg_size 88
  .amdhsa_user_sgpr_count 2
  .amdhsa_user_sgpr_kernarg_segment_ptr 1
  .amdhsa_system_sgpr_workgroup_id_x 1
  .amdhsa_float_denorm_mode_32 3
.end_amdhsa_kernel
'''

hdr = f'''; PaiNN message passing (gather/scatter) for gfx950 -- generated by hand-written generator scripts
; @launch kernel=prep_kernel grid=(256,1,1) block=(768,1,1) lds={k1.K1_LDS}
; @launch kernel={k2.KNAME} grid=(256,1,1) block=(768,1,1) lds={k2.K2_LDS + (1024 if os.environ.get('STAMPS') else 0)}
.amdgcn_target "amdgcn-amd-amdhsa--gfx950"
.text
.globl prep_kernel
.globl {k2.KNAME}
'''
import os
Asm.STAMPS = bool(os.environ.get('STAMPS'))
a1 = Asm(); k1.gen_k1(a1)
a2 = Asm(); k2.gen_k2(a2)
p1 = check(a1.L); p2 = check(a2.L)
txt = hdr + a1.text() + a2.text() + '.section .rodata,"a"\n.p2align 6\n' + kd('prep_kernel', 128, 96) + '.p2align 6\n' + kd(k2.KNAME, k2.NV, 96)
out = sys.argv[1] if len(sys.argv) > 1 else 'gather_scatter__molecular_angular_painn__graph.s'
open(out, 'w').write(txt)
print('written', out, len(txt), 'bytes; hazards:', len(p1), len(p2))
```

```python
import sys, os
sys.path.insert(0, 'gen')
from asmlib import *
import k1, k2

def kd(name, vgpr, sgpr):
    return f'''.amdhsa_kernel {name}
  .amdhsa_next_free_vgpr {vgpr}
  .amdhsa_next_free_sgpr {sgpr}
  .amdhsa_accum_offset {(vgpr+3)//4*4}
  .amdhsa_group_segment_fixed_size 0
  .amdhsa_kernarg_size 88
  .amdhsa_user_sgpr_count 2
  .amdhsa_user_sgpr_kernarg_segment_ptr 1
  .amdhsa_system_sgpr_workgroup_id_x 1
  .amdhsa_float_denorm_mode_32 3
.end_amdhsa_kernel
'''

hdr = f'''; PaiNN message passing (gather/scatter) for gfx950 -- generated by hand-written generator scripts
; @launch kernel=prep_kernel grid=(256,1,1) block=(768,1,1) lds={k1.K1_LDS}
; @launch kernel={k2.KNAME} grid=(256,1,1) block=(768,1,1) lds={k2.K2_LDS + (1024 if os.environ.get('STAMPS') else 0)}
.amdgcn_target "amdgcn-amd-amdhsa--gfx950"
.text
.globl prep_kernel
.globl {k2.KNAME}
'''
import os
Asm.STAMPS = bool(os.environ.get('STAMPS'))
seq = os.environ.get('SEQ','12')
lines = {'1': f'; @launch kernel=prep_kernel grid=(256,1,1) block=(768,1,1) lds={k1.K1_LDS}',
         '2': f'; @launch kernel={k2.KNAME} grid=(256,1,1) block=(768,1,1) lds={k2.K2_LDS + (1024 if os.environ.get("STAMPS") else 0)}',
         '0': '; @launch kernel=nop_kernel grid=(1,1,1) block=(64,1,1) lds=0'}
hl = hdr.split('\n')
hl = [l for l in hl if '@launch' not in l]
hl = hl[:3] + [lines[c] for c in seq] + hl[3:]
hdr = '\n'.join(hl)
a1 = Asm(); k1.gen_k1(a1)
a2 = Asm(); k2.gen_k2(a2)
p1 = check(a1.L); p2 = check(a2.L)
nopk = '.globl nop_kernel\n.p2align 8\n.type nop_kernel,@function\nnop_kernel:\n    s_endpgm\n' if '0' in seq else ''
txt = hdr + a1.text() + a2.text() + nopk + '.section .rodata,"a"\n.p2align 6\n' + ((kd('nop_kernel', 8, 16) + '.p2align 6\n') if '0' in seq else '') + kd('prep_kernel', 136, 96) + '.p2align 6\n' + kd(k2.KNAME, k2.NV, 96)
out = sys.argv[1] if len(sys.argv) > 1 else 'gather_scatter__molecular_angular_painn__graph.s'
open(out, 'w').write(txt)
print('written', out, len(txt), 'bytes; hazards:', len(p1), len(p2))
```

```python
from asmlib import *
import os
STT = os.environ.get('STT','sc1')
STO = os.environ.get('STO','sc1')
LDN = os.environ.get('LDN','')

N = 10000; E = 160000
NBIN = 46; CHUNK = 3480; NG = 768
WS_TA = 0; WS_TB = 10240000; WS_ATAB = 0xC80000; WS_WB = 0xC90000; WS_HDR = 0xCA0000; WS_TAILS = 0xD00000
HOT0 = 1472; NHOT_KB = 17
COMP = bool(os.environ.get('COMP'))
DBASE = 0x38C0; DTHR = 0x409D
K1_LDS = 155712
S_BASE = 131072; HS_OFF = 12288

def srd(a, s, base, nbytes, off=0, stride=0):
    if off:
        a(f's_add_u32 s{s}, s{base}, 0x{off:x}')
        a(f's_addc_u32 s{s+1}, s{base+1}, 0')
    else:
        a(f's_mov_b32 s{s}, s{base}')
        a(f's_mov_b32 s{s+1}, s{base+1}')
    if stride:
        a(f's_or_b32 s{s+1}, s{s+1}, 0x{stride<<16:x}')
    a(f's_mov_b32 s{s+2}, {nbytes}')
    a(f's_mov_b32 s{s+3}, 0x00020000')

def gen_mlp(a):
    a.lab('K1_MLP')
    a.stamp(0)
    a('s_sub_u32 s24, s2, 47')
    a('s_mul_i32 s24, s24, 48          ; node0')
    a('s_lshr_b32 s22, s3, 2           ; nt')
    a('s_and_b32 s23, s3, 3            ; sl')
    srd(a, 28, 4, 10240000)
    srd(a, 32, 14, 32768)
    srd(a, 36, 16, 98304)
    a('s_mul_i32 s25, s23, 2560000')
    a('s_add_u32 s40, s20, s25')
    a('s_addc_u32 s41, s21, 0')
    a('s_mov_b32 s42, 2560000')
    a('s_mov_b32 s43, 0x00020000')
    a('s_mul_i32 s25, s23, 640000')
    a(f's_add_u32 s25, s25, {WS_TB}')
    a('s_add_u32 s44, s20, s25')
    a('s_addc_u32 s45, s21, 0')
    a('s_mov_b32 s46, 640000')
    a('s_mov_b32 s47, 0x00020000')
    FLAG = 155648
    a('v_lshrrev_b32 v3, 4, v2          ; L>>4')
    a('v_and_b32 v4, 15, v2             ; L&15')
    a('v_mov_b32 v5, 0')
    a(f'v_mov_b32 v6, {FLAG}')
    a('ds_write_b32 v6, v5')
    a('s_and_b32 s26, s3, 1')
    a('s_lshl_b32 s26, s26, 2           ; 4*(wv&1)')
    a('v_add_u32 v6, s26, v3            ; kl7')
    a('v_lshrrev_b32 v7, 1, v4          ; p>>1')
    a('v_xor_b32 v7, v7, v6')
    a('v_and_b32 v8, 1, v4')
    a('v_lshl_or_b32 v7, v7, 1, v8      ; lchunk')
    a('v_lshlrev_b32 v7, 4, v7          ; *16')
    a('v_lshl_add_u32 v6, v3, 8, v7')
    a('v_mul_u32_u24 v8, 768, v3')
    a('v_add_u32 v7, v8, v7             ; vW2')
    a('s_waitcnt lgkmcnt(0)')
    a('s_barrier')
    a('s_cmp_ge_u32 s3, 8')
    a('s_cbranch_scc1 K1_LOADER')
    a('s_lshl_b32 s25, s3, 2')
    a('v_add_u32 v5, s25, v3')
    a('v_and_b32 v9, 15, v5')
    a('v_xor_b32 v9, v4, v9             ; lchunk')
    a('v_add_u32 v5, s24, v5            ; node')
    a('v_lshlrev_b32 v5, 10, v5')
    a('v_lshl_add_u32 v5, v9, 4, v5')
    a('s_lshl_b32 s25, s3, 10')
    a(f's_add_u32 s25, s25, {S_BASE}')
    a('s_mov_b32 m0, s25')
    a('s_cmp_ge_u32 s3, 4')
    a(f'buffer_load_dwordx4 v5, s[28:31], 0 offen {LDN} lds')
    a('s_cbranch_scc1 K1_S2SKIP')
    a('s_add_u32 s25, s25, 8192')
    a('s_mov_b32 m0, s25')
    a('v_add_u32 v5, 0x8000, v5')
    a(f'buffer_load_dwordx4 v5, s[28:31], 0 offen {LDN} lds')
    a.lab('K1_S2SKIP')
    for j in range(4):
        a(f's_add_u32 s25, s3, {8*j}')
        a('s_lshl_b32 s26, s25, 10')
        a('s_mov_b32 m0, s26')
        a('s_nop 0')
        a('buffer_load_dwordx4 v6, s[32:35], s26 offen lds')
    a('s_branch K1_ADDR')
    a.lab('K1_LOADER')
    a('s_sub_u32 s49, s3, 8')
    for m in range(1, 4):
        for j in range(8):
            a(f's_add_u32 s25, s49, {4*j}')
            a('s_lshl_b32 s26, s25, 10')
            a(f's_add_u32 s26, s26, {m*32768}')
            a('s_mov_b32 m0, s26')
            a('s_mul_i32 s27, s25, 3072')
            a(f's_add_u32 s27, s27, {(m-1)*256}')
            a('buffer_load_dwordx4 v7, s[36:39], s27 offen lds')
    a.lab('K1_ADDR')
    a('s_lshl_b32 s25, s22, 4')
    a('s_add_u32 s25, s25, s24           ; node0+16nt')
    a('s_mov_b32 s48, s25')
    a('v_add_u32 v8, s25, v4')
    a('v_lshlrev_b32 v8, 10, v8')
    a('v_lshl_add_u32 v8, v3, 3, v8')
    a('s_lshl_b32 s26, s23, 6')
    a('s_add_u32 s26, s26, 256')
    a('v_add_u32 v8, s26, v8')
    VV = 10
    def vloads():
        for j in range(3):
            for hf in range(2):
                r = VV + (j*2+hf)*2
                a(f'buffer_load_dwordx2 v[{r}:{r+1}], v8, s[28:31], 0 offen offset:{j*256+32*hf} {LDN}')
    a('v_lshrrev_b32 v22, 2, v4           ; r\'')
    a('v_lshl_add_u32 v22, v3, 2, v22     ; 4kq + r\'')
    a('v_and_b32 v23, 7, v22              ; kl7')
    a('v_lshlrev_b32 v22, 8, v22')
    a('v_lshl_add_u32 v22, v23, 5, v22')
    a('v_and_b32 v23, 3, v4')
    a('v_lshl_add_u32 v22, v23, 3, v22    ; aBase')
    a('s_lshl_b32 s25, s23, 6             ; 2*sl*32')
    a('v_xor_b32 v24, s25, v22')
    a('v_xor_b32 v25, 32, v24             ; aW[hf=1]')
    a('v_add_u32 v26, 0x10000, v24        ; aW2[0] (+65536)')
    a('v_add_u32 v27, 0x10000, v25        ; aW2[1]')
    a('v_lshrrev_b32 v23, 1, v3')
    a('v_xor_b32 v23, v23, v4')
    a('v_lshlrev_b32 v23, 4, v23')
    a('v_and_b32 v28, 1, v3')
    a('v_lshl_add_u32 v23, v28, 3, v23')
    a('v_lshl_add_u32 v23, v4, 8, v23')
    a(f'v_add_u32 v23, {S_BASE}, v23      ; bBase0')
    VB = 28
    for st in range(4):
        for rd in range(2):
            k = (4*st + 2*rd)*16
            r = VB + st*2 + rd
            if k == 0: a(f'v_mov_b32 v{r}, v23')
            else: a(f'v_xor_b32 v{r}, {k}, v23')
    a('v_mov_b32 v38, 0xffff0000')
    a('s_cmp_ge_u32 s3, 8')
    a('s_cbranch_scc1 K1_LOADER2')
    a('s_lshl_b32 s25, s3, 5')
    a('v_xor_b32 v36, s25, v22')
    a('v_xor_b32 v37, s25, v23')
    a.stamp(1)
    a('s_waitcnt vmcnt(0)')
    a(f'v_mov_b32 v39, {FLAG}')
    a('v_mov_b32 v9, 1')
    a('s_mov_b64 exec, 1')
    a('ds_add_u32 v39, v9')
    a('s_mov_b64 exec, -1')
    a.lab('K1_SPIN')
    a('ds_read_b32 v9, v39')
    a('s_waitcnt lgkmcnt(0)')
    a('v_readfirstlane_b32 s25, v9')
    a('s_cmp_lt_u32 s25, 8')
    a('s_cbranch_scc1 K1_SPIN')
    a.stamp(2)
    AF = 56
    BL = 72
    D1 = 40
    for st in range(4):
        for rd in range(2):
            r = AF + st*4 + rd*2
            a(f'ds_read_b64_tr_b16 v[{r}:{r+1}], v36 offset:{st*8192+rd*4096}')
    for nt in range(3):
        for st in range(4):
            for rd in range(2):
                r = BL + nt*16 + st*4 + rd*2
                a(f'ds_read_b64 v[{r}:{r+1}], v{VB+st*2+rd} offset:{nt*4096}')
    vloads()
    for r in range(D1, D1+12): a(f'v_mov_b32 v{r}, 0')
    a('s_waitcnt lgkmcnt(0)')
    for st in range(4):
        for nt in range(3):
            A_ = AF + st*4; B_ = BL + nt*16 + st*4; D_ = D1 + nt*4
            a(f'v_mfma_f32_16x16x32_bf16 v[{D_}:{D_+3}], v[{A_}:{A_+3}], v[{B_}:{B_+3}], v[{D_}:{D_+3}]')
    a.nop(8)
    a.stamp(3)
    T = 56
    for p in range(6):
        a(f'v_cvt_pk_bf16_f32 v{T+p}, v{D1+2*p}, v{D1+2*p+1}')
    for p in range(6):
        a(f'v_lshlrev_b32 v{D1+2*p}, 16, v{T+p}')
        a(f'v_and_b32 v{D1+2*p+1}, v38, v{T+p}')
    for i in range(12):
        a(f'v_mul_f32 v{T+i}, 0xbfb8aa3b, v{D1+i}     ; -log2e*h')
    for i in range(12):
        a(f'v_exp_f32 v{T+i}, v{T+i}')
    a('s_nop 0')
    for i in range(12):
        a(f'v_add_f32 v{T+i}, 1.0, v{T+i}')
    for i in range(12):
        a(f'v_rcp_f32 v{T+i}, v{T+i}')
    a('s_nop 0')
    for i in range(12):
        a(f'v_mul_f32 v{T+i}, v{D1+i}, v{T+i}')
    for p in range(6):
        a(f'v_cvt_pk_bf16_f32 v{D1+p}, v{T+2*p}, v{T+2*p+1}')
    for nt in range(3):
        a(f'ds_write_b64 v37, v[{D1+2*nt}:{D1+2*nt+1}] offset:{HS_OFF+nt*4096}')
    a('s_waitcnt lgkmcnt(0)')
    a('s_branch K1_B2')
    a.lab('K1_LOADER2')
    vloads()
    a.stamp(1); a.stamp(2); a.stamp(3)
    a('s_waitcnt vmcnt(6)')
    a.lab('K1_B2')
    a('s_lshl_b32 s25, s22, 12')
    for r in range(VB, VB+8): a(f'v_add_u32 v{r}, s25, v{r}')
    a('s_barrier')
    a.stamp(4)
    BS = 40; AF = 56
    for st in range(4):
        for rd in range(2):
            r = BS + st*4 + rd*2
            a(f'ds_read_b64 v[{r}:{r+1}], v{VB+st*2+rd} offset:{HS_OFF}')
    D2 = 96
    for r in range(D2, D2+24): a(f'v_mov_b32 v{r}, 0')
    tiles = [(seg, hf) for seg in range(3) for hf in range(2)]
    bufs = [AF, AF+16, 120]
    def issueA(idx):
        seg, hf = tiles[idx]
        buf = bufs[idx % 3]
        if seg == 0: areg = 24+hf; base = 32768
        else: areg = 26+hf; base = (seg-1)*32768
        for st in range(4):
            for rd in range(2):
                r = buf + st*4 + rd*2
                a(f'ds_read_b64_tr_b16 v[{r}:{r+1}], v{areg} offset:{base+st*8192+rd*4096}')
    issueA(0)
    a('s_waitcnt lgkmcnt(8)')
    for idx in range(6):
        if idx + 1 < 6:
            if idx >= 1: a('s_waitcnt lgkmcnt(7)')
            issueA(idx+1)
            a('s_waitcnt lgkmcnt(8)')
        else:
            a('s_waitcnt lgkmcnt(0)')
        seg, hf = tiles[idx]
        buf = bufs[idx % 3]
        D_ = D2 + (seg*2+hf)*4
        for st in range(4):
            a(f'v_mfma_f32_16x16x32_bf16 v[{D_}:{D_+3}], v[{buf+st*4}:{buf+st*4+3}], v[{BS+st*4}:{BS+st*4+3}], v[{D_}:{D_+3}]')
    a('s_waitcnt vmcnt(0)')
    a('s_barrier')
    a.stamp(5)
    a.nop(8)
    a('s_mul_i32 s25, s3, 5120')
    a('v_lshlrev_b32 v28, 1, v3           ; 2q')
    a('v_xor_b32 v28, v28, v4             ; (2q)^node')
    a('v_lshlrev_b32 v28, 4, v28')
    a('v_lshl_add_u32 v28, v4, 8, v28')
    a('v_add_u32 v28, s25, v28')
    a('v_xor_b32 v29, 16, v28             ; chunk 2q+1')
    a('v_xor_b32 v30, 0x80, v28           ; chunk 8+2q')
    a('v_xor_b32 v31, 0x80, v29           ; chunk 8+2q+1')
    a('v_lshlrev_b32 v32, 6, v4')
    a('v_lshl_add_u32 v32, v3, 3, v32')
    a('v_add_u32 v32, s25, v32')
    O1 = 40; O2 = 44; OB = 48; PV = 50; TT = 56
    for hf in range(2):
        Ds = D2 + (0*2+hf)*4; Dv = D2 + (1*2+hf)*4; Dr = D2 + (2*2+hf)*4
        a(f'v_cvt_pk_bf16_f32 v{OB}, v{Ds}, v{Ds+1}')
        a(f'v_cvt_pk_bf16_f32 v{OB+1}, v{Ds+2}, v{Ds+3}')
        a(f'v_cvt_pk_bf16_f32 v{O1+3}, v{Dr}, v{Dr+1}')
        a(f'v_cvt_pk_bf16_f32 v{O2+3}, v{Dr+2}, v{Dr+3}')
        a(f'v_cvt_pk_bf16_f32 v{TT}, v{Dv}, v{Dv+1}')
        a(f'v_cvt_pk_bf16_f32 v{TT+1}, v{Dv+2}, v{Dv+3}')
        a(f'v_lshlrev_b32 v{PV}, 16, v{TT}')
        a(f'v_and_b32 v{PV+1}, v38, v{TT}')
        a(f'v_lshlrev_b32 v{PV+2}, 16, v{TT+1}')
        a(f'v_and_b32 v{PV+3}, v38, v{TT+1}')
        for j in range(3):
            r = VV + (j*2+hf)*2
            t = TT + 4 + j*4
            a(f'v_lshlrev_b32 v{t}, 16, v{r}')
            a(f'v_and_b32 v{t+1}, v38, v{r}')
            a(f'v_lshlrev_b32 v{t+2}, 16, v{r+1}')
            a(f'v_and_b32 v{t+3}, v38, v{r+1}')
            a(f'v_pk_mul_f32 v[{t}:{t+1}], v[{t}:{t+1}], v[{PV}:{PV+1}]')
            a(f'v_pk_mul_f32 v[{t+2}:{t+3}], v[{t+2}:{t+3}], v[{PV+2}:{PV+3}]')
            a(f'v_cvt_pk_bf16_f32 v{O1+j}, v{t}, v{t+1}')
            a(f'v_cvt_pk_bf16_f32 v{O2+j}, v{t+2}, v{t+3}')
        a(f'ds_write_b128 v{28+2*hf}, v[{O1}:{O1+3}]')
        a(f'ds_write_b128 v{29+2*hf}, v[{O2}:{O2+3}]')
        a(f'ds_write_b64 v32, v[{OB}:{OB+1}] offset:{4096+32*hf}')
        if hf == 0: a('s_nop 1')
    R0 = 64
    a('v_xor_b32 v33, v4, v3              ; p ^ (L>>4)')
    a('v_lshlrev_b32 v33, 4, v33')
    a('v_lshl_add_u32 v33, v3, 8, v33')
    a('v_add_u32 v33, s25, v33')
    for i in range(1, 4):
        a(f'v_xor_b32 v{33+i}, {64*i}, v33')
    a('v_lshlrev_b32 v39, 4, v2           ; L*16')
    a('v_add_u32 v37, s25, v39')
    a('s_waitcnt lgkmcnt(0)')
    for i in range(4):
        a(f'ds_read_b128 v[{R0+4*i}:{R0+4*i+3}], v{33+i} offset:{1024*i}')
    a(f'ds_read_b128 v[{R0+16}:{R0+19}], v37 offset:4096')
    a('s_lshl_b32 s26, s48, 8')
    a('s_lshl_b32 s27, s48, 6')
    a('v_add_u32 v38, s26, v39')
    a('v_add_u32 v39, s27, v39')
    for i in range(4):
        a(f's_waitcnt lgkmcnt({4-i})')
        a(f'buffer_store_dwordx4 v[{R0+4*i}:{R0+4*i+3}], v38, s[40:43], 0 offen offset:{1024*i} {STT}')
    a('s_waitcnt lgkmcnt(0)')
    a(f'buffer_store_dwordx4 v[{R0+16}:{R0+19}], v39, s[44:47], 0 offen {STT}')
    a.stamp(6)
    a.stamp_flush(0, 20, 7, 3)
    a('s_endpgm')

def bf16_round_pair(a, dst, x, y):
    a(f'v_cvt_pk_bf16_f32 v{dst}, v{x}, v{y}')

def gen_bin(a):
    a.lab('K1_BIN')
    a.stamp(0)
    srd(a, 28, 8, E*4)
    srd(a, 32, 10, E*4)
    srd(a, 36, 6, N*6)
    srd(a, 40, 20, NBIN*NG*4, off=WS_HDR)
    srd(a, 44, 20, NBIN*65536, off=WS_TAILS)
    a(f's_mul_i32 s24, s2, {CHUNK}           ; e0')
    a(f's_sub_u32 s25, {E}, s24')
    a(f's_min_u32 s25, s25, {CHUNK}          ; lim')
    a('v_lshlrev_b32 v1, 2, v0')
    a('v_mov_b32 v3, 0')
    a('ds_write_b32 v1, v3')
    SRC = 10; DST = 15; PS = 20; PD = 30; REC = 40; GG = 60; RK = 65
    POSL = 69632
    a('v_lshlrev_b32 v5, 4, v2               ; lane*16')
    for k in range(5):
        if k == 4:
            a('s_cmp_ge_u32 s3, 11')
            a('s_cbranch_scc1 K1_POSDONE')
        a(f's_add_u32 s26, s3, {12*k}')
        a('s_lshl_b32 s26, s26, 10')
        a(f's_add_u32 s27, s26, {POSL}')
        a('s_mov_b32 m0, s27')
        a('s_nop 0')
        a('buffer_load_dwordx4 v5, s[36:39], s26 offen lds')
    a.lab('K1_POSDONE')
    a('v_add_u32 v4, s24, v0')
    a('v_lshlrev_b32 v4, 2, v4              ; e*4 (round 0)')
    for j in range(5):
        a(f's_mov_b32 s26, {j*3072}')
        a(f'buffer_load_dword v{SRC+j}, v4, s[28:31], s26 offen {LDN}')
        a(f'buffer_load_dword v{DST+j}, v4, s[32:35], s26 offen {LDN}')
    for j in range(5):
        a(f'v_add_u32 v5, {j*768}, v0')
        a(f'v_cmp_gt_u32 s[{50+2*j}:{51+2*j}], s25, v5')
    a('v_mov_b32 v6, 0xffff0000')
    a('s_waitcnt vmcnt(10) lgkmcnt(0)')
    a('s_barrier')
    a.stamp(1)
    for j in range(5):
        a(f's_waitcnt vmcnt({8-2*j})')
        for (idx, dstp) in ((SRC+j, PS+2*j), (DST+j, PD+2*j)):
            a(f'v_mul_u32_u24 v5, 6, v{idx}')
            a('v_and_b32 v5, -4, v5')
            a(f'v_add_u32 v5, {POSL}, v5')
            a(f'ds_read2_b32 v[{dstp}:{dstp+1}], v5 offset0:0 offset1:1')
    a.stamp(2)
    a('s_mov_b32 s26, 5033')
    a('s_mov_b32 s27, 853362')
    a('s_mov_b32 s60, 65000')
    a('v_mov_b32 v7, 1')
    for j in range(5):
        a(f's_waitcnt lgkmcnt({min(15, 8-2*j + j)})')
        ps = PS+2*j; pd = PD+2*j; rec = REC+4*j
        t = 70
        a(f'v_and_b32 v{t}, 1, v{SRC+j}')
        a(f'v_lshlrev_b32 v{t}, 4, v{t}')
        a(f'v_lshrrev_b64 v[{ps}:{ps+1}], v{t}, v[{ps}:{ps+1}]')
        a(f'v_and_b32 v{t+1}, 1, v{DST+j}')
        a(f'v_lshlrev_b32 v{t+1}, 4, v{t+1}')
        a(f'v_lshrrev_b64 v[{pd}:{pd+1}], v{t+1}, v[{pd}:{pd+1}]')
        a(f'v_lshlrev_b32 v{t}, 16, v{ps}')
        a(f'v_lshlrev_b32 v{t+1}, 16, v{pd}')
        a(f'v_sub_f32 v{t}, v{t}, v{t+1}          ; rx')
        a(f'v_and_b32 v{t+1}, v6, v{ps}')
        a(f'v_and_b32 v{t+2}, v6, v{pd}')
        a(f'v_sub_f32 v{t+1}, v{t+1}, v{t+2}      ; ry')
        a(f'v_lshlrev_b32 v{t+2}, 16, v{ps+1}')
        a(f'v_lshlrev_b32 v{t+3}, 16, v{pd+1}')
        a(f'v_sub_f32 v{t+2}, v{t+2}, v{t+3}      ; rz')
        a(f'v_cvt_pk_bf16_f32 v{t+3}, v{t}, v{t+1}')
        a(f'v_cvt_pk_bf16_f32 v{t+4}, v{t+2}, v{t+2}')
        a(f'v_lshlrev_b32 v{t}, 16, v{t+3}')
        a(f'v_and_b32 v{t+1}, v6, v{t+3}')
        a(f'v_lshlrev_b32 v{t+2}, 16, v{t+4}')
        a(f'v_mul_f32 v{t+3}, v{t}, v{t}')
        a(f'v_mul_f32 v{t+4}, v{t+1}, v{t+1}')
        a(f'v_mul_f32 v{t+5}, v{t+2}, v{t+2}')
        a(f'v_cvt_pk_bf16_f32 v{t+3}, v{t+3}, v{t+4}')
        a(f'v_cvt_pk_bf16_f32 v{t+5}, v{t+5}, v{t+5}')
        a(f'v_lshlrev_b32 v{t+4}, 16, v{t+3}')
        a(f'v_and_b32 v{t+3}, v6, v{t+3}')
        a(f'v_lshlrev_b32 v{t+5}, 16, v{t+5}')
        a(f'v_add_f32 v{t+3}, v{t+4}, v{t+3}')
        a(f'v_add_f32 v{t+3}, v{t+3}, v{t+5}')
        a(f'v_cvt_pk_bf16_f32 v{t+3}, v{t+3}, v{t+3}')
        a(f'v_and_b32 v{t+3}, v6, v{t+3}')
        a(f'v_add_f32 v{t+3}, 0x322bcc77, v{t+3}   ; +1e-8')
        a(f'v_cvt_pk_bf16_f32 v{t+3}, v{t+3}, v{t+3}')
        a(f'v_and_b32 v{t+3}, v6, v{t+3}')
        a(f'v_sqrt_f32 v{t+3}, v{t+3}')
        a(f'v_mul_u32_u24 v{GG+j}, s26, v{DST+j}')
        a(f'v_cvt_pk_bf16_f32 v{t+3}, v{t+3}, v{t+3}')
        a(f'v_and_b32 v{t+3}, v6, v{t+3}           ; d (f32 bits)')
        a(f'v_rcp_f32 v{t+4}, v{t+3}')
        a(f'v_lshrrev_b32 v{GG+j}, 16, v{GG+j}       ; g')
        a(f'v_mul_f32 v{t}, v{t}, v{t+4}')
        a(f'v_mul_f32 v{t+1}, v{t+1}, v{t+4}')
        a(f'v_mul_f32 v{t+2}, v{t+2}, v{t+4}')
        a(f'v_cvt_pk_bf16_f32 v{rec+1}, v{t}, v{t+1}   ; rx|ry')
        a(f'v_cvt_pk_bf16_f32 v{rec+2}, v{t+2}, v{t+2}')
        a(f'v_cmp_gt_u32 vcc, 0x{DTHR<<16:x}, v{t+3}')
        a(f's_and_b64 s[{50+2*j}:{51+2*j}], s[{50+2*j}:{51+2*j}], vcc')
        a(f'v_lshrrev_b32 v{rec+3}, 16, v{t+3}')
        a(f'v_subrev_u32 v{rec+3}, 0x{DBASE:x}, v{rec+3}')
        a(f'v_cmp_le_u32 vcc, {HOT0}, v{rec+3}')
        a(f'v_lshlrev_b32 v{rec+3}, 5, v{rec+3}')
        a(f'v_subrev_u32 v{t+4}, {HOT0*32-1024}, v{rec+3}')
        a(f'v_or_b32 v{rec+3}, 0x80000000, v{rec+3}')
        a(f'v_cndmask_b32 v{rec+3}, v{rec+3}, v{t+4}, vcc')
        a(f'v_mov_b32 v{t}, s60')
        a(f'v_mad_u32_u24 v{t}, v{GG+j}, s27, v{t}')
        a(f'v_lshrrev_b32 v{t}, 16, v{t}')
        a(f'v_sub_u32 v{t}, v{DST+j}, v{t}          ; dloc')
        a(f'v_add_u32 v{t}, 16, v{t}')
        a(f'v_lshlrev_b32 v{t}, v{t}, v7            ; 1<<(16+dloc)')
        a(f'v_and_b32 v{rec+2}, 0xffff, v{rec+2}')
        a(f'v_or_b32 v{rec+2}, v{t}, v{rec+2}')
        a(f'v_lshlrev_b32 v{rec}, 4, v{SRC+j}')
        a(f'v_or_b32 v{rec}, 0x80000000, v{rec}')
        a(f'v_lshlrev_b32 v{t+1}, 2, v{GG+j}')
        a(f's_mov_b64 exec, s[{50+2*j}:{51+2*j}]')
        a(f'ds_add_rtn_u32 v{RK+j}, v{t+1}, v7')
        a('s_mov_b64 exec, -1')
    a.stamp(3)
    a('s_waitcnt lgkmcnt(0)')
    a('s_barrier')
    a.stamp(4)
    a('ds_read_b32 v3, v1                    ; cnt')
    a('s_waitcnt lgkmcnt(0)')
    a('v_mov_b32 v4, v3')
    a('s_nop 1')
    for sh in (1, 2, 4, 8):
        a(f'v_add_u32_dpp v4, v4, v4 row_shr:{sh} row_mask:0xf bank_mask:0xf')
        a('s_nop 1')
    a('v_add_u32_dpp v4, v4, v4 row_bcast:15 row_mask:0xa bank_mask:0xf')
    a('s_nop 1')
    a('v_add_u32_dpp v4, v4, v4 row_bcast:31 row_mask:0xc bank_mask:0xf')
    a('s_nop 1')
    a('v_readlane_b32 s26, v4, 63')
    a('s_lshl_b32 s27, s3, 2')
    a('v_mov_b32 v5, s27')
    a('v_mov_b32 v8, s26')
    a('ds_write_b32 v5, v8 offset:4096')
    a('s_waitcnt lgkmcnt(0)')
    a('s_barrier')
    a('v_mov_b32 v5, 0')
    a('ds_read_b128 v[70:73], v5 offset:4096')
    a('ds_read_b128 v[74:77], v5 offset:4112')
    a('ds_read_b128 v[78:81], v5 offset:4128')
    a('v_sub_u32 v4, v4, v3')
    a('s_waitcnt lgkmcnt(0)')
    a('v_mov_b32 v9, 0')
    for k in range(12):
        a(f'v_add_u32 v9, v9, v{70+k}')
    for k in range(11):
        a(f's_cmp_gt_u32 s3, {k}')
        a('s_cselect_b32 s26, -1, 0')
        a(f'v_and_b32 v{70+k}, s26, v{70+k}')
        a(f'v_add_u32 v4, v4, v{70+k}')
    a('ds_write_b32 v1, v4 offset:8192         ; start[bin]')
    a('v_lshl_or_b32 v3, v3, 16, v4')
    a(f's_mul_i32 s26, s2, {NG*4}')
    a(f'buffer_store_dword v3, v1, s[40:43], s26 offen {STO}')
    a('s_waitcnt lgkmcnt(0)')
    a('s_barrier')
    a.stamp(5)
    RST = 12288
    for j in range(5):
        a(f'v_lshlrev_b32 v{GG+j}, 2, v{GG+j}')
        a(f'ds_read_b32 v{GG+j}, v{GG+j} offset:8192')
    for j in range(5):
        a(f's_waitcnt lgkmcnt({4-j})')
        a(f'v_add_u32 v{GG+j}, v{GG+j}, v{RK+j}')
        a(f'v_lshlrev_b32 v{GG+j}, 4, v{GG+j}')
    for j in range(5):
        a(f's_mov_b64 exec, s[{50+2*j}:{51+2*j}]')
        a(f'ds_write_b128 v{GG+j}, v[{REC+4*j}:{REC+4*j+3}] offset:{RST}')
    a('s_mov_b64 exec, -1')
    a('s_waitcnt lgkmcnt(0)')
    a('s_barrier')
    a('v_lshlrev_b32 v5, 4, v0                   ; tid*16')
    for j in range(5):
        a(f'ds_read_b128 v[{REC+4*j}:{REC+4*j+3}], v5 offset:{RST+j*12288}')
    a('s_lshl_b32 s26, s2, 16                    ; w*65536')
    for j in range(5):
        a(f'v_add_u32 v6, {j*768}, v0')
        a(f'v_cmp_gt_u32 vcc, v9, v6')
        a(f'v_add_u32 v7, {j*12288}, v5')
        a(f's_waitcnt lgkmcnt({4-j})')
        a('s_mov_b64 exec, vcc')
        a(f'buffer_store_dwordx4 v[{REC+4*j}:{REC+4*j+3}], v7, s[44:47], s26 offen {STO}')
        a('s_mov_b64 exec, -1')
    a.stamp(6)
    a.stamp_flush(0, 20, 7, 3)
    a('s_endpgm')

def gen_tab(a):
    a.lab('K1_TAB')
    a.stamp(0)
    srd(a, 28, 20, 65536, off=WS_ATAB)
    srd(a, 24, 18, 16*768)
    srd(a, 32, 20, 12288, off=WS_WB)
    a('v_lshrrev_b32 v10, 4, v2               ; kq')
    a('v_and_b32 v11, 15, v2                  ; c')
    a('v_mul_u32_u24 v10, 3072, v10           ; 4kq*768')
    a('v_lshl_add_u32 v10, v11, 2, v10')
    a('s_and_b32 s52, s3, 3')
    a('s_lshr_b32 s53, s3, 2')
    a('s_lshl_b32 s54, s52, 6')
    a('s_lshl_b32 s55, s53, 8')
    a('s_add_u32 s54, s54, s55')
    for i in range(4):
        a(f'buffer_load_dword v{12+i}, v10, s[24:27], s54 offen offset:{i*768}')
    a('s_mov_b32 s62, 0x05040100')
    a('s_mov_b32 s63, 0x07060302')
    a('s_mul_i32 s54, s52, 3')
    a('s_add_u32 s54, s54, s53')
    a('s_lshl_b32 s54, s54, 10                ; (slice*3+seg)*1024')
    a('v_lshlrev_b32 v11, 4, v2')
    a('s_waitcnt vmcnt(0)')
    a('v_perm_b32 v16, v13, v12, s62')
    a('v_perm_b32 v17, v15, v14, s62')
    a('v_perm_b32 v18, v13, v12, s63')
    a('v_perm_b32 v19, v15, v14, s63')
    a(f'buffer_store_dwordx4 v[16:19], v11, s[32:35], s54 offen {STO}')
    a('s_load_dwordx8 s[36:43], s[12:13], 0')
    a('v_mov_b32 v6, 0xffff0000')
    a('s_waitcnt lgkmcnt(0)')
    for k in range(8):
        a(f's_lshl_b32 s{44+2*k}, s{36+k}, 16')
        a(f's_and_b32 s{45+2*k}, s{36+k}, 0xffff0000')
    a('s_mov_b32 s60, 0x3e22f983')
    a('s_mov_b32 s61, 0x31dc9c88')
    a('s_mov_b32 s62, 0')
    a.lab('K1_TAB_LOOP')
    a('v_add_u32 v3, s62, v0             ; entry')
    a(f'v_add_u32 v4, 0x{DBASE:x}, v3')
    a('v_lshlrev_b32 v4, 16, v4           ; d')
    a('v_mul_f32 v5, 0x40490fdb, v4       ; pi*d')
    a('v_cvt_pk_bf16_f32 v5, v5, v5')
    a('v_and_b32 v5, v6, v5')
    a('v_mul_f32 v5, 0x3e4ccccd, v5       ; /5')
    a('v_cvt_pk_bf16_f32 v5, v5, v5')
    a('v_and_b32 v5, v6, v5')
    a('v_mul_f32 v5, s60, v5')
    a('v_cos_f32 v5, v5')
    a('v_rcp_f32 v7, v4                   ; 1/d')
    a('v_cvt_pk_bf16_f32 v5, v5, v5')
    a('v_and_b32 v5, v6, v5')
    a('v_add_f32 v5, 1.0, v5')
    a('v_cvt_pk_bf16_f32 v5, v5, v5')
    a('v_and_b32 v5, v6, v5')
    a('v_mul_f32 v5, 0.5, v5              ; fcut')
    a('v_cmp_gt_u32 vcc, 0x40a00000, v4')
    a('v_cmp_ne_u32 s[64:65], 0, v3')
    a('s_and_b64 vcc, vcc, s[64:65]')
    a('s_nop 1')
    a('v_cndmask_b32 v5, 0, v5, vcc')
    for k in range(16):
        t = 10 + k
        a(f'v_mul_f32 v{t}, s{44+k}, v4')
    for k in range(0, 16, 2):
        t = 10 + k
        a(f'v_cvt_pk_bf16_f32 v{30+k//2}, v{t}, v{t+1}')
    for k in range(0, 16, 2):
        t = 10 + k
        a(f'v_lshlrev_b32 v{t}, 16, v{30+k//2}')
        a(f'v_and_b32 v{t+1}, v6, v{30+k//2}')
    for k in range(16):
        t = 10 + k
        a(f'v_mul_f32 v40, s60, v{t}')
        a(f'v_fma_f32 v41, v{t}, s60, -v40')
        a(f'v_fma_f32 v41, v{t}, s61, v41')
        a(f'v_fract_f32 v40, v40')
        a(f'v_add_f32 v40, v40, v41')
        a(f'v_sin_f32 v{t}, v40')
    a('s_nop 0')
    for k in range(0, 16, 2):
        t = 10 + k
        a(f'v_cvt_pk_bf16_f32 v40, v{t}, v{t+1}')
        a(f'v_lshlrev_b32 v{t}, 16, v40')
        a(f'v_and_b32 v{t+1}, v6, v40')
        a(f'v_mul_f32 v{t}, v{t}, v7')
        a(f'v_mul_f32 v{t+1}, v{t+1}, v7')
        a(f'v_cvt_pk_bf16_f32 v40, v{t}, v{t+1}')
        a(f'v_lshlrev_b32 v{t}, 16, v40')
        a(f'v_and_b32 v{t+1}, v6, v40')
        a(f'v_mul_f32 v{t}, v{t}, v5')
        a(f'v_mul_f32 v{t+1}, v{t+1}, v5')
        a(f'v_cvt_pk_bf16_f32 v{30+k//2}, v{t}, v{t+1}')
    a('v_lshlrev_b32 v8, 5, v3')
    a(f'buffer_store_dwordx4 v[30:33], v8, s[28:31], 0 offen {STO}')
    a(f'buffer_store_dwordx4 v[34:37], v8, s[28:31], 0 offen offset:16 {STO}')
    a('s_add_u32 s62, s62, 768')
    a('s_cmp_lt_u32 s62, 2048')
    a('s_nop 1')
    a('s_cbranch_scc1 K1_TAB_LOOP')
    for i in range(1,7): a.stamp(i)
    a.stamp_flush(0, 20, 7, 3)
    a('s_endpgm')

def gen_k1(a):
    a.raw('.p2align 8')
    a.raw('.type prep_kernel,@function')
    a.lab('prep_kernel')
    a('s_cmp_ge_u32 s2, 256')
    a('s_cbranch_scc1 K1_END')
    a('s_load_dwordx4 s[4:7], s[0:1], 0')
    a('s_load_dwordx4 s[8:11], s[0:1], 16')
    a('s_load_dwordx4 s[12:15], s[0:1], 32')
    a('s_load_dwordx4 s[16:19], s[0:1], 48')
    a('s_load_dwordx2 s[20:21], s[0:1], 80')
    a('v_lshrrev_b32 v1, 6, v0')
    a('v_and_b32 v2, 63, v0')
    a('s_nop 0')
    a('v_readfirstlane_b32 s3, v1')
    a('s_waitcnt lgkmcnt(0)')
    a(f's_cmp_lt_u32 s2, {NBIN}')
    a('s_cbranch_scc1 K1_BIN')
    a(f's_cmp_eq_u32 s2, {NBIN}')
    a('s_cbranch_scc1 K1_TAB')
    gen_mlp(a)
    gen_bin(a)
    gen_tab(a)
    a.lab('K1_END')
    a('s_endpgm')
```

```python
from asmlib import *
from k1 import *

KNAME = 'gather_scatter__molecular_angular_painn__graph_kernel'
OUTST = os.environ.get('OUTST', 'sc1')
RESLD = os.environ.get('RESLD', '')
WBASE = 18432
WREG = 5120
RES0 = WBASE + 12*WREG
O_SRC = 0; O_AOF = 1280; O_OH = 2560; O_RX = 3200; O_RY = 3840; O_RZ = 4480
K2_LDS = RES0 + 12*4096

V_C = 0; V_SHL = 1; V_KQ8 = 2; V_A1 = 3; V_A2 = 4; V_A3 = 5
TMP = 6
WB = 10; ACC = 22; GA = 54; GB = 86; WF = 94; MSG = 118; SM = 138; SRC = 154; AOP = 162
T4 = 166; T5 = 167
NV = 168

def wb(seg, t): return WB + (seg*2+t)*2
def acc(comp, t): return ACC + (comp*2+t)*4
def gA(i, c): return GA + 4*i + c
def wf(seg, R, r=0): return WF + seg*8 + R*4 + r
def msg(comp, j=0): return MSG + comp*4 + j

def scan64(a, P):
    a('s_nop 1')
    for sh in (1, 2, 4, 8):
        a(f'v_add_u32_dpp v{P}, v{P}, v{P} row_shr:{sh} row_mask:0xf bank_mask:0xf')
        a('s_nop 1')
    a(f'v_add_u32_dpp v{P}, v{P}, v{P} row_bcast:15 row_mask:0xa bank_mask:0xf')
    a('s_nop 1')
    a(f'v_add_u32_dpp v{P}, v{P}, v{P} row_bcast:31 row_mask:0xc bank_mask:0xf')
    a('s_nop 1')

def gen_k2(a):
    LANE = T4
    a.raw('.p2align 8')
    a.raw(f'.type {KNAME},@function')
    a.lab(KNAME)
    a('s_cmp_ge_u32 s2, 256')
    a('s_cbranch_scc1 K2_END')
    if os.environ.get('PRIO','1') != '0': a('s_setprio 3')
    a('s_load_dwordx2 s[4:5], s[0:1], 0       ; sv')
    a('s_load_dwordx2 s[8:9], s[0:1], 64      ; out')
    a('s_load_dwordx2 s[10:11], s[0:1], 80    ; ws')
    a(f'v_lshrrev_b32 v{T5}, 6, v0')
    a(f'v_and_b32 v{LANE}, 63, v0')
    a('s_and_b32 s12, s2, 7                   ; x')
    a(f'v_readfirstlane_b32 s3, v{T5}             ; wave')
    a('s_lshr_b32 s13, s12, 1                 ; slice')
    a('s_lshr_b32 s14, s2, 3')
    a('s_lshl_b32 s14, s14, 1')
    a('s_and_b32 s12, s12, 1')
    a('s_add_u32 s14, s14, s12                ; rank (0..63)')
    a('s_mul_i32 s14, s14, 12')
    a('s_add_u32 s14, s14, s3                 ; g')
    a('s_mul_i32 s15, s14, 853362')
    a('s_add_u32 s16, s15, 65000')
    a('s_lshr_b32 s15, s16, 16                ; start')
    a('s_add_u32 s16, s16, 853362')
    a('s_lshr_b32 s16, s16, 16')
    a(f's_min_u32 s16, s16, {N}')
    a('s_sub_u32 s16, s16, s15                ; size')
    a.stamp(0)
    if Asm.STAMPS: a('s_memtime s[92:93]')
    a(f'v_mul_u32_u24 v{TMP}, {NG*4}, v{LANE}        ; lane*3072')
    a('s_lshl_b32 s17, s14, 2')
    a('s_waitcnt lgkmcnt(0)')
    srd(a, 20, 10, NBIN*NG*4, off=WS_HDR)
    a(f'buffer_load_dword v{TMP+1}, v{TMP}, s[20:23], s17 offen')
    srd(a, 24, 10, NBIN*65536, off=WS_TAILS)
    srd(a, 28, 10, 65536, off=WS_ATAB)
    srd(a, 40, 10, 12288, off=WS_WB)
    a(f'v_lshlrev_b32 v{TMP+2}, 4, v{LANE}')
    a('s_mul_i32 s17, s13, 3072')
    for seg in range(3):
        a(f'buffer_load_dwordx4 v[{wb(seg,0)}:{wb(seg,0)+3}], v{TMP+2}, s[40:43], s17 offen offset:{seg*1024}')
    a('s_lshl_b32 s17, s3, 10')
    a('s_add_u32 s18, s17, 1024')
    a('s_mov_b32 m0, s18')
    a(f's_add_u32 s17, s17, {HOT0*32}')
    a(f'buffer_load_dwordx4 v{TMP+2}, s[28:31], s17 offen lds')
    a(f's_cmp_ge_u32 s3, {NHOT_KB-12}')
    a('s_cbranch_scc1 K2_DMA_DONE')
    a('s_add_u32 s18, s18, 12288')
    a('s_mov_b32 m0, s18')
    a('s_add_u32 s17, s17, 12288')
    a(f'buffer_load_dwordx4 v{TMP+2}, s[28:31], s17 offen lds')
    a.lab('K2_DMA_DONE')
    srd(a, 32, 4, 10240000)
    srd(a, 36, 8, 10240000)
    a('s_mul_i32 s17, s13, 2560000')
    a('s_add_u32 s44, s10, s17')
    a('s_addc_u32 s45, s11, 0')
    a('s_or_b32 s45, s45, 0x100000            ; stride 16')
    a('s_mov_b32 s46, 160000')
    a('s_mov_b32 s47, 0x00020000')
    a('s_mul_i32 s17, s13, 640000')
    a(f's_add_u32 s17, s17, {WS_TB}')
    a('s_add_u32 s48, s10, s17')
    a('s_addc_u32 s49, s11, 0')
    a('s_or_b32 s49, s49, 0x40000             ; stride 4')
    a('s_mov_b32 s50, 160000')
    a('s_mov_b32 s51, 0x00020000')
    a(f'v_and_b32 v{V_C}, 15, v{LANE}')
    a(f'v_lshrrev_b32 v{T5}, 4, v{LANE}           ; q')
    a(f'v_sub_u32 v{V_SHL}, 15, v{V_C}')
    a(f'v_lshl_or_b32 v{V_SHL}, v{V_SHL}, 16, v{V_SHL}')
    a(f'v_lshlrev_b32 v{V_KQ8}, 3, v{T5}')
    a(f'v_lshlrev_b32 v{TMP+2}, 2, v{LANE}')
    a(f'v_mov_b32 v{TMP+3}, 0')
    a(f'ds_write_b32 v{TMP+2}, v{TMP+3}')
    for r in range(ACC, ACC+32): a(f'v_mov_b32 v{r}, 0')
    for r in range(MSG, MSG+20): a(f'v_mov_b32 v{r}, 0')
    for r in range(SM, SM+16): a(f'v_mov_b32 v{r}, 0')
    a(f's_mul_i32 s18, s3, {WREG}')
    a(f's_add_u32 s18, s18, {WBASE}')
    a('s_mov_b32 s52, 0                          ; base')
    a('s_mov_b32 s60, 0')
    CNT = SRC; ST = SRC+1; P = SRC+2; LOCB = SRC+3; KK = SRC+4; POS = SRC+5; KHI = SRC+6
    H = TMP+1
    def header():
        a(f'v_lshrrev_b32 v{CNT}, 16, v{H}')
        a(f'v_and_b32 v{ST}, 0xffff, v{H}')
        a(f'v_mov_b32 v{P}, v{CNT}')
        scan64(a, P)
    PFPOS = os.environ.get('PFPOS','N')
    PFF = os.environ.get('PFF','sc1')
    def pf_setup():
        a('s_lshr_b32 s61, s2, 3')
        a('s_mul_i32 s61, s61, 12')
        a('s_add_u32 s61, s61, s3                ; chunk 0..383')
    def pf_A(lo, hi, reg):
        a('s_mul_i32 s17, s13, 2560000')
        a('s_add_u32 s64, s10, s17')
        a('s_addc_u32 s65, s11, 0')
        a('s_mov_b32 s66, 2560000')
        a('s_mov_b32 s67, 0x00020000')
        a(f's_mul_i32 s62, s61, {53*128}')
        a(f's_add_u32 s62, s62, {lo*128}')
        a(f'v_lshlrev_b32 v{reg}, 7, v{LANE}')
        a(f'v_add_u32 v{reg}, s62, v{reg}')
        a(f'v_cmp_gt_u32 vcc, {hi-lo}, v{LANE}')
        a('s_mov_b64 exec, vcc')
        a(f'buffer_load_dword v{reg+1}, v{reg}, s[64:67], 0 offen {PFF}')
        a('s_mov_b64 exec, -1')
    def pf_B(reg):
        a('s_mul_i32 s17, s13, 640000')
        a(f's_add_u32 s17, s17, {WS_TB}')
        a('s_add_u32 s64, s10, s17')
        a('s_addc_u32 s65, s11, 0')
        a('s_mov_b32 s66, 640000')
        a('s_mov_b32 s67, 0x00020000')
        a(f's_mul_i32 s62, s61, {14*128}')
        a(f'v_lshlrev_b32 v{reg}, 7, v{LANE}')
        a(f'v_add_u32 v{reg}, s62, v{reg}')
        a(f'v_cmp_gt_u32 vcc, 14, v{LANE}')
        a('s_mov_b64 exec, vcc')
        a(f'buffer_load_dword v{reg+1}, v{reg}, s[64:67], 0 offen {PFF}')
        a('s_mov_b64 exec, -1')
    PR = GA+24
    npf = 0
    if PFPOS in 'ABC': pf_setup()
    if PFPOS == 'A':
        pf_A(0, 53, PR); pf_B(PR+2); npf = 2
    if PFPOS == 'C':
        pf_B(PR+2); pf_A(0, 10, PR); npf = 2
    a(f's_waitcnt vmcnt({npf}) lgkmcnt(0)')
    a('s_barrier')
    a.stamp(1)
    header()
    a(f'v_readlane_b32 s19, v{P}, 63             ; M')
    a(f'v_sub_u32 v{P}, v{P}, v{CNT}')
    a(f'v_lshl_add_u32 v{LOCB}, v{LANE}, 12, v{ST}   ; w*4096 + start')
    a.stamp(2)
    a.lab('K2_CHUNK')
    a(f'v_sub_u32 v{KK}, s52, v{P}')
    a(f'v_max_i32 v{KK}, 0, v{KK}')
    a.lab('K2_FILL')
    a(f'v_add_u32 v{POS}, v{P}, v{KK}')
    a(f'v_subrev_u32 v{POS}, s52, v{POS}')
    a(f'v_cmp_lt_u32 s[56:57], v{KK}, v{CNT}')
    a(f'v_cmp_gt_u32 vcc, 256, v{POS}')
    a('s_and_b64 vcc, vcc, s[56:57]')
    a('s_cbranch_vccz K2_FILL_DONE')
    a(f'v_lshlrev_b32 v{POS}, 2, v{POS}')
    a(f'v_add_u32 v{POS}, s18, v{POS}')
    a(f'v_add_u32 v{KHI}, v{LOCB}, v{KK}')
    a('s_mov_b64 exec, vcc')
    a(f'ds_write_b32 v{POS}, v{KHI}')
    a('s_mov_b64 exec, -1')
    a(f'v_add_u32 v{KK}, 1, v{KK}')
    a('s_branch K2_FILL')
    a.lab('K2_FILL_DONE')
    a.stamp(3)
    a('s_sub_u32 s55, s19, s52')
    a('s_min_u32 s55, s55, 256                   ; n_c')
    a('s_add_u32 s58, s55, 31')
    a('s_lshr_b32 s58, s58, 5                    ; ntiles')
    a('s_lshl_b32 s59, s58, 5')
    a('s_add_u32 s59, s59, 32                    ; npad')
    RC = GA; LA = GB
    a(f'v_lshlrev_b32 v{TMP}, 2, v{LANE}')
    a(f'v_add_u32 v{TMP}, s18, v{TMP}')
    for j in range(5):
        a(f'ds_read_b32 v{LA+j}, v{TMP} offset:{256*j}')
    a(f'v_mov_b32 v{TMP+2}, 0x80000000')
    for j in range(5):
        if j >= 1:
            a(f's_cmp_le_u32 s59, {64*j}')
            a('s_cbranch_scc1 K2_REC_ISSUED')
        a(f'v_add_u32 v{TMP+1}, {64*j}, v{LANE}')
        a(f'v_cmp_gt_u32 vcc, s55, v{TMP+1}')
        a(f's_waitcnt lgkmcnt({4-j})')
        a(f'v_lshlrev_b32 v{LA+j}, 4, v{LA+j}')
        a(f'v_cndmask_b32 v{LA+j}, v{TMP+2}, v{LA+j}, vcc')
        a(f'buffer_load_dwordx4 v[{RC+4*j}:{RC+4*j+3}], v{LA+j}, s[24:27], 0 offen')
    a.lab('K2_REC_ISSUED')
    npf2 = 0
    if PFPOS in 'BC':
        a('s_cmp_lg_u32 s52, 0')
        a('s_cbranch_scc1 K2_NOPF')
        if PFPOS == 'B':
            pf_A(0, 53, PR); pf_B(PR+2); npf2 = 2
        else:
            pf_A(10, 53, PR+4); npf2 = 1
        a.lab('K2_NOPF')
    a(f'v_lshlrev_b32 v{TMP+1}, 1, v{LANE}')
    a(f'v_add_u32 v{TMP+1}, s18, v{TMP+1}')
    if npf2:
        a('s_cmp_lg_u32 s52, 0')
        a('s_cbranch_scc1 K2_RW0')
        a(f's_waitcnt vmcnt({npf2}) lgkmcnt(0)')
        a('s_branch K2_RW1')
        a.lab('K2_RW0')
        a('s_waitcnt vmcnt(0) lgkmcnt(0)')
        a.lab('K2_RW1')
    else:
        a('s_waitcnt vmcnt(0) lgkmcnt(0)')
    a.stamp(4)
    for j in range(5):
        if j >= 1:
            a(f's_cmp_le_u32 s59, {64*j}')
            a('s_cbranch_scc1 K2_SOA_DONE')
        r = RC+4*j
        a(f'v_xor_b32 v{r}, v{TMP+2}, v{r}')
        a(f'ds_write_b32 v{TMP}, v{r} offset:{O_SRC+256*j}')
        a(f'ds_write_b32 v{TMP}, v{r+3} offset:{O_AOF+256*j}')
        a(f'ds_write_b16 v{TMP+1}, v{r+1} offset:{O_RX+128*j}')
        a(f'ds_write_b16_d16_hi v{TMP+1}, v{r+1} offset:{O_RY+128*j}')
        a(f'ds_write_b16 v{TMP+1}, v{r+2} offset:{O_RZ+128*j}')
        a(f'ds_write_b16_d16_hi v{TMP+1}, v{r+2} offset:{O_OH+128*j}')
    a.lab('K2_SOA_DONE')
    a(f'v_lshrrev_b32 v{TMP}, 4, v{LANE}          ; q')
    a(f'v_lshlrev_b32 v{V_A1}, 5, v{TMP}            ; q*8*4')
    a(f'v_add_u32 v{V_A1}, s18, v{V_A1}')
    a(f'v_lshlrev_b32 v{V_A2}, 4, v{TMP}            ; q*8*2')
    a(f'v_add_u32 v{V_A2}, s18, v{V_A2}')
    a(f'v_lshrrev_b32 v{TMP}, 2, v{V_C}             ; rho>>2')
    a(f'v_and_b32 v{TMP+1}, 3, v{V_C}')
    a(f'v_lshl_add_u32 v{TMP}, v{TMP}, 3, v{TMP+1}   ; 8*(rho>>2)+(rho&3)')
    a(f'v_lshlrev_b32 v{V_A3}, 2, v{TMP}')
    a(f'v_add_u32 v{V_A3}, s18, v{V_A3}')
    a('s_cmp_eq_u32 s58, 0')
    a('s_cbranch_scc1 K2_NOTILES')
    X = os.environ.get('X','')
    def issue_row(i):
        t = T4 + (i & 1)
        a(f'v_add_u32 v{t}, v{SRC+i}, v{V_C}')
        if 'L' in X: return
        a(f'buffer_load_dwordx4 v[{gA(i,0)}:{gA(i,3)}], v{t}, s[44:47], 0 idxen')
        if not os.environ.get('NOB'): a(f'buffer_load_dword v{GB+i}, v{t}, s[48:51], 0 idxen')
    def read_src(off):
        a(f'ds_read_b128 v[{SRC}:{SRC+3}], v{V_A1} offset:{O_SRC+off}')
        a(f'ds_read_b128 v[{SRC+4}:{SRC+7}], v{V_A1} offset:{O_SRC+off+16}')
    rare_id = [0]
    def load_A(ao0, ao1, tmp):
        k = rare_id[0]; rare_id[0] += 1
        a(f'v_or_b32 v{tmp}, v{ao0}, v{ao1}')
        a(f'v_cmp_gt_i32 vcc, 0, v{tmp}')
        a(f's_cbranch_vccnz K2_RARE{k}')
        a(f'v_add_u32 v{ao0}, v{ao0}, v{V_KQ8}')
        a(f'v_add_u32 v{ao1}, v{ao1}, v{V_KQ8}')
        a(f'ds_read_b64 v[{AOP}:{AOP+1}], v{ao0}')
        a(f'ds_read_b64 v[{AOP+2}:{AOP+3}], v{ao1}')
        a.lab(f'K2_RARE_BACK{k}')
        return (k, ao0, ao1)
    rares = []
    read_src(0)
    a(f'ds_read_b32 v{TMP+2}, v{V_A3} offset:{O_AOF}')
    a(f'ds_read_b32 v{TMP+3}, v{V_A3} offset:{O_AOF+16}')
    a('s_waitcnt lgkmcnt(2)')
    for i in range(8): issue_row(i)
    a.stamp(5)
    a('s_waitcnt lgkmcnt(0)')
    rares.append(load_A(TMP+2, TMP+3, T4))
    a('s_waitcnt lgkmcnt(0)')
    def wf1(t, R, seg):
        if 'M' in X: return
        a(f'v_mfma_f32_16x16x16_bf16 v[{wf(seg,R)}:{wf(seg,R)+3}], v[{AOP+2*R}:{AOP+2*R+1}], v[{wb(seg,t)}:{wb(seg,t)+1}], 0')
    def seg1(t, ac, m, mc):
        if 'M' in X: return
        a(f'v_mfma_f32_16x16x32_bf16 v[{acc(ac,t)}:{acc(ac,t)+3}], v[{SM+4*m}:{SM+4*m+3}], v[{msg(mc)}:{msg(mc)+3}], v[{acc(ac,t)}:{acc(ac,t)+3}]')
    for seg in (1, 2, 0): wf1(0, 0, seg)
    for r in range(TMP, TMP+4): a(f'v_mov_b32 v{r}, 0')
    a.nop(4)
    if Asm.STAMPS:
        a('s_lshl_b32 s69, s3, 6')
        a(f's_add_u32 s69, s69, {K2_LDS}')
    a.lab('K2_TILE')
    if Asm.STAMPS:
        a('s_memrealtime s[90:91]')
        a('s_waitcnt lgkmcnt(0)')
        a(f'v_mov_b32 v{T4}, s90')
        a(f'v_mov_b32 v{T5}, s69')
        a(f'ds_write_b32 v{T5}, v{T4}')
        a('s_add_u32 s69, s69, 4')
    PRIO = os.environ.get('PRIO','1')
    if PRIO == '1':
        a('s_cmp_ge_u32 s58, 4')
        a('s_cbranch_scc1 K2_P2')
        a('s_cmp_ge_u32 s58, 2')
        a('s_cbranch_scc1 K2_P1')
        a('s_setprio 0')
        a('s_branch K2_PDONE')
        a.lab('K2_P1'); a('s_setprio 1'); a('s_branch K2_PDONE')
        a.lab('K2_P2'); a('s_setprio 2')
        a.lab('K2_PDONE')
    if PRIO == '2':
        a('s_cmp_ge_u32 s58, 4')
        a('s_cbranch_scc1 K2_P3')
        a('s_cmp_eq_u32 s58, 3')
        a('s_cbranch_scc1 K2_P2')
        a('s_cmp_eq_u32 s58, 2')
        a('s_cbranch_scc1 K2_P1')
        a('s_setprio 0')
        a('s_branch K2_PDONE')
        a.lab('K2_P1'); a('s_setprio 1'); a('s_branch K2_PDONE')
        a.lab('K2_P2'); a('s_setprio 2'); a('s_branch K2_PDONE')
        a.lab('K2_P3'); a('s_setprio 3')
        a.lab('K2_PDONE')
    SEG = [1, 1, 1, 2, 0]
    X_, Y_, Z_, VR_, S_ = 0, 1, 2, 3, 4
    groups = []
    for c in range(5): groups.append((0, (0, c), (2, c)))
    for c in range(5): groups.append((0, (4, c), (6, c)))
    pm = [(0, 0), (0, 1), (0, 2), (0, 3), (0, 4), (2, 0), (2, 1), (2, 2), (2, 3), (2, 4)]
    for k in range(5): groups.append((1, pm[2*k], pm[2*k+1]))
    for c in range(5): groups.append((1, (4, c), (6, c)))
    def unpack(t, i, comp, u):
        s0 = gA(i, comp) if comp < 4 else GB+i
        s1 = gA(i+1, comp) if comp < 4 else GB+i+1
        if 'V' in X: return
        if t == 0:
            a(f'v_lshlrev_b32 v{u}, 16, v{s0}'); a(f'v_lshlrev_b32 v{u+1}, 16, v{s1}')
        else:
            a(f'v_and_b32 v{u}, 0xffff0000, v{s0}'); a(f'v_and_b32 v{u+1}, 0xffff0000, v{s1}')
    def pk(t, i, comp, u):
        R = i >> 2; r = i & 3; seg = SEG[comp]
        if 'V' in X: return
        a(f'v_pk_mul_f32 v[{u}:{u+1}], v[{u}:{u+1}], v[{wf(seg,R,r)}:{wf(seg,R,r+1)}]')
    def cvt(g):
        t, (i0_, c0), (i1_, c1) = groups[g]
        if 'V' in X: return
        a(f'v_cvt_pk_bf16_f32 v{msg(c0,i0_//2)}, v{TMP}, v{TMP+1}')
        a(f'v_cvt_pk_bf16_f32 v{msg(c1,i1_//2)}, v{TMP+2}, v{TMP+3}')
    def block(g, slot):
        t, (i0_, c0), (i1_, c1) = groups[g]
        if slot: slot()
        cvt((g-1) % 20)
        unpack(t, i0_, c0, TMP); unpack(t, i1_, c1, TMP+2)
        pk(t, i0_, c0, TMP); pk(t, i1_, c1, TMP+2)
    SS = {X_: (1, 0, 0), Y_: (2, 0, 1), Z_: (3, 0, 2), S_: (0, 0, 4), 'vx': (1, 1, 3), 'vy': (2, 2, 3), 'vz': (3, 3, 3)}
    def sg(t, k): return lambda: seg1(t, *SS[k])
    def wfl(t, R, seg): return lambda: wf1(t, R, seg)
    slots = {0: sg(1,'vx'), 1: sg(1,'vy'), 2: sg(1,'vz'), 3: sg(1,S_),
             4: wfl(0,1,1), 5: wfl(0,1,2), 6: wfl(0,1,0),
             7: sg(0,X_), 8: sg(0,Y_), 9: sg(0,Z_), 10: sg(0,'vx'), 11: sg(0,'vy'), 12: sg(0,'vz'), 13: sg(0,S_),
             14: wfl(1,1,1), 15: wfl(1,1,2), 16: wfl(1,1,0), 17: sg(1,X_), 18: sg(1,Y_), 19: sg(1,Z_)}
    VW = (lambda n: n//2) if os.environ.get('NOB') else (lambda n: n)
    for g in range(20):
        if g == 0: a(f's_waitcnt vmcnt({VW(8)})')
        if g == 5: a('s_waitcnt vmcnt(0)')
        block(g, slots[g])
        if g == 3:
            wf1(1, 0, 1)
            a(f'ds_read_b128 v[{SM}:{SM+3}], v{V_A2} offset:{O_OH}')
            a(f'ds_read_b128 v[{SM+4}:{SM+7}], v{V_A2} offset:{O_RX}')
            a(f'ds_read_b128 v[{SM+8}:{SM+11}], v{V_A2} offset:{O_RY}')
            a(f'ds_read_b128 v[{SM+12}:{SM+15}], v{V_A2} offset:{O_RZ}')
            read_src(128)
        if g == 6:
            a('s_waitcnt lgkmcnt(2)')
            wf1(1, 0, 2)
            for j in range(4): a(f'v_pk_lshlrev_b16 v{SM+j}, v{V_SHL}, v{SM+j}')
            for j in range(4): a(f'v_pk_ashrrev_i16 v{SM+j}, 15, v{SM+j} op_sel_hi:[0,1]')
            wf1(1, 0, 0)
            for m in (1, 2, 3):
                for j in range(4): a(f'v_and_b32 v{SM+4*m+j}, v{SM+j}, v{SM+4*m+j}')
            for j in range(4): a(f'v_and_b32 v{SM+j}, 0x3f803f80, v{SM+j}')
            a(f'v_add_u32 v{V_A1}, 128, v{V_A1}')
            a(f'v_add_u32 v{V_A2}, 64, v{V_A2}')
        if g == 9: a('s_waitcnt lgkmcnt(0)')
        if g == 12:
            issue_row(0); issue_row(1)
            a(f'ds_read_b32 v{SRC}, v{V_A3} offset:{O_AOF+128}')
            a(f'ds_read_b32 v{SRC+1}, v{V_A3} offset:{O_AOF+128+16}')
        if g == 14:
            issue_row(2); issue_row(3)
        if g == 16:
            a('s_waitcnt lgkmcnt(0)')
            rares.append(load_A(SRC, SRC+1, T4))
        if g == 19:
            issue_row(4)
            a('s_waitcnt lgkmcnt(0)')
            wf1(0, 0, 1)
            issue_row(5);
            wf1(0, 0, 2)
            issue_row(6)
            wf1(0, 0, 0)
            issue_row(7)
    a(f'v_add_u32 v{V_A3}, 128, v{V_A3}')
    def res_dma(tag):
        a('s_cmp_lg_u32 s60, 0')
        a(f's_cbranch_scc1 K2_RESDONE{tag}')
        a('s_mov_b32 s60, 1')
        a(f'v_mbcnt_lo_u32_b32 v{T4}, -1, 0')
        a(f'v_mbcnt_hi_u32_b32 v{T4}, -1, v{T4}')
        a(f'v_lshrrev_b32 v{T5}, 4, v{T4}')
        a(f'v_lshlrev_b32 v{T5}, 10, v{T5}')
        a(f'v_bfe_u32 v{SRC+2}, v{T4}, 2, 2')
        a(f'v_lshl_add_u32 v{T5}, v{SRC+2}, 8, v{T5}')
        a(f'v_and_b32 v{T4}, 3, v{T4}')
        a(f'v_lshl_add_u32 v{T5}, v{T4}, 4, v{T5}')
        a('s_lshl_b32 s61, s15, 10')
        a('s_lshl_b32 s62, s13, 6')
        a('s_add_u32 s61, s61, s62')
        a('s_lshl_b32 s62, s3, 12')
        a(f's_add_u32 s62, s62, {RES0}')
        for j in range(4):
            a('s_mov_b32 m0, s62')
            a('s_add_u32 s62, s62, 1024')
            a(f'buffer_load_dwordx4 v{T5}, s[32:35], s61 offen {RESLD} lds')
            a('s_add_u32 s61, s61, 4096')
        a.lab(f'K2_RESDONE{tag}')
    res_dma('A')
    a('s_sub_u32 s58, s58, 1')
    a('s_cmp_lg_u32 s58, 0')
    a('s_cbranch_scc1 K2_TILE')
    cvt(19)
    for k in ('vx', 'vy', 'vz'): seg1(1, *SS[k])
    seg1(1, *SS[S_])
    a('s_waitcnt vmcnt(0) lgkmcnt(0)')
    a('s_branch K2_TILES_DONE')
    a.lab('K2_NOTILES')
    a.lab('K2_TILES_DONE')
    a.stamp(6)
    a('s_add_u32 s52, s52, 256')
    a('s_cmp_ge_u32 s52, s19')
    a('s_cbranch_scc1 K2_EPI')
    for r in range(SM, SM+16): a(f'v_mov_b32 v{r}, 0')
    a(f'v_mbcnt_lo_u32_b32 v{LANE}, -1, 0')
    a(f'v_mbcnt_hi_u32_b32 v{LANE}, -1, v{LANE}')
    a(f'v_mul_u32_u24 v{TMP}, {NG*4}, v{LANE}')
    a('s_lshl_b32 s17, s14, 2')
    a(f'buffer_load_dword v{TMP+1}, v{TMP}, s[20:23], s17 offen')
    a('s_waitcnt vmcnt(0)')
    header()
    a(f'v_sub_u32 v{P}, v{P}, v{CNT}')
    a(f'v_lshl_add_u32 v{LOCB}, v{LANE}, 12, v{ST}')
    a('s_branch K2_CHUNK')
    for (k, ao0, ao1) in rares:
        a.lab(f'K2_RARE{k}')
        a(f'v_max_i32 v{T4}, 0, v{ao0}')
        a(f'v_max_i32 v{T5}, 0, v{ao1}')
        a(f'v_add_u32 v{T4}, v{T4}, v{V_KQ8}')
        a(f'v_add_u32 v{T5}, v{T5}, v{V_KQ8}')
        a(f'ds_read_b64 v[{AOP}:{AOP+1}], v{T4}')
        a(f'ds_read_b64 v[{AOP+2}:{AOP+3}], v{T5}')
        a('s_waitcnt lgkmcnt(0)')
        for h, ao in ((0, ao0), (1, ao1)):
            a(f'v_cmp_gt_i32 vcc, 0, v{ao}')
            a(f'v_and_b32 v{T4}, 0x7fffffff, v{ao}')
            a(f'v_add_u32 v{T4}, v{T4}, v{V_KQ8}')
            a('s_and_saveexec_b64 s[62:63], vcc')
            a(f's_cbranch_execz K2_RSK{k}_{h}')
            a(f'buffer_load_dwordx2 v[{AOP+2*h}:{AOP+2*h+1}], v{T4}, s[28:31], 0 offen')
            a('s_waitcnt vmcnt(0)')
            a.lab(f'K2_RSK{k}_{h}')
            a('s_mov_b64 exec, s[62:63]')
        a(f's_branch K2_RARE_BACK{k}')
    a.lab('K2_EPI')
    res_dma('B')
    a('s_waitcnt vmcnt(0)')
    LN = T4
    a(f'v_mbcnt_lo_u32_b32 v{LN}, -1, 0')
    a(f'v_mbcnt_hi_u32_b32 v{LN}, -1, v{LN}')
    a('s_lshl_b32 s62, s3, 12')
    a(f's_add_u32 s62, s62, {RES0}')
    a(f'v_lshrrev_b32 v{T5}, 4, v{LN}')
    a(f'v_lshlrev_b32 v{T5}, 10, v{T5}')
    a(f'v_lshl_add_u32 v{T5}, v{V_C}, 2, v{T5}')
    a(f'v_add_u32 v{T5}, s62, v{T5}')
    for r in range(4):
        for comp in range(4):
            a(f'ds_read_b32 v{GA+r*4+comp}, v{T5} offset:{r*256+comp*64}')
    a('s_waitcnt lgkmcnt(0)')
    for r in range(4):
        for comp in range(4):
            x = GA+r*4+comp
            a(f'v_lshlrev_b32 v{TMP}, 16, v{x}')
            a(f'v_and_b32 v{TMP+1}, 0xffff0000, v{x}')
            a(f'v_add_f32 v{TMP}, v{TMP}, v{acc(comp,0)+r}')
            a(f'v_add_f32 v{TMP+1}, v{TMP+1}, v{acc(comp,1)+r}')
            a(f'v_cvt_pk_bf16_f32 v{x}, v{TMP}, v{TMP+1}')
            a(f'ds_write_b32 v{T5}, v{x} offset:{r*256+comp*64}')
    a(f'v_lshlrev_b32 v{TMP}, 4, v{LN}')
    a(f'v_add_u32 v{TMP}, s62, v{TMP}')
    for j in range(4):
        a(f'ds_read_b128 v[{MSG+4*j}:{MSG+4*j+3}], v{TMP} offset:{1024*j}')
    a(f'v_lshrrev_b32 v{T5}, 4, v{LN}')
    a(f'v_lshlrev_b32 v{TMP+1}, 10, v{T5}')
    a(f'v_bfe_u32 v{TMP+2}, v{LN}, 2, 2')
    a(f'v_lshl_add_u32 v{TMP+1}, v{TMP+2}, 8, v{TMP+1}')
    a(f'v_and_b32 v{TMP+2}, 3, v{LN}')
    a(f'v_lshl_add_u32 v{TMP+1}, v{TMP+2}, 4, v{TMP+1}')
    a('s_lshl_b32 s61, s15, 10')
    a('s_lshl_b32 s62, s13, 6')
    a('s_add_u32 s61, s61, s62')
    a(f'v_mov_b32 v{TMP+2}, 0x80000000')
    for j in range(4):
        a(f'v_add_u32 v{TMP+3}, {4*j}, v{T5}')
        a(f'v_cmp_gt_u32 vcc, s16, v{TMP+3}')
        a('s_nop 1')
        a(f'v_cndmask_b32 v{WF+j}, v{TMP+2}, v{TMP+1}, vcc')
    for j in range(4):
        a(f's_waitcnt lgkmcnt({3-j})')
        a(f'buffer_store_dwordx4 v[{MSG+4*j}:{MSG+4*j+3}], v{WF+j}, s[36:39], s61 offen {OUTST}')
        a('s_add_u32 s61, s61, 4096')
    a.stamp(7)
    if Asm.STAMPS:
        a('s_memtime s[94:95]')
        a('s_waitcnt lgkmcnt(0)')
        a('s_sub_u32 s84, s94, s92')
        a('s_lshl_b32 s68, s3, 6')
        a(f's_add_u32 s68, s68, {K2_LDS}')
        a(f'v_lshlrev_b32 v2, 2, v{LN}')
        a('v_add_u32 v3, s68, v2')
        a('ds_read_b32 v4, v3')
        a('s_add_u32 s64, s10, 0x1A00000')
        a('s_addc_u32 s65, s11, 0')
        a('s_mov_b32 s66, 0x100000')
        a('s_mov_b32 s67, 0x00020000')
        a('s_lshl_b32 s68, s2, 4')
        a('s_add_u32 s68, s68, s3')
        a('s_lshl_b32 s68, s68, 6')
        a('s_waitcnt lgkmcnt(0)')
        a('s_mov_b64 exec, 0xffff')
        a('buffer_store_dword v4, v2, s[64:67], s68 offen')
        a('s_mov_b64 exec, -1')
    a.stamp_flush(1, 10, 8, 3)
    a.lab('K2_END')
    a('s_endpgm')
```

```python
from asmlib import *
import os
STT = os.environ.get('STT','sc1')
STO = os.environ.get('STO','sc1')
LDN = os.environ.get('LDN','')

N = 10000; E = 160000
NBIN = 47; CHUNK = 3405; NG = 768
WS_TA = 0; WS_TB = 10240000; WS_ATAB = 0xC80000; WS_WB = 0xC90000; WS_HDR = 0xCA0000; WS_TAILS = 0xD00000
HOT0 = 1472; NHOT_KB = 17
WS_FLAGS = 0xCF0000
FUSE = bool(os.environ.get('FUSE'))
KNAME = 'gather_scatter__molecular_angular_painn__graph_kernel'
COMP = bool(os.environ.get('COMP'))
DBASE = 0x38C0; DTHR = 0x409D
K1_LDS = 155712
S_BASE = 131072; HS_OFF = 12288

def srd(a, s, base, nbytes, off=0, stride=0):
    if off:
        a(f's_add_u32 s{s}, s{base}, 0x{off:x}')
        a(f's_addc_u32 s{s+1}, s{base+1}, 0')
    else:
        a(f's_mov_b32 s{s}, s{base}')
        a(f's_mov_b32 s{s+1}, s{base+1}')
    if stride:
        a(f's_or_b32 s{s+1}, s{s+1}, 0x{stride<<16:x}')
    a(f's_mov_b32 s{s+2}, {nbytes}')
    a(f's_mov_b32 s{s+3}, 0x00020000')

def gen_mlp(a):
    a.lab('K1_MLP')
    a.stamp(0)
    a('s_sub_u32 s24, s2, 47')
    a('s_mul_i32 s24, s24, 48          ; node0')
    a('s_lshr_b32 s22, s3, 2           ; nt')
    a('s_and_b32 s23, s3, 3            ; sl')
    srd(a, 28, 4, 10240000)
    srd(a, 32, 14, 32768)
    srd(a, 36, 16, 98304)
    a('s_mul_i32 s25, s23, 2560000')
    a('s_add_u32 s40, s20, s25')
    a('s_addc_u32 s41, s21, 0')
    a('s_mov_b32 s42, 2560000')
    a('s_mov_b32 s43, 0x00020000')
    a('s_mul_i32 s25, s23, 640000')
    a(f's_add_u32 s25, s25, {WS_TB}')
    a('s_add_u32 s44, s20, s25')
    a('s_addc_u32 s45, s21, 0')
    a('s_mov_b32 s46, 640000')
    a('s_mov_b32 s47, 0x00020000')
    FLAG = 155648
    a('v_lshrrev_b32 v3, 4, v2          ; L>>4')
    a('v_and_b32 v4, 15, v2             ; L&15')
    a('v_mov_b32 v5, 0')
    a(f'v_mov_b32 v6, {FLAG}')
    a('ds_write_b32 v6, v5')
    a('s_and_b32 s26, s3, 1')
    a('s_lshl_b32 s26, s26, 2           ; 4*(wv&1)')
    a('v_add_u32 v6, s26, v3            ; kl7')
    a('v_lshrrev_b32 v7, 1, v4          ; p>>1')
    a('v_xor_b32 v7, v7, v6')
    a('v_and_b32 v8, 1, v4')
    a('v_lshl_or_b32 v7, v7, 1, v8      ; lchunk')
    a('v_lshlrev_b32 v7, 4, v7          ; *16')
    a('v_lshl_add_u32 v6, v3, 8, v7')
    a('v_mul_u32_u24 v8, 768, v3')
    a('v_add_u32 v7, v8, v7             ; vW2')
    a('s_waitcnt lgkmcnt(0)')
    a('s_barrier')
    a('s_cmp_ge_u32 s3, 8')
    a('s_cbranch_scc1 K1_LOADER')
    a('s_lshl_b32 s25, s3, 2')
    a('v_add_u32 v5, s25, v3')
    a('v_and_b32 v9, 15, v5')
    a('v_xor_b32 v9, v4, v9             ; lchunk')
    a('v_add_u32 v5, s24, v5            ; node')
    a('v_lshlrev_b32 v5, 10, v5')
    a('v_lshl_add_u32 v5, v9, 4, v5')
    a('s_lshl_b32 s25, s3, 10')
    a(f's_add_u32 s25, s25, {S_BASE}')
    a('s_mov_b32 m0, s25')
    a('s_cmp_ge_u32 s3, 4')
    a(f'buffer_load_dwordx4 v5, s[28:31], 0 offen {LDN} lds')
    a('s_cbranch_scc1 K1_S2SKIP')
    a('s_add_u32 s25, s25, 8192')
    a('s_mov_b32 m0, s25')
    a('v_add_u32 v5, 0x8000, v5')
    a(f'buffer_load_dwordx4 v5, s[28:31], 0 offen {LDN} lds')
    a.lab('K1_S2SKIP')
    for j in range(4):
        a(f's_add_u32 s25, s3, {8*j}')
        a('s_lshl_b32 s26, s25, 10')
        a('s_mov_b32 m0, s26')
        a('s_nop 0')
        a('buffer_load_dwordx4 v6, s[32:35], s26 offen lds')
    a('s_branch K1_ADDR')
    a.lab('K1_LOADER')
    a('s_sub_u32 s49, s3, 8')
    for m in range(1, 4):
        for j in range(8):
            a(f's_add_u32 s25, s49, {4*j}')
            a('s_lshl_b32 s26, s25, 10')
            a(f's_add_u32 s26, s26, {m*32768}')
            a('s_mov_b32 m0, s26')
            a('s_mul_i32 s27, s25, 3072')
            a(f's_add_u32 s27, s27, {(m-1)*256}')
            a('buffer_load_dwordx4 v7, s[36:39], s27 offen lds')
    a.lab('K1_ADDR')
    a('s_lshl_b32 s25, s22, 4')
    a('s_add_u32 s25, s25, s24           ; node0+16nt')
    a('s_mov_b32 s48, s25')
    a('v_add_u32 v8, s25, v4')
    a('v_lshlrev_b32 v8, 10, v8')
    a('v_lshl_add_u32 v8, v3, 3, v8')
    a('s_lshl_b32 s26, s23, 6')
    a('s_add_u32 s26, s26, 256')
    a('v_add_u32 v8, s26, v8')
    VV = 10
    def vloads():
        for j in range(3):
            for hf in range(2):
                r = VV + (j*2+hf)*2
                a(f'buffer_load_dwordx2 v[{r}:{r+1}], v8, s[28:31], 0 offen offset:{j*256+32*hf} {LDN}')
    a('v_lshrrev_b32 v22, 2, v4           ; r\'')
    a('v_lshl_add_u32 v22, v3, 2, v22     ; 4kq + r\'')
    a('v_and_b32 v23, 7, v22              ; kl7')
    a('v_lshlrev_b32 v22, 8, v22')
    a('v_lshl_add_u32 v22, v23, 5, v22')
    a('v_and_b32 v23, 3, v4')
    a('v_lshl_add_u32 v22, v23, 3, v22    ; aBase')
    a('s_lshl_b32 s25, s23, 6             ; 2*sl*32')
    a('v_xor_b32 v24, s25, v22')
    a('v_xor_b32 v25, 32, v24             ; aW[hf=1]')
    a('v_add_u32 v26, 0x10000, v24        ; aW2[0] (+65536)')
    a('v_add_u32 v27, 0x10000, v25        ; aW2[1]')
    a('v_lshrrev_b32 v23, 1, v3')
    a('v_xor_b32 v23, v23, v4')
    a('v_lshlrev_b32 v23, 4, v23')
    a('v_and_b32 v28, 1, v3')
    a('v_lshl_add_u32 v23, v28, 3, v23')
    a('v_lshl_add_u32 v23, v4, 8, v23')
    a(f'v_add_u32 v23, {S_BASE}, v23      ; bBase0')
    VB = 28
    for st in range(4):
        for rd in range(2):
            k = (4*st + 2*rd)*16
            r = VB + st*2 + rd
            if k == 0: a(f'v_mov_b32 v{r}, v23')
            else: a(f'v_xor_b32 v{r}, {k}, v23')
    a('v_mov_b32 v38, 0xffff0000')
    a('s_cmp_ge_u32 s3, 8')
    a('s_cbranch_scc1 K1_LOADER2')
    a('s_lshl_b32 s25, s3, 5')
    a('v_xor_b32 v36, s25, v22')
    a('v_xor_b32 v37, s25, v23')
    a.stamp(1)
    a('s_waitcnt vmcnt(0)')
    a(f'v_mov_b32 v39, {FLAG}')
    a('v_mov_b32 v9, 1')
    a('s_mov_b64 exec, 1')
    a('ds_add_u32 v39, v9')
    a('s_mov_b64 exec, -1')
    a.lab('K1_SPIN')
    a('ds_read_b32 v9, v39')
    a('s_waitcnt lgkmcnt(0)')
    a('v_readfirstlane_b32 s25, v9')
    a('s_cmp_lt_u32 s25, 8')
    a('s_cbranch_scc1 K1_SPIN')
    a.stamp(2)
    AF = 56
    BL = 72
    D1 = 40
    for st in range(4):
        for rd in range(2):
            r = AF + st*4 + rd*2
            a(f'ds_read_b64_tr_b16 v[{r}:{r+1}], v36 offset:{st*8192+rd*4096}')
    for nt in range(3):
        for st in range(4):
            for rd in range(2):
                r = BL + nt*16 + st*4 + rd*2
                a(f'ds_read_b64 v[{r}:{r+1}], v{VB+st*2+rd} offset:{nt*4096}')
    vloads()
    for r in range(D1, D1+12): a(f'v_mov_b32 v{r}, 0')
    a('s_waitcnt lgkmcnt(0)')
    for st in range(4):
        for nt in range(3):
            A_ = AF + st*4; B_ = BL + nt*16 + st*4; D_ = D1 + nt*4
            a(f'v_mfma_f32_16x16x32_bf16 v[{D_}:{D_+3}], v[{A_}:{A_+3}], v[{B_}:{B_+3}], v[{D_}:{D_+3}]')
    a.nop(8)
    a.stamp(3)
    T = 56
    for p in range(6):
        a(f'v_cvt_pk_bf16_f32 v{T+p}, v{D1+2*p}, v{D1+2*p+1}')
    for p in range(6):
        a(f'v_lshlrev_b32 v{D1+2*p}, 16, v{T+p}')
        a(f'v_and_b32 v{D1+2*p+1}, v38, v{T+p}')
    for i in range(12):
        a(f'v_mul_f32 v{T+i}, 0xbfb8aa3b, v{D1+i}     ; -log2e*h')
    for i in range(12):
        a(f'v_exp_f32 v{T+i}, v{T+i}')
    a('s_nop 0')
    for i in range(12):
        a(f'v_add_f32 v{T+i}, 1.0, v{T+i}')
    for i in range(12):
        a(f'v_rcp_f32 v{T+i}, v{T+i}')
    a('s_nop 0')
    for i in range(12):
        a(f'v_mul_f32 v{T+i}, v{D1+i}, v{T+i}')
    for p in range(6):
        a(f'v_cvt_pk_bf16_f32 v{D1+p}, v{T+2*p}, v{T+2*p+1}')
    for nt in range(3):
        a(f'ds_write_b64 v37, v[{D1+2*nt}:{D1+2*nt+1}] offset:{HS_OFF+nt*4096}')
    a('s_waitcnt lgkmcnt(0)')
    a('s_branch K1_B2')
    a.lab('K1_LOADER2')
    vloads()
    a.stamp(1); a.stamp(2); a.stamp(3)
    a('s_waitcnt vmcnt(6)')
    a.lab('K1_B2')
    a('s_lshl_b32 s25, s22, 12')
    for r in range(VB, VB+8): a(f'v_add_u32 v{r}, s25, v{r}')
    a('s_barrier')
    a.stamp(4)
    BS = 40; AF = 56
    for st in range(4):
        for rd in range(2):
            r = BS + st*4 + rd*2
            a(f'ds_read_b64 v[{r}:{r+1}], v{VB+st*2+rd} offset:{HS_OFF}')
    D2 = 96
    for r in range(D2, D2+24): a(f'v_mov_b32 v{r}, 0')
    tiles = [(seg, hf) for seg in range(3) for hf in range(2)]
    bufs = [AF, AF+16, 120]
    def issueA(idx):
        seg, hf = tiles[idx]
        buf = bufs[idx % 3]
        if seg == 0: areg = 24+hf; base = 32768
        else: areg = 26+hf; base = (seg-1)*32768
        for st in range(4):
            for rd in range(2):
                r = buf + st*4 + rd*2
                a(f'ds_read_b64_tr_b16 v[{r}:{r+1}], v{areg} offset:{base+st*8192+rd*4096}')
    issueA(0)
    a('s_waitcnt lgkmcnt(8)')
    for idx in range(6):
        if idx + 1 < 6:
            if idx >= 1: a('s_waitcnt lgkmcnt(7)')
            issueA(idx+1)
            a('s_waitcnt lgkmcnt(8)')
        else:
            a('s_waitcnt lgkmcnt(0)')
        seg, hf = tiles[idx]
        buf = bufs[idx % 3]
        D_ = D2 + (seg*2+hf)*4
        for st in range(4):
            a(f'v_mfma_f32_16x16x32_bf16 v[{D_}:{D_+3}], v[{buf+st*4}:{buf+st*4+3}], v[{BS+st*4}:{BS+st*4+3}], v[{D_}:{D_+3}]')
    a('s_waitcnt vmcnt(0)')
    a('s_barrier')
    a.stamp(5)
    nonce_load(a, 'M')
    a.nop(8)
    a('s_mul_i32 s25, s3, 5120')
    a('v_lshlrev_b32 v28, 1, v3           ; 2q')
    a('v_xor_b32 v28, v28, v4             ; (2q)^node')
    a('v_lshlrev_b32 v28, 4, v28')
    a('v_lshl_add_u32 v28, v4, 8, v28')
    a('v_add_u32 v28, s25, v28')
    a('v_xor_b32 v29, 16, v28             ; chunk 2q+1')
    a('v_xor_b32 v30, 0x80, v28           ; chunk 8+2q')
    a('v_xor_b32 v31, 0x80, v29           ; chunk 8+2q+1')
    a('v_lshlrev_b32 v32, 6, v4')
    a('v_lshl_add_u32 v32, v3, 3, v32')
    a('v_add_u32 v32, s25, v32')
    O1 = 40; O2 = 44; OB = 48; PV = 50; TT = 56
    for hf in range(2):
        Ds = D2 + (0*2+hf)*4; Dv = D2 + (1*2+hf)*4; Dr = D2 + (2*2+hf)*4
        a(f'v_cvt_pk_bf16_f32 v{OB}, v{Ds}, v{Ds+1}')
        a(f'v_cvt_pk_bf16_f32 v{OB+1}, v{Ds+2}, v{Ds+3}')
        a(f'v_cvt_pk_bf16_f32 v{O1+3}, v{Dr}, v{Dr+1}')
        a(f'v_cvt_pk_bf16_f32 v{O2+3}, v{Dr+2}, v{Dr+3}')
        a(f'v_cvt_pk_bf16_f32 v{TT}, v{Dv}, v{Dv+1}')
        a(f'v_cvt_pk_bf16_f32 v{TT+1}, v{Dv+2}, v{Dv+3}')
        a(f'v_lshlrev_b32 v{PV}, 16, v{TT}')
        a(f'v_and_b32 v{PV+1}, v38, v{TT}')
        a(f'v_lshlrev_b32 v{PV+2}, 16, v{TT+1}')
        a(f'v_and_b32 v{PV+3}, v38, v{TT+1}')
        for j in range(3):
            r = VV + (j*2+hf)*2
            t = TT + 4 + j*4
            a(f'v_lshlrev_b32 v{t}, 16, v{r}')
            a(f'v_and_b32 v{t+1}, v38, v{r}')
            a(f'v_lshlrev_b32 v{t+2}, 16, v{r+1}')
            a(f'v_and_b32 v{t+3}, v38, v{r+1}')
            a(f'v_pk_mul_f32 v[{t}:{t+1}], v[{t}:{t+1}], v[{PV}:{PV+1}]')
            a(f'v_pk_mul_f32 v[{t+2}:{t+3}], v[{t+2}:{t+3}], v[{PV+2}:{PV+3}]')
            a(f'v_cvt_pk_bf16_f32 v{O1+j}, v{t}, v{t+1}')
            a(f'v_cvt_pk_bf16_f32 v{O2+j}, v{t+2}, v{t+3}')
        a(f'ds_write_b128 v{28+2*hf}, v[{O1}:{O1+3}]')
        a(f'ds_write_b128 v{29+2*hf}, v[{O2}:{O2+3}]')
        a(f'ds_write_b64 v32, v[{OB}:{OB+1}] offset:{4096+32*hf}')
        if hf == 0: a('s_nop 1')
    R0 = 64
    a('v_xor_b32 v33, v4, v3              ; p ^ (L>>4)')
    a('v_lshlrev_b32 v33, 4, v33')
    a('v_lshl_add_u32 v33, v3, 8, v33')
    a('v_add_u32 v33, s25, v33')
    for i in range(1, 4):
        a(f'v_xor_b32 v{33+i}, {64*i}, v33')
    a('v_lshlrev_b32 v39, 4, v2           ; L*16')
    a('v_add_u32 v37, s25, v39')
    a('s_waitcnt lgkmcnt(0)')
    for i in range(4):
        a(f'ds_read_b128 v[{R0+4*i}:{R0+4*i+3}], v{33+i} offset:{1024*i}')
    a(f'ds_read_b128 v[{R0+16}:{R0+19}], v37 offset:4096')
    a('s_lshl_b32 s26, s48, 8')
    a('s_lshl_b32 s27, s48, 6')
    a('v_add_u32 v38, s26, v39')
    a('v_add_u32 v39, s27, v39')
    for i in range(4):
        a(f's_waitcnt lgkmcnt({4-i})')
        a(f'buffer_store_dwordx4 v[{R0+4*i}:{R0+4*i+3}], v38, s[40:43], 0 offen offset:{1024*i} {STT}')
    a('s_waitcnt lgkmcnt(0)')
    a(f'buffer_store_dwordx4 v[{R0+16}:{R0+19}], v39, s[44:47], 0 offen {STT}')
    a.stamp(6)
    role_end(a)

def nonce_load(a, tag):
    if FUSE:
        a('s_cmp_lg_u32 s3, 0')
        a(f's_cbranch_scc1 K1_NL{tag}')
        a('v_mov_b32 v165, 0')
        a('buffer_load_dword v166, v165, s[92:95], 0 offen sc1')
        a.lab(f'K1_NL{tag}')

def role_end(a):
    if FUSE:
        a('s_branch K1_DONE')
    else:
        a.stamp_flush(0, 20, 7, 3)
        a('s_endpgm')

def bf16_round_pair(a, dst, x, y):
    a(f'v_cvt_pk_bf16_f32 v{dst}, v{x}, v{y}')

def gen_bin(a):
    a.lab('K1_BIN')
    a.stamp(0)
    srd(a, 28, 8, E*4)
    srd(a, 32, 10, E*4)
    srd(a, 36, 6, N*6)
    srd(a, 40, 20, NBIN*NG*4, off=WS_HDR)
    srd(a, 44, 20, NBIN*65536, off=WS_TAILS)
    a(f's_mul_i32 s24, s2, {CHUNK}           ; e0')
    a(f's_sub_u32 s25, {E}, s24')
    a(f's_min_u32 s25, s25, {CHUNK}          ; lim')
    a('v_lshlrev_b32 v1, 2, v0')
    a('v_mov_b32 v3, 0')
    a('ds_write_b32 v1, v3')
    SRC = 10; DST = 15; PS = 20; PD = 30; REC = 40; GG = 60; RK = 65
    POSL = 69632
    srd(a, 64, 12, 32)
    srd(a, 84, 20, 65536, off=WS_ATAB)
    a('v_and_b32 v82, 15, v0                 ; k')
    a('v_lshlrev_b32 v83, 1, v82')
    a('buffer_load_ushort v84, v83, s[64:67], 0 offen')
    a('s_cmp_lg_u32 s2, 0')
    a('s_cbranch_scc1 K1_NOWB1')
    srd(a, 64, 18, 16*768)
    a('v_lshrrev_b32 v90, 4, v2               ; kq')
    a('v_and_b32 v91, 15, v2                  ; c')
    a('v_mul_u32_u24 v90, 3072, v90           ; 4kq*768')
    a('v_lshl_add_u32 v90, v91, 2, v90')
    a('s_and_b32 s61, s3, 3')
    a('s_lshr_b32 s62, s3, 2')
    a('s_lshl_b32 s63, s61, 6')
    a('s_lshl_b32 s68, s62, 8')
    a('s_add_u32 s63, s63, s68')
    for i in range(4):
        a(f'buffer_load_dword v{92+i}, v90, s[64:67], s63 offen offset:{i*768}')
    a.lab('K1_NOWB1')
    a('v_lshlrev_b32 v5, 4, v2               ; lane*16')
    for k in range(5):
        if k == 4:
            a('s_cmp_ge_u32 s3, 11')
            a('s_cbranch_scc1 K1_POSDONE')
        a(f's_add_u32 s26, s3, {12*k}')
        a('s_lshl_b32 s26, s26, 10')
        a(f's_add_u32 s27, s26, {POSL}')
        a('s_mov_b32 m0, s27')
        a('s_nop 0')
        a('buffer_load_dwordx4 v5, s[36:39], s26 offen lds')
    a.lab('K1_POSDONE')
    a('v_add_u32 v4, s24, v0')
    a('v_lshlrev_b32 v4, 2, v4              ; e*4 (round 0)')
    for j in range(5):
        a(f's_mov_b32 s26, {j*3072}')
        a(f'buffer_load_dword v{SRC+j}, v4, s[28:31], s26 offen {LDN}')
        a(f'buffer_load_dword v{DST+j}, v4, s[32:35], s26 offen {LDN}')
    for j in range(5):
        a(f'v_add_u32 v5, {j*768}, v0')
        a(f'v_cmp_gt_u32 s[{50+2*j}:{51+2*j}], s25, v5')
    a('v_mov_b32 v6, 0xffff0000')
    a('v_lshrrev_b32 v85, 4, v0')
    a('s_mul_i32 s61, s2, 48')
    a('v_add_u32 v85, s61, v85             ; entry')
    a(f'v_add_u32 v86, 0x{DBASE:x}, v85')
    a('v_lshlrev_b32 v86, 16, v86          ; d')
    a('v_mul_f32 v87, 0x40490fdb, v86       ; pi*d')
    a('v_cvt_pk_bf16_f32 v87, v87, v87')
    a('v_and_b32 v87, v6, v87')
    a('v_mul_f32 v87, 0x3e4ccccd, v87       ; /5')
    a('v_cvt_pk_bf16_f32 v87, v87, v87')
    a('v_and_b32 v87, v6, v87')
    a('v_mul_f32 v87, 0x3e22f983, v87')
    a('v_cos_f32 v87, v87')
    a('v_rcp_f32 v88, v86                   ; 1/d')
    a('v_cvt_pk_bf16_f32 v87, v87, v87')
    a('v_and_b32 v87, v6, v87')
    a('v_add_f32 v87, 1.0, v87')
    a('v_cvt_pk_bf16_f32 v87, v87, v87')
    a('v_and_b32 v87, v6, v87')
    a('v_mul_f32 v87, 0.5, v87              ; fcut')
    a('v_cmp_gt_u32 vcc, 0x40a00000, v86')
    a('v_cmp_ne_u32 s[62:63], 0, v85')
    a('s_and_b64 vcc, vcc, s[62:63]')
    a('s_nop 1')
    a('v_cndmask_b32 v87, 0, v87, vcc')
    a('s_waitcnt vmcnt(14)')
    a('v_lshlrev_b32 v84, 16, v84           ; f_k')
    a('v_mul_f32 v84, v84, v86')
    a('v_cvt_pk_bf16_f32 v84, v84, v84')
    a('v_and_b32 v84, v6, v84               ; arg')
    a('v_mul_f32 v89, 0x3e22f983, v84')
    a('v_mov_b32 v81, 0x3e22f983')
    a('v_fma_f32 v80, v84, v81, -v89')
    a('v_mov_b32 v81, 0x31dc9c88')
    a('v_fma_f32 v80, v84, v81, v80')
    a('v_fract_f32 v89, v89')
    a('v_add_f32 v89, v89, v80')
    a('v_sin_f32 v89, v89')
    a('s_nop 0')
    a('v_cvt_pk_bf16_f32 v89, v89, v89')
    a('v_and_b32 v89, v6, v89')
    a('v_mul_f32 v89, v89, v88')
    a('v_cvt_pk_bf16_f32 v89, v89, v89')
    a('v_and_b32 v89, v6, v89')
    a('v_mul_f32 v89, v89, v87')
    a('v_cvt_pk_bf16_f32 v89, v89, v89')
    a('s_nop 1')
    a('v_mov_b32_dpp v88, v89 quad_perm:[1,0,3,2] row_mask:0xf bank_mask:0xf')
    a('v_and_b32 v89, 0xffff, v89')
    a('v_and_b32 v88, v6, v88')
    a('v_or_b32 v89, v89, v88')
    a('v_lshlrev_b32 v85, 5, v85')
    a('v_add_u32 v85, v85, v83               ; entry*32 + 2k')
    a('s_waitcnt vmcnt(10) lgkmcnt(0)')
    a('s_barrier')
    a.stamp(1)
    a('s_mov_b32 s62, 0x55555555')
    a('s_mov_b32 s63, 0x55555555')
    a('s_mov_b64 exec, s[62:63]')
    a(f'buffer_store_dword v89, v85, s[84:87], 0 offen {STO}')
    a('s_mov_b64 exec, -1')
    a('s_cmp_lg_u32 s2, 0')
    a('s_cbranch_scc1 K1_NOWB2')
    srd(a, 64, 20, 12288, off=WS_WB)
    a('s_mov_b32 s62, 0x05040100')
    a('s_mov_b32 s63, 0x07060302')
    a('v_perm_b32 v96, v93, v92, s62')
    a('v_perm_b32 v97, v95, v94, s62')
    a('v_perm_b32 v98, v93, v92, s63')
    a('v_perm_b32 v99, v95, v94, s63')
    a('s_and_b32 s61, s3, 3')
    a('s_lshr_b32 s62, s3, 2')
    a('s_mul_i32 s61, s61, 3')
    a('s_add_u32 s61, s61, s62')
    a('s_lshl_b32 s61, s61, 10                ; (slice*3+seg)*1024')
    a('v_lshlrev_b32 v91, 4, v2')
    a(f'buffer_store_dwordx4 v[96:99], v91, s[64:67], s61 offen {STO}')
    a.lab('K1_NOWB2')
    for j in range(5):
        a(f's_waitcnt vmcnt({8-2*j+1})')
        for (idx, dstp) in ((SRC+j, PS+2*j), (DST+j, PD+2*j)):
            a(f'v_mul_u32_u24 v5, 6, v{idx}')
            a('v_and_b32 v5, -4, v5')
            a(f'v_add_u32 v5, {POSL}, v5')
            a(f'ds_read2_b32 v[{dstp}:{dstp+1}], v5 offset0:0 offset1:1')
    a.stamp(2)
    a('s_mov_b32 s26, 5033')
    a('s_mov_b32 s27, 853362')
    a('s_mov_b32 s60, 65000')
    a('v_mov_b32 v7, 1')
    for j in range(5):
        a(f's_waitcnt lgkmcnt({min(15, 8-2*j + j)})')
        ps = PS+2*j; pd = PD+2*j; rec = REC+4*j
        t = 70
        a(f'v_and_b32 v{t}, 1, v{SRC+j}')
        a(f'v_lshlrev_b32 v{t}, 4, v{t}')
        a(f'v_lshrrev_b64 v[{ps}:{ps+1}], v{t}, v[{ps}:{ps+1}]')
        a(f'v_and_b32 v{t+1}, 1, v{DST+j}')
        a(f'v_lshlrev_b32 v{t+1}, 4, v{t+1}')
        a(f'v_lshrrev_b64 v[{pd}:{pd+1}], v{t+1}, v[{pd}:{pd+1}]')
        a(f'v_lshlrev_b32 v{t}, 16, v{ps}')
        a(f'v_lshlrev_b32 v{t+1}, 16, v{pd}')
        a(f'v_sub_f32 v{t}, v{t}, v{t+1}          ; rx')
        a(f'v_and_b32 v{t+1}, v6, v{ps}')
        a(f'v_and_b32 v{t+2}, v6, v{pd}')
        a(f'v_sub_f32 v{t+1}, v{t+1}, v{t+2}      ; ry')
        a(f'v_lshlrev_b32 v{t+2}, 16, v{ps+1}')
        a(f'v_lshlrev_b32 v{t+3}, 16, v{pd+1}')
        a(f'v_sub_f32 v{t+2}, v{t+2}, v{t+3}      ; rz')
        a(f'v_cvt_pk_bf16_f32 v{t+3}, v{t}, v{t+1}')
        a(f'v_cvt_pk_bf16_f32 v{t+4}, v{t+2}, v{t+2}')
        a(f'v_lshlrev_b32 v{t}, 16, v{t+3}')
        a(f'v_and_b32 v{t+1}, v6, v{t+3}')
        a(f'v_lshlrev_b32 v{t+2}, 16, v{t+4}')
        a(f'v_mul_f32 v{t+3}, v{t}, v{t}')
        a(f'v_mul_f32 v{t+4}, v{t+1}, v{t+1}')
        a(f'v_mul_f32 v{t+5}, v{t+2}, v{t+2}')
        a(f'v_cvt_pk_bf16_f32 v{t+3}, v{t+3}, v{t+4}')
        a(f'v_cvt_pk_bf16_f32 v{t+5}, v{t+5}, v{t+5}')
        a(f'v_lshlrev_b32 v{t+4}, 16, v{t+3}')
        a(f'v_and_b32 v{t+3}, v6, v{t+3}')
        a(f'v_lshlrev_b32 v{t+5}, 16, v{t+5}')
        a(f'v_add_f32 v{t+3}, v{t+4}, v{t+3}')
        a(f'v_add_f32 v{t+3}, v{t+3}, v{t+5}')
        a(f'v_cvt_pk_bf16_f32 v{t+3}, v{t+3}, v{t+3}')
        a(f'v_and_b32 v{t+3}, v6, v{t+3}')
        a(f'v_add_f32 v{t+3}, 0x322bcc77, v{t+3}   ; +1e-8')
        a(f'v_cvt_pk_bf16_f32 v{t+3}, v{t+3}, v{t+3}')
        a(f'v_and_b32 v{t+3}, v6, v{t+3}')
        a(f'v_sqrt_f32 v{t+3}, v{t+3}')
        a(f'v_mul_u32_u24 v{GG+j}, s26, v{DST+j}')
        a(f'v_cvt_pk_bf16_f32 v{t+3}, v{t+3}, v{t+3}')
        a(f'v_and_b32 v{t+3}, v6, v{t+3}           ; d (f32 bits)')
        a(f'v_rcp_f32 v{t+4}, v{t+3}')
        a(f'v_lshrrev_b32 v{GG+j}, 16, v{GG+j}       ; g')
        a(f'v_mul_f32 v{t}, v{t}, v{t+4}')
        a(f'v_mul_f32 v{t+1}, v{t+1}, v{t+4}')
        a(f'v_mul_f32 v{t+2}, v{t+2}, v{t+4}')
        a(f'v_cvt_pk_bf16_f32 v{rec+1}, v{t}, v{t+1}   ; rx|ry')
        a(f'v_cvt_pk_bf16_f32 v{rec+2}, v{t+2}, v{t+2}')
        a(f'v_cmp_gt_u32 vcc, 0x{DTHR<<16:x}, v{t+3}')
        a(f's_and_b64 s[{50+2*j}:{51+2*j}], s[{50+2*j}:{51+2*j}], vcc')
        a(f'v_lshrrev_b32 v{rec+3}, 16, v{t+3}')
        a(f'v_subrev_u32 v{rec+3}, 0x{DBASE:x}, v{rec+3}')
        a(f'v_cmp_le_u32 vcc, {HOT0}, v{rec+3}')
        a(f'v_lshlrev_b32 v{rec+3}, 5, v{rec+3}')
        a(f'v_subrev_u32 v{t+4}, {HOT0*32-1024}, v{rec+3}')
        a(f'v_or_b32 v{rec+3}, 0x80000000, v{rec+3}')
        a(f'v_cndmask_b32 v{rec+3}, v{rec+3}, v{t+4}, vcc')
        a(f'v_mov_b32 v{t}, s60')
        a(f'v_mad_u32_u24 v{t}, v{GG+j}, s27, v{t}')
        a(f'v_lshrrev_b32 v{t}, 16, v{t}')
        a(f'v_sub_u32 v{t}, v{DST+j}, v{t}          ; dloc')
        a(f'v_add_u32 v{t}, 16, v{t}')
        a(f'v_lshlrev_b32 v{t}, v{t}, v7            ; 1<<(16+dloc)')
        a(f'v_and_b32 v{rec+2}, 0xffff, v{rec+2}')
        a(f'v_or_b32 v{rec+2}, v{t}, v{rec+2}')
        a(f'v_lshlrev_b32 v{rec}, 4, v{SRC+j}')
        a(f'v_or_b32 v{rec}, 0x80000000, v{rec}')
        a(f'v_lshlrev_b32 v{t+1}, 2, v{GG+j}')
        a(f's_mov_b64 exec, s[{50+2*j}:{51+2*j}]')
        a(f'ds_add_rtn_u32 v{RK+j}, v{t+1}, v7')
        a('s_mov_b64 exec, -1')
    a.stamp(3)
    a('s_waitcnt lgkmcnt(0)')
    a('s_barrier')
    a.stamp(4)
    nonce_load(a, 'B')
    a('ds_read_b32 v3, v1                    ; cnt')
    a('s_waitcnt lgkmcnt(0)')
    a('v_mov_b32 v4, v3')
    a('s_nop 1')
    for sh in (1, 2, 4, 8):
        a(f'v_add_u32_dpp v4, v4, v4 row_shr:{sh} row_mask:0xf bank_mask:0xf')
        a('s_nop 1')
    a('v_add_u32_dpp v4, v4, v4 row_bcast:15 row_mask:0xa bank_mask:0xf')
    a('s_nop 1')
    a('v_add_u32_dpp v4, v4, v4 row_bcast:31 row_mask:0xc bank_mask:0xf')
    a('s_nop 1')
    a('v_readlane_b32 s26, v4, 63')
    a('s_lshl_b32 s27, s3, 2')
    a('v_mov_b32 v5, s27')
    a('v_mov_b32 v8, s26')
    a('ds_write_b32 v5, v8 offset:4096')
    a('s_waitcnt lgkmcnt(0)')
    a('s_barrier')
    a('v_mov_b32 v5, 0')
    a('ds_read_b128 v[70:73], v5 offset:4096')
    a('ds_read_b128 v[74:77], v5 offset:4112')
    a('ds_read_b128 v[78:81], v5 offset:4128')
    a('v_sub_u32 v4, v4, v3')
    a('s_waitcnt lgkmcnt(0)')
    a('v_mov_b32 v9, 0')
    for k in range(12):
        a(f'v_add_u32 v9, v9, v{70+k}')
    for k in range(11):
        a(f's_cmp_gt_u32 s3, {k}')
        a('s_cselect_b32 s26, -1, 0')
        a(f'v_and_b32 v{70+k}, s26, v{70+k}')
        a(f'v_add_u32 v4, v4, v{70+k}')
    a('ds_write_b32 v1, v4 offset:8192         ; start[bin]')
    a('v_lshl_or_b32 v3, v3, 16, v4')
    a(f's_mul_i32 s26, s2, {NG*4}')
    a(f'buffer_store_dword v3, v1, s[40:43], s26 offen {STO}')
    a('s_waitcnt lgkmcnt(0)')
    a('s_barrier')
    a.stamp(5)
    RST = 12288
    for j in range(5):
        a(f'v_lshlrev_b32 v{GG+j}, 2, v{GG+j}')
        a(f'ds_read_b32 v{GG+j}, v{GG+j} offset:8192')
    for j in range(5):
        a(f's_waitcnt lgkmcnt({4-j})')
        a(f'v_add_u32 v{GG+j}, v{GG+j}, v{RK+j}')
        a(f'v_lshlrev_b32 v{GG+j}, 4, v{GG+j}')
    for j in range(5):
        a(f's_mov_b64 exec, s[{50+2*j}:{51+2*j}]')
        a(f'ds_write_b128 v{GG+j}, v[{REC+4*j}:{REC+4*j+3}] offset:{RST}')
    a('s_mov_b64 exec, -1')
    a('s_waitcnt lgkmcnt(0)')
    a('s_barrier')
    a('v_lshlrev_b32 v5, 4, v0                   ; tid*16')
    for j in range(5):
        a(f'ds_read_b128 v[{REC+4*j}:{REC+4*j+3}], v5 offset:{RST+j*12288}')
    a('s_lshl_b32 s26, s2, 16                    ; w*65536')
    for j in range(5):
        a(f'v_add_u32 v6, {j*768}, v0')
        a(f'v_cmp_gt_u32 vcc, v9, v6')
        a(f'v_add_u32 v7, {j*12288}, v5')
        a(f's_waitcnt lgkmcnt({4-j})')
        a('s_mov_b64 exec, vcc')
        a(f'buffer_store_dwordx4 v[{REC+4*j}:{REC+4*j+3}], v7, s[44:47], s26 offen {STO}')
        a('s_mov_b64 exec, -1')
    a.stamp(6)
    role_end(a)

def gen_tab(a):
    a.lab('K1_TAB')
    a.stamp(0)
    srd(a, 28, 20, 65536, off=WS_ATAB)
    srd(a, 24, 18, 16*768)
    srd(a, 32, 20, 12288, off=WS_WB)
    a('v_lshrrev_b32 v10, 4, v2               ; kq')
    a('v_and_b32 v11, 15, v2                  ; c')
    a('v_mul_u32_u24 v10, 3072, v10           ; 4kq*768')
    a('v_lshl_add_u32 v10, v11, 2, v10')
    a('s_and_b32 s52, s3, 3')
    a('s_lshr_b32 s53, s3, 2')
    a('s_lshl_b32 s54, s52, 6')
    a('s_lshl_b32 s55, s53, 8')
    a('s_add_u32 s54, s54, s55')
    for i in range(4):
        a(f'buffer_load_dword v{12+i}, v10, s[24:27], s54 offen offset:{i*768}')
    a('s_mov_b32 s62, 0x05040100')
    a('s_mov_b32 s63, 0x07060302')
    a('s_mul_i32 s54, s52, 3')
    a('s_add_u32 s54, s54, s53')
    a('s_lshl_b32 s54, s54, 10                ; (slice*3+seg)*1024')
    a('v_lshlrev_b32 v11, 4, v2')
    a('s_waitcnt vmcnt(0)')
    a('v_perm_b32 v16, v13, v12, s62')
    a('v_perm_b32 v17, v15, v14, s62')
    a('v_perm_b32 v18, v13, v12, s63')
    a('v_perm_b32 v19, v15, v14, s63')
    a(f'buffer_store_dwordx4 v[16:19], v11, s[32:35], s54 offen {STO}')
    nonce_load(a, 'T')
    a('s_load_dwordx8 s[36:43], s[12:13], 0')
    a('v_mov_b32 v6, 0xffff0000')
    a('s_waitcnt lgkmcnt(0)')
    for k in range(8):
        a(f's_lshl_b32 s{44+2*k}, s{36+k}, 16')
        a(f's_and_b32 s{45+2*k}, s{36+k}, 0xffff0000')
    a('s_mov_b32 s60, 0x3e22f983')
    a('s_mov_b32 s61, 0x31dc9c88')
    a('s_mov_b32 s62, 0')
    a.lab('K1_TAB_LOOP')
    a('v_add_u32 v3, s62, v0             ; entry')
    a(f'v_add_u32 v4, 0x{DBASE:x}, v3')
    a('v_lshlrev_b32 v4, 16, v4           ; d')
    a('v_mul_f32 v5, 0x40490fdb, v4       ; pi*d')
    a('v_cvt_pk_bf16_f32 v5, v5, v5')
    a('v_and_b32 v5, v6, v5')
    a('v_mul_f32 v5, 0x3e4ccccd, v5       ; /5')
    a('v_cvt_pk_bf16_f32 v5, v5, v5')
    a('v_and_b32 v5, v6, v5')
    a('v_mul_f32 v5, s60, v5')
    a('v_cos_f32 v5, v5')
    a('v_rcp_f32 v7, v4                   ; 1/d')
    a('v_cvt_pk_bf16_f32 v5, v5, v5')
    a('v_and_b32 v5, v6, v5')
    a('v_add_f32 v5, 1.0, v5')
    a('v_cvt_pk_bf16_f32 v5, v5, v5')
    a('v_and_b32 v5, v6, v5')
    a('v_mul_f32 v5, 0.5, v5              ; fcut')
    a('v_cmp_gt_u32 vcc, 0x40a00000, v4')
    a('v_cmp_ne_u32 s[64:65], 0, v3')
    a('s_and_b64 vcc, vcc, s[64:65]')
    a('s_nop 1')
    a('v_cndmask_b32 v5, 0, v5, vcc')
    for k in range(16):
        t = 10 + k
        a(f'v_mul_f32 v{t}, s{44+k}, v4')
    for k in range(0, 16, 2):
        t = 10 + k
        a(f'v_cvt_pk_bf16_f32 v{30+k//2}, v{t}, v{t+1}')
    for k in range(0, 16, 2):
        t = 10 + k
        a(f'v_lshlrev_b32 v{t}, 16, v{30+k//2}')
        a(f'v_and_b32 v{t+1}, v6, v{30+k//2}')
    for k in range(16):
        t = 10 + k
        a(f'v_mul_f32 v40, s60, v{t}')
        a(f'v_fma_f32 v41, v{t}, s60, -v40')
        a(f'v_fma_f32 v41, v{t}, s61, v41')
        a(f'v_fract_f32 v40, v40')
        a(f'v_add_f32 v40, v40, v41')
        a(f'v_sin_f32 v{t}, v40')
    a('s_nop 0')
    for k in range(0, 16, 2):
        t = 10 + k
        a(f'v_cvt_pk_bf16_f32 v40, v{t}, v{t+1}')
        a(f'v_lshlrev_b32 v{t}, 16, v40')
        a(f'v_and_b32 v{t+1}, v6, v40')
        a(f'v_mul_f32 v{t}, v{t}, v7')
        a(f'v_mul_f32 v{t+1}, v{t+1}, v7')
        a(f'v_cvt_pk_bf16_f32 v40, v{t}, v{t+1}')
        a(f'v_lshlrev_b32 v{t}, 16, v40')
        a(f'v_and_b32 v{t+1}, v6, v40')
        a(f'v_mul_f32 v{t}, v{t}, v5')
        a(f'v_mul_f32 v{t+1}, v{t+1}, v5')
        a(f'v_cvt_pk_bf16_f32 v{30+k//2}, v{t}, v{t+1}')
    a('v_lshlrev_b32 v8, 5, v3')
    a(f'buffer_store_dwordx4 v[30:33], v8, s[28:31], 0 offen {STO}')
    a(f'buffer_store_dwordx4 v[34:37], v8, s[28:31], 0 offen offset:16 {STO}')
    a('s_add_u32 s62, s62, 768')
    a('s_cmp_lt_u32 s62, 2048')
    a('s_nop 1')
    a('s_cbranch_scc1 K1_TAB_LOOP')
    for i in range(1,7): a.stamp(i)
    role_end(a)

def gen_k1(a):
    name = KNAME if FUSE else 'prep_kernel'
    a.raw('.p2align 8')
    a.raw(f'.type {name},@function')
    a.lab(name)
    a('s_cmp_ge_u32 s2, 256')
    a('s_cbranch_scc1 K1_END')
    a('s_load_dwordx4 s[4:7], s[0:1], 0')
    a('s_load_dwordx4 s[8:11], s[0:1], 16')
    a('s_load_dwordx4 s[12:15], s[0:1], 32')
    a('s_load_dwordx4 s[16:19], s[0:1], 48')
    a('s_load_dwordx2 s[20:21], s[0:1], 80')
    if FUSE:
        a('s_load_dwordx2 s[96:97], s[0:1], 72     ; d_debug')
        a('s_memrealtime s[98:99]')
    a('v_lshrrev_b32 v1, 6, v0')
    a('v_and_b32 v2, 63, v0')
    a('s_nop 0')
    a('v_readfirstlane_b32 s3, v1')
    a('s_waitcnt lgkmcnt(0)')
    if FUSE:
        a('s_mov_b32 s92, s96')
        a('s_mov_b32 s93, s97')
        a('s_mov_b32 s94, 256')
        a('s_mov_b32 s95, 0x00020000')
        a('s_or_b32 s68, s2, s3')
        a('s_cmp_lg_u32 s68, 0')
        a('s_cbranch_scc1 K1_NONONCE')
        a('s_or_b32 s98, s98, 1')
        a('v_mov_b32 v166, s98')
        a('v_mov_b32 v165, 0')
        a('s_mov_b64 exec, 1')
        a('buffer_store_dword v166, v165, s[92:95], 0 offen sc1')
        a('s_mov_b64 exec, -1')
        a.lab('K1_NONONCE')
    a(f's_cmp_lt_u32 s2, {NBIN}')
    a('s_cbranch_scc1 K1_BIN')
    gen_mlp(a)
    gen_bin(a)
    if FUSE:
        a.lab('K1_DONE')
        a('s_waitcnt vmcnt(0) lgkmcnt(0)')
        a('s_barrier')
        if Asm.STAMPS:
            a('s_memrealtime s[84:85]')
            a('s_waitcnt lgkmcnt(0)')
            a('s_lshl_b32 s68, s3, 5')
            a('s_add_u32 s68, s68, 155712')
            a('v_mov_b32 v1, s68')
            for i in range(8):
                a(f'v_mov_b32 v2, s{70+2*i}')
                a(f'ds_write_b32 v1, v2 offset:{4*i}')
        a('s_cmp_lg_u32 s3, 0')
        a('s_cbranch_scc1 K2_START')
        a('s_mov_b32 s68, 0x10000')
        a.lab('K1_NLOOP')
        a('v_readfirstlane_b32 s100, v166')
        a('s_cmp_lg_u32 s100, 0')
        a('s_cbranch_scc1 K1_NOK')
        a('v_mov_b32 v165, 0')
        a('buffer_load_dword v166, v165, s[92:95], 0 offen sc1')
        a('s_waitcnt vmcnt(0)')
        a('s_sub_u32 s68, s68, 1')
        a('s_cmp_lg_u32 s68, 0')
        a('s_cbranch_scc1 K1_NLOOP')
        a.lab('K1_NOK')
        a(f's_add_u32 s64, s20, 0x{WS_FLAGS:x}')
        a('s_addc_u32 s65, s21, 0')
        a('s_mov_b32 s66, 8192')
        a('s_mov_b32 s67, 0x00020000')
        a('v_mbcnt_lo_u32_b32 v1, -1, 0')
        a('v_mbcnt_hi_u32_b32 v1, -1, v1')
        a('v_lshlrev_b32 v1, 10, v1           ; replica*1024')
        a('s_lshl_b32 s68, s2, 2')
        a('v_mov_b32 v2, s100')
        a('s_mov_b64 exec, 0xff')
        a('buffer_store_dword v2, v1, s[64:67], s68 offen sc1')
        a('s_mov_b64 exec, -1')
        a('s_branch K2_START')
    a.lab('K1_END')
    a('s_endpgm')
```

```python
from asmlib import *
from k1 import *

OUTST = os.environ.get('OUTST', 'sc1')
RESLD = os.environ.get('RESLD', '')
WBASE = 18432
WREG = 5120
RES0 = WBASE + 12*WREG
O_SRC = 0; O_AOF = 1280; O_OH = 2560; O_RX = 3200; O_RY = 3840; O_RZ = 4480
K2_LDS = RES0 + 12*4096
SC = 'sc1' if FUSE else ''
LBF = 768

V_C = 0; V_SHL = 1; V_KQ8 = 2; V_A1 = 3; V_A2 = 4; V_A3 = 5
TMP = 6
WB = 10; ACC = 22; GA = 54; GB = 86; WF = 94; MSG = 118; SM = 138; SRC = 154; AOP = 162
T4 = 166; T5 = 167
NV = 168

def wb(seg, t): return WB + (seg*2+t)*2
def acc(comp, t): return ACC + (comp*2+t)*4
def gA(i, c): return GA + 4*i + c
def wf(seg, R, r=0): return WF + seg*8 + R*4 + r
def msg(comp, j=0): return MSG + comp*4 + j

def scan64(a, P):
    a('s_nop 1')
    for sh in (1, 2, 4, 8):
        a(f'v_add_u32_dpp v{P}, v{P}, v{P} row_shr:{sh} row_mask:0xf bank_mask:0xf')
        a('s_nop 1')
    a(f'v_add_u32_dpp v{P}, v{P}, v{P} row_bcast:15 row_mask:0xa bank_mask:0xf')
    a('s_nop 1')
    a(f'v_add_u32_dpp v{P}, v{P}, v{P} row_bcast:31 row_mask:0xc bank_mask:0xf')
    a('s_nop 1')

def gen_k2(a):
    LANE = T4
    if FUSE:
        a.lab('K2_START')
    else:
        a.raw('.p2align 8')
        a.raw(f'.type {KNAME},@function')
        a.lab(KNAME)
        a('s_cmp_ge_u32 s2, 256')
        a('s_cbranch_scc1 K2_END')
    if os.environ.get('PRIO','1') != '0': a('s_setprio 3')
    a('s_load_dwordx2 s[4:5], s[0:1], 0       ; sv')
    a('s_load_dwordx2 s[8:9], s[0:1], 64      ; out')
    a('s_load_dwordx2 s[10:11], s[0:1], 80    ; ws')
    if FUSE:
        a(f'v_mbcnt_lo_u32_b32 v{LANE}, -1, 0')
        a(f'v_mbcnt_hi_u32_b32 v{LANE}, -1, v{LANE}')
        a('s_and_b32 s12, s2, 7                   ; x')
    else:
        a(f'v_lshrrev_b32 v{T5}, 6, v0')
        a(f'v_and_b32 v{LANE}, 63, v0')
        a('s_and_b32 s12, s2, 7                   ; x')
        a(f'v_readfirstlane_b32 s3, v{T5}             ; wave')
    a('s_lshr_b32 s13, s12, 1                 ; slice')
    a('s_lshr_b32 s14, s2, 3')
    a('s_lshl_b32 s14, s14, 1')
    a('s_and_b32 s12, s12, 1')
    a('s_add_u32 s14, s14, s12                ; rank (0..63)')
    a('s_mul_i32 s14, s14, 12')
    a('s_add_u32 s14, s14, s3                 ; g')
    a('s_mul_i32 s15, s14, 853362')
    a('s_add_u32 s16, s15, 65000')
    a('s_lshr_b32 s15, s16, 16                ; start')
    a('s_add_u32 s16, s16, 853362')
    a('s_lshr_b32 s16, s16, 16')
    a(f's_min_u32 s16, s16, {N}')
    a('s_sub_u32 s16, s16, s15                ; size')
    a.stamp(0)
    if Asm.STAMPS: a('s_memtime s[88:89]')
    a(f'v_mul_u32_u24 v{TMP}, {NG*4}, v{LANE}        ; lane*3072')
    a('s_lshl_b32 s17, s14, 2')
    a('s_waitcnt lgkmcnt(0)')
    srd(a, 20, 10, NBIN*NG*4, off=WS_HDR)
    if not FUSE:
        a(f'buffer_load_dword v{TMP+1}, v{TMP}, s[20:23], s17 offen')
    srd(a, 24, 10, NBIN*65536, off=WS_TAILS)
    srd(a, 28, 10, 65536, off=WS_ATAB)
    srd(a, 40, 10, 12288, off=WS_WB)
    srd(a, 32, 4, 10240000)
    srd(a, 36, 8, 10240000)
    def wb_and_table():
        a(f'v_lshlrev_b32 v{TMP+2}, 4, v{LANE}')
        a('s_mul_i32 s17, s13, 3072')
        for seg in range(3):
            a(f'buffer_load_dwordx4 v[{wb(seg,0)}:{wb(seg,0)+3}], v{TMP+2}, s[40:43], s17 offen offset:{seg*1024} {SC}')
        a('s_lshl_b32 s17, s3, 10')
        if FUSE:
            a(f's_add_u32 s17, s17, {HOT0*32}')
            a(f'buffer_load_dwordx4 v[{GA}:{GA+3}], v{TMP+2}, s[28:31], s17 offen sc1')
            a(f's_cmp_ge_u32 s3, {NHOT_KB-12}')
            a('s_cbranch_scc1 K2_DMA_DONE')
            a('s_add_u32 s17, s17, 12288')
            a(f'buffer_load_dwordx4 v[{GA+4}:{GA+7}], v{TMP+2}, s[28:31], s17 offen sc1')
        else:
            a('s_add_u32 s18, s17, 1024')
            a('s_mov_b32 m0, s18')
            a(f's_add_u32 s17, s17, {HOT0*32}')
            a(f'buffer_load_dwordx4 v{TMP+2}, s[28:31], s17 offen lds')
            a(f's_cmp_ge_u32 s3, {NHOT_KB-12}')
            a('s_cbranch_scc1 K2_DMA_DONE')
            a('s_add_u32 s18, s18, 12288')
            a('s_mov_b32 m0, s18')
            a('s_add_u32 s17, s17, 12288')
            a(f'buffer_load_dwordx4 v{TMP+2}, s[28:31], s17 offen lds')
        a.lab('K2_DMA_DONE')
    if not FUSE: wb_and_table()
    a('s_mul_i32 s17, s13, 2560000')
    a('s_add_u32 s44, s10, s17')
    a('s_addc_u32 s45, s11, 0')
    a('s_or_b32 s45, s45, 0x100000            ; stride 16')
    a('s_mov_b32 s46, 160000')
    a('s_mov_b32 s47, 0x00020000')
    a('s_mul_i32 s17, s13, 640000')
    a(f's_add_u32 s17, s17, {WS_TB}')
    a('s_add_u32 s48, s10, s17')
    a('s_addc_u32 s49, s11, 0')
    a('s_or_b32 s49, s49, 0x40000             ; stride 4')
    a('s_mov_b32 s50, 160000')
    a('s_mov_b32 s51, 0x00020000')
    a(f'v_and_b32 v{V_C}, 15, v{LANE}')
    a(f'v_lshrrev_b32 v{T5}, 4, v{LANE}           ; q')
    a(f'v_sub_u32 v{V_SHL}, 15, v{V_C}')
    a(f'v_lshl_or_b32 v{V_SHL}, v{V_SHL}, 16, v{V_SHL}')
    a(f'v_lshlrev_b32 v{V_KQ8}, 3, v{T5}')
    a(f'v_lshlrev_b32 v{TMP+2}, 2, v{LANE}')
    a(f'v_mov_b32 v{TMP+3}, 0')
    a(f'ds_write_b32 v{TMP+2}, v{TMP+3}')
    if FUSE:
        a(f'ds_write_b32 v{TMP+2}, v{TMP+3} offset:768')
    for r in range(ACC, ACC+32): a(f'v_mov_b32 v{r}, 0')
    for r in range(MSG, MSG+20): a(f'v_mov_b32 v{r}, 0')
    for r in range(SM, SM+16): a(f'v_mov_b32 v{r}, 0')
    a(f's_mul_i32 s18, s3, {WREG}')
    a(f's_add_u32 s18, s18, {WBASE}')
    a('s_mov_b32 s52, 0                          ; base')
    a('s_mov_b32 s60, 0')
    def res_dma(tag):
        a('s_cmp_lg_u32 s60, 0')
        a(f's_cbranch_scc1 K2_RESDONE{tag}')
        a('s_mov_b32 s60, 1')
        a(f'v_mbcnt_lo_u32_b32 v{T4}, -1, 0')
        a(f'v_mbcnt_hi_u32_b32 v{T4}, -1, v{T4}')
        a(f'v_lshrrev_b32 v{T5}, 4, v{T4}')
        a(f'v_lshlrev_b32 v{T5}, 10, v{T5}')
        a(f'v_bfe_u32 v{SRC+2}, v{T4}, 2, 2')
        a(f'v_lshl_add_u32 v{T5}, v{SRC+2}, 8, v{T5}')
        a(f'v_and_b32 v{SRC+2}, 3, v{T4}')
        a(f'v_lshl_add_u32 v{T5}, v{SRC+2}, 4, v{T5}')
        a('s_lshl_b32 s61, s15, 10')
        a('s_lshl_b32 s62, s13, 6')
        a('s_add_u32 s61, s61, s62')
        a('s_lshl_b32 s62, s3, 12')
        a(f's_add_u32 s62, s62, {RES0}')
        for j in range(4):
            a('s_mov_b32 m0, s62')
            a('s_add_u32 s62, s62, 1024')
            a(f'buffer_load_dwordx4 v{T5}, s[32:35], s61 offen {RESLD} lds')
            a('s_add_u32 s61, s61, 4096')
        a.lab(f'K2_RESDONE{tag}')
    def poll_issue(reg):
        a(f'v_mbcnt_lo_u32_b32 v{T5}, -1, 0')
        a(f'v_mbcnt_hi_u32_b32 v{T5}, -1, v{T5}')
        a(f'v_lshlrev_b32 v{T5}, 4, v{T5}')
        a(f's_add_u32 s64, s10, 0x{WS_FLAGS:x}')
        a('s_addc_u32 s65, s11, 0')
        a('s_mov_b32 s66, 8192')
        a('s_mov_b32 s67, 0x00020000')
        a('s_and_b32 s62, s2, 7')
        a('s_lshl_b32 s62, s62, 10')
        a(f'buffer_load_dwordx4 v[{reg}:{reg+3}], v{T5}, s[64:67], s62 offen sc1')
    def poll_masks(reg):
        a(f'v_cmp_eq_u32 s[56:57], s100, v{reg}')
        a(f'v_cmp_eq_u32 s[62:63], s100, v{reg+1}')
        a(f'v_cmp_eq_u32 vcc, s100, v{reg+2}')
        a('s_and_b64 s[56:57], s[56:57], s[62:63]')
        a('s_and_b64 s[56:57], s[56:57], vcc')
        a(f'v_cmp_eq_u32 vcc, s100, v{reg+3}')
    if FUSE:
        res_dma('S')
        a('s_cmp_lg_u32 s3, 0')
        a('s_cbranch_scc1 K2_POLLA_DONE')
        a('s_mov_b32 s59, 0x10000')
        a.lab('K2_POLLA')
        poll_issue(WF)
        a('s_waitcnt vmcnt(0)')
        poll_masks(WF)
        a('s_and_b32 s56, s56, 0xfff')
        a('s_and_b32 s62, vcc_lo, 0x7ff')
        a('s_lshl_b32 s62, s62, 12')
        a('s_or_b32 s56, s56, s62')
        a('s_cmp_eq_u32 s56, 0x7fffff')
        a('s_cbranch_scc1 K2_POLLA_DONE')
        a('s_sleep 4')
        a('s_sub_u32 s59, s59, 1')
        a('s_cmp_lg_u32 s59, 0')
        a('s_cbranch_scc1 K2_POLLA')
        a.lab('K2_POLLA_DONE')
        a.stamp(2)
        a('s_waitcnt lgkmcnt(0)')
        a('s_barrier')
        a.stamp(3)
        a(f'v_mbcnt_lo_u32_b32 v{LANE}, -1, 0')
        a(f'v_mbcnt_hi_u32_b32 v{LANE}, -1, v{LANE}')
        a(f'v_mul_u32_u24 v{TMP}, {NG*4}, v{LANE}')
        a('s_lshl_b32 s17, s14, 2')
        a(f'buffer_load_dword v{TMP+1}, v{TMP}, s[20:23], s17 offen sc1')
        wb_and_table()
        a('s_waitcnt vmcnt(0)')
        a(f'v_lshlrev_b32 v{TMP+2}, 4, v{LANE}')
        a('s_lshl_b32 s17, s3, 10')
        a(f'v_add_u32 v{TMP+2}, s17, v{TMP+2}')
        a(f'ds_write_b128 v{TMP+2}, v[{GA}:{GA+3}] offset:1024')
        a(f's_cmp_ge_u32 s3, {NHOT_KB-12}')
        a('s_cbranch_scc1 K2_TABW_DONE')
        a(f'ds_write_b128 v{TMP+2}, v[{GA+4}:{GA+7}] offset:{1024+12288}')
        a.lab('K2_TABW_DONE')
    CNT = SRC; ST = SRC+1; P = SRC+2; LOCB = SRC+3; KK = SRC+4; POS = SRC+5; KHI = SRC+6
    H = TMP+1
    def header():
        a(f'v_lshrrev_b32 v{CNT}, 16, v{H}')
        a(f'v_and_b32 v{ST}, 0xffff, v{H}')
        a(f'v_mov_b32 v{P}, v{CNT}')
        scan64(a, P)
    PFPOS = os.environ.get('PFPOS','N')
    PFF = os.environ.get('PFF','sc1')
    def pf_setup():
        a('s_lshr_b32 s61, s2, 3')
        a('s_mul_i32 s61, s61, 12')
        a('s_add_u32 s61, s61, s3                ; chunk 0..383')
    def pf_A(lo, hi, reg):
        a('s_mul_i32 s17, s13, 2560000')
        a('s_add_u32 s64, s10, s17')
        a('s_addc_u32 s65, s11, 0')
        a('s_mov_b32 s66, 2560000')
        a('s_mov_b32 s67, 0x00020000')
        a(f's_mul_i32 s62, s61, {53*128}')
        a(f's_add_u32 s62, s62, {lo*128}')
        a(f'v_lshlrev_b32 v{reg}, 7, v{LANE}')
        a(f'v_add_u32 v{reg}, s62, v{reg}')
        a(f'v_cmp_gt_u32 vcc, {hi-lo}, v{LANE}')
        a('s_mov_b64 exec, vcc')
        a(f'buffer_load_dword v{reg+1}, v{reg}, s[64:67], 0 offen {PFF}')
        a('s_mov_b64 exec, -1')
    def pf_B(reg):
        a('s_mul_i32 s17, s13, 640000')
        a(f's_add_u32 s17, s17, {WS_TB}')
        a('s_add_u32 s64, s10, s17')
        a('s_addc_u32 s65, s11, 0')
        a('s_mov_b32 s66, 640000')
        a('s_mov_b32 s67, 0x00020000')
        a(f's_mul_i32 s62, s61, {14*128}')
        a(f'v_lshlrev_b32 v{reg}, 7, v{LANE}')
        a(f'v_add_u32 v{reg}, s62, v{reg}')
        a(f'v_cmp_gt_u32 vcc, 14, v{LANE}')
        a('s_mov_b64 exec, vcc')
        a(f'buffer_load_dword v{reg+1}, v{reg}, s[64:67], 0 offen {PFF}')
        a('s_mov_b64 exec, -1')
    PR = GA+24
    npf = 0
    if PFPOS in 'ABC': pf_setup()
    if PFPOS == 'A':
        pf_A(0, 53, PR); pf_B(PR+2); npf = 2
    if PFPOS == 'C':
        pf_B(PR+2); pf_A(0, 10, PR); npf = 2
    a(f's_waitcnt vmcnt({npf}) lgkmcnt(0)')
    a('s_barrier')
    a.stamp(1)
    header()
    a(f'v_readlane_b32 s19, v{P}, 63             ; M')
    a(f'v_sub_u32 v{P}, v{P}, v{CNT}')
    a(f'v_lshl_add_u32 v{LOCB}, v{LANE}, 12, v{ST}   ; w*4096 + start')
    if not FUSE: a.stamp(2)
    a.lab('K2_CHUNK')
    a(f'v_sub_u32 v{KK}, s52, v{P}')
    a(f'v_max_i32 v{KK}, 0, v{KK}')
    NFAST = 12
    a('s_cmp_gt_u32 s19, 256')
    a('s_cbranch_scc1 K2_FILL')
    a(f'v_lshlrev_b32 v{POS}, 2, v{P}')
    a(f'v_add_u32 v{POS}, s18, v{POS}')
    a(f'v_mov_b32 v{KHI}, v{LOCB}')
    for k in range(NFAST):
        a(f'v_cmp_lt_u32 vcc, {k}, v{CNT}')
        a('s_cbranch_vccz K2_FILL_DONE')
        a('s_mov_b64 exec, vcc')
        a(f'ds_write_b32 v{POS}, v{KHI} offset:{4*k}')
        a(f'v_add_u32 v{KHI}, 1, v{KHI}')
    a('s_mov_b64 exec, -1')
    a(f'v_mov_b32 v{KK}, {NFAST}')
    a.lab('K2_FILL')
    a(f'v_add_u32 v{POS}, v{P}, v{KK}')
    a(f'v_subrev_u32 v{POS}, s52, v{POS}')
    a(f'v_cmp_lt_u32 s[56:57], v{KK}, v{CNT}')
    a(f'v_cmp_gt_u32 vcc, 256, v{POS}')
    a('s_and_b64 vcc, vcc, s[56:57]')
    a('s_cbranch_vccz K2_FILL_DONE')
    a(f'v_lshlrev_b32 v{POS}, 2, v{POS}')
    a(f'v_add_u32 v{POS}, s18, v{POS}')
    a(f'v_add_u32 v{KHI}, v{LOCB}, v{KK}')
    a('s_mov_b64 exec, vcc')
    a(f'ds_write_b32 v{POS}, v{KHI}')
    a('s_mov_b64 exec, -1')
    a(f'v_add_u32 v{KK}, 1, v{KK}')
    a('s_branch K2_FILL')
    a.lab('K2_FILL_DONE')
    a('s_mov_b64 exec, -1')
    if not FUSE: a.stamp(3)
    a('s_sub_u32 s55, s19, s52')
    a('s_min_u32 s55, s55, 256                   ; n_c')
    a('s_add_u32 s58, s55, 31')
    a('s_lshr_b32 s58, s58, 5')
    a('s_lshl_b32 s59, s58, 5')
    a('s_add_u32 s59, s59, 32                    ; npad')
    a('s_and_b32 s54, s55, 31')
    a('s_sub_u32 s54, s54, 1')
    a('s_cmp_lt_u32 s54, 16')
    a('s_cselect_b32 s54, 1, 0')
    a('s_sub_u32 s58, s58, s54')
    RC = GA; LA = GB
    a(f'v_lshlrev_b32 v{TMP}, 2, v{LANE}')
    a(f'v_add_u32 v{TMP}, s18, v{TMP}')
    for j in range(5):
        a(f'ds_read_b32 v{LA+j}, v{TMP} offset:{256*j}')
    a(f'v_mov_b32 v{TMP+2}, 0x80000000')
    for j in range(5):
        if j >= 1:
            a(f's_cmp_le_u32 s59, {64*j}')
            a('s_cbranch_scc1 K2_REC_ISSUED')
        a(f'v_add_u32 v{TMP+1}, {64*j}, v{LANE}')
        a(f'v_cmp_gt_u32 vcc, s55, v{TMP+1}')
        a(f's_waitcnt lgkmcnt({4-j})')
        a(f'v_lshlrev_b32 v{LA+j}, 4, v{LA+j}')
        a(f'v_cndmask_b32 v{LA+j}, v{TMP+2}, v{LA+j}, vcc')
        a(f'buffer_load_dwordx4 v[{RC+4*j}:{RC+4*j+3}], v{LA+j}, s[24:27], 0 offen {SC}')
    a.lab('K2_REC_ISSUED')
    if FUSE:
        a('s_or_b32 s62, s3, s52')
        a('s_cmp_lg_u32 s62, 0')
        a('s_cbranch_scc1 K2_NOPB')
        poll_issue(WF)
        a.lab('K2_NOPB')
        a(f'v_mbcnt_lo_u32_b32 v{LANE}, -1, 0')
        a(f'v_mbcnt_hi_u32_b32 v{LANE}, -1, v{LANE}')
    a(f'v_and_b32 v{TMP}, 3, v{LANE}')
    a(f'v_lshlrev_b32 v{TMP}, 3, v{TMP}')
    a(f'v_bfe_u32 v{TMP+1}, v{LANE}, 2, 3')
    a(f'v_or_b32 v{TMP}, v{TMP}, v{TMP+1}')
    a(f'v_and_b32 v{TMP+1}, 32, v{LANE}')
    a(f'v_or_b32 v{TMP+3}, v{TMP}, v{TMP+1}')
    a(f'v_lshlrev_b32 v{TMP}, 2, v{TMP+3}')
    a(f'v_add_u32 v{TMP}, s18, v{TMP}')
    npf2 = 0
    if PFPOS in 'BC':
        a('s_cmp_lg_u32 s52, 0')
        a('s_cbranch_scc1 K2_NOPF')
        if PFPOS == 'B':
            pf_A(0, 53, PR); pf_B(PR+2); npf2 = 2
        else:
            pf_A(10, 53, PR+4); npf2 = 1
        a.lab('K2_NOPF')
    a(f'v_lshlrev_b32 v{TMP+1}, 1, v{TMP+3}')
    a(f'v_add_u32 v{TMP+1}, s18, v{TMP+1}')
    if npf2:
        a('s_cmp_lg_u32 s52, 0')
        a('s_cbranch_scc1 K2_RW0')
        a(f's_waitcnt vmcnt({npf2}) lgkmcnt(0)')
        a('s_branch K2_RW1')
        a.lab('K2_RW0')
        a('s_waitcnt vmcnt(0) lgkmcnt(0)')
        a.lab('K2_RW1')
    else:
        a('s_waitcnt vmcnt(0) lgkmcnt(0)')
    a.stamp(4)
    if FUSE:
        a('s_or_b32 s62, s3, s52')
        a('s_cmp_lg_u32 s62, 0')
        a('s_cbranch_scc1 K2_PB_DONE')
        a('s_mov_b32 s61, 0x10000')
        a.lab('K2_POLLB')
        poll_masks(WF)
        a('s_and_b64 s[56:57], s[56:57], vcc')
        a('s_cmp_eq_u64 s[56:57], -1')
        a('s_cbranch_scc1 K2_PB_OK')
        a('s_sleep 4')
        poll_issue(WF)
        a('s_waitcnt vmcnt(0)')
        a('s_sub_u32 s61, s61, 1')
        a('s_cmp_lg_u32 s61, 0')
        a('s_cbranch_scc1 K2_POLLB')
        a.lab('K2_PB_OK')
        a(f'v_mov_b32 v{WF}, {LBF}')
        a(f'v_mov_b32 v{WF+1}, 1')
        a(f'ds_write_b32 v{WF}, v{WF+1}')
        a.lab('K2_PB_DONE')
    for j in range(5):
        if j >= 1:
            a(f's_cmp_le_u32 s59, {64*j}')
            a('s_cbranch_scc1 K2_SOA_DONE')
        r = RC+4*j
        a(f'v_xor_b32 v{r}, v{TMP+2}, v{r}')
        a(f'ds_write_b32 v{TMP}, v{r} offset:{O_SRC+256*j}')
        a(f'ds_write_b32 v{TMP}, v{r+3} offset:{O_AOF+256*j}')
        a(f'ds_write_b16 v{TMP+1}, v{r+1} offset:{O_RX+128*j}')
        a(f'ds_write_b16_d16_hi v{TMP+1}, v{r+1} offset:{O_RY+128*j}')
        a(f'ds_write_b16 v{TMP+1}, v{r+2} offset:{O_RZ+128*j}')
        a(f'ds_write_b16_d16_hi v{TMP+1}, v{r+2} offset:{O_OH+128*j}')
    a.lab('K2_SOA_DONE')
    a(f'v_lshrrev_b32 v{TMP}, 4, v{LANE}          ; q')
    a(f'v_lshlrev_b32 v{V_A1}, 5, v{TMP}            ; q*8*4')
    a(f'v_add_u32 v{V_A1}, s18, v{V_A1}')
    a(f'v_lshlrev_b32 v{V_A2}, 4, v{TMP}            ; q*8*2')
    a(f'v_add_u32 v{V_A2}, s18, v{V_A2}')
    a(f'v_lshrrev_b32 v{TMP}, 2, v{V_C}             ; rho>>2')
    a(f'v_and_b32 v{TMP+1}, 3, v{V_C}')
    a(f'v_lshl_add_u32 v{TMP}, v{TMP}, 3, v{TMP+1}   ; 8*(rho>>2)+(rho&3)')
    a(f'v_lshlrev_b32 v{V_A3}, 2, v{TMP}')
    a(f'v_add_u32 v{V_A3}, s18, v{V_A3}')
    a('s_add_u32 s53, s58, s54')
    a('s_cmp_eq_u32 s53, 0')
    a('s_cbranch_scc1 K2_NOTILES')
    X = os.environ.get('X','')
    def issue_row(i):
        t = T4 + (i & 1)
        a(f'v_add_u32 v{t}, v{SRC+i}, v{V_C}')
        if 'L' in X: return
        a(f'buffer_load_dwordx4 v[{gA(i,0)}:{gA(i,3)}], v{t}, s[44:47], 0 idxen {SC}')
        if not os.environ.get('NOB'): a(f'buffer_load_dword v{GB+i}, v{t}, s[48:51], 0 idxen {SC}')
    def read_src(off):
        a(f'ds_read_b128 v[{SRC}:{SRC+3}], v{V_A1} offset:{O_SRC+off}')
        a(f'ds_read_b128 v[{SRC+4}:{SRC+7}], v{V_A1} offset:{O_SRC+off+16}')
    rare_id = [0]
    def load_A(ao0, ao1, tmp):
        k = rare_id[0]; rare_id[0] += 1
        a(f'v_or_b32 v{tmp}, v{ao0}, v{ao1}')
        a(f'v_cmp_gt_i32 vcc, 0, v{tmp}')
        a(f's_cbranch_vccnz K2_RARE{k}')
        a(f'v_add_u32 v{ao0}, v{ao0}, v{V_KQ8}')
        a(f'v_add_u32 v{ao1}, v{ao1}, v{V_KQ8}')
        a(f'ds_read_b64 v[{AOP}:{AOP+1}], v{ao0}')
        a(f'ds_read_b64 v[{AOP+2}:{AOP+3}], v{ao1}')
        a.lab(f'K2_RARE_BACK{k}')
        return (k, ao0, ao1)
    rares = []
    if FUSE:
        a(f'v_mov_b32 v{WF}, {LBF}')
        a('s_mov_b32 s61, 0x200000')
        a.lab('K2_TSPIN')
        a(f'ds_read_b32 v{WF+1}, v{WF}')
        a('s_waitcnt lgkmcnt(0)')
        a(f'v_readfirstlane_b32 s62, v{WF+1}')
        a('s_cmp_lg_u32 s62, 0')
        a('s_cbranch_scc1 K2_TOK')
        a('s_sub_u32 s61, s61, 1')
        a('s_cmp_lg_u32 s61, 0')
        a('s_cbranch_scc1 K2_TSPIN')
        a.lab('K2_TOK')
    read_src(0)
    a(f'ds_read_b32 v{TMP+2}, v{V_A3} offset:{O_AOF}')
    a(f'ds_read_b32 v{TMP+3}, v{V_A3} offset:{O_AOF+16}')
    a('s_waitcnt lgkmcnt(2)')
    for i in range(8): issue_row(i)
    a.stamp(5)
    a('s_waitcnt lgkmcnt(0)')
    rares.append(load_A(TMP+2, TMP+3, T4))
    a('s_waitcnt lgkmcnt(0)')
    def wf1(t, R, seg):
        if 'M' in X: return
        a(f'v_mfma_f32_16x16x16_bf16 v[{wf(seg,R)}:{wf(seg,R)+3}], v[{AOP+2*R}:{AOP+2*R+1}], v[{wb(seg,t)}:{wb(seg,t)+1}], 0')
    def seg1(t, ac, m, mc):
        if 'M' in X: return
        a(f'v_mfma_f32_16x16x32_bf16 v[{acc(ac,t)}:{acc(ac,t)+3}], v[{SM+4*m}:{SM+4*m+3}], v[{msg(mc)}:{msg(mc)+3}], v[{acc(ac,t)}:{acc(ac,t)+3}]')
    for seg in (1, 2, 0): wf1(0, 0, seg)
    for r in range(TMP, TMP+4): a(f'v_mov_b32 v{r}, 0')
    a.nop(4)
    if Asm.STAMPS:
        a('s_lshl_b32 s69, s3, 6')
        a(f's_add_u32 s69, s69, {K2_LDS}')
    a('s_cmp_eq_u32 s58, 0')
    a('s_cbranch_scc1 K2_HALF')
    a.lab('K2_TILE')
    if Asm.STAMPS:
        a('s_memrealtime s[90:91]')
        a('s_waitcnt lgkmcnt(0)')
        a(f'v_mov_b32 v{T4}, s90')
        a(f'v_mov_b32 v{T5}, s69')
        a(f'ds_write_b32 v{T5}, v{T4}')
        a('s_add_u32 s69, s69, 4')
    PRIO = os.environ.get('PRIO','1')
    if PRIO == '1':
        a('s_cmp_ge_u32 s58, 4')
        a('s_cbranch_scc1 K2_P2')
        a('s_cmp_ge_u32 s58, 2')
        a('s_cbranch_scc1 K2_P1')
        a('s_setprio 0')
        a('s_branch K2_PDONE')
        a.lab('K2_P1'); a('s_setprio 1'); a('s_branch K2_PDONE')
        a.lab('K2_P2'); a('s_setprio 2')
        a.lab('K2_PDONE')
    if PRIO == '2':
        a('s_cmp_ge_u32 s58, 4')
        a('s_cbranch_scc1 K2_P3')
        a('s_cmp_eq_u32 s58, 3')
        a('s_cbranch_scc1 K2_P2')
        a('s_cmp_eq_u32 s58, 2')
        a('s_cbranch_scc1 K2_P1')
        a('s_setprio 0')
        a('s_branch K2_PDONE')
        a.lab('K2_P1'); a('s_setprio 1'); a('s_branch K2_PDONE')
        a.lab('K2_P2'); a('s_setprio 2'); a('s_branch K2_PDONE')
        a.lab('K2_P3'); a('s_setprio 3')
        a.lab('K2_PDONE')
    SEG = [1, 1, 1, 2, 0]
    X_, Y_, Z_, VR_, S_ = 0, 1, 2, 3, 4
    groups = []
    for c in range(5): groups.append((0, (0, c), (2, c)))
    for c in range(5): groups.append((0, (4, c), (6, c)))
    pm = [(0, 0), (0, 1), (0, 2), (0, 3), (0, 4), (2, 0), (2, 1), (2, 2), (2, 3), (2, 4)]
    for k in range(5): groups.append((1, pm[2*k], pm[2*k+1]))
    for c in range(5): groups.append((1, (4, c), (6, c)))
    def unpack(t, i, comp, u):
        s0 = gA(i, comp) if comp < 4 else GB+i
        s1 = gA(i+1, comp) if comp < 4 else GB+i+1
        if 'V' in X: return
        if t == 0:
            a(f'v_lshlrev_b32 v{u}, 16, v{s0}'); a(f'v_lshlrev_b32 v{u+1}, 16, v{s1}')
        else:
            a(f'v_and_b32 v{u}, 0xffff0000, v{s0}'); a(f'v_and_b32 v{u+1}, 0xffff0000, v{s1}')
    def pk(t, i, comp, u):
        R = i >> 2; r = i & 3; seg = SEG[comp]
        if 'V' in X: return
        a(f'v_pk_mul_f32 v[{u}:{u+1}], v[{u}:{u+1}], v[{wf(seg,R,r)}:{wf(seg,R,r+1)}]')
    def cvt(g):
        t, (i0_, c0), (i1_, c1) = groups[g]
        if 'V' in X: return
        a(f'v_cvt_pk_bf16_f32 v{msg(c0,i0_//2)}, v{TMP}, v{TMP+1}')
        a(f'v_cvt_pk_bf16_f32 v{msg(c1,i1_//2)}, v{TMP+2}, v{TMP+3}')
    def block(g, slot):
        t, (i0_, c0), (i1_, c1) = groups[g]
        if slot: slot()
        cvt((g-1) % 20)
        unpack(t, i0_, c0, TMP); unpack(t, i1_, c1, TMP+2)
        pk(t, i0_, c0, TMP); pk(t, i1_, c1, TMP+2)
    SS = {X_: (1, 0, 0), Y_: (2, 0, 1), Z_: (3, 0, 2), S_: (0, 0, 4), 'vx': (1, 1, 3), 'vy': (2, 2, 3), 'vz': (3, 3, 3)}
    def sg(t, k): return lambda: seg1(t, *SS[k])
    def wfl(t, R, seg): return lambda: wf1(t, R, seg)
    slots = {0: sg(1,'vx'), 1: sg(1,'vy'), 2: sg(1,'vz'), 3: sg(1,S_),
             4: wfl(0,1,1), 5: wfl(0,1,2), 6: wfl(0,1,0),
             7: sg(0,X_), 8: sg(0,Y_), 9: sg(0,Z_), 10: sg(0,'vx'), 11: sg(0,'vy'), 12: sg(0,'vz'), 13: sg(0,S_),
             14: wfl(1,1,1), 15: wfl(1,1,2), 16: wfl(1,1,0), 17: sg(1,X_), 18: sg(1,Y_), 19: sg(1,Z_)}
    VW = (lambda n: n//2) if os.environ.get('NOB') else (lambda n: n)
    for g in range(20):
        if g == 0: a(f's_waitcnt vmcnt({VW(8)})')
        if g == 5: a('s_waitcnt vmcnt(0)')
        block(g, slots[g])
        if g == 3:
            wf1(1, 0, 1)
            a(f'ds_read_b128 v[{SM}:{SM+3}], v{V_A2} offset:{O_OH}')
            a(f'ds_read_b128 v[{SM+4}:{SM+7}], v{V_A2} offset:{O_RX}')
            a(f'ds_read_b128 v[{SM+8}:{SM+11}], v{V_A2} offset:{O_RY}')
            a(f'ds_read_b128 v[{SM+12}:{SM+15}], v{V_A2} offset:{O_RZ}')
            read_src(128)
        if g == 6:
            a('s_waitcnt lgkmcnt(2)')
            wf1(1, 0, 2)
            for j in range(4): a(f'v_pk_lshlrev_b16 v{SM+j}, v{V_SHL}, v{SM+j}')
            for j in range(4): a(f'v_pk_ashrrev_i16 v{SM+j}, 15, v{SM+j} op_sel_hi:[0,1]')
            wf1(1, 0, 0)
            for m in (1, 2, 3):
                for j in range(4): a(f'v_and_b32 v{SM+4*m+j}, v{SM+j}, v{SM+4*m+j}')
            for j in range(4): a(f'v_and_b32 v{SM+j}, 0x3f803f80, v{SM+j}')
            a(f'v_add_u32 v{V_A1}, 128, v{V_A1}')
            a(f'v_add_u32 v{V_A2}, 64, v{V_A2}')
        if g == 9: a('s_waitcnt lgkmcnt(0)')
        if g == 12:
            issue_row(0); issue_row(1)
            a(f'ds_read_b32 v{SRC}, v{V_A3} offset:{O_AOF+128}')
            a(f'ds_read_b32 v{SRC+1}, v{V_A3} offset:{O_AOF+128+16}')
        if g == 14:
            issue_row(2); issue_row(3)
        if g == 16:
            a('s_waitcnt lgkmcnt(0)')
            rares.append(load_A(SRC, SRC+1, T4))
        if g == 19:
            issue_row(4)
            a('s_waitcnt lgkmcnt(0)')
            wf1(0, 0, 1)
            issue_row(5);
            wf1(0, 0, 2)
            issue_row(6)
            wf1(0, 0, 0)
            issue_row(7)
    a(f'v_add_u32 v{V_A3}, 128, v{V_A3}')
    res_dma('A')
    a('s_sub_u32 s58, s58, 1')
    a('s_cmp_lg_u32 s58, 0')
    a('s_cbranch_scc1 K2_TILE')
    a('s_cmp_eq_u32 s54, 0')
    a('s_cbranch_scc1 K2_FLUSH')
    a.lab('K2_HALF')
    a('s_setprio 0')
    hslots = {0: sg(1,'vx'), 1: sg(1,'vy'), 2: sg(1,'vz'), 3: sg(1,S_), 4: None}
    for g in range(5):
        if g == 0: a(f's_waitcnt vmcnt({VW(8)})')
        block(g, hslots[g])
        if g == 3:
            wf1(1, 0, 1)
            a(f'ds_read_b128 v[{SM}:{SM+3}], v{V_A2} offset:{O_OH}')
            a(f'ds_read_b128 v[{SM+4}:{SM+7}], v{V_A2} offset:{O_RX}')
            a(f'ds_read_b128 v[{SM+8}:{SM+11}], v{V_A2} offset:{O_RY}')
            a(f'ds_read_b128 v[{SM+12}:{SM+15}], v{V_A2} offset:{O_RZ}')
    cvt(4)
    for c in range(5):
        a(f'v_mov_b32 v{msg(c,2)}, 0'); a(f'v_mov_b32 v{msg(c,3)}, 0')
    a('s_waitcnt lgkmcnt(0)')
    wf1(1, 0, 2)
    for j in range(4): a(f'v_pk_lshlrev_b16 v{SM+j}, v{V_SHL}, v{SM+j}')
    for j in range(4): a(f'v_pk_ashrrev_i16 v{SM+j}, 15, v{SM+j} op_sel_hi:[0,1]')
    wf1(1, 0, 0)
    for m in (1, 2, 3):
        for j in range(4): a(f'v_and_b32 v{SM+4*m+j}, v{SM+j}, v{SM+4*m+j}')
    for j in range(4): a(f'v_and_b32 v{SM+j}, 0x3f803f80, v{SM+j}')
    a('s_nop 1')
    seg1(0, *SS[X_]); seg1(0, *SS[Y_]); seg1(0, *SS[Z_])
    def block_nocvt(g, slot):
        t, (i0_, c0), (i1_, c1) = groups[g]
        if slot: slot()
        unpack(t, i0_, c0, TMP); unpack(t, i1_, c1, TMP+2)
        pk(t, i0_, c0, TMP); pk(t, i1_, c1, TMP+2)
    block_nocvt(10, sg(0,'vx'))
    seg1(0, *SS['vy'])
    block(11, sg(0,'vz'))
    block(12, sg(0,S_))
    block(13, None)
    block(14, None)
    cvt(14)
    a('s_nop 1')
    for k in (X_, Y_, Z_, 'vx', 'vy', 'vz', S_): seg1(1, *SS[k])
    a('s_waitcnt vmcnt(0) lgkmcnt(0)')
    a('s_branch K2_TILES_DONE')
    a.lab('K2_FLUSH')
    cvt(19)
    for k in ('vx', 'vy', 'vz'): seg1(1, *SS[k])
    seg1(1, *SS[S_])
    a('s_waitcnt vmcnt(0) lgkmcnt(0)')
    a('s_branch K2_TILES_DONE')
    a.lab('K2_NOTILES')
    a.lab('K2_TILES_DONE')
    a.stamp(6)
    a('s_add_u32 s52, s52, 256')
    a('s_cmp_ge_u32 s52, s19')
    a('s_cbranch_scc1 K2_EPI')
    for r in range(SM, SM+16): a(f'v_mov_b32 v{r}, 0')
    a(f'v_mbcnt_lo_u32_b32 v{LANE}, -1, 0')
    a(f'v_mbcnt_hi_u32_b32 v{LANE}, -1, v{LANE}')
    a(f'v_mul_u32_u24 v{TMP}, {NG*4}, v{LANE}')
    a('s_lshl_b32 s17, s14, 2')
    a(f'buffer_load_dword v{TMP+1}, v{TMP}, s[20:23], s17 offen {SC}')
    a('s_waitcnt vmcnt(0)')
    header()
    a(f'v_sub_u32 v{P}, v{P}, v{CNT}')
    a(f'v_lshl_add_u32 v{LOCB}, v{LANE}, 12, v{ST}')
    a('s_branch K2_CHUNK')
    for (k, ao0, ao1) in rares:
        a.lab(f'K2_RARE{k}')
        a(f'v_max_i32 v{T4}, 0, v{ao0}')
        a(f'v_max_i32 v{T5}, 0, v{ao1}')
        a(f'v_add_u32 v{T4}, v{T4}, v{V_KQ8}')
        a(f'v_add_u32 v{T5}, v{T5}, v{V_KQ8}')
        a(f'ds_read_b64 v[{AOP}:{AOP+1}], v{T4}')
        a(f'ds_read_b64 v[{AOP+2}:{AOP+3}], v{T5}')
        a('s_waitcnt lgkmcnt(0)')
        for h, ao in ((0, ao0), (1, ao1)):
            a(f'v_cmp_gt_i32 vcc, 0, v{ao}')
            a(f'v_and_b32 v{T4}, 0x7fffffff, v{ao}')
            a(f'v_add_u32 v{T4}, v{T4}, v{V_KQ8}')
            a('s_and_saveexec_b64 s[62:63], vcc')
            a(f's_cbranch_execz K2_RSK{k}_{h}')
            a(f'buffer_load_dwordx2 v[{AOP+2*h}:{AOP+2*h+1}], v{T4}, s[28:31], 0 offen {SC}')
            a('s_waitcnt vmcnt(0)')
            a.lab(f'K2_RSK{k}_{h}')
            a('s_mov_b64 exec, s[62:63]')
        a(f's_branch K2_RARE_BACK{k}')
    a.lab('K2_EPI')
    res_dma('B')
    a('s_waitcnt vmcnt(0)')
    LN = T4
    a(f'v_mbcnt_lo_u32_b32 v{LN}, -1, 0')
    a(f'v_mbcnt_hi_u32_b32 v{LN}, -1, v{LN}')
    a('s_lshl_b32 s62, s3, 12')
    a(f's_add_u32 s62, s62, {RES0}')
    a(f'v_lshrrev_b32 v{T5}, 4, v{LN}')
    a(f'v_lshlrev_b32 v{T5}, 10, v{T5}')
    a(f'v_lshl_add_u32 v{T5}, v{V_C}, 2, v{T5}')
    a(f'v_add_u32 v{T5}, s62, v{T5}')
    for r in range(4):
        for comp in range(4):
            a(f'ds_read_b32 v{GA+r*4+comp}, v{T5} offset:{r*256+comp*64}')
    a('s_waitcnt lgkmcnt(0)')
    for r in range(4):
        for comp in range(4):
            x = GA+r*4+comp
            a(f'v_lshlrev_b32 v{TMP}, 16, v{x}')
            a(f'v_and_b32 v{TMP+1}, 0xffff0000, v{x}')
            a(f'v_add_f32 v{TMP}, v{TMP}, v{acc(comp,0)+r}')
            a(f'v_add_f32 v{TMP+1}, v{TMP+1}, v{acc(comp,1)+r}')
            a(f'v_cvt_pk_bf16_f32 v{x}, v{TMP}, v{TMP+1}')
            a(f'ds_write_b32 v{T5}, v{x} offset:{r*256+comp*64}')
    a(f'v_lshlrev_b32 v{TMP}, 4, v{LN}')
    a(f'v_add_u32 v{TMP}, s62, v{TMP}')
    for j in range(4):
        a(f'ds_read_b128 v[{MSG+4*j}:{MSG+4*j+3}], v{TMP} offset:{1024*j}')
    a(f'v_lshrrev_b32 v{T5}, 4, v{LN}')
    a(f'v_lshlrev_b32 v{TMP+1}, 10, v{T5}')
    a(f'v_bfe_u32 v{TMP+2}, v{LN}, 2, 2')
    a(f'v_lshl_add_u32 v{TMP+1}, v{TMP+2}, 8, v{TMP+1}')
    a(f'v_and_b32 v{TMP+2}, 3, v{LN}')
    a(f'v_lshl_add_u32 v{TMP+1}, v{TMP+2}, 4, v{TMP+1}')
    a('s_lshl_b32 s61, s15, 10')
    a('s_lshl_b32 s62, s13, 6')
    a('s_add_u32 s61, s61, s62')
    a(f'v_mov_b32 v{TMP+2}, 0x80000000')
    for j in range(4):
        a(f'v_add_u32 v{TMP+3}, {4*j}, v{T5}')
        a(f'v_cmp_gt_u32 vcc, s16, v{TMP+3}')
        a('s_nop 1')
        a(f'v_cndmask_b32 v{WF+j}, v{TMP+2}, v{TMP+1}, vcc')
    for j in range(4):
        a(f's_waitcnt lgkmcnt({3-j})')
        a(f'buffer_store_dwordx4 v[{MSG+4*j}:{MSG+4*j+3}], v{WF+j}, s[36:39], s61 offen {OUTST}')
        a('s_add_u32 s61, s61, 4096')
    a.stamp(7)
    if Asm.STAMPS:
        a('s_memtime s[86:87]')
        a('s_waitcnt lgkmcnt(0)')
        a('s_sub_u32 s84, s86, s88')
        a('s_lshl_b32 s68, s3, 6')
        a(f's_add_u32 s68, s68, {K2_LDS}')
        a(f'v_lshlrev_b32 v2, 2, v{LN}')
        a('v_add_u32 v3, s68, v2')
        a('ds_read_b32 v4, v3')
        a('s_add_u32 s64, s10, 0x1A00000')
        a('s_addc_u32 s65, s11, 0')
        a('s_mov_b32 s66, 0x100000')
        a('s_mov_b32 s67, 0x00020000')
        a('s_lshl_b32 s68, s2, 4')
        a('s_add_u32 s68, s68, s3')
        a('s_lshl_b32 s68, s68, 6')
        a('s_waitcnt lgkmcnt(0)')
        a('s_mov_b64 exec, 0xffff')
        a('buffer_store_dword v4, v2, s[64:67], s68 offen')
        a('s_mov_b64 exec, -1')
    if Asm.STAMPS and FUSE:
        a('s_lshl_b32 s68, s3, 5')
        a('s_add_u32 s68, s68, 155712')
        a(f'v_mbcnt_lo_u32_b32 v2, -1, 0')
        a(f'v_mbcnt_hi_u32_b32 v2, -1, v2')
        a('v_lshlrev_b32 v2, 2, v2')
        a('v_add_u32 v3, s68, v2')
        a('ds_read_b32 v4, v3')
        a('s_add_u32 s64, s10, 0x1800000')
        a('s_addc_u32 s65, s11, 0')
        a('s_mov_b32 s66, 0x100000')
        a('s_mov_b32 s67, 0x00020000')
        a('s_lshl_b32 s68, s2, 4')
        a('s_add_u32 s68, s68, s3')
        a('s_lshl_b32 s68, s68, 6')
        a('s_waitcnt lgkmcnt(0)')
        a('s_mov_b64 exec, 0xff')
        a('buffer_store_dword v4, v2, s[64:67], s68 offen')
        a('s_mov_b64 exec, -1')
    a.stamp_flush(1, 10, 8, 3)
    a.lab('K2_END')
    a('s_endpgm')
```

```python
import sys, os
sys.path.insert(0, 'gen')
from asmlib import *
import k1, k2

def kd(name, vgpr, sgpr):
    return f'''.amdhsa_kernel {name}
  .amdhsa_next_free_vgpr {vgpr}
  .amdhsa_next_free_sgpr {sgpr}
  .amdhsa_accum_offset {(vgpr+3)//4*4}
  .amdhsa_group_segment_fixed_size 0
  .amdhsa_kernarg_size 88
  .amdhsa_user_sgpr_count 2
  .amdhsa_user_sgpr_kernarg_segment_ptr 1
  .amdhsa_system_sgpr_workgroup_id_x 1
  .amdhsa_float_denorm_mode_32 3
.end_amdhsa_kernel
'''

hdr = f'''; PaiNN message passing (gather/scatter) for gfx950 -- generated by hand-written generator scripts
; @launch kernel=prep_kernel grid=(256,1,1) block=(768,1,1) lds={k1.K1_LDS}
; @launch kernel={k1.KNAME} grid=(256,1,1) block=(768,1,1) lds={k2.K2_LDS + (1024 if os.environ.get('STAMPS') else 0)}
.amdgcn_target "amdgcn-amd-amdhsa--gfx950"
.text
.globl prep_kernel
.globl {k1.KNAME}
'''
import os
Asm.STAMPS = bool(os.environ.get('STAMPS'))
FUSE = os.environ.get('FUSE','1') == '1'
seq = os.environ.get('SEQ','12')
lines = {'1': f'; @launch kernel=prep_kernel grid=(256,1,1) block=(768,1,1) lds={k1.K1_LDS}',
         '2': f'; @launch kernel={k1.KNAME} grid=(256,1,1) block=(768,1,1) lds={k2.K2_LDS + (1024 if os.environ.get("STAMPS") else 0)}',
         '0': '; @launch kernel=nop_kernel grid=(1,1,1) block=(64,1,1) lds=0'}
hl = hdr.split('\n')
hl = [l for l in hl if '@launch' not in l]
hl = hl[:3] + [lines[c] for c in seq] + hl[3:]
hdr = '\n'.join(hl)
if FUSE:
    hdr = f'''; PaiNN message passing (gather/scatter) for gfx950 -- generated by hand-written generator scripts
; @launch grid=(256,1,1) block=(768,1,1) lds={max(k1.K1_LDS, k2.K2_LDS) + (1024 if os.environ.get('STAMPS') else 0)}
.amdgcn_target "amdgcn-amd-amdhsa--gfx950"
.text
.globl {k1.KNAME}
'''
a1 = Asm(); k1.gen_k1(a1)
a2 = Asm(); k2.gen_k2(a2)
a3 = Asm(); k1.gen_k1_tail(a3)
p1 = check(a1.L + a2.L); p2 = check(a3.L)
nopk = '.globl nop_kernel\n.p2align 8\n.type nop_kernel,@function\nnop_kernel:\n    s_endpgm\n' if '0' in seq else ''
txt = hdr + a1.text() + a2.text() + nopk + '.section .rodata,"a"\n.p2align 6\n' + ((kd('nop_kernel', 8, 16) + '.p2align 6\n') if '0' in seq else '') + kd('prep_kernel', 136, 96) + '.p2align 6\n' + kd(k1.KNAME, k2.NV, 96)
out = sys.argv[1] if len(sys.argv) > 1 else 'gather_scatter__molecular_angular_painn__graph.s'
if FUSE:
    txt = hdr + a1.text() + a2.text() + a3.text() + '.section .rodata,"a"\n.p2align 6\n' + kd(k1.KNAME, k2.NV, 102)
open(out, 'w').write(txt)
print('written', out, len(txt), 'bytes; hazards:', len(p1), len(p2))
```

```python
from asmlib import *
import os
STT = os.environ.get('STT','sc1')
STO = os.environ.get('STO','sc1')
LDN = os.environ.get('LDN','')

N = 10000; E = 160000
NBIN = 47; CHUNK = 3405; NG = 768
WS_TA = 0; WS_TB = 10240000; WS_ATAB = 0xC80000; WS_WB = 0xC90000; WS_HDR = 0xCA0000; WS_TAILS = 0xD00000
HOT0 = 1472; NHOT_KB = 17
WS_FLAGS = 0xCF0000
FUSE = bool(os.environ.get('FUSE'))
KNAME = 'gather_scatter__molecular_angular_painn__graph_kernel'
COMP = bool(os.environ.get('COMP'))
DBASE = 0x38C0; DTHR = 0x409D
K1_LDS = 155712
S_BASE = 131072; HS_OFF = 12288

def srd(a, s, base, nbytes, off=0, stride=0):
    if off:
        a(f's_add_u32 s{s}, s{base}, 0x{off:x}')
        a(f's_addc_u32 s{s+1}, s{base+1}, 0')
    else:
        a(f's_mov_b32 s{s}, s{base}')
        a(f's_mov_b32 s{s+1}, s{base+1}')
    if stride:
        a(f's_or_b32 s{s+1}, s{s+1}, 0x{stride<<16:x}')
    a(f's_mov_b32 s{s+2}, {nbytes}')
    a(f's_mov_b32 s{s+3}, 0x00020000')

def gen_mlp(a):
    a.lab('K1_MLP')
    a.stamp(0)
    a('s_sub_u32 s24, s2, 47')
    a('s_mul_i32 s24, s24, 48          ; node0')
    a('s_lshr_b32 s22, s3, 2           ; nt')
    a('s_and_b32 s23, s3, 3            ; sl')
    srd(a, 28, 4, 10240000)
    srd(a, 32, 14, 32768)
    srd(a, 36, 16, 98304)
    a('s_mul_i32 s25, s23, 2560000')
    a('s_add_u32 s40, s20, s25')
    a('s_addc_u32 s41, s21, 0')
    a('s_mov_b32 s42, 2560000')
    a('s_mov_b32 s43, 0x00020000')
    a('s_mul_i32 s25, s23, 640000')
    a(f's_add_u32 s25, s25, {WS_TB}')
    a('s_add_u32 s44, s20, s25')
    a('s_addc_u32 s45, s21, 0')
    a('s_mov_b32 s46, 640000')
    a('s_mov_b32 s47, 0x00020000')
    FLAG = 155648
    a('v_lshrrev_b32 v3, 4, v2          ; L>>4')
    a('v_and_b32 v4, 15, v2             ; L&15')
    a('v_mov_b32 v5, 0')
    a(f'v_mov_b32 v6, {FLAG}')
    a('ds_write_b32 v6, v5')
    a('s_and_b32 s26, s3, 1')
    a('s_lshl_b32 s26, s26, 2           ; 4*(wv&1)')
    a('v_add_u32 v6, s26, v3            ; kl7')
    a('v_lshrrev_b32 v7, 1, v4          ; p>>1')
    a('v_xor_b32 v7, v7, v6')
    a('v_and_b32 v8, 1, v4')
    a('v_lshl_or_b32 v7, v7, 1, v8      ; lchunk')
    a('v_lshlrev_b32 v7, 4, v7          ; *16')
    a('v_lshl_add_u32 v6, v3, 8, v7')
    a('v_mul_u32_u24 v8, 768, v3')
    a('v_add_u32 v7, v8, v7             ; vW2')
    a('s_waitcnt lgkmcnt(0)')
    a('s_barrier')
    a('s_cmp_ge_u32 s3, 8')
    a('s_cbranch_scc1 K1_LOADER')
    a('s_lshl_b32 s25, s3, 2')
    a('v_add_u32 v5, s25, v3')
    a('v_and_b32 v9, 15, v5')
    a('v_xor_b32 v9, v4, v9             ; lchunk')
    a('v_add_u32 v5, s24, v5            ; node')
    a('v_lshlrev_b32 v5, 10, v5')
    a('v_lshl_add_u32 v5, v9, 4, v5')
    a('s_lshl_b32 s25, s3, 10')
    a(f's_add_u32 s25, s25, {S_BASE}')
    a('s_mov_b32 m0, s25')
    a('s_cmp_ge_u32 s3, 4')
    a(f'buffer_load_dwordx4 v5, s[28:31], 0 offen {LDN} lds')
    a('s_cbranch_scc1 K1_S2SKIP')
    a('s_add_u32 s25, s25, 8192')
    a('s_mov_b32 m0, s25')
    a('v_add_u32 v5, 0x8000, v5')
    a(f'buffer_load_dwordx4 v5, s[28:31], 0 offen {LDN} lds')
    a.lab('K1_S2SKIP')
    for j in range(4):
        a(f's_add_u32 s25, s3, {8*j}')
        a('s_lshl_b32 s26, s25, 10')
        a('s_mov_b32 m0, s26')
        a('s_nop 0')
        a('buffer_load_dwordx4 v6, s[32:35], s26 offen lds')
    a('s_branch K1_ADDR')
    a.lab('K1_LOADER')
    a('s_sub_u32 s49, s3, 8')
    for m in range(1, 4):
        for j in range(8):
            a(f's_add_u32 s25, s49, {4*j}')
            a('s_lshl_b32 s26, s25, 10')
            a(f's_add_u32 s26, s26, {m*32768}')
            a('s_mov_b32 m0, s26')
            a('s_mul_i32 s27, s25, 3072')
            a(f's_add_u32 s27, s27, {(m-1)*256}')
            a('buffer_load_dwordx4 v7, s[36:39], s27 offen lds')
    a.lab('K1_ADDR')
    a('s_lshl_b32 s25, s22, 4')
    a('s_add_u32 s25, s25, s24           ; node0+16nt')
    a('s_mov_b32 s48, s25')
    a('v_add_u32 v8, s25, v4')
    a('v_lshlrev_b32 v8, 10, v8')
    a('v_lshl_add_u32 v8, v3, 3, v8')
    a('s_lshl_b32 s26, s23, 6')
    a('s_add_u32 s26, s26, 256')
    a('v_add_u32 v8, s26, v8')
    VV = 10
    def vloads():
        for j in range(3):
            for hf in range(2):
                r = VV + (j*2+hf)*2
                a(f'buffer_load_dwordx2 v[{r}:{r+1}], v8, s[28:31], 0 offen offset:{j*256+32*hf} {LDN}')
    a('v_lshrrev_b32 v22, 2, v4           ; r\'')
    a('v_lshl_add_u32 v22, v3, 2, v22     ; 4kq + r\'')
    a('v_and_b32 v23, 7, v22              ; kl7')
    a('v_lshlrev_b32 v22, 8, v22')
    a('v_lshl_add_u32 v22, v23, 5, v22')
    a('v_and_b32 v23, 3, v4')
    a('v_lshl_add_u32 v22, v23, 3, v22    ; aBase')
    a('s_lshl_b32 s25, s23, 6             ; 2*sl*32')
    a('v_xor_b32 v24, s25, v22')
    a('v_xor_b32 v25, 32, v24             ; aW[hf=1]')
    a('v_add_u32 v26, 0x10000, v24        ; aW2[0] (+65536)')
    a('v_add_u32 v27, 0x10000, v25        ; aW2[1]')
    a('v_lshrrev_b32 v23, 1, v3')
    a('v_xor_b32 v23, v23, v4')
    a('v_lshlrev_b32 v23, 4, v23')
    a('v_and_b32 v28, 1, v3')
    a('v_lshl_add_u32 v23, v28, 3, v23')
    a('v_lshl_add_u32 v23, v4, 8, v23')
    a(f'v_add_u32 v23, {S_BASE}, v23      ; bBase0')
    VB = 28
    for st in range(4):
        for rd in range(2):
            k = (4*st + 2*rd)*16
            r = VB + st*2 + rd
            if k == 0: a(f'v_mov_b32 v{r}, v23')
            else: a(f'v_xor_b32 v{r}, {k}, v23')
    a('v_mov_b32 v38, 0xffff0000')
    a('s_cmp_ge_u32 s3, 8')
    a('s_cbranch_scc1 K1_LOADER2')
    a('s_lshl_b32 s25, s3, 5')
    a('v_xor_b32 v36, s25, v22')
    a('v_xor_b32 v37, s25, v23')
    a.stamp(1)
    a('s_waitcnt vmcnt(0)')
    a(f'v_mov_b32 v39, {FLAG}')
    a('v_mov_b32 v9, 1')
    a('s_mov_b64 exec, 1')
    a('ds_add_u32 v39, v9')
    a('s_mov_b64 exec, -1')
    a.lab('K1_SPIN')
    a('ds_read_b32 v9, v39')
    a('s_waitcnt lgkmcnt(0)')
    a('v_readfirstlane_b32 s25, v9')
    a('s_cmp_lt_u32 s25, 8')
    a('s_cbranch_scc1 K1_SPIN')
    a.stamp(2)
    AF = 56
    BL = 72
    D1 = 40
    for st in range(4):
        for rd in range(2):
            r = AF + st*4 + rd*2
            a(f'ds_read_b64_tr_b16 v[{r}:{r+1}], v36 offset:{st*8192+rd*4096}')
    for nt in range(3):
        for st in range(4):
            for rd in range(2):
                r = BL + nt*16 + st*4 + rd*2
                a(f'ds_read_b64 v[{r}:{r+1}], v{VB+st*2+rd} offset:{nt*4096}')
    vloads()
    for r in range(D1, D1+12): a(f'v_mov_b32 v{r}, 0')
    a('s_waitcnt lgkmcnt(0)')
    for st in range(4):
        for nt in range(3):
            A_ = AF + st*4; B_ = BL + nt*16 + st*4; D_ = D1 + nt*4
            a(f'v_mfma_f32_16x16x32_bf16 v[{D_}:{D_+3}], v[{A_}:{A_+3}], v[{B_}:{B_+3}], v[{D_}:{D_+3}]')
    a.nop(8)
    a.stamp(3)
    T = 56
    for p in range(6):
        a(f'v_cvt_pk_bf16_f32 v{T+p}, v{D1+2*p}, v{D1+2*p+1}')
    for p in range(6):
        a(f'v_lshlrev_b32 v{D1+2*p}, 16, v{T+p}')
        a(f'v_and_b32 v{D1+2*p+1}, v38, v{T+p}')
    for i in range(12):
        a(f'v_mul_f32 v{T+i}, 0xbfb8aa3b, v{D1+i}     ; -log2e*h')
    for i in range(12):
        a(f'v_exp_f32 v{T+i}, v{T+i}')
    a('s_nop 0')
    for i in range(12):
        a(f'v_add_f32 v{T+i}, 1.0, v{T+i}')
    for i in range(12):
        a(f'v_rcp_f32 v{T+i}, v{T+i}')
    a('s_nop 0')
    for i in range(12):
        a(f'v_mul_f32 v{T+i}, v{D1+i}, v{T+i}')
    for p in range(6):
        a(f'v_cvt_pk_bf16_f32 v{D1+p}, v{T+2*p}, v{T+2*p+1}')
    for nt in range(3):
        a(f'ds_write_b64 v37, v[{D1+2*nt}:{D1+2*nt+1}] offset:{HS_OFF+nt*4096}')
    a('s_waitcnt lgkmcnt(0)')
    a('s_branch K1_B2')
    a.lab('K1_LOADER2')
    vloads()
    a.stamp(1); a.stamp(2); a.stamp(3)
    a('s_waitcnt vmcnt(6)')
    a.lab('K1_B2')
    a('s_lshl_b32 s25, s22, 12')
    for r in range(VB, VB+8): a(f'v_add_u32 v{r}, s25, v{r}')
    a('s_barrier')
    a.stamp(4)
    BS = 40; AF = 56
    for st in range(4):
        for rd in range(2):
            r = BS + st*4 + rd*2
            a(f'ds_read_b64 v[{r}:{r+1}], v{VB+st*2+rd} offset:{HS_OFF}')
    D2 = 96
    for r in range(D2, D2+24): a(f'v_mov_b32 v{r}, 0')
    tiles = [(seg, hf) for seg in range(3) for hf in range(2)]
    bufs = [AF, AF+16, 120]
    def issueA(idx):
        seg, hf = tiles[idx]
        buf = bufs[idx % 3]
        if seg == 0: areg = 24+hf; base = 32768
        else: areg = 26+hf; base = (seg-1)*32768
        for st in range(4):
            for rd in range(2):
                r = buf + st*4 + rd*2
                a(f'ds_read_b64_tr_b16 v[{r}:{r+1}], v{areg} offset:{base+st*8192+rd*4096}')
    issueA(0)
    a('s_waitcnt lgkmcnt(8)')
    for idx in range(6):
        if idx + 1 < 6:
            if idx >= 1: a('s_waitcnt lgkmcnt(7)')
            issueA(idx+1)
            a('s_waitcnt lgkmcnt(8)')
        else:
            a('s_waitcnt lgkmcnt(0)')
        seg, hf = tiles[idx]
        buf = bufs[idx % 3]
        D_ = D2 + (seg*2+hf)*4
        for st in range(4):
            a(f'v_mfma_f32_16x16x32_bf16 v[{D_}:{D_+3}], v[{buf+st*4}:{buf+st*4+3}], v[{BS+st*4}:{BS+st*4+3}], v[{D_}:{D_+3}]')
    a('s_waitcnt vmcnt(0)')
    a('s_barrier')
    a.stamp(5)
    nonce_load(a, 'M')
    a.nop(8)
    a('s_mul_i32 s25, s3, 5120')
    a('v_lshlrev_b32 v28, 1, v3           ; 2q')
    a('v_xor_b32 v28, v28, v4             ; (2q)^node')
    a('v_lshlrev_b32 v28, 4, v28')
    a('v_lshl_add_u32 v28, v4, 8, v28')
    a('v_add_u32 v28, s25, v28')
    a('v_xor_b32 v29, 16, v28             ; chunk 2q+1')
    a('v_xor_b32 v30, 0x80, v28           ; chunk 8+2q')
    a('v_xor_b32 v31, 0x80, v29           ; chunk 8+2q+1')
    a('v_lshlrev_b32 v32, 6, v4')
    a('v_lshl_add_u32 v32, v3, 3, v32')
    a('v_add_u32 v32, s25, v32')
    O1 = 40; O2 = 44; OB = 48; PV = 50; TT = 56
    for hf in range(2):
        Ds = D2 + (0*2+hf)*4; Dv = D2 + (1*2+hf)*4; Dr = D2 + (2*2+hf)*4
        a(f'v_cvt_pk_bf16_f32 v{OB}, v{Ds}, v{Ds+1}')
        a(f'v_cvt_pk_bf16_f32 v{OB+1}, v{Ds+2}, v{Ds+3}')
        a(f'v_cvt_pk_bf16_f32 v{O1+3}, v{Dr}, v{Dr+1}')
        a(f'v_cvt_pk_bf16_f32 v{O2+3}, v{Dr+2}, v{Dr+3}')
        a(f'v_cvt_pk_bf16_f32 v{TT}, v{Dv}, v{Dv+1}')
        a(f'v_cvt_pk_bf16_f32 v{TT+1}, v{Dv+2}, v{Dv+3}')
        a(f'v_lshlrev_b32 v{PV}, 16, v{TT}')
        a(f'v_and_b32 v{PV+1}, v38, v{TT}')
        a(f'v_lshlrev_b32 v{PV+2}, 16, v{TT+1}')
        a(f'v_and_b32 v{PV+3}, v38, v{TT+1}')
        for j in range(3):
            r = VV + (j*2+hf)*2
            t = TT + 4 + j*4
            a(f'v_lshlrev_b32 v{t}, 16, v{r}')
            a(f'v_and_b32 v{t+1}, v38, v{r}')
            a(f'v_lshlrev_b32 v{t+2}, 16, v{r+1}')
            a(f'v_and_b32 v{t+3}, v38, v{r+1}')
            a(f'v_pk_mul_f32 v[{t}:{t+1}], v[{t}:{t+1}], v[{PV}:{PV+1}]')
            a(f'v_pk_mul_f32 v[{t+2}:{t+3}], v[{t+2}:{t+3}], v[{PV+2}:{PV+3}]')
            a(f'v_cvt_pk_bf16_f32 v{O1+j}, v{t}, v{t+1}')
            a(f'v_cvt_pk_bf16_f32 v{O2+j}, v{t+2}, v{t+3}')
        a(f'ds_write_b128 v{28+2*hf}, v[{O1}:{O1+3}]')
        a(f'ds_write_b128 v{29+2*hf}, v[{O2}:{O2+3}]')
        a(f'ds_write_b64 v32, v[{OB}:{OB+1}] offset:{4096+32*hf}')
        if hf == 0: a('s_nop 1')
    R0 = 64
    a('v_xor_b32 v33, v4, v3              ; p ^ (L>>4)')
    a('v_lshlrev_b32 v33, 4, v33')
    a('v_lshl_add_u32 v33, v3, 8, v33')
    a('v_add_u32 v33, s25, v33')
    for i in range(1, 4):
        a(f'v_xor_b32 v{33+i}, {64*i}, v33')
    a('v_lshlrev_b32 v39, 4, v2           ; L*16')
    a('v_add_u32 v37, s25, v39')
    a('s_waitcnt lgkmcnt(0)')
    for i in range(4):
        a(f'ds_read_b128 v[{R0+4*i}:{R0+4*i+3}], v{33+i} offset:{1024*i}')
    a(f'ds_read_b128 v[{R0+16}:{R0+19}], v37 offset:4096')
    a('s_lshl_b32 s26, s48, 8')
    a('s_lshl_b32 s27, s48, 6')
    a('v_add_u32 v38, s26, v39')
    a('v_add_u32 v39, s27, v39')
    for i in range(4):
        a(f's_waitcnt lgkmcnt({4-i})')
        a(f'buffer_store_dwordx4 v[{R0+4*i}:{R0+4*i+3}], v38, s[40:43], 0 offen offset:{1024*i} {STT}')
    a('s_waitcnt lgkmcnt(0)')
    a(f'buffer_store_dwordx4 v[{R0+16}:{R0+19}], v39, s[44:47], 0 offen {STT}')
    a.stamp(6)
    role_end(a)

def nonce_load(a, tag):
    if FUSE:
        a('s_cmp_lg_u32 s3, 0')
        a(f's_cbranch_scc1 K1_NL{tag}')
        a('v_mov_b32 v165, 0')
        a('buffer_load_dword v166, v165, s[92:95], 0 offen sc1')
        a.lab(f'K1_NL{tag}')

def get_nonce(a, tag):
    a('s_mov_b32 s68, 0x10000')
    a.lab(f'K1_NLOOP{tag}')
    a('v_readfirstlane_b32 s100, v166')
    a('s_cmp_lg_u32 s100, 0')
    a(f's_cbranch_scc1 K1_NOK{tag}')
    a('v_mov_b32 v165, 0')
    a('buffer_load_dword v166, v165, s[92:95], 0 offen sc1')
    a('s_waitcnt vmcnt(0)')
    a('s_sub_u32 s68, s68, 1')
    a('s_cmp_lg_u32 s68, 0')
    a(f's_cbranch_scc1 K1_NLOOP{tag}')
    a.lab(f'K1_NOK{tag}')

def publish(a, off):
    a(f's_add_u32 s64, s20, 0x{WS_FLAGS:x}')
    a('s_addc_u32 s65, s21, 0')
    a('s_mov_b32 s66, 16384')
    a('s_mov_b32 s67, 0x00020000')
    a('v_mbcnt_lo_u32_b32 v164, -1, 0')
    a('v_mbcnt_hi_u32_b32 v164, -1, v164')
    a('v_lshlrev_b32 v164, 11, v164           ; replica*2048')
    a('s_lshl_b32 s68, s2, 2')
    a(f's_add_u32 s68, s68, {off}')
    a('v_mov_b32 v163, s100')
    a('s_mov_b64 exec, 0xff')
    a('buffer_store_dword v163, v164, s[64:67], s68 offen sc1')
    a('s_mov_b64 exec, -1')

def role_end(a):
    if FUSE:
        a('s_branch K1_DONE')
    else:
        a.stamp_flush(0, 20, 7, 3)
        a('s_endpgm')

def bf16_round_pair(a, dst, x, y):
    a(f'v_cvt_pk_bf16_f32 v{dst}, v{x}, v{y}')

def gen_bin(a):
    a.lab('K1_BIN')
    a.stamp(0)
    srd(a, 28, 8, E*4)
    srd(a, 32, 10, E*4)
    srd(a, 36, 6, N*6)
    srd(a, 40, 20, NBIN*NG*4, off=WS_HDR)
    srd(a, 44, 20, NBIN*65536, off=WS_TAILS)
    a(f's_mul_i32 s24, s2, {CHUNK}           ; e0')
    a(f's_sub_u32 s25, {E}, s24')
    a(f's_min_u32 s25, s25, {CHUNK}          ; lim')
    a('v_lshlrev_b32 v1, 2, v0')
    a('v_mov_b32 v3, 0')
    a('ds_write_b32 v1, v3')
    SRC = 10; DST = 15; PS = 20; PD = 30; REC = 40; GG = 60; RK = 65
    POSL = 69632
    srd(a, 64, 12, 32)
    srd(a, 84, 20, 65536, off=WS_ATAB)
    a('v_and_b32 v82, 15, v0                 ; k')
    a('v_lshlrev_b32 v83, 1, v82')
    a('buffer_load_ushort v84, v83, s[64:67], 0 offen')
    a('s_cmp_lg_u32 s2, 0')
    a('s_cbranch_scc1 K1_NOWB1')
    srd(a, 64, 18, 16*768)
    a('v_lshrrev_b32 v90, 4, v2               ; kq')
    a('v_and_b32 v91, 15, v2                  ; c')
    a('v_mul_u32_u24 v90, 3072, v90           ; 4kq*768')
    a('v_lshl_add_u32 v90, v91, 2, v90')
    a('s_and_b32 s61, s3, 3')
    a('s_lshr_b32 s62, s3, 2')
    a('s_lshl_b32 s63, s61, 6')
    a('s_lshl_b32 s68, s62, 8')
    a('s_add_u32 s63, s63, s68')
    for i in range(4):
        a(f'buffer_load_dword v{92+i}, v90, s[64:67], s63 offen offset:{i*768}')
    a.lab('K1_NOWB1')
    a('v_lshlrev_b32 v5, 4, v2               ; lane*16')
    for k in range(5):
        if k == 4:
            a('s_cmp_ge_u32 s3, 11')
            a('s_cbranch_scc1 K1_POSDONE')
        a(f's_add_u32 s26, s3, {12*k}')
        a('s_lshl_b32 s26, s26, 10')
        a(f's_add_u32 s27, s26, {POSL}')
        a('s_mov_b32 m0, s27')
        a('s_nop 0')
        a('buffer_load_dwordx4 v5, s[36:39], s26 offen lds')
    a.lab('K1_POSDONE')
    a('v_add_u32 v4, s24, v0')
    a('v_lshlrev_b32 v4, 2, v4              ; e*4 (round 0)')
    for j in range(5):
        a(f's_mov_b32 s26, {j*3072}')
        a(f'buffer_load_dword v{SRC+j}, v4, s[28:31], s26 offen {LDN}')
        a(f'buffer_load_dword v{DST+j}, v4, s[32:35], s26 offen {LDN}')
    for j in range(5):
        a(f'v_add_u32 v5, {j*768}, v0')
        a(f'v_cmp_gt_u32 s[{50+2*j}:{51+2*j}], s25, v5')
    a('v_mov_b32 v6, 0xffff0000')
    a('v_lshrrev_b32 v85, 4, v0')
    a('s_mul_i32 s61, s2, 48')
    a('v_add_u32 v85, s61, v85             ; entry')
    a(f'v_add_u32 v86, 0x{DBASE:x}, v85')
    a('v_lshlrev_b32 v86, 16, v86          ; d')
    a('v_mul_f32 v87, 0x40490fdb, v86       ; pi*d')
    a('v_cvt_pk_bf16_f32 v87, v87, v87')
    a('v_and_b32 v87, v6, v87')
    a('v_mul_f32 v87, 0x3e4ccccd, v87       ; /5')
    a('v_cvt_pk_bf16_f32 v87, v87, v87')
    a('v_and_b32 v87, v6, v87')
    a('v_mul_f32 v87, 0x3e22f983, v87')
    a('v_cos_f32 v87, v87')
    a('v_rcp_f32 v88, v86                   ; 1/d')
    a('v_cvt_pk_bf16_f32 v87, v87, v87')
    a('v_and_b32 v87, v6, v87')
    a('v_add_f32 v87, 1.0, v87')
    a('v_cvt_pk_bf16_f32 v87, v87, v87')
    a('v_and_b32 v87, v6, v87')
    a('v_mul_f32 v87, 0.5, v87              ; fcut')
    a('v_cmp_gt_u32 vcc, 0x40a00000, v86')
    a('v_cmp_ne_u32 s[62:63], 0, v85')
    a('s_and_b64 vcc, vcc, s[62:63]')
    a('s_nop 1')
    a('v_cndmask_b32 v87, 0, v87, vcc')
    a('s_waitcnt vmcnt(14)')
    a('v_lshlrev_b32 v84, 16, v84           ; f_k')
    a('v_mul_f32 v84, v84, v86')
    a('v_cvt_pk_bf16_f32 v84, v84, v84')
    a('v_and_b32 v84, v6, v84               ; arg')
    a('v_mul_f32 v89, 0x3e22f983, v84')
    a('v_mov_b32 v81, 0x3e22f983')
    a('v_fma_f32 v80, v84, v81, -v89')
    a('v_mov_b32 v81, 0x31dc9c88')
    a('v_fma_f32 v80, v84, v81, v80')
    a('v_fract_f32 v89, v89')
    a('v_add_f32 v89, v89, v80')
    a('v_sin_f32 v89, v89')
    a('s_nop 0')
    a('v_cvt_pk_bf16_f32 v89, v89, v89')
    a('v_and_b32 v89, v6, v89')
    a('v_mul_f32 v89, v89, v88')
    a('v_cvt_pk_bf16_f32 v89, v89, v89')
    a('v_and_b32 v89, v6, v89')
    a('v_mul_f32 v89, v89, v87')
    a('v_cvt_pk_bf16_f32 v89, v89, v89')
    a('s_nop 1')
    a('v_mov_b32_dpp v88, v89 quad_perm:[1,0,3,2] row_mask:0xf bank_mask:0xf')
    a('v_and_b32 v89, 0xffff, v89')
    a('v_and_b32 v88, v6, v88')
    a('v_or_b32 v89, v89, v88')
    a('v_lshlrev_b32 v85, 5, v85')
    a('v_add_u32 v85, v85, v83               ; entry*32 + 2k')
    a('s_waitcnt vmcnt(10) lgkmcnt(0)')
    a('s_barrier')
    a.stamp(1)
    a('s_mov_b32 s62, 0x55555555')
    a('s_mov_b32 s63, 0x55555555')
    a('s_mov_b64 exec, s[62:63]')
    a(f'buffer_store_dword v89, v85, s[84:87], 0 offen {STO}')
    a('s_mov_b64 exec, -1')
    a('s_cmp_lg_u32 s2, 0')
    a('s_cbranch_scc1 K1_NOWB2')
    srd(a, 64, 20, 12288, off=WS_WB)
    a('s_mov_b32 s62, 0x05040100')
    a('s_mov_b32 s63, 0x07060302')
    a('v_perm_b32 v96, v93, v92, s62')
    a('v_perm_b32 v97, v95, v94, s62')
    a('v_perm_b32 v98, v93, v92, s63')
    a('v_perm_b32 v99, v95, v94, s63')
    a('s_and_b32 s61, s3, 3')
    a('s_lshr_b32 s62, s3, 2')
    a('s_mul_i32 s61, s61, 3')
    a('s_add_u32 s61, s61, s62')
    a('s_lshl_b32 s61, s61, 10                ; (slice*3+seg)*1024')
    a('v_lshlrev_b32 v91, 4, v2')
    a(f'buffer_store_dwordx4 v[96:99], v91, s[64:67], s61 offen {STO}')
    a.lab('K1_NOWB2')
    for j in range(5):
        a(f's_waitcnt vmcnt({8-2*j+1})')
        for (idx, dstp) in ((SRC+j, PS+2*j), (DST+j, PD+2*j)):
            a(f'v_mul_u32_u24 v5, 6, v{idx}')
            a('v_and_b32 v5, -4, v5')
            a(f'v_add_u32 v5, {POSL}, v5')
            a(f'ds_read2_b32 v[{dstp}:{dstp+1}], v5 offset0:0 offset1:1')
    a.stamp(2)
    a('s_mov_b32 s26, 5033')
    a('s_mov_b32 s27, 853362')
    a('s_mov_b32 s60, 65000')
    a('v_mov_b32 v7, 1')
    for j in range(5):
        a(f's_waitcnt lgkmcnt({min(15, 8-2*j + j)})')
        ps = PS+2*j; pd = PD+2*j; rec = REC+4*j
        t = 70
        a(f'v_and_b32 v{t}, 1, v{SRC+j}')
        a(f'v_lshlrev_b32 v{t}, 4, v{t}')
        a(f'v_lshrrev_b64 v[{ps}:{ps+1}], v{t}, v[{ps}:{ps+1}]')
        a(f'v_and_b32 v{t+1}, 1, v{DST+j}')
        a(f'v_lshlrev_b32 v{t+1}, 4, v{t+1}')
        a(f'v_lshrrev_b64 v[{pd}:{pd+1}], v{t+1}, v[{pd}:{pd+1}]')
        a(f'v_lshlrev_b32 v{t}, 16, v{ps}')
        a(f'v_lshlrev_b32 v{t+1}, 16, v{pd}')
        a(f'v_sub_f32 v{t}, v{t}, v{t+1}          ; rx')
        a(f'v_and_b32 v{t+1}, v6, v{ps}')
        a(f'v_and_b32 v{t+2}, v6, v{pd}')
        a(f'v_sub_f32 v{t+1}, v{t+1}, v{t+2}      ; ry')
        a(f'v_lshlrev_b32 v{t+2}, 16, v{ps+1}')
        a(f'v_lshlrev_b32 v{t+3}, 16, v{pd+1}')
        a(f'v_sub_f32 v{t+2}, v{t+2}, v{t+3}      ; rz')
        a(f'v_cvt_pk_bf16_f32 v{t+3}, v{t}, v{t+1}')
        a(f'v_cvt_pk_bf16_f32 v{t+4}, v{t+2}, v{t+2}')
        a(f'v_lshlrev_b32 v{t}, 16, v{t+3}')
        a(f'v_and_b32 v{t+1}, v6, v{t+3}')
        a(f'v_lshlrev_b32 v{t+2}, 16, v{t+4}')
        a(f'v_mul_f32 v{t+3}, v{t}, v{t}')
        a(f'v_mul_f32 v{t+4}, v{t+1}, v{t+1}')
        a(f'v_mul_f32 v{t+5}, v{t+2}, v{t+2}')
        a(f'v_cvt_pk_bf16_f32 v{t+3}, v{t+3}, v{t+4}')
        a(f'v_cvt_pk_bf16_f32 v{t+5}, v{t+5}, v{t+5}')
        a(f'v_lshlrev_b32 v{t+4}, 16, v{t+3}')
        a(f'v_and_b32 v{t+3}, v6, v{t+3}')
        a(f'v_lshlrev_b32 v{t+5}, 16, v{t+5}')
        a(f'v_add_f32 v{t+3}, v{t+4}, v{t+3}')
        a(f'v_add_f32 v{t+3}, v{t+3}, v{t+5}')
        a(f'v_cvt_pk_bf16_f32 v{t+3}, v{t+3}, v{t+3}')
        a(f'v_and_b32 v{t+3}, v6, v{t+3}')
        a(f'v_add_f32 v{t+3}, 0x322bcc77, v{t+3}   ; +1e-8')
        a(f'v_cvt_pk_bf16_f32 v{t+3}, v{t+3}, v{t+3}')
        a(f'v_and_b32 v{t+3}, v6, v{t+3}')
        a(f'v_sqrt_f32 v{t+3}, v{t+3}')
        a(f'v_mul_u32_u24 v{GG+j}, s26, v{DST+j}')
        a(f'v_cvt_pk_bf16_f32 v{t+3}, v{t+3}, v{t+3}')
        a(f'v_and_b32 v{t+3}, v6, v{t+3}           ; d (f32 bits)')
        a(f'v_rcp_f32 v{t+4}, v{t+3}')
        a(f'v_lshrrev_b32 v{GG+j}, 16, v{GG+j}       ; g')
        a(f'v_mul_f32 v{t}, v{t}, v{t+4}')
        a(f'v_mul_f32 v{t+1}, v{t+1}, v{t+4}')
        a(f'v_mul_f32 v{t+2}, v{t+2}, v{t+4}')
        a(f'v_cvt_pk_bf16_f32 v{rec+1}, v{t}, v{t+1}   ; rx|ry')
        a(f'v_cvt_pk_bf16_f32 v{rec+2}, v{t+2}, v{t+2}')
        a(f'v_cmp_gt_u32 vcc, 0x{DTHR<<16:x}, v{t+3}')
        a(f's_and_b64 s[{50+2*j}:{51+2*j}], s[{50+2*j}:{51+2*j}], vcc')
        a(f'v_lshrrev_b32 v{rec+3}, 16, v{t+3}')
        a(f'v_subrev_u32 v{rec+3}, 0x{DBASE:x}, v{rec+3}')
        a(f'v_cmp_le_u32 vcc, {HOT0}, v{rec+3}')
        a(f'v_lshlrev_b32 v{rec+3}, 5, v{rec+3}')
        a(f'v_subrev_u32 v{t+4}, {HOT0*32-1024}, v{rec+3}')
        a(f'v_or_b32 v{rec+3}, 0x80000000, v{rec+3}')
        a(f'v_cndmask_b32 v{rec+3}, v{rec+3}, v{t+4}, vcc')
        a(f'v_mov_b32 v{t}, s60')
        a(f'v_mad_u32_u24 v{t}, v{GG+j}, s27, v{t}')
        a(f'v_lshrrev_b32 v{t}, 16, v{t}')
        a(f'v_sub_u32 v{t}, v{DST+j}, v{t}          ; dloc')
        a(f'v_add_u32 v{t}, 16, v{t}')
        a(f'v_lshlrev_b32 v{t}, v{t}, v7            ; 1<<(16+dloc)')
        a(f'v_and_b32 v{rec+2}, 0xffff, v{rec+2}')
        a(f'v_or_b32 v{rec+2}, v{t}, v{rec+2}')
        a(f'v_lshlrev_b32 v{rec}, 4, v{SRC+j}')
        a(f'v_or_b32 v{rec}, 0x80000000, v{rec}')
        a(f'v_lshlrev_b32 v{t+1}, 2, v{GG+j}')
        a(f's_mov_b64 exec, s[{50+2*j}:{51+2*j}]')
        a(f'ds_add_rtn_u32 v{RK+j}, v{t+1}, v7')
        a('s_mov_b64 exec, -1')
    a.stamp(3)
    nonce_load(a, 'B')
    a('s_waitcnt vmcnt(0) lgkmcnt(0)')
    a('s_barrier')
    a.stamp(4)
    if FUSE:
        a('s_cmp_lg_u32 s3, 0')
        a('s_cbranch_scc1 K1_NOE')
        get_nonce(a, 'E')
        publish(a, 1024)
        a.lab('K1_NOE')
    a('ds_read_b32 v3, v1                    ; cnt')
    a('s_waitcnt lgkmcnt(0)')
    a('v_mov_b32 v4, v3')
    a('s_nop 1')
    for sh in (1, 2, 4, 8):
        a(f'v_add_u32_dpp v4, v4, v4 row_shr:{sh} row_mask:0xf bank_mask:0xf')
        a('s_nop 1')
    a('v_add_u32_dpp v4, v4, v4 row_bcast:15 row_mask:0xa bank_mask:0xf')
    a('s_nop 1')
    a('v_add_u32_dpp v4, v4, v4 row_bcast:31 row_mask:0xc bank_mask:0xf')
    a('s_nop 1')
    a('v_readlane_b32 s26, v4, 63')
    a('s_lshl_b32 s27, s3, 2')
    a('v_mov_b32 v5, s27')
    a('v_mov_b32 v8, s26')
    a('ds_write_b32 v5, v8 offset:4096')
    a('s_waitcnt lgkmcnt(0)')
    a('s_barrier')
    a('v_mov_b32 v5, 0')
    a('ds_read_b128 v[70:73], v5 offset:4096')
    a('ds_read_b128 v[74:77], v5 offset:4112')
    a('ds_read_b128 v[78:81], v5 offset:4128')
    a('v_sub_u32 v4, v4, v3')
    a('s_waitcnt lgkmcnt(0)')
    a('v_mov_b32 v9, 0')
    for k in range(12):
        a(f'v_add_u32 v9, v9, v{70+k}')
    for k in range(11):
        a(f's_cmp_gt_u32 s3, {k}')
        a('s_cselect_b32 s26, -1, 0')
        a(f'v_and_b32 v{70+k}, s26, v{70+k}')
        a(f'v_add_u32 v4, v4, v{70+k}')
    a('ds_write_b32 v1, v4 offset:8192         ; start[bin]')
    a('v_lshl_or_b32 v3, v3, 16, v4')
    a(f's_mul_i32 s26, s2, {NG*4}')
    a(f'buffer_store_dword v3, v1, s[40:43], s26 offen {STO}')
    a('s_waitcnt lgkmcnt(0)')
    a('s_barrier')
    a.stamp(5)
    RST = 12288
    for j in range(5):
        a(f'v_lshlrev_b32 v{GG+j}, 2, v{GG+j}')
        a(f'ds_read_b32 v{GG+j}, v{GG+j} offset:8192')
    for j in range(5):
        a(f's_waitcnt lgkmcnt({4-j})')
        a(f'v_add_u32 v{GG+j}, v{GG+j}, v{RK+j}')
        a(f'v_lshlrev_b32 v{GG+j}, 4, v{GG+j}')
    for j in range(5):
        a(f's_mov_b64 exec, s[{50+2*j}:{51+2*j}]')
        a(f'ds_write_b128 v{GG+j}, v[{REC+4*j}:{REC+4*j+3}] offset:{RST}')
    a('s_mov_b64 exec, -1')
    a('s_waitcnt lgkmcnt(0)')
    a('s_barrier')
    a('v_lshlrev_b32 v5, 4, v0                   ; tid*16')
    for j in range(5):
        a(f'ds_read_b128 v[{REC+4*j}:{REC+4*j+3}], v5 offset:{RST+j*12288}')
    a('s_lshl_b32 s26, s2, 16                    ; w*65536')
    for j in range(5):
        a(f'v_add_u32 v6, {j*768}, v0')
        a(f'v_cmp_gt_u32 vcc, v9, v6')
        a(f'v_add_u32 v7, {j*12288}, v5')
        a(f's_waitcnt lgkmcnt({4-j})')
        a('s_mov_b64 exec, vcc')
        a(f'buffer_store_dwordx4 v[{REC+4*j}:{REC+4*j+3}], v7, s[44:47], s26 offen {STO}')
        a('s_mov_b64 exec, -1')
    a.stamp(6)
    role_end(a)

def gen_tab(a):
    a.lab('K1_TAB')
    a.stamp(0)
    srd(a, 28, 20, 65536, off=WS_ATAB)
    srd(a, 24, 18, 16*768)
    srd(a, 32, 20, 12288, off=WS_WB)
    a('v_lshrrev_b32 v10, 4, v2               ; kq')
    a('v_and_b32 v11, 15, v2                  ; c')
    a('v_mul_u32_u24 v10, 3072, v10           ; 4kq*768')
    a('v_lshl_add_u32 v10, v11, 2, v10')
    a('s_and_b32 s52, s3, 3')
    a('s_lshr_b32 s53, s3, 2')
    a('s_lshl_b32 s54, s52, 6')
    a('s_lshl_b32 s55, s53, 8')
    a('s_add_u32 s54, s54, s55')
    for i in range(4):
        a(f'buffer_load_dword v{12+i}, v10, s[24:27], s54 offen offset:{i*768}')
    a('s_mov_b32 s62, 0x05040100')
    a('s_mov_b32 s63, 0x07060302')
    a('s_mul_i32 s54, s52, 3')
    a('s_add_u32 s54, s54, s53')
    a('s_lshl_b32 s54, s54, 10                ; (slice*3+seg)*1024')
    a('v_lshlrev_b32 v11, 4, v2')
    a('s_waitcnt vmcnt(0)')
    a('v_perm_b32 v16, v13, v12, s62')
    a('v_perm_b32 v17, v15, v14, s62')
    a('v_perm_b32 v18, v13, v12, s63')
    a('v_perm_b32 v19, v15, v14, s63')
    a(f'buffer_store_dwordx4 v[16:19], v11, s[32:35], s54 offen {STO}')
    nonce_load(a, 'T')
    a('s_load_dwordx8 s[36:43], s[12:13], 0')
    a('v_mov_b32 v6, 0xffff0000')
    a('s_waitcnt lgkmcnt(0)')
    for k in range(8):
        a(f's_lshl_b32 s{44+2*k}, s{36+k}, 16')
        a(f's_and_b32 s{45+2*k}, s{36+k}, 0xffff0000')
    a('s_mov_b32 s60, 0x3e22f983')
    a('s_mov_b32 s61, 0x31dc9c88')
    a('s_mov_b32 s62, 0')
    a.lab('K1_TAB_LOOP')
    a('v_add_u32 v3, s62, v0             ; entry')
    a(f'v_add_u32 v4, 0x{DBASE:x}, v3')
    a('v_lshlrev_b32 v4, 16, v4           ; d')
    a('v_mul_f32 v5, 0x40490fdb, v4       ; pi*d')
    a('v_cvt_pk_bf16_f32 v5, v5, v5')
    a('v_and_b32 v5, v6, v5')
    a('v_mul_f32 v5, 0x3e4ccccd, v5       ; /5')
    a('v_cvt_pk_bf16_f32 v5, v5, v5')
    a('v_and_b32 v5, v6, v5')
    a('v_mul_f32 v5, s60, v5')
    a('v_cos_f32 v5, v5')
    a('v_rcp_f32 v7, v4                   ; 1/d')
    a('v_cvt_pk_bf16_f32 v5, v5, v5')
    a('v_and_b32 v5, v6, v5')
    a('v_add_f32 v5, 1.0, v5')
    a('v_cvt_pk_bf16_f32 v5, v5, v5')
    a('v_and_b32 v5, v6, v5')
    a('v_mul_f32 v5, 0.5, v5              ; fcut')
    a('v_cmp_gt_u32 vcc, 0x40a00000, v4')
    a('v_cmp_ne_u32 s[64:65], 0, v3')
    a('s_and_b64 vcc, vcc, s[64:65]')
    a('s_nop 1')
    a('v_cndmask_b32 v5, 0, v5, vcc')
    for k in range(16):
        t = 10 + k
        a(f'v_mul_f32 v{t}, s{44+k}, v4')
    for k in range(0, 16, 2):
        t = 10 + k
        a(f'v_cvt_pk_bf16_f32 v{30+k//2}, v{t}, v{t+1}')
    for k in range(0, 16, 2):
        t = 10 + k
        a(f'v_lshlrev_b32 v{t}, 16, v{30+k//2}')
        a(f'v_and_b32 v{t+1}, v6, v{30+k//2}')
    for k in range(16):
        t = 10 + k
        a(f'v_mul_f32 v40, s60, v{t}')
        a(f'v_fma_f32 v41, v{t}, s60, -v40')
        a(f'v_fma_f32 v41, v{t}, s61, v41')
        a(f'v_fract_f32 v40, v40')
        a(f'v_add_f32 v40, v40, v41')
        a(f'v_sin_f32 v{t}, v40')
    a('s_nop 0')
    for k in range(0, 16, 2):
        t = 10 + k
        a(f'v_cvt_pk_bf16_f32 v40, v{t}, v{t+1}')
        a(f'v_lshlrev_b32 v{t}, 16, v40')
        a(f'v_and_b32 v{t+1}, v6, v40')
        a(f'v_mul_f32 v{t}, v{t}, v7')
        a(f'v_mul_f32 v{t+1}, v{t+1}, v7')
        a(f'v_cvt_pk_bf16_f32 v40, v{t}, v{t+1}')
        a(f'v_lshlrev_b32 v{t}, 16, v40')
        a(f'v_and_b32 v{t+1}, v6, v40')
        a(f'v_mul_f32 v{t}, v{t}, v5')
        a(f'v_mul_f32 v{t+1}, v{t+1}, v5')
        a(f'v_cvt_pk_bf16_f32 v{30+k//2}, v{t}, v{t+1}')
    a('v_lshlrev_b32 v8, 5, v3')
    a(f'buffer_store_dwordx4 v[30:33], v8, s[28:31], 0 offen {STO}')
    a(f'buffer_store_dwordx4 v[34:37], v8, s[28:31], 0 offen offset:16 {STO}')
    a('s_add_u32 s62, s62, 768')
    a('s_cmp_lt_u32 s62, 2048')
    a('s_nop 1')
    a('s_cbranch_scc1 K1_TAB_LOOP')
    for i in range(1,7): a.stamp(i)
    role_end(a)

def gen_k1(a):
    name = KNAME if FUSE else 'prep_kernel'
    a.raw('.p2align 8')
    a.raw(f'.type {name},@function')
    a.lab(name)
    a('s_cmp_ge_u32 s2, 256')
    a('s_cbranch_scc1 K1_END')
    a('s_load_dwordx4 s[4:7], s[0:1], 0')
    a('s_load_dwordx4 s[8:11], s[0:1], 16')
    a('s_load_dwordx4 s[12:15], s[0:1], 32')
    a('s_load_dwordx4 s[16:19], s[0:1], 48')
    a('s_load_dwordx2 s[20:21], s[0:1], 80')
    if FUSE:
        a('s_load_dwordx2 s[96:97], s[0:1], 72     ; d_debug')
        a('s_memrealtime s[98:99]')
    a('v_lshrrev_b32 v1, 6, v0')
    a('v_and_b32 v2, 63, v0')
    a('s_nop 0')
    a('v_readfirstlane_b32 s3, v1')
    a('s_waitcnt lgkmcnt(0)')
    if FUSE:
        a('s_mov_b32 s92, s96')
        a('s_mov_b32 s93, s97')
        a('s_mov_b32 s94, 256')
        a('s_mov_b32 s95, 0x00020000')
        a('s_or_b32 s68, s2, s3')
        a('s_cmp_lg_u32 s68, 0')
        a('s_cbranch_scc1 K1_NONONCE')
        a('s_or_b32 s98, s98, 1')
        a('v_mov_b32 v166, s98')
        a('v_mov_b32 v165, 0')
        a('s_mov_b64 exec, 1')
        a('buffer_store_dword v166, v165, s[92:95], 0 offen sc1')
        a('s_mov_b64 exec, -1')
        a.lab('K1_NONONCE')
    if os.environ.get('CPF','1') == '1':
        a('s_cmp_lg_u32 s3, 11')
        a('s_cbranch_scc1 K1_NOCPF')
        a('s_getpc_b64 s[62:63]')
        a.lab('K1_PCREF')
        a('v_lshlrev_b32 v160, 7, v2')
        a('v_mov_b32 v161, s63')
        a('v_add_co_u32 v160, vcc, s62, v160')
        a('s_nop 1')
        a('v_addc_co_u32 v161, vcc, 0, v161, vcc')
        NCH = int(os.environ.get('CPFN','2'))
        for k in range(NCH):
            a('global_load_dword v162, v[160:161], off')
            if k + 1 < NCH:
                a('v_add_co_u32 v160, vcc, 0x2000, v160')
                a('s_nop 1')
                a('v_addc_co_u32 v161, vcc, 0, v161, vcc')
        a.lab('K1_NOCPF')
    a(f's_cmp_lt_u32 s2, {NBIN}')
    a('s_cbranch_scc1 K1_BIN')
    gen_mlp(a)
    gen_bin(a)
    if FUSE:
        a.lab('K1_DONE')
        a('s_waitcnt vmcnt(0) lgkmcnt(0)')
        a('s_barrier')
        if Asm.STAMPS:
            a('s_memrealtime s[84:85]')
            a('s_waitcnt lgkmcnt(0)')
            a('s_lshl_b32 s68, s3, 5')
            a('s_add_u32 s68, s68, 155712')
            a('v_mov_b32 v1, s68')
            for i in range(8):
                a(f'v_mov_b32 v2, s{70+2*i}')
                a(f'ds_write_b32 v1, v2 offset:{4*i}')
        a('s_cmp_lg_u32 s3, 0')
        a('s_cbranch_scc1 K2_START')
        get_nonce(a, 'D')
        publish(a, 0)
        a('s_branch K2_START')
    a.lab('K1_END')
    a('s_endpgm')
```

```python
from asmlib import *
from k1 import *

OUTST = os.environ.get('OUTST', 'sc1')
RESLD = os.environ.get('RESLD', '')
WBASE = 18432
WREG = 5120
RES0 = WBASE + 12*WREG
O_SRC = 0; O_AOF = 1280; O_OH = 2560; O_RX = 3200; O_RY = 3840; O_RZ = 4480
K2_LDS = RES0 + 12*4096
SC = 'sc1' if FUSE else ''
LBF = 768

V_C = 0; V_SHL = 1; V_KQ8 = 2; V_A1 = 3; V_A2 = 4; V_A3 = 5
TMP = 6
WB = 10; ACC = 22; GA = 54; GB = 86; WF = 94; MSG = 118; SM = 138; SRC = 154; AOP = 162
T4 = 166; T5 = 167
NV = 168

def wb(seg, t): return WB + (seg*2+t)*2
def acc(comp, t): return ACC + (comp*2+t)*4
def gA(i, c): return GA + 4*i + c
def wf(seg, R, r=0): return WF + seg*8 + R*4 + r
def msg(comp, j=0): return MSG + comp*4 + j

def scan64(a, P):
    a('s_nop 1')
    for sh in (1, 2, 4, 8):
        a(f'v_add_u32_dpp v{P}, v{P}, v{P} row_shr:{sh} row_mask:0xf bank_mask:0xf')
        a('s_nop 1')
    a(f'v_add_u32_dpp v{P}, v{P}, v{P} row_bcast:15 row_mask:0xa bank_mask:0xf')
    a('s_nop 1')
    a(f'v_add_u32_dpp v{P}, v{P}, v{P} row_bcast:31 row_mask:0xc bank_mask:0xf')
    a('s_nop 1')

def gen_k2(a):
    LANE = T4
    if FUSE:
        a.lab('K2_START')
    else:
        a.raw('.p2align 8')
        a.raw(f'.type {KNAME},@function')
        a.lab(KNAME)
        a('s_cmp_ge_u32 s2, 256')
        a('s_cbranch_scc1 K2_END')
    if os.environ.get('PRIO','1') != '0': a('s_setprio 3')
    a('s_load_dwordx2 s[4:5], s[0:1], 0       ; sv')
    a('s_load_dwordx2 s[8:9], s[0:1], 64      ; out')
    a('s_load_dwordx2 s[10:11], s[0:1], 80    ; ws')
    if FUSE:
        a(f'v_mbcnt_lo_u32_b32 v{LANE}, -1, 0')
        a(f'v_mbcnt_hi_u32_b32 v{LANE}, -1, v{LANE}')
        a('s_and_b32 s12, s2, 7                   ; x')
    else:
        a(f'v_lshrrev_b32 v{T5}, 6, v0')
        a(f'v_and_b32 v{LANE}, 63, v0')
        a('s_and_b32 s12, s2, 7                   ; x')
        a(f'v_readfirstlane_b32 s3, v{T5}             ; wave')
    a('s_lshr_b32 s13, s12, 1                 ; slice')
    a('s_lshr_b32 s14, s2, 3')
    a('s_lshl_b32 s14, s14, 1')
    a('s_and_b32 s12, s12, 1')
    a('s_add_u32 s14, s14, s12                ; rank (0..63)')
    a('s_mul_i32 s14, s14, 12')
    a('s_add_u32 s14, s14, s3                 ; g')
    a('s_mul_i32 s15, s14, 853362')
    a('s_add_u32 s16, s15, 65000')
    a('s_lshr_b32 s15, s16, 16                ; start')
    a('s_add_u32 s16, s16, 853362')
    a('s_lshr_b32 s16, s16, 16')
    a(f's_min_u32 s16, s16, {N}')
    a('s_sub_u32 s16, s16, s15                ; size')
    a.stamp(0)
    if Asm.STAMPS: a('s_memtime s[88:89]')
    a(f'v_mul_u32_u24 v{TMP}, {NG*4}, v{LANE}        ; lane*3072')
    a('s_lshl_b32 s17, s14, 2')
    a('s_waitcnt lgkmcnt(0)')
    srd(a, 20, 10, NBIN*NG*4, off=WS_HDR)
    if not FUSE:
        a(f'buffer_load_dword v{TMP+1}, v{TMP}, s[20:23], s17 offen')
    srd(a, 24, 10, NBIN*65536, off=WS_TAILS)
    srd(a, 28, 10, 65536, off=WS_ATAB)
    srd(a, 40, 10, 12288, off=WS_WB)
    srd(a, 32, 4, 10240000)
    srd(a, 36, 8, 10240000)
    def wb_and_table():
        a(f'v_lshlrev_b32 v{TMP+2}, 4, v{LANE}')
        a('s_mul_i32 s17, s13, 3072')
        for seg in range(3):
            a(f'buffer_load_dwordx4 v[{wb(seg,0)}:{wb(seg,0)+3}], v{TMP+2}, s[40:43], s17 offen offset:{seg*1024} {SC}')
        a('s_lshl_b32 s17, s3, 10')
        if FUSE:
            a(f's_add_u32 s17, s17, {HOT0*32}')
            a(f'buffer_load_dwordx4 v[{GA}:{GA+3}], v{TMP+2}, s[28:31], s17 offen sc1')
            a(f's_cmp_ge_u32 s3, {NHOT_KB-12}')
            a('s_cbranch_scc1 K2_DMA_DONE')
            a('s_add_u32 s17, s17, 12288')
            a(f'buffer_load_dwordx4 v[{GA+4}:{GA+7}], v{TMP+2}, s[28:31], s17 offen sc1')
        else:
            a('s_add_u32 s18, s17, 1024')
            a('s_mov_b32 m0, s18')
            a(f's_add_u32 s17, s17, {HOT0*32}')
            a(f'buffer_load_dwordx4 v{TMP+2}, s[28:31], s17 offen lds')
            a(f's_cmp_ge_u32 s3, {NHOT_KB-12}')
            a('s_cbranch_scc1 K2_DMA_DONE')
            a('s_add_u32 s18, s18, 12288')
            a('s_mov_b32 m0, s18')
            a('s_add_u32 s17, s17, 12288')
            a(f'buffer_load_dwordx4 v{TMP+2}, s[28:31], s17 offen lds')
        a.lab('K2_DMA_DONE')
    if not FUSE: wb_and_table()
    a('s_mul_i32 s17, s13, 2560000')
    a('s_add_u32 s44, s10, s17')
    a('s_addc_u32 s45, s11, 0')
    a('s_or_b32 s45, s45, 0x100000            ; stride 16')
    a('s_mov_b32 s46, 160000')
    a('s_mov_b32 s47, 0x00020000')
    a('s_mul_i32 s17, s13, 640000')
    a(f's_add_u32 s17, s17, {WS_TB}')
    a('s_add_u32 s48, s10, s17')
    a('s_addc_u32 s49, s11, 0')
    a('s_or_b32 s49, s49, 0x40000             ; stride 4')
    a('s_mov_b32 s50, 160000')
    a('s_mov_b32 s51, 0x00020000')
    a(f'v_and_b32 v{V_C}, 15, v{LANE}')
    a(f'v_lshrrev_b32 v{T5}, 4, v{LANE}           ; q')
    a(f'v_sub_u32 v{V_SHL}, 15, v{V_C}')
    a(f'v_lshl_or_b32 v{V_SHL}, v{V_SHL}, 16, v{V_SHL}')
    a(f'v_lshlrev_b32 v{V_KQ8}, 3, v{T5}')
    a(f'v_lshlrev_b32 v{TMP+2}, 2, v{LANE}')
    a(f'v_mov_b32 v{TMP+3}, 0')
    a(f'ds_write_b32 v{TMP+2}, v{TMP+3}')
    if FUSE:
        a(f'ds_write_b32 v{TMP+2}, v{TMP+3} offset:768')
    for r in range(ACC, ACC+32): a(f'v_mov_b32 v{r}, 0')
    for r in range(MSG, MSG+20): a(f'v_mov_b32 v{r}, 0')
    for r in range(SM, SM+16): a(f'v_mov_b32 v{r}, 0')
    a(f's_mul_i32 s18, s3, {WREG}')
    a(f's_add_u32 s18, s18, {WBASE}')
    a('s_mov_b32 s52, 0                          ; base')
    a('s_mov_b32 s60, 0')
    def res_dma(tag):
        a('s_cmp_lg_u32 s60, 0')
        a(f's_cbranch_scc1 K2_RESDONE{tag}')
        a('s_mov_b32 s60, 1')
        a(f'v_mbcnt_lo_u32_b32 v{T4}, -1, 0')
        a(f'v_mbcnt_hi_u32_b32 v{T4}, -1, v{T4}')
        a(f'v_and_b32 v{T5}, 3, v{T4}')
        a(f'v_lshlrev_b32 v{T5}, 4, v{T5}')
        a(f'v_lshrrev_b32 v{T4}, 2, v{T4}')
        a(f'v_lshl_add_u32 v{T5}, v{T4}, 8, v{T5}')
        a('s_lshl_b32 s61, s15, 10')
        a('s_lshl_b32 s62, s13, 6')
        a('s_add_u32 s61, s61, s62')
        a('s_lshl_b32 s62, s3, 12')
        a(f's_add_u32 s62, s62, {RES0}')
        for j in range(4):
            a('s_mov_b32 m0, s62')
            a('s_add_u32 s62, s62, 1024')
            a(f'buffer_load_dwordx4 v{T5}, s[32:35], s61 offen {RESLD} lds')
            a('s_add_u32 s61, s61, 4096')
        a.lab(f'K2_RESDONE{tag}')
    def poll_issue(reg, off=0):
        a(f'v_mbcnt_lo_u32_b32 v{T5}, -1, 0')
        a(f'v_mbcnt_hi_u32_b32 v{T5}, -1, v{T5}')
        a(f'v_lshlrev_b32 v{T5}, 4, v{T5}')
        a(f's_add_u32 s64, s10, 0x{WS_FLAGS:x}')
        a('s_addc_u32 s65, s11, 0')
        a('s_mov_b32 s66, 16384')
        a('s_mov_b32 s67, 0x00020000')
        a('s_and_b32 s62, s2, 7')
        a('s_lshl_b32 s62, s62, 11')
        a(f'buffer_load_dwordx4 v[{reg}:{reg+3}], v{T5}, s[64:67], s62 offen offset:{off} sc1')
    def poll_masks(reg):
        a(f'v_cmp_eq_u32 s[56:57], s100, v{reg}')
        a(f'v_cmp_eq_u32 s[62:63], s100, v{reg+1}')
        a(f'v_cmp_eq_u32 vcc, s100, v{reg+2}')
        a('s_and_b64 s[56:57], s[56:57], s[62:63]')
        a('s_and_b64 s[56:57], s[56:57], vcc')
        a(f'v_cmp_eq_u32 vcc, s100, v{reg+3}')
    def poll47(tag, off):
        a('s_cmp_lg_u32 s3, 0')
        a(f's_cbranch_scc1 K2_POLL{tag}_DONE')
        a('s_mov_b32 s59, 0x10000')
        a.lab(f'K2_POLL{tag}')
        poll_issue(WF, off)
        a('s_waitcnt vmcnt(0)')
        poll_masks(WF)
        a('s_and_b32 s56, s56, 0xfff')
        a('s_and_b32 s62, vcc_lo, 0x7ff')
        a('s_lshl_b32 s62, s62, 12')
        a('s_or_b32 s56, s56, s62')
        a('s_cmp_eq_u32 s56, 0x7fffff')
        a(f's_cbranch_scc1 K2_POLL{tag}_DONE')
        a('s_sleep 2')
        a('s_sub_u32 s59, s59, 1')
        a('s_cmp_lg_u32 s59, 0')
        a(f's_cbranch_scc1 K2_POLL{tag}')
        a.lab(f'K2_POLL{tag}_DONE')
    if FUSE:
        poll47('E', 1024)
        a('s_waitcnt lgkmcnt(0)')
        a('s_barrier')
        a(f'v_mbcnt_lo_u32_b32 v{LANE}, -1, 0')
        a(f'v_mbcnt_hi_u32_b32 v{LANE}, -1, v{LANE}')
        wb_and_table()
        a('s_waitcnt vmcnt(0)')
        a(f'v_lshlrev_b32 v{TMP+2}, 4, v{LANE}')
        a('s_lshl_b32 s17, s3, 10')
        a(f'v_add_u32 v{TMP+2}, s17, v{TMP+2}')
        a(f'ds_write_b128 v{TMP+2}, v[{GA}:{GA+3}] offset:1024')
        a(f's_cmp_ge_u32 s3, {NHOT_KB-12}')
        a('s_cbranch_scc1 K2_TABW_DONE')
        a(f'ds_write_b128 v{TMP+2}, v[{GA+4}:{GA+7}] offset:{1024+12288}')
        a.lab('K2_TABW_DONE')
        poll47('A', 0)
        a.stamp(2)
        a('s_waitcnt lgkmcnt(0)')
        a('s_barrier')
        a.stamp(3)
        a(f'v_mbcnt_lo_u32_b32 v{LANE}, -1, 0')
        a(f'v_mbcnt_hi_u32_b32 v{LANE}, -1, v{LANE}')
        a(f'v_mul_u32_u24 v{TMP}, {NG*4}, v{LANE}')
        a('s_lshl_b32 s17, s14, 2')
        a(f'buffer_load_dword v{TMP+1}, v{TMP}, s[20:23], s17 offen sc1')
    CNT = SRC; ST = SRC+1; P = SRC+2; LOCB = SRC+3; KK = SRC+4; POS = SRC+5; KHI = SRC+6
    H = TMP+1
    def header():
        a(f'v_lshrrev_b32 v{CNT}, 16, v{H}')
        a(f'v_and_b32 v{ST}, 0xffff, v{H}')
        a(f'v_mov_b32 v{P}, v{CNT}')
        scan64(a, P)
    PFPOS = os.environ.get('PFPOS','N')
    PFF = os.environ.get('PFF','sc1')
    def pf_setup():
        a('s_lshr_b32 s61, s2, 3')
        a('s_mul_i32 s61, s61, 12')
        a('s_add_u32 s61, s61, s3                ; chunk 0..383')
    def pf_A(lo, hi, reg):
        a('s_mul_i32 s17, s13, 2560000')
        a('s_add_u32 s64, s10, s17')
        a('s_addc_u32 s65, s11, 0')
        a('s_mov_b32 s66, 2560000')
        a('s_mov_b32 s67, 0x00020000')
        a(f's_mul_i32 s62, s61, {53*128}')
        a(f's_add_u32 s62, s62, {lo*128}')
        a(f'v_lshlrev_b32 v{reg}, 7, v{LANE}')
        a(f'v_add_u32 v{reg}, s62, v{reg}')
        a(f'v_cmp_gt_u32 vcc, {hi-lo}, v{LANE}')
        a('s_mov_b64 exec, vcc')
        a(f'buffer_load_dword v{reg+1}, v{reg}, s[64:67], 0 offen {PFF}')
        a('s_mov_b64 exec, -1')
    def pf_B(reg):
        a('s_mul_i32 s17, s13, 640000')
        a(f's_add_u32 s17, s17, {WS_TB}')
        a('s_add_u32 s64, s10, s17')
        a('s_addc_u32 s65, s11, 0')
        a('s_mov_b32 s66, 640000')
        a('s_mov_b32 s67, 0x00020000')
        a(f's_mul_i32 s62, s61, {14*128}')
        a(f'v_lshlrev_b32 v{reg}, 7, v{LANE}')
        a(f'v_add_u32 v{reg}, s62, v{reg}')
        a(f'v_cmp_gt_u32 vcc, 14, v{LANE}')
        a('s_mov_b64 exec, vcc')
        a(f'buffer_load_dword v{reg+1}, v{reg}, s[64:67], 0 offen {PFF}')
        a('s_mov_b64 exec, -1')
    PR = GA+24
    npf = 0
    if PFPOS in 'ABC': pf_setup()
    if PFPOS == 'A':
        pf_A(0, 53, PR); pf_B(PR+2); npf = 2
    if PFPOS == 'C':
        pf_B(PR+2); pf_A(0, 10, PR); npf = 2
    a(f's_waitcnt vmcnt({npf}) lgkmcnt(0)')
    if not FUSE: a('s_barrier')
    a.stamp(1)
    if os.environ.get('BAL','0') == '1':
        header()
        a(f'v_readlane_b32 s19, v{P}, 63')
        a(f'v_lshlrev_b32 v{KK}, 2, v{LANE}')
        a('s_lshl_b32 s17, s3, 8')
        a(f's_add_u32 s17, s17, {RES0}')
        a(f'v_add_u32 v{POS}, s17, v{KK}')
        a(f'ds_write_b32 v{POS}, v{H}')
        a('s_add_u32 s19, s19, 15')
        a('s_lshr_b32 s19, s19, 4')
        a('s_lshl_b32 s19, s19, 4')
        a('s_add_u32 s19, s19, 15')
        a('s_sub_u32 s19, s19, s3')
        a('s_lshl_b32 s17, s3, 2')
        a(f's_add_u32 s17, s17, {RES0+4096}')
        a(f'v_mov_b32 v{POS}, s17')
        a(f'v_mov_b32 v{KHI}, s19')
        a(f'ds_write_b32 v{POS}, v{KHI}')
        a('s_waitcnt lgkmcnt(0)')
        a('s_barrier')
        a(f'v_add_u32 v{POS}, {RES0+4096}, v{KK}')
        a(f'ds_read_b32 v{KHI}, v{POS}')
        a(f'v_mov_b32 v{POS}, {RES0+4096}')
        for j in range(3):
            a(f'ds_read_b128 v[{GA+4*j}:{GA+4*j+3}], v{POS} offset:{16*j}')
        a(f'v_mov_b32 v{CNT}, 0                      ; rank')
        a('s_waitcnt lgkmcnt(0)')
        for j in range(12):
            a(f'v_sub_u32 v{GA+j}, v{KHI}, v{GA+j}')
        for j in range(12):
            a(f'v_lshrrev_b32 v{GA+j}, 31, v{GA+j}')
        for j in range(0, 12, 2):
            a(f'v_add3_u32 v{CNT}, v{CNT}, v{GA+j}, v{GA+j+1}')
        a('s_sub_u32 s17, 11, s3')
        a('s_cmp_lt_u32 s3, 4')
        a('s_cselect_b32 s17, s3, s17')
        a('s_sub_u32 s19, 19, s3')
        a('s_cmp_ge_u32 s3, 8')
        a('s_cselect_b32 s17, s19, s17')
        a(f'v_cmp_eq_u32 vcc, s17, v{CNT}')
        a('s_and_b32 s17, vcc_lo, 0xfff')
        a('s_ff1_i32_b32 s17, s17')
        a('s_sub_u32 s14, s14, s3')
        a('s_add_u32 s14, s14, s17                   ; g')
        a('s_mul_i32 s15, s14, 853362')
        a('s_add_u32 s16, s15, 65000')
        a('s_lshr_b32 s15, s16, 16                ; start')
        a('s_add_u32 s16, s16, 853362')
        a('s_lshr_b32 s16, s16, 16')
        a(f's_min_u32 s16, s16, {N}')
        a('s_sub_u32 s16, s16, s15                ; size')
        a('s_lshl_b32 s17, s17, 8')
        a(f's_add_u32 s17, s17, {RES0}')
        a(f'v_add_u32 v{POS}, s17, v{KK}')
        a(f'ds_read_b32 v{H}, v{POS}')
        a('s_waitcnt lgkmcnt(0)')
    header()
    a(f'v_readlane_b32 s19, v{P}, 63             ; M')
    a(f'v_sub_u32 v{P}, v{P}, v{CNT}')
    a(f'v_lshl_add_u32 v{LOCB}, v{LANE}, 12, v{ST}   ; w*4096 + start')
    if not FUSE: a.stamp(2)
    a.lab('K2_CHUNK')
    a(f'v_sub_u32 v{KK}, s52, v{P}')
    a(f'v_max_i32 v{KK}, 0, v{KK}')
    NFAST = 12
    a('s_cmp_gt_u32 s19, 256')
    a('s_cbranch_scc1 K2_FILL')
    a(f'v_lshlrev_b32 v{POS}, 2, v{P}')
    a(f'v_add_u32 v{POS}, s18, v{POS}')
    a(f'v_mov_b32 v{KHI}, v{LOCB}')
    for k in range(NFAST):
        a(f'v_cmp_lt_u32 vcc, {k}, v{CNT}')
        a('s_cbranch_vccz K2_FILL_DONE')
        a('s_mov_b64 exec, vcc')
        a(f'ds_write_b32 v{POS}, v{KHI} offset:{4*k}')
        a(f'v_add_u32 v{KHI}, 1, v{KHI}')
    a('s_mov_b64 exec, -1')
    a(f'v_mov_b32 v{KK}, {NFAST}')
    a.lab('K2_FILL')
    a(f'v_add_u32 v{POS}, v{P}, v{KK}')
    a(f'v_subrev_u32 v{POS}, s52, v{POS}')
    a(f'v_cmp_lt_u32 s[56:57], v{KK}, v{CNT}')
    a(f'v_cmp_gt_u32 vcc, 256, v{POS}')
    a('s_and_b64 vcc, vcc, s[56:57]')
    a('s_cbranch_vccz K2_FILL_DONE')
    a(f'v_lshlrev_b32 v{POS}, 2, v{POS}')
    a(f'v_add_u32 v{POS}, s18, v{POS}')
    a(f'v_add_u32 v{KHI}, v{LOCB}, v{KK}')
    a('s_mov_b64 exec, vcc')
    a(f'ds_write_b32 v{POS}, v{KHI}')
    a('s_mov_b64 exec, -1')
    a(f'v_add_u32 v{KK}, 1, v{KK}')
    a('s_branch K2_FILL')
    a.lab('K2_FILL_DONE')
    a('s_mov_b64 exec, -1')
    if not FUSE: a.stamp(3)
    a('s_sub_u32 s55, s19, s52')
    a('s_min_u32 s55, s55, 256                   ; n_c')
    a('s_add_u32 s58, s55, 31')
    a('s_lshr_b32 s58, s58, 5')
    a('s_lshl_b32 s59, s58, 5')
    a('s_add_u32 s59, s59, 32                    ; npad')
    a('s_and_b32 s54, s55, 31')
    a('s_sub_u32 s54, s54, 1')
    a('s_cmp_lt_u32 s54, 16')
    a('s_cselect_b32 s54, 1, 0')
    a('s_sub_u32 s58, s58, s54')
    RC = GA; LA = GB
    a(f'v_lshlrev_b32 v{TMP}, 2, v{LANE}')
    a(f'v_add_u32 v{TMP}, s18, v{TMP}')
    for j in range(5):
        a(f'ds_read_b32 v{LA+j}, v{TMP} offset:{256*j}')
    a(f'v_mov_b32 v{TMP+2}, 0x80000000')
    for j in range(5):
        if j >= 1:
            a(f's_cmp_le_u32 s59, {64*j}')
            a('s_cbranch_scc1 K2_REC_ISSUED')
        a(f'v_add_u32 v{TMP+1}, {64*j}, v{LANE}')
        a(f'v_cmp_gt_u32 vcc, s55, v{TMP+1}')
        a(f's_waitcnt lgkmcnt({4-j})')
        a(f'v_lshlrev_b32 v{LA+j}, 4, v{LA+j}')
        a(f'v_cndmask_b32 v{LA+j}, v{TMP+2}, v{LA+j}, vcc')
        a(f'buffer_load_dwordx4 v[{RC+4*j}:{RC+4*j+3}], v{LA+j}, s[24:27], 0 offen {SC}')
    a.lab('K2_REC_ISSUED')
    if FUSE:
        a('s_or_b32 s62, s3, s52')
        a('s_cmp_lg_u32 s62, 0')
        a('s_cbranch_scc1 K2_NOPB')
        poll_issue(WF)
        a.lab('K2_NOPB')
        a(f'v_mbcnt_lo_u32_b32 v{LANE}, -1, 0')
        a(f'v_mbcnt_hi_u32_b32 v{LANE}, -1, v{LANE}')
    a(f'v_and_b32 v{TMP}, 3, v{LANE}')
    a(f'v_lshlrev_b32 v{TMP}, 3, v{TMP}')
    a(f'v_bfe_u32 v{TMP+1}, v{LANE}, 2, 3')
    a(f'v_or_b32 v{TMP}, v{TMP}, v{TMP+1}')
    a(f'v_and_b32 v{TMP+1}, 32, v{LANE}')
    a(f'v_or_b32 v{TMP+3}, v{TMP}, v{TMP+1}')
    a(f'v_lshlrev_b32 v{TMP}, 2, v{TMP+3}')
    a(f'v_add_u32 v{TMP}, s18, v{TMP}')
    npf2 = 0
    if PFPOS in 'BC':
        a('s_cmp_lg_u32 s52, 0')
        a('s_cbranch_scc1 K2_NOPF')
        if PFPOS == 'B':
            pf_A(0, 53, PR); pf_B(PR+2); npf2 = 2
        else:
            pf_A(10, 53, PR+4); npf2 = 1
        a.lab('K2_NOPF')
    a(f'v_lshlrev_b32 v{TMP+1}, 1, v{TMP+3}')
    a(f'v_add_u32 v{TMP+1}, s18, v{TMP+1}')
    if npf2:
        a('s_cmp_lg_u32 s52, 0')
        a('s_cbranch_scc1 K2_RW0')
        a(f's_waitcnt vmcnt({npf2}) lgkmcnt(0)')
        a('s_branch K2_RW1')
        a.lab('K2_RW0')
        a('s_waitcnt vmcnt(0) lgkmcnt(0)')
        a.lab('K2_RW1')
    else:
        a('s_waitcnt vmcnt(0) lgkmcnt(0)')
    a.stamp(4)
    if FUSE:
        a('s_or_b32 s62, s3, s52')
        a('s_cmp_lg_u32 s62, 0')
        a('s_cbranch_scc1 K2_PB_DONE')
        a('s_mov_b32 s61, 0x10000')
        a.lab('K2_POLLB')
        poll_masks(WF)
        a('s_and_b64 s[56:57], s[56:57], vcc')
        a('s_cmp_eq_u64 s[56:57], -1')
        a('s_cbranch_scc1 K2_PB_OK')
        a('s_sleep 4')
        poll_issue(WF)
        a('s_waitcnt vmcnt(0)')
        a('s_sub_u32 s61, s61, 1')
        a('s_cmp_lg_u32 s61, 0')
        a('s_cbranch_scc1 K2_POLLB')
        a.lab('K2_PB_OK')
        a(f'v_mov_b32 v{WF}, {LBF}')
        a(f'v_mov_b32 v{WF+1}, 1')
        a(f'ds_write_b32 v{WF}, v{WF+1}')
        a.lab('K2_PB_DONE')
    for j in range(5):
        if j >= 1:
            a(f's_cmp_le_u32 s59, {64*j}')
            a('s_cbranch_scc1 K2_SOA_DONE')
        r = RC+4*j
        a(f'v_xor_b32 v{r}, v{TMP+2}, v{r}')
        a(f'ds_write_b32 v{TMP}, v{r} offset:{O_SRC+256*j}')
        a(f'ds_write_b32 v{TMP}, v{r+3} offset:{O_AOF+256*j}')
        a(f'ds_write_b16 v{TMP+1}, v{r+1} offset:{O_RX+128*j}')
        a(f'ds_write_b16_d16_hi v{TMP+1}, v{r+1} offset:{O_RY+128*j}')
        a(f'ds_write_b16 v{TMP+1}, v{r+2} offset:{O_RZ+128*j}')
        a(f'ds_write_b16_d16_hi v{TMP+1}, v{r+2} offset:{O_OH+128*j}')
    a.lab('K2_SOA_DONE')
    a(f'v_lshrrev_b32 v{TMP}, 4, v{LANE}          ; q')
    a(f'v_lshlrev_b32 v{V_A1}, 5, v{TMP}            ; q*8*4')
    a(f'v_add_u32 v{V_A1}, s18, v{V_A1}')
    a(f'v_lshlrev_b32 v{V_A2}, 4, v{TMP}            ; q*8*2')
    a(f'v_add_u32 v{V_A2}, s18, v{V_A2}')
    a(f'v_lshrrev_b32 v{TMP}, 2, v{V_C}             ; rho>>2')
    a(f'v_and_b32 v{TMP+1}, 3, v{V_C}')
    a(f'v_lshl_add_u32 v{TMP}, v{TMP}, 3, v{TMP+1}   ; 8*(rho>>2)+(rho&3)')
    a(f'v_lshlrev_b32 v{V_A3}, 2, v{TMP}')
    a(f'v_add_u32 v{V_A3}, s18, v{V_A3}')
    a('s_add_u32 s53, s58, s54')
    a('s_cmp_eq_u32 s53, 0')
    a('s_cbranch_scc1 K2_NOTILES')
    X = os.environ.get('X','')
    def issue_row(i):
        t = T4 + (i & 1)
        a(f'v_add_u32 v{t}, v{SRC+i}, v{V_C}')
        if 'L' in X: return
        a(f'buffer_load_dwordx4 v[{gA(i,0)}:{gA(i,3)}], v{t}, s[44:47], 0 idxen {SC}')
        if not os.environ.get('NOB'): a(f'buffer_load_dword v{GB+i}, v{t}, s[48:51], 0 idxen {SC}')
    def read_src(off):
        a(f'ds_read_b128 v[{SRC}:{SRC+3}], v{V_A1} offset:{O_SRC+off}')
        a(f'ds_read_b128 v[{SRC+4}:{SRC+7}], v{V_A1} offset:{O_SRC+off+16}')
    rare_id = [0]
    def load_A(ao0, ao1, tmp):
        k = rare_id[0]; rare_id[0] += 1
        a(f'v_or_b32 v{tmp}, v{ao0}, v{ao1}')
        a(f'v_cmp_gt_i32 vcc, 0, v{tmp}')
        a(f's_cbranch_vccnz K2_RARE{k}')
        a(f'v_add_u32 v{ao0}, v{ao0}, v{V_KQ8}')
        a(f'v_add_u32 v{ao1}, v{ao1}, v{V_KQ8}')
        a(f'ds_read_b64 v[{AOP}:{AOP+1}], v{ao0}')
        a(f'ds_read_b64 v[{AOP+2}:{AOP+3}], v{ao1}')
        a.lab(f'K2_RARE_BACK{k}')
        return (k, ao0, ao1)
    rares = []
    if FUSE:
        a(f'v_mov_b32 v{WF}, {LBF}')
        a('s_mov_b32 s61, 0x200000')
        a.lab('K2_TSPIN')
        a(f'ds_read_b32 v{WF+1}, v{WF}')
        a('s_waitcnt lgkmcnt(0)')
        a(f'v_readfirstlane_b32 s62, v{WF+1}')
        a('s_cmp_lg_u32 s62, 0')
        a('s_cbranch_scc1 K2_TOK')
        a('s_sub_u32 s61, s61, 1')
        a('s_cmp_lg_u32 s61, 0')
        a('s_cbranch_scc1 K2_TSPIN')
        a.lab('K2_TOK')
    read_src(0)
    a(f'ds_read_b32 v{TMP+2}, v{V_A3} offset:{O_AOF}')
    a(f'ds_read_b32 v{TMP+3}, v{V_A3} offset:{O_AOF+16}')
    a('s_waitcnt lgkmcnt(2)')
    for i in range(8): issue_row(i)
    a.stamp(5)
    a('s_waitcnt lgkmcnt(0)')
    rares.append(load_A(TMP+2, TMP+3, T4))
    a('s_waitcnt lgkmcnt(0)')
    def wf1(t, R, seg):
        if 'M' in X: return
        a(f'v_mfma_f32_16x16x16_bf16 v[{wf(seg,R)}:{wf(seg,R)+3}], v[{AOP+2*R}:{AOP+2*R+1}], v[{wb(seg,t)}:{wb(seg,t)+1}], 0')
    def seg1(t, ac, m, mc):
        if 'M' in X: return
        a(f'v_mfma_f32_16x16x32_bf16 v[{acc(ac,t)}:{acc(ac,t)+3}], v[{SM+4*m}:{SM+4*m+3}], v[{msg(mc)}:{msg(mc)+3}], v[{acc(ac,t)}:{acc(ac,t)+3}]')
    for seg in (1, 2, 0): wf1(0, 0, seg)
    for r in range(TMP, TMP+4): a(f'v_mov_b32 v{r}, 0')
    a.nop(4)
    if Asm.STAMPS:
        a('s_lshl_b32 s69, s3, 6')
        a(f's_add_u32 s69, s69, {K2_LDS}')
    a('s_mov_b32 s53, 0')
    a('s_cmp_eq_u32 s58, 0')
    a('s_cbranch_scc1 K2_HALF')
    a.lab('K2_TILE')
    if Asm.STAMPS:
        a('s_memrealtime s[90:91]')
        a('s_waitcnt lgkmcnt(0)')
        a(f'v_mov_b32 v{T4}, s90')
        a(f'v_mov_b32 v{T5}, s69')
        a(f'ds_write_b32 v{T5}, v{T4}')
        a('s_add_u32 s69, s69, 4')
    PRIO = os.environ.get('PRIO','1')
    if PRIO == '1':
        a('s_cmp_ge_u32 s58, 4')
        a('s_cbranch_scc1 K2_P2')
        a('s_cmp_ge_u32 s58, 2')
        a('s_cbranch_scc1 K2_P1')
        a('s_setprio 0')
        a('s_branch K2_PDONE')
        a.lab('K2_P1'); a('s_setprio 1'); a('s_branch K2_PDONE')
        a.lab('K2_P2'); a('s_setprio 2')
        a.lab('K2_PDONE')
    if PRIO == '2':
        a('s_cmp_ge_u32 s58, 4')
        a('s_cbranch_scc1 K2_P3')
        a('s_cmp_eq_u32 s58, 3')
        a('s_cbranch_scc1 K2_P2')
        a('s_cmp_eq_u32 s58, 2')
        a('s_cbranch_scc1 K2_P1')
        a('s_setprio 0')
        a('s_branch K2_PDONE')
        a.lab('K2_P1'); a('s_setprio 1'); a('s_branch K2_PDONE')
        a.lab('K2_P2'); a('s_setprio 2'); a('s_branch K2_PDONE')
        a.lab('K2_P3'); a('s_setprio 3')
        a.lab('K2_PDONE')
    SEG = [1, 1, 1, 2, 0]
    X_, Y_, Z_, VR_, S_ = 0, 1, 2, 3, 4
    groups = []
    for c in range(5): groups.append((0, (0, c), (2, c)))
    for c in range(5): groups.append((0, (4, c), (6, c)))
    pm = [(0, 0), (0, 1), (0, 2), (0, 3), (0, 4), (2, 0), (2, 1), (2, 2), (2, 3), (2, 4)]
    for k in range(5): groups.append((1, pm[2*k], pm[2*k+1]))
    for c in range(5): groups.append((1, (4, c), (6, c)))
    def unpack(t, i, comp, u):
        s0 = gA(i, comp) if comp < 4 else GB+i
        s1 = gA(i+1, comp) if comp < 4 else GB+i+1
        if 'V' in X: return
        if t == 0:
            a(f'v_lshlrev_b32 v{u}, 16, v{s0}'); a(f'v_lshlrev_b32 v{u+1}, 16, v{s1}')
        else:
            a(f'v_and_b32 v{u}, 0xffff0000, v{s0}'); a(f'v_and_b32 v{u+1}, 0xffff0000, v{s1}')
    def pk(t, i, comp, u):
        R = i >> 2; r = i & 3; seg = SEG[comp]
        if 'V' in X: return
        a(f'v_pk_mul_f32 v[{u}:{u+1}], v[{u}:{u+1}], v[{wf(seg,R,r)}:{wf(seg,R,r+1)}]')
    def cvt(g):
        t, (i0_, c0), (i1_, c1) = groups[g]
        if 'V' in X: return
        a(f'v_cvt_pk_bf16_f32 v{msg(c0,i0_//2)}, v{TMP}, v{TMP+1}')
        a(f'v_cvt_pk_bf16_f32 v{msg(c1,i1_//2)}, v{TMP+2}, v{TMP+3}')
    def block(g, slot):
        t, (i0_, c0), (i1_, c1) = groups[g]
        if slot: slot()
        cvt((g-1) % 20)
        unpack(t, i0_, c0, TMP); unpack(t, i1_, c1, TMP+2)
        pk(t, i0_, c0, TMP); pk(t, i1_, c1, TMP+2)
    SS = {X_: (1, 0, 0), Y_: (2, 0, 1), Z_: (3, 0, 2), S_: (0, 0, 4), 'vx': (1, 1, 3), 'vy': (2, 2, 3), 'vz': (3, 3, 3)}
    def sg(t, k): return lambda: seg1(t, *SS[k])
    def wfl(t, R, seg): return lambda: wf1(t, R, seg)
    slots = {0: sg(1,'vx'), 1: sg(1,'vy'), 2: sg(1,'vz'), 3: sg(1,S_),
             4: wfl(0,1,1), 5: wfl(0,1,2), 6: wfl(0,1,0),
             7: sg(0,X_), 8: sg(0,Y_), 9: sg(0,Z_), 10: sg(0,'vx'), 11: sg(0,'vy'), 12: sg(0,'vz'), 13: sg(0,S_),
             14: wfl(1,1,1), 15: wfl(1,1,2), 16: wfl(1,1,0), 17: sg(1,X_), 18: sg(1,Y_), 19: sg(1,Z_)}
    VW = (lambda n: n//2) if os.environ.get('NOB') else (lambda n: n)
    for g in range(20):
        if g == 0: a(f's_waitcnt vmcnt({VW(8)})')
        if g == 5:
            a('s_waitcnt vmcnt(0)')
            RESPOS = int(os.environ.get('RESPOS','2'))
            a(f's_cmp_lt_u32 s53, {RESPOS}')
            a('s_cbranch_scc1 K2_RESSKIP')
            res_dma('A')
            a.lab('K2_RESSKIP')
        block(g, slots[g])
        if g == 3:
            wf1(1, 0, 1)
            a(f'ds_read_b128 v[{SM}:{SM+3}], v{V_A2} offset:{O_OH}')
            a(f'ds_read_b128 v[{SM+4}:{SM+7}], v{V_A2} offset:{O_RX}')
            a(f'ds_read_b128 v[{SM+8}:{SM+11}], v{V_A2} offset:{O_RY}')
            a(f'ds_read_b128 v[{SM+12}:{SM+15}], v{V_A2} offset:{O_RZ}')
            read_src(128)
        if g == 6:
            a('s_waitcnt lgkmcnt(2)')
            wf1(1, 0, 2)
            for j in range(4): a(f'v_pk_lshlrev_b16 v{SM+j}, v{V_SHL}, v{SM+j}')
            for j in range(4): a(f'v_pk_ashrrev_i16 v{SM+j}, 15, v{SM+j} op_sel_hi:[0,1]')
            wf1(1, 0, 0)
            for m in (1, 2, 3):
                for j in range(4): a(f'v_and_b32 v{SM+4*m+j}, v{SM+j}, v{SM+4*m+j}')
            for j in range(4): a(f'v_and_b32 v{SM+j}, 0x3f803f80, v{SM+j}')
            a(f'v_add_u32 v{V_A1}, 128, v{V_A1}')
            a(f'v_add_u32 v{V_A2}, 64, v{V_A2}')
        if g == 9: a('s_waitcnt lgkmcnt(0)')
        if g == 12:
            issue_row(0); issue_row(1)
            a(f'ds_read_b32 v{SRC}, v{V_A3} offset:{O_AOF+128}')
            a(f'ds_read_b32 v{SRC+1}, v{V_A3} offset:{O_AOF+128+16}')
        if g == 14:
            issue_row(2); issue_row(3)
        if g == 16:
            a('s_waitcnt lgkmcnt(0)')
            rares.append(load_A(SRC, SRC+1, T4))
        if g == 19:
            issue_row(4)
            a('s_waitcnt lgkmcnt(0)')
            wf1(0, 0, 1)
            issue_row(5);
            wf1(0, 0, 2)
            issue_row(6)
            wf1(0, 0, 0)
            issue_row(7)
    a(f'v_add_u32 v{V_A3}, 128, v{V_A3}')
    a('s_add_u32 s53, s53, 1')
    a('s_sub_u32 s58, s58, 1')
    a('s_cmp_lg_u32 s58, 0')
    a('s_cbranch_scc1 K2_TILE')
    a('s_cmp_eq_u32 s54, 0')
    a('s_cbranch_scc1 K2_FLUSH')
    a.lab('K2_HALF')
    a('s_setprio 0')
    hslots = {0: sg(1,'vx'), 1: sg(1,'vy'), 2: sg(1,'vz'), 3: sg(1,S_), 4: None}
    for g in range(5):
        if g == 0: a(f's_waitcnt vmcnt({VW(8)})')
        block(g, hslots[g])
        if g == 3:
            wf1(1, 0, 1)
            a(f'ds_read_b128 v[{SM}:{SM+3}], v{V_A2} offset:{O_OH}')
            a(f'ds_read_b128 v[{SM+4}:{SM+7}], v{V_A2} offset:{O_RX}')
            a(f'ds_read_b128 v[{SM+8}:{SM+11}], v{V_A2} offset:{O_RY}')
            a(f'ds_read_b128 v[{SM+12}:{SM+15}], v{V_A2} offset:{O_RZ}')
    cvt(4)
    for c in range(5):
        a(f'v_mov_b32 v{msg(c,2)}, 0'); a(f'v_mov_b32 v{msg(c,3)}, 0')
    a('s_waitcnt lgkmcnt(0)')
    wf1(1, 0, 2)
    for j in range(4): a(f'v_pk_lshlrev_b16 v{SM+j}, v{V_SHL}, v{SM+j}')
    for j in range(4): a(f'v_pk_ashrrev_i16 v{SM+j}, 15, v{SM+j} op_sel_hi:[0,1]')
    wf1(1, 0, 0)
    for m in (1, 2, 3):
        for j in range(4): a(f'v_and_b32 v{SM+4*m+j}, v{SM+j}, v{SM+4*m+j}')
    for j in range(4): a(f'v_and_b32 v{SM+j}, 0x3f803f80, v{SM+j}')
    a('s_nop 1')
    seg1(0, *SS[X_]); seg1(0, *SS[Y_]); seg1(0, *SS[Z_])
    def block_nocvt(g, slot):
        t, (i0_, c0), (i1_, c1) = groups[g]
        if slot: slot()
        unpack(t, i0_, c0, TMP); unpack(t, i1_, c1, TMP+2)
        pk(t, i0_, c0, TMP); pk(t, i1_, c1, TMP+2)
    block_nocvt(10, sg(0,'vx'))
    seg1(0, *SS['vy'])
    block(11, sg(0,'vz'))
    block(12, sg(0,S_))
    block(13, None)
    block(14, None)
    cvt(14)
    a('s_nop 1')
    for k in (X_, Y_, Z_, 'vx', 'vy', 'vz', S_): seg1(1, *SS[k])
    a('s_waitcnt vmcnt(0) lgkmcnt(0)')
    a('s_branch K2_TILES_DONE')
    a.lab('K2_FLUSH')
    cvt(19)
    for k in ('vx', 'vy', 'vz'): seg1(1, *SS[k])
    seg1(1, *SS[S_])
    a('s_waitcnt vmcnt(0) lgkmcnt(0)')
    a('s_branch K2_TILES_DONE')
    a.lab('K2_NOTILES')
    a.lab('K2_TILES_DONE')
    a.stamp(6)
    a('s_add_u32 s52, s52, 256')
    a('s_cmp_ge_u32 s52, s19')
    a('s_cbranch_scc1 K2_EPI')
    for r in range(SM, SM+16): a(f'v_mov_b32 v{r}, 0')
    a(f'v_mbcnt_lo_u32_b32 v{LANE}, -1, 0')
    a(f'v_mbcnt_hi_u32_b32 v{LANE}, -1, v{LANE}')
    a(f'v_mul_u32_u24 v{TMP}, {NG*4}, v{LANE}')
    a('s_lshl_b32 s17, s14, 2')
    a(f'buffer_load_dword v{TMP+1}, v{TMP}, s[20:23], s17 offen {SC}')
    a('s_waitcnt vmcnt(0)')
    header()
    a(f'v_sub_u32 v{P}, v{P}, v{CNT}')
    a(f'v_lshl_add_u32 v{LOCB}, v{LANE}, 12, v{ST}')
    a('s_branch K2_CHUNK')
    for (k, ao0, ao1) in rares:
        a.lab(f'K2_RARE{k}')
        a(f'v_max_i32 v{T4}, 0, v{ao0}')
        a(f'v_max_i32 v{T5}, 0, v{ao1}')
        a(f'v_add_u32 v{T4}, v{T4}, v{V_KQ8}')
        a(f'v_add_u32 v{T5}, v{T5}, v{V_KQ8}')
        a(f'ds_read_b64 v[{AOP}:{AOP+1}], v{T4}')
        a(f'ds_read_b64 v[{AOP+2}:{AOP+3}], v{T5}')
        a('s_waitcnt lgkmcnt(0)')
        for h, ao in ((0, ao0), (1, ao1)):
            a(f'v_cmp_gt_i32 vcc, 0, v{ao}')
            a(f'v_and_b32 v{T4}, 0x7fffffff, v{ao}')
            a(f'v_add_u32 v{T4}, v{T4}, v{V_KQ8}')
            a('s_and_saveexec_b64 s[62:63], vcc')
            a(f's_cbranch_execz K2_RSK{k}_{h}')
            a(f'buffer_load_dwordx2 v[{AOP+2*h}:{AOP+2*h+1}], v{T4}, s[28:31], 0 offen {SC}')
            a('s_waitcnt vmcnt(0)')
            a.lab(f'K2_RSK{k}_{h}')
            a('s_mov_b64 exec, s[62:63]')
        a(f's_branch K2_RARE_BACK{k}')
    a.lab('K2_EPI')
    res_dma('B')
    a('s_waitcnt vmcnt(0)')
    LN = T4
    a(f'v_mbcnt_lo_u32_b32 v{LN}, -1, 0')
    a(f'v_mbcnt_hi_u32_b32 v{LN}, -1, v{LN}')
    a('s_lshl_b32 s62, s3, 12')
    a(f's_add_u32 s62, s62, {RES0}')
    a(f'v_lshrrev_b32 v{T5}, 4, v{LN}')
    a(f'v_lshlrev_b32 v{T5}, 10, v{T5}')
    a(f'v_lshl_add_u32 v{T5}, v{V_C}, 2, v{T5}')
    a(f'v_add_u32 v{T5}, s62, v{T5}')
    for r in range(4):
        for comp in range(4):
            a(f'ds_read_b32 v{GA+r*4+comp}, v{T5} offset:{r*256+comp*64}')
    a('s_waitcnt lgkmcnt(0)')
    for r in range(4):
        for comp in range(4):
            x = GA+r*4+comp
            a(f'v_lshlrev_b32 v{TMP}, 16, v{x}')
            a(f'v_and_b32 v{TMP+1}, 0xffff0000, v{x}')
            a(f'v_add_f32 v{TMP}, v{TMP}, v{acc(comp,0)+r}')
            a(f'v_add_f32 v{TMP+1}, v{TMP+1}, v{acc(comp,1)+r}')
            a(f'v_cvt_pk_bf16_f32 v{x}, v{TMP}, v{TMP+1}')
            a(f'ds_write_b32 v{T5}, v{x} offset:{r*256+comp*64}')
    a(f'v_lshlrev_b32 v{TMP}, 4, v{LN}')
    a(f'v_add_u32 v{TMP}, s62, v{TMP}')
    for j in range(4):
        a(f'ds_read_b128 v[{MSG+4*j}:{MSG+4*j+3}], v{TMP} offset:{1024*j}')
    a(f'v_lshrrev_b32 v{T5}, 4, v{LN}')
    a(f'v_lshlrev_b32 v{TMP+1}, 10, v{T5}')
    a(f'v_bfe_u32 v{TMP+2}, v{LN}, 2, 2')
    a(f'v_lshl_add_u32 v{TMP+1}, v{TMP+2}, 8, v{TMP+1}')
    a(f'v_and_b32 v{TMP+2}, 3, v{LN}')
    a(f'v_lshl_add_u32 v{TMP+1}, v{TMP+2}, 4, v{TMP+1}')
    a('s_lshl_b32 s61, s15, 10')
    a('s_lshl_b32 s62, s13, 6')
    a('s_add_u32 s61, s61, s62')
    a(f'v_mov_b32 v{TMP+2}, 0x80000000')
    for j in range(4):
        a(f'v_add_u32 v{TMP+3}, {4*j}, v{T5}')
        a(f'v_cmp_gt_u32 vcc, s16, v{TMP+3}')
        a('s_nop 1')
        a(f'v_cndmask_b32 v{WF+j}, v{TMP+2}, v{TMP+1}, vcc')
    for j in range(4):
        a(f's_waitcnt lgkmcnt({3-j})')
        a(f'buffer_store_dwordx4 v[{MSG+4*j}:{MSG+4*j+3}], v{WF+j}, s[36:39], s61 offen {OUTST}')
        a('s_add_u32 s61, s61, 4096')
    a.stamp(7)
    if Asm.STAMPS:
        a('s_memtime s[86:87]')
        a('s_waitcnt lgkmcnt(0)')
        a('s_sub_u32 s84, s86, s88')
        a('s_lshl_b32 s68, s3, 6')
        a(f's_add_u32 s68, s68, {K2_LDS}')
        a(f'v_lshlrev_b32 v2, 2, v{LN}')
        a('v_add_u32 v3, s68, v2')
        a('ds_read_b32 v4, v3')
        a('s_add_u32 s64, s10, 0x1A00000')
        a('s_addc_u32 s65, s11, 0')
        a('s_mov_b32 s66, 0x100000')
        a('s_mov_b32 s67, 0x00020000')
        a('s_lshl_b32 s68, s2, 4')
        a('s_add_u32 s68, s68, s3')
        a('s_lshl_b32 s68, s68, 6')
        a('s_waitcnt lgkmcnt(0)')
        a('s_mov_b64 exec, 0xffff')
        a('buffer_store_dword v4, v2, s[64:67], s68 offen')
        a('s_mov_b64 exec, -1')
    if Asm.STAMPS and FUSE:
        a('s_lshl_b32 s68, s3, 5')
        a('s_add_u32 s68, s68, 155712')
        a(f'v_mbcnt_lo_u32_b32 v2, -1, 0')
        a(f'v_mbcnt_hi_u32_b32 v2, -1, v2')
        a('v_lshlrev_b32 v2, 2, v2')
        a('v_add_u32 v3, s68, v2')
        a('ds_read_b32 v4, v3')
        a('s_add_u32 s64, s10, 0x1800000')
        a('s_addc_u32 s65, s11, 0')
        a('s_mov_b32 s66, 0x100000')
        a('s_mov_b32 s67, 0x00020000')
        a('s_lshl_b32 s68, s2, 4')
        a('s_add_u32 s68, s68, s3')
        a('s_lshl_b32 s68, s68, 6')
        a('s_waitcnt lgkmcnt(0)')
        a('s_mov_b64 exec, 0xff')
        a('buffer_store_dword v4, v2, s[64:67], s68 offen')
        a('s_mov_b64 exec, -1')
    a.stamp_flush(1, 10, 8, 3)
    a.lab('K2_END')
    a('s_endpgm')
```

```python
from asmlib import *
import os
STT = os.environ.get('STT','sc1')
STO = os.environ.get('STO','sc1')
LDN = os.environ.get('LDN','')

N = 10000; E = 160000
NBIN = 47; CHUNK = 3405; NG = 768
WS_TA = 0; WS_TB = 10240000; WS_ATAB = 0xC80000; WS_WB = 0xC90000; WS_HDR = 0xCA0000; WS_TAILS = 0xD00000
HOT0 = 1472; NHOT_KB = 17
WS_FLAGS = 0xCF0000
FUSE = os.environ.get('FUSE','1') == '1'
KNAME = 'gather_scatter__molecular_angular_painn__graph_kernel'
COMP = bool(os.environ.get('COMP'))
DBASE = 0x38C0; DTHR = 0x409D
K1_LDS = 155712
S_BASE = 131072; HS_OFF = 12288

def srd(a, s, base, nbytes, off=0, stride=0):
    if off:
        a(f's_add_u32 s{s}, s{base}, 0x{off:x}')
        a(f's_addc_u32 s{s+1}, s{base+1}, 0')
    else:
        a(f's_mov_b32 s{s}, s{base}')
        a(f's_mov_b32 s{s+1}, s{base+1}')
    if stride:
        a(f's_or_b32 s{s+1}, s{s+1}, 0x{stride<<16:x}')
    a(f's_mov_b32 s{s+2}, {nbytes}')
    a(f's_mov_b32 s{s+3}, 0x00020000')

def gen_mlp(a):
    a.lab('K1_MLP')
    a.stamp(0)
    a('s_sub_u32 s24, s2, 47')
    a('s_mul_i32 s24, s24, 48          ; node0')
    a('s_lshr_b32 s22, s3, 2           ; nt')
    a('s_and_b32 s23, s3, 3            ; sl')
    srd(a, 28, 4, 10240000)
    srd(a, 32, 14, 32768)
    srd(a, 36, 16, 98304)
    a('s_mul_i32 s25, s23, 2560000')
    a('s_add_u32 s40, s20, s25')
    a('s_addc_u32 s41, s21, 0')
    a('s_mov_b32 s42, 2560000')
    a('s_mov_b32 s43, 0x00020000')
    a('s_mul_i32 s25, s23, 640000')
    a(f's_add_u32 s25, s25, {WS_TB}')
    a('s_add_u32 s44, s20, s25')
    a('s_addc_u32 s45, s21, 0')
    a('s_mov_b32 s46, 640000')
    a('s_mov_b32 s47, 0x00020000')
    FLAG = 155648
    a('v_lshrrev_b32 v3, 4, v2          ; L>>4')
    a('v_and_b32 v4, 15, v2             ; L&15')
    a('v_mov_b32 v5, 0')
    a(f'v_mov_b32 v6, {FLAG}')
    a('ds_write_b32 v6, v5')
    a('s_and_b32 s26, s3, 1')
    a('s_lshl_b32 s26, s26, 2           ; 4*(wv&1)')
    a('v_add_u32 v6, s26, v3            ; kl7')
    a('v_lshrrev_b32 v7, 1, v4          ; p>>1')
    a('v_xor_b32 v7, v7, v6')
    a('v_and_b32 v8, 1, v4')
    a('v_lshl_or_b32 v7, v7, 1, v8      ; lchunk')
    a('v_lshlrev_b32 v7, 4, v7          ; *16')
    a('v_lshl_add_u32 v6, v3, 8, v7')
    a('v_mul_u32_u24 v8, 768, v3')
    a('v_add_u32 v7, v8, v7             ; vW2')
    a('s_waitcnt lgkmcnt(0)')
    a('s_barrier')
    a('s_cmp_ge_u32 s3, 8')
    a('s_cbranch_scc1 K1_LOADER')
    a('s_lshl_b32 s25, s3, 2')
    a('v_add_u32 v5, s25, v3')
    a('v_and_b32 v9, 15, v5')
    a('v_xor_b32 v9, v4, v9             ; lchunk')
    a('v_add_u32 v5, s24, v5            ; node')
    a('v_lshlrev_b32 v5, 10, v5')
    a('v_lshl_add_u32 v5, v9, 4, v5')
    a('s_lshl_b32 s25, s3, 10')
    a(f's_add_u32 s25, s25, {S_BASE}')
    a('s_mov_b32 m0, s25')
    a('s_cmp_ge_u32 s3, 4')
    a(f'buffer_load_dwordx4 v5, s[28:31], 0 offen {LDN} lds')
    a('s_cbranch_scc1 K1_S2SKIP')
    a('s_add_u32 s25, s25, 8192')
    a('s_mov_b32 m0, s25')
    a('v_add_u32 v5, 0x8000, v5')
    a(f'buffer_load_dwordx4 v5, s[28:31], 0 offen {LDN} lds')
    a.lab('K1_S2SKIP')
    for j in range(4):
        a(f's_add_u32 s25, s3, {8*j}')
        a('s_lshl_b32 s26, s25, 10')
        a('s_mov_b32 m0, s26')
        a('s_nop 0')
        a('buffer_load_dwordx4 v6, s[32:35], s26 offen lds')
    a('s_branch K1_ADDR')
    a.lab('K1_LOADER')
    a('s_sub_u32 s49, s3, 8')
    for m in range(1, 4):
        for j in range(8):
            a(f's_add_u32 s25, s49, {4*j}')
            a('s_lshl_b32 s26, s25, 10')
            a(f's_add_u32 s26, s26, {m*32768}')
            a('s_mov_b32 m0, s26')
            a('s_mul_i32 s27, s25, 3072')
            a(f's_add_u32 s27, s27, {(m-1)*256}')
            a('buffer_load_dwordx4 v7, s[36:39], s27 offen lds')
    a.lab('K1_ADDR')
    a('s_lshl_b32 s25, s22, 4')
    a('s_add_u32 s25, s25, s24           ; node0+16nt')
    a('s_mov_b32 s48, s25')
    a('v_add_u32 v8, s25, v4')
    a('v_lshlrev_b32 v8, 10, v8')
    a('v_lshl_add_u32 v8, v3, 3, v8')
    a('s_lshl_b32 s26, s23, 6')
    a('s_add_u32 s26, s26, 256')
    a('v_add_u32 v8, s26, v8')
    VV = 10
    def vloads():
        for j in range(3):
            for hf in range(2):
                r = VV + (j*2+hf)*2
                a(f'buffer_load_dwordx2 v[{r}:{r+1}], v8, s[28:31], 0 offen offset:{j*256+32*hf} {LDN}')
    a('v_lshrrev_b32 v22, 2, v4           ; r\'')
    a('v_lshl_add_u32 v22, v3, 2, v22     ; 4kq + r\'')
    a('v_and_b32 v23, 7, v22              ; kl7')
    a('v_lshlrev_b32 v22, 8, v22')
    a('v_lshl_add_u32 v22, v23, 5, v22')
    a('v_and_b32 v23, 3, v4')
    a('v_lshl_add_u32 v22, v23, 3, v22    ; aBase')
    a('s_lshl_b32 s25, s23, 6             ; 2*sl*32')
    a('v_xor_b32 v24, s25, v22')
    a('v_xor_b32 v25, 32, v24             ; aW[hf=1]')
    a('v_add_u32 v26, 0x10000, v24        ; aW2[0] (+65536)')
    a('v_add_u32 v27, 0x10000, v25        ; aW2[1]')
    a('v_lshrrev_b32 v23, 1, v3')
    a('v_xor_b32 v23, v23, v4')
    a('v_lshlrev_b32 v23, 4, v23')
    a('v_and_b32 v28, 1, v3')
    a('v_lshl_add_u32 v23, v28, 3, v23')
    a('v_lshl_add_u32 v23, v4, 8, v23')
    a(f'v_add_u32 v23, {S_BASE}, v23      ; bBase0')
    VB = 28
    for st in range(4):
        for rd in range(2):
            k = (4*st + 2*rd)*16
            r = VB + st*2 + rd
            if k == 0: a(f'v_mov_b32 v{r}, v23')
            else: a(f'v_xor_b32 v{r}, {k}, v23')
    a('v_mov_b32 v38, 0xffff0000')
    a('s_cmp_ge_u32 s3, 8')
    a('s_cbranch_scc1 K1_LOADER2')
    a('s_lshl_b32 s25, s3, 5')
    a('v_xor_b32 v36, s25, v22')
    a('v_xor_b32 v37, s25, v23')
    a.stamp(1)
    a('s_waitcnt vmcnt(0)')
    a(f'v_mov_b32 v39, {FLAG}')
    a('v_mov_b32 v9, 1')
    a('s_mov_b64 exec, 1')
    a('ds_add_u32 v39, v9')
    a('s_mov_b64 exec, -1')
    a.lab('K1_SPIN')
    a('ds_read_b32 v9, v39')
    a('s_waitcnt lgkmcnt(0)')
    a('v_readfirstlane_b32 s25, v9')
    a('s_cmp_lt_u32 s25, 8')
    a('s_cbranch_scc1 K1_SPIN')
    a.stamp(2)
    AF = 56
    BL = 72
    D1 = 40
    for st in range(4):
        for rd in range(2):
            r = AF + st*4 + rd*2
            a(f'ds_read_b64_tr_b16 v[{r}:{r+1}], v36 offset:{st*8192+rd*4096}')
    for nt in range(3):
        for st in range(4):
            for rd in range(2):
                r = BL + nt*16 + st*4 + rd*2
                a(f'ds_read_b64 v[{r}:{r+1}], v{VB+st*2+rd} offset:{nt*4096}')
    vloads()
    for r in range(D1, D1+12): a(f'v_mov_b32 v{r}, 0')
    a('s_waitcnt lgkmcnt(0)')
    for st in range(4):
        for nt in range(3):
            A_ = AF + st*4; B_ = BL + nt*16 + st*4; D_ = D1 + nt*4
            a(f'v_mfma_f32_16x16x32_bf16 v[{D_}:{D_+3}], v[{A_}:{A_+3}], v[{B_}:{B_+3}], v[{D_}:{D_+3}]')
    a.nop(8)
    a.stamp(3)
    T = 56
    for p in range(6):
        a(f'v_cvt_pk_bf16_f32 v{T+p}, v{D1+2*p}, v{D1+2*p+1}')
    for p in range(6):
        a(f'v_lshlrev_b32 v{D1+2*p}, 16, v{T+p}')
        a(f'v_and_b32 v{D1+2*p+1}, v38, v{T+p}')
    for i in range(12):
        a(f'v_mul_f32 v{T+i}, 0xbfb8aa3b, v{D1+i}     ; -log2e*h')
    for i in range(12):
        a(f'v_exp_f32 v{T+i}, v{T+i}')
    a('s_nop 0')
    for i in range(12):
        a(f'v_add_f32 v{T+i}, 1.0, v{T+i}')
    for i in range(12):
        a(f'v_rcp_f32 v{T+i}, v{T+i}')
    a('s_nop 0')
    for i in range(12):
        a(f'v_mul_f32 v{T+i}, v{D1+i}, v{T+i}')
    for p in range(6):
        a(f'v_cvt_pk_bf16_f32 v{D1+p}, v{T+2*p}, v{T+2*p+1}')
    for nt in range(3):
        a(f'ds_write_b64 v37, v[{D1+2*nt}:{D1+2*nt+1}] offset:{HS_OFF+nt*4096}')
    a('s_waitcnt lgkmcnt(0)')
    a('s_branch K1_B2')
    a.lab('K1_LOADER2')
    vloads()
    a.stamp(1); a.stamp(2); a.stamp(3)
    a('s_waitcnt vmcnt(6)')
    a.lab('K1_B2')
    a('s_lshl_b32 s25, s22, 12')
    for r in range(VB, VB+8): a(f'v_add_u32 v{r}, s25, v{r}')
    a('s_barrier')
    a.stamp(4)
    BS = 40; AF = 56
    for st in range(4):
        for rd in range(2):
            r = BS + st*4 + rd*2
            a(f'ds_read_b64 v[{r}:{r+1}], v{VB+st*2+rd} offset:{HS_OFF}')
    D2 = 96
    for r in range(D2, D2+24): a(f'v_mov_b32 v{r}, 0')
    tiles = [(seg, hf) for seg in range(3) for hf in range(2)]
    bufs = [AF, AF+16, 120]
    def issueA(idx):
        seg, hf = tiles[idx]
        buf = bufs[idx % 3]
        if seg == 0: areg = 24+hf; base = 32768
        else: areg = 26+hf; base = (seg-1)*32768
        for st in range(4):
            for rd in range(2):
                r = buf + st*4 + rd*2
                a(f'ds_read_b64_tr_b16 v[{r}:{r+1}], v{areg} offset:{base+st*8192+rd*4096}')
    issueA(0)
    a('s_waitcnt lgkmcnt(8)')
    for idx in range(6):
        if idx + 1 < 6:
            if idx >= 1: a('s_waitcnt lgkmcnt(7)')
            issueA(idx+1)
            a('s_waitcnt lgkmcnt(8)')
        else:
            a('s_waitcnt lgkmcnt(0)')
        seg, hf = tiles[idx]
        buf = bufs[idx % 3]
        D_ = D2 + (seg*2+hf)*4
        for st in range(4):
            a(f'v_mfma_f32_16x16x32_bf16 v[{D_}:{D_+3}], v[{buf+st*4}:{buf+st*4+3}], v[{BS+st*4}:{BS+st*4+3}], v[{D_}:{D_+3}]')
    a('s_waitcnt vmcnt(0)')
    a('s_barrier')
    a.stamp(5)
    nonce_load(a, 'M')
    a.nop(8)
    a('s_mul_i32 s25, s3, 5120')
    a('v_lshlrev_b32 v28, 1, v3           ; 2q')
    a('v_xor_b32 v28, v28, v4             ; (2q)^node')
    a('v_lshlrev_b32 v28, 4, v28')
    a('v_lshl_add_u32 v28, v4, 8, v28')
    a('v_add_u32 v28, s25, v28')
    a('v_xor_b32 v29, 16, v28             ; chunk 2q+1')
    a('v_xor_b32 v30, 0x80, v28           ; chunk 8+2q')
    a('v_xor_b32 v31, 0x80, v29           ; chunk 8+2q+1')
    a('v_lshlrev_b32 v32, 6, v4')
    a('v_lshl_add_u32 v32, v3, 3, v32')
    a('v_add_u32 v32, s25, v32')
    O1 = 40; O2 = 44; OB = 48; PV = 50; TT = 56
    for hf in range(2):
        Ds = D2 + (0*2+hf)*4; Dv = D2 + (1*2+hf)*4; Dr = D2 + (2*2+hf)*4
        a(f'v_cvt_pk_bf16_f32 v{OB}, v{Ds}, v{Ds+1}')
        a(f'v_cvt_pk_bf16_f32 v{OB+1}, v{Ds+2}, v{Ds+3}')
        a(f'v_cvt_pk_bf16_f32 v{O1+3}, v{Dr}, v{Dr+1}')
        a(f'v_cvt_pk_bf16_f32 v{O2+3}, v{Dr+2}, v{Dr+3}')
        a(f'v_cvt_pk_bf16_f32 v{TT}, v{Dv}, v{Dv+1}')
        a(f'v_cvt_pk_bf16_f32 v{TT+1}, v{Dv+2}, v{Dv+3}')
        a(f'v_lshlrev_b32 v{PV}, 16, v{TT}')
        a(f'v_and_b32 v{PV+1}, v38, v{TT}')
        a(f'v_lshlrev_b32 v{PV+2}, 16, v{TT+1}')
        a(f'v_and_b32 v{PV+3}, v38, v{TT+1}')
        for j in range(3):
            r = VV + (j*2+hf)*2
            t = TT + 4 + j*4
            a(f'v_lshlrev_b32 v{t}, 16, v{r}')
            a(f'v_and_b32 v{t+1}, v38, v{r}')
            a(f'v_lshlrev_b32 v{t+2}, 16, v{r+1}')
            a(f'v_and_b32 v{t+3}, v38, v{r+1}')
            a(f'v_pk_mul_f32 v[{t}:{t+1}], v[{t}:{t+1}], v[{PV}:{PV+1}]')
            a(f'v_pk_mul_f32 v[{t+2}:{t+3}], v[{t+2}:{t+3}], v[{PV+2}:{PV+3}]')
            a(f'v_cvt_pk_bf16_f32 v{O1+j}, v{t}, v{t+1}')
            a(f'v_cvt_pk_bf16_f32 v{O2+j}, v{t+2}, v{t+3}')
        a(f'ds_write_b128 v{28+2*hf}, v[{O1}:{O1+3}]')
        a(f'ds_write_b128 v{29+2*hf}, v[{O2}:{O2+3}]')
        a(f'ds_write_b64 v32, v[{OB}:{OB+1}] offset:{4096+32*hf}')
        if hf == 0: a('s_nop 1')
    R0 = 64
    a('v_xor_b32 v33, v4, v3              ; p ^ (L>>4)')
    a('v_lshlrev_b32 v33, 4, v33')
    a('v_lshl_add_u32 v33, v3, 8, v33')
    a('v_add_u32 v33, s25, v33')
    for i in range(1, 4):
        a(f'v_xor_b32 v{33+i}, {64*i}, v33')
    a('v_lshlrev_b32 v39, 4, v2           ; L*16')
    a('v_add_u32 v37, s25, v39')
    a('s_waitcnt lgkmcnt(0)')
    for i in range(4):
        a(f'ds_read_b128 v[{R0+4*i}:{R0+4*i+3}], v{33+i} offset:{1024*i}')
    a(f'ds_read_b128 v[{R0+16}:{R0+19}], v37 offset:4096')
    a('s_lshl_b32 s26, s48, 8')
    a('s_lshl_b32 s27, s48, 6')
    a('v_add_u32 v38, s26, v39')
    a('v_add_u32 v39, s27, v39')
    for i in range(4):
        a(f's_waitcnt lgkmcnt({4-i})')
        a(f'buffer_store_dwordx4 v[{R0+4*i}:{R0+4*i+3}], v38, s[40:43], 0 offen offset:{1024*i} {STT}')
    a('s_waitcnt lgkmcnt(0)')
    a(f'buffer_store_dwordx4 v[{R0+16}:{R0+19}], v39, s[44:47], 0 offen {STT}')
    a.stamp(6)
    role_end(a)

def nonce_load(a, tag):
    if FUSE:
        a('s_cmp_lg_u32 s3, 0')
        a(f's_cbranch_scc1 K1_NL{tag}')
        a('v_mov_b32 v165, 0')
        a('buffer_load_dword v166, v165, s[92:95], 0 offen sc1')
        a.lab(f'K1_NL{tag}')

def get_nonce(a, tag):
    a('s_mov_b32 s68, 0x10000')
    a.lab(f'K1_NLOOP{tag}')
    a('v_readfirstlane_b32 s100, v166')
    a('s_cmp_lg_u32 s100, 0')
    a(f's_cbranch_scc1 K1_NOK{tag}')
    a('v_mov_b32 v165, 0')
    a('buffer_load_dword v166, v165, s[92:95], 0 offen sc1')
    a('s_waitcnt vmcnt(0)')
    a('s_sub_u32 s68, s68, 1')
    a('s_cmp_lg_u32 s68, 0')
    a(f's_cbranch_scc1 K1_NLOOP{tag}')
    a.lab(f'K1_NOK{tag}')

def publish(a, off):
    a(f's_add_u32 s64, s20, 0x{WS_FLAGS:x}')
    a('s_addc_u32 s65, s21, 0')
    a('s_mov_b32 s66, 16384')
    a('s_mov_b32 s67, 0x00020000')
    a('v_mbcnt_lo_u32_b32 v164, -1, 0')
    a('v_mbcnt_hi_u32_b32 v164, -1, v164')
    a('v_lshlrev_b32 v164, 11, v164           ; replica*2048')
    a('s_lshl_b32 s68, s2, 2')
    a(f's_add_u32 s68, s68, {off}')
    a('v_mov_b32 v163, s100')
    a('s_mov_b64 exec, 0xff')
    a('buffer_store_dword v163, v164, s[64:67], s68 offen sc1')
    a('s_mov_b64 exec, -1')

def role_end(a):
    if FUSE:
        a('s_branch K1_DONE')
    else:
        a.stamp_flush(0, 20, 7, 3)
        a('s_endpgm')

def bf16_round_pair(a, dst, x, y):
    a(f'v_cvt_pk_bf16_f32 v{dst}, v{x}, v{y}')

def gen_bin(a):
    a.lab('K1_BIN')
    a.stamp(0)
    srd(a, 28, 8, E*4)
    srd(a, 32, 10, E*4)
    srd(a, 36, 6, N*6)
    srd(a, 40, 20, NBIN*NG*4, off=WS_HDR)
    srd(a, 44, 20, NBIN*65536, off=WS_TAILS)
    a(f's_mul_i32 s24, s2, {CHUNK}           ; e0')
    a(f's_sub_u32 s25, {E}, s24')
    a(f's_min_u32 s25, s25, {CHUNK}          ; lim')
    a('v_lshlrev_b32 v1, 2, v0')
    a('v_mov_b32 v3, 0')
    a('ds_write_b32 v1, v3')
    SRC = 10; DST = 15; PS = 20; PD = 30; REC = 40; GG = 60; RK = 65
    POSL = 69632
    srd(a, 64, 12, 32)
    srd(a, 84, 20, 65536, off=WS_ATAB)
    a('v_and_b32 v82, 15, v0                 ; k')
    a('v_lshlrev_b32 v83, 1, v82')
    a('buffer_load_ushort v84, v83, s[64:67], 0 offen')
    a('s_cmp_lg_u32 s2, 0')
    a('s_cbranch_scc1 K1_NOWB1')
    srd(a, 64, 18, 16*768)
    a('v_lshrrev_b32 v90, 4, v2               ; kq')
    a('v_and_b32 v91, 15, v2                  ; c')
    a('v_mul_u32_u24 v90, 3072, v90           ; 4kq*768')
    a('v_lshl_add_u32 v90, v91, 2, v90')
    a('s_and_b32 s61, s3, 3')
    a('s_lshr_b32 s62, s3, 2')
    a('s_lshl_b32 s63, s61, 6')
    a('s_lshl_b32 s68, s62, 8')
    a('s_add_u32 s63, s63, s68')
    for i in range(4):
        a(f'buffer_load_dword v{92+i}, v90, s[64:67], s63 offen offset:{i*768}')
    a.lab('K1_NOWB1')
    a('v_lshlrev_b32 v5, 4, v2               ; lane*16')
    for k in range(5):
        if k == 4:
            a('s_cmp_ge_u32 s3, 11')
            a('s_cbranch_scc1 K1_POSDONE')
        a(f's_add_u32 s26, s3, {12*k}')
        a('s_lshl_b32 s26, s26, 10')
        a(f's_add_u32 s27, s26, {POSL}')
        a('s_mov_b32 m0, s27')
        a('s_nop 0')
        a('buffer_load_dwordx4 v5, s[36:39], s26 offen lds')
    a.lab('K1_POSDONE')
    a('v_add_u32 v4, s24, v0')
    a('v_lshlrev_b32 v4, 2, v4              ; e*4 (round 0)')
    for j in range(5):
        a(f's_mov_b32 s26, {j*3072}')
        a(f'buffer_load_dword v{SRC+j}, v4, s[28:31], s26 offen {LDN}')
        a(f'buffer_load_dword v{DST+j}, v4, s[32:35], s26 offen {LDN}')
    for j in range(5):
        a(f'v_add_u32 v5, {j*768}, v0')
        a(f'v_cmp_gt_u32 s[{50+2*j}:{51+2*j}], s25, v5')
    a('v_mov_b32 v6, 0xffff0000')
    a('v_lshrrev_b32 v85, 4, v0')
    a('s_mul_i32 s61, s2, 48')
    a('v_add_u32 v85, s61, v85             ; entry')
    a(f'v_add_u32 v86, 0x{DBASE:x}, v85')
    a('v_lshlrev_b32 v86, 16, v86          ; d')
    a('v_mul_f32 v87, 0x40490fdb, v86       ; pi*d')
    a('v_cvt_pk_bf16_f32 v87, v87, v87')
    a('v_and_b32 v87, v6, v87')
    a('v_mul_f32 v87, 0x3e4ccccd, v87       ; /5')
    a('v_cvt_pk_bf16_f32 v87, v87, v87')
    a('v_and_b32 v87, v6, v87')
    a('v_mul_f32 v87, 0x3e22f983, v87')
    a('v_cos_f32 v87, v87')
    a('v_rcp_f32 v88, v86                   ; 1/d')
    a('v_cvt_pk_bf16_f32 v87, v87, v87')
    a('v_and_b32 v87, v6, v87')
    a('v_add_f32 v87, 1.0, v87')
    a('v_cvt_pk_bf16_f32 v87, v87, v87')
    a('v_and_b32 v87, v6, v87')
    a('v_mul_f32 v87, 0.5, v87              ; fcut')
    a('v_cmp_gt_u32 vcc, 0x40a00000, v86')
    a('v_cmp_ne_u32 s[62:63], 0, v85')
    a('s_and_b64 vcc, vcc, s[62:63]')
    a('s_nop 1')
    a('v_cndmask_b32 v87, 0, v87, vcc')
    a('s_waitcnt vmcnt(14)')
    a('v_lshlrev_b32 v84, 16, v84           ; f_k')
    a('v_mul_f32 v84, v84, v86')
    a('v_cvt_pk_bf16_f32 v84, v84, v84')
    a('v_and_b32 v84, v6, v84               ; arg')
    a('v_mul_f32 v89, 0x3e22f983, v84')
    a('v_mov_b32 v81, 0x3e22f983')
    a('v_fma_f32 v80, v84, v81, -v89')
    a('v_mov_b32 v81, 0x31dc9c88')
    a('v_fma_f32 v80, v84, v81, v80')
    a('v_fract_f32 v89, v89')
    a('v_add_f32 v89, v89, v80')
    a('v_sin_f32 v89, v89')
    a('s_nop 0')
    a('v_cvt_pk_bf16_f32 v89, v89, v89')
    a('v_and_b32 v89, v6, v89')
    a('v_mul_f32 v89, v89, v88')
    a('v_cvt_pk_bf16_f32 v89, v89, v89')
    a('v_and_b32 v89, v6, v89')
    a('v_mul_f32 v89, v89, v87')
    a('v_cvt_pk_bf16_f32 v89, v89, v89')
    a('s_nop 1')
    a('v_mov_b32_dpp v88, v89 quad_perm:[1,0,3,2] row_mask:0xf bank_mask:0xf')
    a('v_and_b32 v89, 0xffff, v89')
    a('v_and_b32 v88, v6, v88')
    a('v_or_b32 v89, v89, v88')
    a('v_lshlrev_b32 v85, 5, v85')
    a('v_add_u32 v85, v85, v83               ; entry*32 + 2k')
    a('s_waitcnt vmcnt(10) lgkmcnt(0)')
    a('s_barrier')
    a.stamp(1)
    a('s_mov_b32 s62, 0x55555555')
    a('s_mov_b32 s63, 0x55555555')
    a('s_mov_b64 exec, s[62:63]')
    a(f'buffer_store_dword v89, v85, s[84:87], 0 offen {STO}')
    a('s_mov_b64 exec, -1')
    a('s_cmp_lg_u32 s2, 0')
    a('s_cbranch_scc1 K1_NOWB2')
    srd(a, 64, 20, 12288, off=WS_WB)
    a('s_mov_b32 s62, 0x05040100')
    a('s_mov_b32 s63, 0x07060302')
    a('v_perm_b32 v96, v93, v92, s62')
    a('v_perm_b32 v97, v95, v94, s62')
    a('v_perm_b32 v98, v93, v92, s63')
    a('v_perm_b32 v99, v95, v94, s63')
    a('s_and_b32 s61, s3, 3')
    a('s_lshr_b32 s62, s3, 2')
    a('s_mul_i32 s61, s61, 3')
    a('s_add_u32 s61, s61, s62')
    a('s_lshl_b32 s61, s61, 10                ; (slice*3+seg)*1024')
    a('v_lshlrev_b32 v91, 4, v2')
    a(f'buffer_store_dwordx4 v[96:99], v91, s[64:67], s61 offen {STO}')
    a.lab('K1_NOWB2')
    for j in range(5):
        a(f's_waitcnt vmcnt({8-2*j+1})')
        for (idx, dstp) in ((SRC+j, PS+2*j), (DST+j, PD+2*j)):
            a(f'v_mul_u32_u24 v5, 6, v{idx}')
            a('v_and_b32 v5, -4, v5')
            a(f'v_add_u32 v5, {POSL}, v5')
            a(f'ds_read2_b32 v[{dstp}:{dstp+1}], v5 offset0:0 offset1:1')
    a.stamp(2)
    a('s_mov_b32 s26, 5033')
    a('s_mov_b32 s27, 853362')
    a('s_mov_b32 s60, 65000')
    a('v_mov_b32 v7, 1')
    for j in range(5):
        a(f's_waitcnt lgkmcnt({min(15, 8-2*j + j)})')
        ps = PS+2*j; pd = PD+2*j; rec = REC+4*j
        t = 70
        a(f'v_and_b32 v{t}, 1, v{SRC+j}')
        a(f'v_lshlrev_b32 v{t}, 4, v{t}')
        a(f'v_lshrrev_b64 v[{ps}:{ps+1}], v{t}, v[{ps}:{ps+1}]')
        a(f'v_and_b32 v{t+1}, 1, v{DST+j}')
        a(f'v_lshlrev_b32 v{t+1}, 4, v{t+1}')
        a(f'v_lshrrev_b64 v[{pd}:{pd+1}], v{t+1}, v[{pd}:{pd+1}]')
        a(f'v_lshlrev_b32 v{t}, 16, v{ps}')
        a(f'v_lshlrev_b32 v{t+1}, 16, v{pd}')
        a(f'v_sub_f32 v{t}, v{t}, v{t+1}          ; rx')
        a(f'v_and_b32 v{t+1}, v6, v{ps}')
        a(f'v_and_b32 v{t+2}, v6, v{pd}')
        a(f'v_sub_f32 v{t+1}, v{t+1}, v{t+2}      ; ry')
        a(f'v_lshlrev_b32 v{t+2}, 16, v{ps+1}')
        a(f'v_lshlrev_b32 v{t+3}, 16, v{pd+1}')
        a(f'v_sub_f32 v{t+2}, v{t+2}, v{t+3}      ; rz')
        a(f'v_cvt_pk_bf16_f32 v{t+3}, v{t}, v{t+1}')
        a(f'v_cvt_pk_bf16_f32 v{t+4}, v{t+2}, v{t+2}')
        a(f'v_lshlrev_b32 v{t}, 16, v{t+3}')
        a(f'v_and_b32 v{t+1}, v6, v{t+3}')
        a(f'v_lshlrev_b32 v{t+2}, 16, v{t+4}')
        a(f'v_mul_f32 v{t+3}, v{t}, v{t}')
        a(f'v_mul_f32 v{t+4}, v{t+1}, v{t+1}')
        a(f'v_mul_f32 v{t+5}, v{t+2}, v{t+2}')
        a(f'v_cvt_pk_bf16_f32 v{t+3}, v{t+3}, v{t+4}')
        a(f'v_cvt_pk_bf16_f32 v{t+5}, v{t+5}, v{t+5}')
        a(f'v_lshlrev_b32 v{t+4}, 16, v{t+3}')
        a(f'v_and_b32 v{t+3}, v6, v{t+3}')
        a(f'v_lshlrev_b32 v{t+5}, 16, v{t+5}')
        a(f'v_add_f32 v{t+3}, v{t+4}, v{t+3}')
        a(f'v_add_f32 v{t+3}, v{t+3}, v{t+5}')
        a(f'v_cvt_pk_bf16_f32 v{t+3}, v{t+3}, v{t+3}')
        a(f'v_and_b32 v{t+3}, v6, v{t+3}')
        a(f'v_add_f32 v{t+3}, 0x322bcc77, v{t+3}   ; +1e-8')
        a(f'v_cvt_pk_bf16_f32 v{t+3}, v{t+3}, v{t+3}')
        a(f'v_and_b32 v{t+3}, v6, v{t+3}')
        a(f'v_sqrt_f32 v{t+3}, v{t+3}')
        a(f'v_mul_u32_u24 v{GG+j}, s26, v{DST+j}')
        a(f'v_cvt_pk_bf16_f32 v{t+3}, v{t+3}, v{t+3}')
        a(f'v_and_b32 v{t+3}, v6, v{t+3}           ; d (f32 bits)')
        a(f'v_rcp_f32 v{t+4}, v{t+3}')
        a(f'v_lshrrev_b32 v{GG+j}, 16, v{GG+j}       ; g')
        a(f'v_mul_f32 v{t}, v{t}, v{t+4}')
        a(f'v_mul_f32 v{t+1}, v{t+1}, v{t+4}')
        a(f'v_mul_f32 v{t+2}, v{t+2}, v{t+4}')
        a(f'v_cvt_pk_bf16_f32 v{rec+1}, v{t}, v{t+1}   ; rx|ry')
        a(f'v_cvt_pk_bf16_f32 v{rec+2}, v{t+2}, v{t+2}')
        a(f'v_cmp_gt_u32 vcc, 0x{DTHR<<16:x}, v{t+3}')
        a(f's_and_b64 s[{50+2*j}:{51+2*j}], s[{50+2*j}:{51+2*j}], vcc')
        a(f'v_lshrrev_b32 v{rec+3}, 16, v{t+3}')
        a(f'v_subrev_u32 v{rec+3}, 0x{DBASE:x}, v{rec+3}')
        a(f'v_cmp_le_u32 vcc, {HOT0}, v{rec+3}')
        a(f'v_lshlrev_b32 v{rec+3}, 5, v{rec+3}')
        a(f'v_subrev_u32 v{t+4}, {HOT0*32-1024}, v{rec+3}')
        a(f'v_or_b32 v{rec+3}, 0x80000000, v{rec+3}')
        a(f'v_cndmask_b32 v{rec+3}, v{rec+3}, v{t+4}, vcc')
        a(f'v_mov_b32 v{t}, s60')
        a(f'v_mad_u32_u24 v{t}, v{GG+j}, s27, v{t}')
        a(f'v_lshrrev_b32 v{t}, 16, v{t}')
        a(f'v_sub_u32 v{t}, v{DST+j}, v{t}          ; dloc')
        a(f'v_add_u32 v{t}, 16, v{t}')
        a(f'v_lshlrev_b32 v{t}, v{t}, v7            ; 1<<(16+dloc)')
        a(f'v_and_b32 v{rec+2}, 0xffff, v{rec+2}')
        a(f'v_or_b32 v{rec+2}, v{t}, v{rec+2}')
        a(f'v_lshlrev_b32 v{rec}, 4, v{SRC+j}')
        a(f'v_or_b32 v{rec}, 0x80000000, v{rec}')
        a(f'v_lshlrev_b32 v{t+1}, 2, v{GG+j}')
        a(f's_mov_b64 exec, s[{50+2*j}:{51+2*j}]')
        a(f'ds_add_rtn_u32 v{RK+j}, v{t+1}, v7')
        a('s_mov_b64 exec, -1')
    a.stamp(3)
    nonce_load(a, 'B')
    a('s_waitcnt vmcnt(0) lgkmcnt(0)')
    a('s_barrier')
    a.stamp(4)
    if FUSE:
        a('s_cmp_lg_u32 s3, 0')
        a('s_cbranch_scc1 K1_NOE')
        get_nonce(a, 'E')
        publish(a, 1024)
        a.lab('K1_NOE')
    a('ds_read_b32 v3, v1                    ; cnt')
    a('s_waitcnt lgkmcnt(0)')
    a('v_mov_b32 v4, v3')
    a('s_nop 1')
    for sh in (1, 2, 4, 8):
        a(f'v_add_u32_dpp v4, v4, v4 row_shr:{sh} row_mask:0xf bank_mask:0xf')
        a('s_nop 1')
    a('v_add_u32_dpp v4, v4, v4 row_bcast:15 row_mask:0xa bank_mask:0xf')
    a('s_nop 1')
    a('v_add_u32_dpp v4, v4, v4 row_bcast:31 row_mask:0xc bank_mask:0xf')
    a('s_nop 1')
    a('v_readlane_b32 s26, v4, 63')
    a('s_lshl_b32 s27, s3, 2')
    a('v_mov_b32 v5, s27')
    a('v_mov_b32 v8, s26')
    a('ds_write_b32 v5, v8 offset:4096')
    a('s_waitcnt lgkmcnt(0)')
    a('s_barrier')
    a('v_mov_b32 v5, 0')
    a('ds_read_b128 v[70:73], v5 offset:4096')
    a('ds_read_b128 v[74:77], v5 offset:4112')
    a('ds_read_b128 v[78:81], v5 offset:4128')
    a('v_sub_u32 v4, v4, v3')
    a('s_waitcnt lgkmcnt(0)')
    a('v_mov_b32 v9, 0')
    for k in range(12):
        a(f'v_add_u32 v9, v9, v{70+k}')
    for k in range(11):
        a(f's_cmp_gt_u32 s3, {k}')
        a('s_cselect_b32 s26, -1, 0')
        a(f'v_and_b32 v{70+k}, s26, v{70+k}')
        a(f'v_add_u32 v4, v4, v{70+k}')
    a('ds_write_b32 v1, v4 offset:8192         ; start[bin]')
    a('v_lshl_or_b32 v3, v3, 16, v4')
    a(f's_mul_i32 s26, s2, {NG*4}')
    a(f'buffer_store_dword v3, v1, s[40:43], s26 offen {STO}')
    a('s_waitcnt lgkmcnt(0)')
    a('s_barrier')
    a.stamp(5)
    RST = 12288
    for j in range(5):
        a(f'v_lshlrev_b32 v{GG+j}, 2, v{GG+j}')
        a(f'ds_read_b32 v{GG+j}, v{GG+j} offset:8192')
    for j in range(5):
        a(f's_waitcnt lgkmcnt({4-j})')
        a(f'v_add_u32 v{GG+j}, v{GG+j}, v{RK+j}')
        a(f'v_lshlrev_b32 v{GG+j}, 4, v{GG+j}')
    for j in range(5):
        a(f's_mov_b64 exec, s[{50+2*j}:{51+2*j}]')
        a(f'ds_write_b128 v{GG+j}, v[{REC+4*j}:{REC+4*j+3}] offset:{RST}')
    a('s_mov_b64 exec, -1')
    a('s_waitcnt lgkmcnt(0)')
    a('s_barrier')
    a('v_lshlrev_b32 v5, 4, v0                   ; tid*16')
    for j in range(5):
        a(f'ds_read_b128 v[{REC+4*j}:{REC+4*j+3}], v5 offset:{RST+j*12288}')
    a('s_lshl_b32 s26, s2, 16                    ; w*65536')
    for j in range(5):
        a(f'v_add_u32 v6, {j*768}, v0')
        a(f'v_cmp_gt_u32 vcc, v9, v6')
        a(f'v_add_u32 v7, {j*12288}, v5')
        a(f's_waitcnt lgkmcnt({4-j})')
        a('s_mov_b64 exec, vcc')
        a(f'buffer_store_dwordx4 v[{REC+4*j}:{REC+4*j+3}], v7, s[44:47], s26 offen {STO}')
        a('s_mov_b64 exec, -1')
    a.stamp(6)
    role_end(a)

def gen_tab(a):
    a.lab('K1_TAB')
    a.stamp(0)
    srd(a, 28, 20, 65536, off=WS_ATAB)
    srd(a, 24, 18, 16*768)
    srd(a, 32, 20, 12288, off=WS_WB)
    a('v_lshrrev_b32 v10, 4, v2               ; kq')
    a('v_and_b32 v11, 15, v2                  ; c')
    a('v_mul_u32_u24 v10, 3072, v10           ; 4kq*768')
    a('v_lshl_add_u32 v10, v11, 2, v10')
    a('s_and_b32 s52, s3, 3')
    a('s_lshr_b32 s53, s3, 2')
    a('s_lshl_b32 s54, s52, 6')
    a('s_lshl_b32 s55, s53, 8')
    a('s_add_u32 s54, s54, s55')
    for i in range(4):
        a(f'buffer_load_dword v{12+i}, v10, s[24:27], s54 offen offset:{i*768}')
    a('s_mov_b32 s62, 0x05040100')
    a('s_mov_b32 s63, 0x07060302')
    a('s_mul_i32 s54, s52, 3')
    a('s_add_u32 s54, s54, s53')
    a('s_lshl_b32 s54, s54, 10                ; (slice*3+seg)*1024')
    a('v_lshlrev_b32 v11, 4, v2')
    a('s_waitcnt vmcnt(0)')
    a('v_perm_b32 v16, v13, v12, s62')
    a('v_perm_b32 v17, v15, v14, s62')
    a('v_perm_b32 v18, v13, v12, s63')
    a('v_perm_b32 v19, v15, v14, s63')
    a(f'buffer_store_dwordx4 v[16:19], v11, s[32:35], s54 offen {STO}')
    nonce_load(a, 'T')
    a('s_load_dwordx8 s[36:43], s[12:13], 0')
    a('v_mov_b32 v6, 0xffff0000')
    a('s_waitcnt lgkmcnt(0)')
    for k in range(8):
        a(f's_lshl_b32 s{44+2*k}, s{36+k}, 16')
        a(f's_and_b32 s{45+2*k}, s{36+k}, 0xffff0000')
    a('s_mov_b32 s60, 0x3e22f983')
    a('s_mov_b32 s61, 0x31dc9c88')
    a('s_mov_b32 s62, 0')
    a.lab('K1_TAB_LOOP')
    a('v_add_u32 v3, s62, v0             ; entry')
    a(f'v_add_u32 v4, 0x{DBASE:x}, v3')
    a('v_lshlrev_b32 v4, 16, v4           ; d')
    a('v_mul_f32 v5, 0x40490fdb, v4       ; pi*d')
    a('v_cvt_pk_bf16_f32 v5, v5, v5')
    a('v_and_b32 v5, v6, v5')
    a('v_mul_f32 v5, 0x3e4ccccd, v5       ; /5')
    a('v_cvt_pk_bf16_f32 v5, v5, v5')
    a('v_and_b32 v5, v6, v5')
    a('v_mul_f32 v5, s60, v5')
    a('v_cos_f32 v5, v5')
    a('v_rcp_f32 v7, v4                   ; 1/d')
    a('v_cvt_pk_bf16_f32 v5, v5, v5')
    a('v_and_b32 v5, v6, v5')
    a('v_add_f32 v5, 1.0, v5')
    a('v_cvt_pk_bf16_f32 v5, v5, v5')
    a('v_and_b32 v5, v6, v5')
    a('v_mul_f32 v5, 0.5, v5              ; fcut')
    a('v_cmp_gt_u32 vcc, 0x40a00000, v4')
    a('v_cmp_ne_u32 s[64:65], 0, v3')
    a('s_and_b64 vcc, vcc, s[64:65]')
    a('s_nop 1')
    a('v_cndmask_b32 v5, 0, v5, vcc')
    for k in range(16):
        t = 10 + k
        a(f'v_mul_f32 v{t}, s{44+k}, v4')
    for k in range(0, 16, 2):
        t = 10 + k
        a(f'v_cvt_pk_bf16_f32 v{30+k//2}, v{t}, v{t+1}')
    for k in range(0, 16, 2):
        t = 10 + k
        a(f'v_lshlrev_b32 v{t}, 16, v{30+k//2}')
        a(f'v_and_b32 v{t+1}, v6, v{30+k//2}')
    for k in range(16):
        t = 10 + k
        a(f'v_mul_f32 v40, s60, v{t}')
        a(f'v_fma_f32 v41, v{t}, s60, -v40')
        a(f'v_fma_f32 v41, v{t}, s61, v41')
        a(f'v_fract_f32 v40, v40')
        a(f'v_add_f32 v40, v40, v41')
        a(f'v_sin_f32 v{t}, v40')
    a('s_nop 0')
    for k in range(0, 16, 2):
        t = 10 + k
        a(f'v_cvt_pk_bf16_f32 v40, v{t}, v{t+1}')
        a(f'v_lshlrev_b32 v{t}, 16, v40')
        a(f'v_and_b32 v{t+1}, v6, v40')
        a(f'v_mul_f32 v{t}, v{t}, v7')
        a(f'v_mul_f32 v{t+1}, v{t+1}, v7')
        a(f'v_cvt_pk_bf16_f32 v40, v{t}, v{t+1}')
        a(f'v_lshlrev_b32 v{t}, 16, v40')
        a(f'v_and_b32 v{t+1}, v6, v40')
        a(f'v_mul_f32 v{t}, v{t}, v5')
        a(f'v_mul_f32 v{t+1}, v{t+1}, v5')
        a(f'v_cvt_pk_bf16_f32 v{30+k//2}, v{t}, v{t+1}')
    a('v_lshlrev_b32 v8, 5, v3')
    a(f'buffer_store_dwordx4 v[30:33], v8, s[28:31], 0 offen {STO}')
    a(f'buffer_store_dwordx4 v[34:37], v8, s[28:31], 0 offen offset:16 {STO}')
    a('s_add_u32 s62, s62, 768')
    a('s_cmp_lt_u32 s62, 2048')
    a('s_nop 1')
    a('s_cbranch_scc1 K1_TAB_LOOP')
    for i in range(1,7): a.stamp(i)
    role_end(a)

def gen_k1(a):
    name = KNAME if FUSE else 'prep_kernel'
    a.raw('.p2align 8')
    a.raw(f'.type {name},@function')
    a.lab(name)
    a('s_cmp_ge_u32 s2, 256')
    a('s_cbranch_scc1 K1_END')
    a('s_load_dwordx4 s[4:7], s[0:1], 0')
    a('s_load_dwordx4 s[8:11], s[0:1], 16')
    a('s_load_dwordx4 s[12:15], s[0:1], 32')
    a('s_load_dwordx4 s[16:19], s[0:1], 48')
    a('s_load_dwordx2 s[20:21], s[0:1], 80')
    if FUSE:
        a('s_load_dwordx2 s[96:97], s[0:1], 72     ; d_debug')
        a('s_memrealtime s[98:99]')
    a('v_lshrrev_b32 v1, 6, v0')
    a('v_and_b32 v2, 63, v0')
    a('s_nop 0')
    a('v_readfirstlane_b32 s3, v1')
    a('s_waitcnt lgkmcnt(0)')
    if FUSE:
        a('s_mov_b32 s92, s96')
        a('s_mov_b32 s93, s97')
        a('s_mov_b32 s94, 256')
        a('s_mov_b32 s95, 0x00020000')
        a('s_or_b32 s68, s2, s3')
        a('s_cmp_lg_u32 s68, 0')
        a('s_cbranch_scc1 K1_NONONCE')
        a('s_or_b32 s98, s98, 1')
        a('v_mov_b32 v166, s98')
        a('v_mov_b32 v165, 0')
        a('s_mov_b64 exec, 1')
        a('buffer_store_dword v166, v165, s[92:95], 0 offen sc1')
        a('s_mov_b64 exec, -1')
        a.lab('K1_NONONCE')
    if os.environ.get('CPF','0') == '1':
        a('s_cmp_lg_u32 s3, 11')
        a('s_cbranch_scc1 K1_NOCPF')
        a('s_getpc_b64 s[62:63]')
        a.lab('K1_PCREF')
        a('v_lshlrev_b32 v160, 7, v2')
        a('v_mov_b32 v161, s63')
        a('v_add_co_u32 v160, vcc, s62, v160')
        a('s_nop 1')
        a('v_addc_co_u32 v161, vcc, 0, v161, vcc')
        NCH = int(os.environ.get('CPFN','2'))
        for k in range(NCH):
            a('global_load_dword v162, v[160:161], off')
            if k + 1 < NCH:
                a('v_add_co_u32 v160, vcc, 0x2000, v160')
                a('s_nop 1')
                a('v_addc_co_u32 v161, vcc, 0, v161, vcc')
        a.lab('K1_NOCPF')
    a(f's_cmp_lt_u32 s2, {NBIN}')
    a('s_cbranch_scc1 K1_BIN')
    gen_mlp(a)
    gen_bin(a)
    if FUSE:
        a.lab('K1_DONE')
        a('s_waitcnt vmcnt(0) lgkmcnt(0)')
        a('s_barrier')
        if Asm.STAMPS:
            a('s_memrealtime s[84:85]')
            a('s_waitcnt lgkmcnt(0)')
            a('s_lshl_b32 s68, s3, 5')
            a('s_add_u32 s68, s68, 155712')
            a('v_mov_b32 v1, s68')
            for i in range(8):
                a(f'v_mov_b32 v2, s{70+2*i}')
                a(f'ds_write_b32 v1, v2 offset:{4*i}')
        a('s_cmp_lg_u32 s3, 0')
        a('s_cbranch_scc1 K2_START')
        get_nonce(a, 'D')
        publish(a, 0)
        a('s_branch K2_START')
    a.lab('K1_END')
    a('s_endpgm')
```

```python
from asmlib import *
import os
STT = os.environ.get('STT','sc1')
STO = os.environ.get('STO','sc1')
LDN = os.environ.get('LDN','')

N = 10000; E = 160000
NBIN = 47; CHUNK = 3405; NG = 768
WS_TA = 0; WS_TB = 10240000; WS_ATAB = 0xC80000; WS_WB = 0xC90000; WS_HDR = 0xCA0000; WS_TAILS = 0xD00000
HOT0 = 1472; NHOT_KB = 17; ZROW = 17408
WS_FLAGS = 0xCF0000
FUSE = os.environ.get('FUSE','1') == '1'
KNAME = 'gather_scatter__molecular_angular_painn__graph_kernel'
COMP = bool(os.environ.get('COMP'))
DBASE = 0x38C0; DTHR = 0x409D
K1_LDS = 155712
S_BASE = 131072; HS_OFF = 12288

def srd(a, s, base, nbytes, off=0, stride=0):
    if off:
        a(f's_add_u32 s{s}, s{base}, 0x{off:x}')
        a(f's_addc_u32 s{s+1}, s{base+1}, 0')
    else:
        a(f's_mov_b32 s{s}, s{base}')
        a(f's_mov_b32 s{s+1}, s{base+1}')
    if stride:
        a(f's_or_b32 s{s+1}, s{s+1}, 0x{stride<<16:x}')
    a(f's_mov_b32 s{s+2}, {nbytes}')
    a(f's_mov_b32 s{s+3}, 0x00020000')

def gen_mlp(a):
    a.lab('K1_MLP')
    a.stamp(0)
    a('s_sub_u32 s24, s2, 47')
    a('s_mul_i32 s24, s24, 48          ; node0')
    a('s_lshr_b32 s22, s3, 2           ; nt')
    a('s_and_b32 s23, s3, 3            ; sl')
    srd(a, 28, 4, 10240000)
    srd(a, 32, 14, 32768)
    srd(a, 36, 16, 98304)
    a('s_mul_i32 s25, s23, 2560000')
    a('s_add_u32 s40, s20, s25')
    a('s_addc_u32 s41, s21, 0')
    a('s_mov_b32 s42, 2560000')
    a('s_mov_b32 s43, 0x00020000')
    a('s_mul_i32 s25, s23, 640000')
    a(f's_add_u32 s25, s25, {WS_TB}')
    a('s_add_u32 s44, s20, s25')
    a('s_addc_u32 s45, s21, 0')
    a('s_mov_b32 s46, 640000')
    a('s_mov_b32 s47, 0x00020000')
    FLAG = 155648
    a('v_lshrrev_b32 v3, 4, v2          ; L>>4')
    a('v_and_b32 v4, 15, v2             ; L&15')
    a('v_mov_b32 v5, 0')
    a(f'v_mov_b32 v6, {FLAG}')
    a('ds_write_b32 v6, v5')
    a('s_and_b32 s26, s3, 1')
    a('s_lshl_b32 s26, s26, 2           ; 4*(wv&1)')
    a('v_add_u32 v6, s26, v3            ; kl7')
    a('v_lshrrev_b32 v7, 1, v4          ; p>>1')
    a('v_xor_b32 v7, v7, v6')
    a('v_and_b32 v8, 1, v4')
    a('v_lshl_or_b32 v7, v7, 1, v8      ; lchunk')
    a('v_lshlrev_b32 v7, 4, v7          ; *16')
    a('v_lshl_add_u32 v6, v3, 8, v7')
    a('v_mul_u32_u24 v8, 768, v3')
    a('v_add_u32 v7, v8, v7             ; vW2')
    a('s_waitcnt lgkmcnt(0)')
    a('s_barrier')
    a('s_cmp_ge_u32 s3, 8')
    a('s_cbranch_scc1 K1_LOADER')
    a('s_lshl_b32 s25, s3, 2')
    a('v_add_u32 v5, s25, v3')
    a('v_and_b32 v9, 15, v5')
    a('v_xor_b32 v9, v4, v9             ; lchunk')
    a('v_add_u32 v5, s24, v5            ; node')
    a('v_lshlrev_b32 v5, 10, v5')
    a('v_lshl_add_u32 v5, v9, 4, v5')
    a('s_lshl_b32 s25, s3, 10')
    a(f's_add_u32 s25, s25, {S_BASE}')
    a('s_mov_b32 m0, s25')
    a('s_cmp_ge_u32 s3, 4')
    a(f'buffer_load_dwordx4 v5, s[28:31], 0 offen {LDN} lds')
    a('s_cbranch_scc1 K1_S2SKIP')
    a('s_add_u32 s25, s25, 8192')
    a('s_mov_b32 m0, s25')
    a('v_add_u32 v5, 0x8000, v5')
    a(f'buffer_load_dwordx4 v5, s[28:31], 0 offen {LDN} lds')
    a.lab('K1_S2SKIP')
    for j in range(4):
        a(f's_add_u32 s25, s3, {8*j}')
        a('s_lshl_b32 s26, s25, 10')
        a('s_mov_b32 m0, s26')
        a('s_nop 0')
        a('buffer_load_dwordx4 v6, s[32:35], s26 offen lds')
    a('s_branch K1_ADDR')
    a.lab('K1_LOADER')
    a('s_sub_u32 s49, s3, 8')
    for m in range(1, 4):
        for j in range(8):
            a(f's_add_u32 s25, s49, {4*j}')
            a('s_lshl_b32 s26, s25, 10')
            a(f's_add_u32 s26, s26, {m*32768}')
            a('s_mov_b32 m0, s26')
            a('s_mul_i32 s27, s25, 3072')
            a(f's_add_u32 s27, s27, {(m-1)*256}')
            a('buffer_load_dwordx4 v7, s[36:39], s27 offen lds')
    a.lab('K1_ADDR')
    a('s_lshl_b32 s25, s22, 4')
    a('s_add_u32 s25, s25, s24           ; node0+16nt')
    a('s_mov_b32 s48, s25')
    a('v_add_u32 v8, s25, v4')
    a('v_lshlrev_b32 v8, 10, v8')
    a('v_lshl_add_u32 v8, v3, 3, v8')
    a('s_lshl_b32 s26, s23, 6')
    a('s_add_u32 s26, s26, 256')
    a('v_add_u32 v8, s26, v8')
    VV = 10
    def vloads():
        for j in range(3):
            for hf in range(2):
                r = VV + (j*2+hf)*2
                a(f'buffer_load_dwordx2 v[{r}:{r+1}], v8, s[28:31], 0 offen offset:{j*256+32*hf} {LDN}')
    a('v_lshrrev_b32 v22, 2, v4           ; r\'')
    a('v_lshl_add_u32 v22, v3, 2, v22     ; 4kq + r\'')
    a('v_and_b32 v23, 7, v22              ; kl7')
    a('v_lshlrev_b32 v22, 8, v22')
    a('v_lshl_add_u32 v22, v23, 5, v22')
    a('v_and_b32 v23, 3, v4')
    a('v_lshl_add_u32 v22, v23, 3, v22    ; aBase')
    a('s_lshl_b32 s25, s23, 6             ; 2*sl*32')
    a('v_xor_b32 v24, s25, v22')
    a('v_xor_b32 v25, 32, v24             ; aW[hf=1]')
    a('v_add_u32 v26, 0x10000, v24        ; aW2[0] (+65536)')
    a('v_add_u32 v27, 0x10000, v25        ; aW2[1]')
    a('v_lshrrev_b32 v23, 1, v3')
    a('v_xor_b32 v23, v23, v4')
    a('v_lshlrev_b32 v23, 4, v23')
    a('v_and_b32 v28, 1, v3')
    a('v_lshl_add_u32 v23, v28, 3, v23')
    a('v_lshl_add_u32 v23, v4, 8, v23')
    a(f'v_add_u32 v23, {S_BASE}, v23      ; bBase0')
    VB = 28
    for st in range(4):
        for rd in range(2):
            k = (4*st + 2*rd)*16
            r = VB + st*2 + rd
            if k == 0: a(f'v_mov_b32 v{r}, v23')
            else: a(f'v_xor_b32 v{r}, {k}, v23')
    a('v_mov_b32 v38, 0xffff0000')
    a('s_cmp_ge_u32 s3, 8')
    a('s_cbranch_scc1 K1_LOADER2')
    a('s_lshl_b32 s25, s3, 5')
    a('v_xor_b32 v36, s25, v22')
    a('v_xor_b32 v37, s25, v23')
    a.stamp(1)
    a('s_waitcnt vmcnt(0)')
    a(f'v_mov_b32 v39, {FLAG}')
    a('v_mov_b32 v9, 1')
    a('s_mov_b64 exec, 1')
    a('ds_add_u32 v39, v9')
    a('s_mov_b64 exec, -1')
    a.lab('K1_SPIN')
    a('ds_read_b32 v9, v39')
    a('s_waitcnt lgkmcnt(0)')
    a('v_readfirstlane_b32 s25, v9')
    a('s_cmp_lt_u32 s25, 8')
    a('s_cbranch_scc1 K1_SPIN')
    a.stamp(2)
    AF = 56
    BL = 72
    D1 = 40
    for st in range(4):
        for rd in range(2):
            r = AF + st*4 + rd*2
            a(f'ds_read_b64_tr_b16 v[{r}:{r+1}], v36 offset:{st*8192+rd*4096}')
    for nt in range(3):
        for st in range(4):
            for rd in range(2):
                r = BL + nt*16 + st*4 + rd*2
                a(f'ds_read_b64 v[{r}:{r+1}], v{VB+st*2+rd} offset:{nt*4096}')
    vloads()
    for r in range(D1, D1+12): a(f'v_mov_b32 v{r}, 0')
    a('s_waitcnt lgkmcnt(0)')
    for st in range(4):
        for nt in range(3):
            A_ = AF + st*4; B_ = BL + nt*16 + st*4; D_ = D1 + nt*4
            a(f'v_mfma_f32_16x16x32_bf16 v[{D_}:{D_+3}], v[{A_}:{A_+3}], v[{B_}:{B_+3}], v[{D_}:{D_+3}]')
    a.nop(8)
    a.stamp(3)
    T = 56
    for p in range(6):
        a(f'v_cvt_pk_bf16_f32 v{T+p}, v{D1+2*p}, v{D1+2*p+1}')
    for p in range(6):
        a(f'v_lshlrev_b32 v{D1+2*p}, 16, v{T+p}')
        a(f'v_and_b32 v{D1+2*p+1}, v38, v{T+p}')
    for i in range(12):
        a(f'v_mul_f32 v{T+i}, 0xbfb8aa3b, v{D1+i}     ; -log2e*h')
    for i in range(12):
        a(f'v_exp_f32 v{T+i}, v{T+i}')
    a('s_nop 0')
    for i in range(12):
        a(f'v_add_f32 v{T+i}, 1.0, v{T+i}')
    for i in range(12):
        a(f'v_rcp_f32 v{T+i}, v{T+i}')
    a('s_nop 0')
    for i in range(12):
        a(f'v_mul_f32 v{T+i}, v{D1+i}, v{T+i}')
    for p in range(6):
        a(f'v_cvt_pk_bf16_f32 v{D1+p}, v{T+2*p}, v{T+2*p+1}')
    for nt in range(3):
        a(f'ds_write_b64 v37, v[{D1+2*nt}:{D1+2*nt+1}] offset:{HS_OFF+nt*4096}')
    a('s_waitcnt lgkmcnt(0)')
    a('s_branch K1_B2')
    a.lab('K1_LOADER2')
    vloads()
    a.stamp(1); a.stamp(2); a.stamp(3)
    a('s_waitcnt vmcnt(6)')
    a.lab('K1_B2')
    a('s_lshl_b32 s25, s22, 12')
    for r in range(VB, VB+8): a(f'v_add_u32 v{r}, s25, v{r}')
    a('s_barrier')
    a.stamp(4)
    BS = 40; AF = 56
    nonce_load(a, 'M')
    for st in range(4):
        for rd in range(2):
            r = BS + st*4 + rd*2
            a(f'ds_read_b64 v[{r}:{r+1}], v{VB+st*2+rd} offset:{HS_OFF}')
    D2 = 96
    bufs = [AF, AF+16, 120]
    def issueA(seg, hf, bi):
        buf = bufs[bi]
        if seg == 0: areg = 24+hf; base = 32768
        else: areg = 26+hf; base = (seg-1)*32768
        for st in range(4):
            for rd in range(2):
                r = buf + st*4 + rd*2
                a(f'ds_read_b64_tr_b16 v[{r}:{r+1}], v{areg} offset:{base+st*8192+rd*4096}')
    a('s_lshl_b32 s25, s3, 11')
    a('v_and_b32 v9, 7, v4')
    a('v_lshlrev_b32 v28, 1, v3           ; 2q')
    a('v_xor_b32 v28, v28, v9')
    a('v_lshlrev_b32 v28, 4, v28')
    a('v_lshl_add_u32 v28, v4, 7, v28')
    a('v_add_u32 v28, s25, v28            ; chunk 2q')
    a('v_xor_b32 v29, 16, v28             ; chunk 2q+1')
    a('v_lshrrev_b32 v30, 3, v2           ; L>>3')
    a('v_and_b32 v31, 7, v2               ; p')
    a('v_xor_b32 v33, v31, v30            ; p ^ (node&7)')
    a('v_lshlrev_b32 v33, 4, v33')
    a('v_lshl_add_u32 v33, v30, 7, v33')
    a('v_add_u32 v33, s25, v33')
    a('s_lshl_b32 s26, s48, 8')
    a('v_lshlrev_b32 v34, 8, v30')
    a('v_lshl_add_u32 v34, v31, 4, v34')
    a('v_add_u32 v34, s26, v34')
    a('s_lshl_b32 s25, s3, 10')
    a(f's_add_u32 s25, s25, {S_BASE}')
    a('v_lshlrev_b32 v32, 6, v4')
    a('v_lshl_add_u32 v32, v3, 3, v32')
    a('v_add_u32 v32, s25, v32')
    a('v_lshlrev_b32 v39, 4, v2           ; L*16')
    a('v_add_u32 v37, s25, v39')
    a('s_lshl_b32 s27, s48, 6')
    a('v_add_u32 v39, s27, v39')
    O1 = 80; O2 = 84; OB = 88; PV = 90; TT = 108; R0 = 64
    issueA(0, 0, 0)
    a('s_waitcnt lgkmcnt(8)')
    for hf in range(2):
        for r in range(D2, D2+12): a(f'v_mov_b32 v{r}, 0')
        for seg in range(3):
            bi = (hf*3+seg) % 3
            nxt = hf*3+seg+1
            if nxt < 6:
                a('s_waitcnt lgkmcnt(7)')
                issueA(nxt % 3, nxt // 3, nxt % 3)
                a('s_waitcnt lgkmcnt(8)')
            else:
                a('s_waitcnt lgkmcnt(0)')
            D_ = D2 + seg*4
            buf = bufs[bi]
            for st in range(4):
                a(f'v_mfma_f32_16x16x32_bf16 v[{D_}:{D_+3}], v[{buf+st*4}:{buf+st*4+3}], v[{BS+st*4}:{BS+st*4+3}], v[{D_}:{D_+3}]')
        if hf == 0: a('s_waitcnt vmcnt(0)')
        a.nop(8)
        Ds = D2; Dv = D2+4; Dr = D2+8
        a(f'v_cvt_pk_bf16_f32 v{OB}, v{Ds}, v{Ds+1}')
        a(f'v_cvt_pk_bf16_f32 v{OB+1}, v{Ds+2}, v{Ds+3}')
        a(f'v_cvt_pk_bf16_f32 v{O1+3}, v{Dr}, v{Dr+1}')
        a(f'v_cvt_pk_bf16_f32 v{O2+3}, v{Dr+2}, v{Dr+3}')
        a(f'v_cvt_pk_bf16_f32 v{TT}, v{Dv}, v{Dv+1}')
        a(f'v_cvt_pk_bf16_f32 v{TT+1}, v{Dv+2}, v{Dv+3}')
        a(f'v_lshlrev_b32 v{PV}, 16, v{TT}')
        a(f'v_and_b32 v{PV+1}, v38, v{TT}')
        a(f'v_lshlrev_b32 v{PV+2}, 16, v{TT+1}')
        a(f'v_and_b32 v{PV+3}, v38, v{TT+1}')
        for j in range(3):
            r = VV + (j*2+hf)*2
            t = TT
            a(f'v_lshlrev_b32 v{t}, 16, v{r}')
            a(f'v_and_b32 v{t+1}, v38, v{r}')
            a(f'v_lshlrev_b32 v{t+2}, 16, v{r+1}')
            a(f'v_and_b32 v{t+3}, v38, v{r+1}')
            a(f'v_pk_mul_f32 v[{t}:{t+1}], v[{t}:{t+1}], v[{PV}:{PV+1}]')
            a(f'v_pk_mul_f32 v[{t+2}:{t+3}], v[{t+2}:{t+3}], v[{PV+2}:{PV+3}]')
            a(f'v_cvt_pk_bf16_f32 v{O1+j}, v{t}, v{t+1}')
            a(f'v_cvt_pk_bf16_f32 v{O2+j}, v{t+2}, v{t+3}')
        a(f'ds_write_b128 v28, v[{O1}:{O1+3}]')
        a(f'ds_write_b128 v29, v[{O2}:{O2+3}]')
        a(f'ds_write_b64 v32, v[{OB}:{OB+1}] offset:{32*hf}')
        RR = R0 if hf == 0 else 40 + 0
        RR = 108 + 4 if hf == 0 else 40
        a(f'ds_read_b128 v[{RR}:{RR+3}], v33')
        a(f'ds_read_b128 v[{RR+4}:{RR+7}], v33 offset:1024')
        if hf == 1:
            a(f'ds_read_b128 v[{RR+8}:{RR+11}], v37')
        if hf == 0:
            a.stamp(5)
        a(f's_waitcnt lgkmcnt({1 if hf == 0 else 2})')
        a(f'buffer_store_dwordx4 v[{RR}:{RR+3}], v34, s[40:43], 0 offen offset:{128*hf} {STT}')
        a(f's_waitcnt lgkmcnt({0 if hf == 0 else 1})')
        a(f'buffer_store_dwordx4 v[{RR+4}:{RR+7}], v34, s[40:43], 0 offen offset:{2048+128*hf} {STT}')
        if hf == 1:
            a('s_waitcnt lgkmcnt(0)')
            a(f'buffer_store_dwordx4 v[{RR+8}:{RR+11}], v39, s[44:47], 0 offen {STT}')
    a.stamp(6)
    role_end(a, True)

def nonce_load(a, tag):
    if FUSE:
        a('s_cmp_lg_u32 s3, 0')
        a(f's_cbranch_scc1 K1_NL{tag}')
        a('v_mov_b32 v165, 0')
        a('buffer_load_dword v166, v165, s[92:95], 0 offen sc1')
        a.lab(f'K1_NL{tag}')

def get_nonce(a, tag):
    a('s_mov_b32 s68, 0x10000')
    a.lab(f'K1_NLOOP{tag}')
    a('v_readfirstlane_b32 s100, v166')
    a('s_cmp_lg_u32 s100, 0')
    a(f's_cbranch_scc1 K1_NOK{tag}')
    a('v_mov_b32 v165, 0')
    a('buffer_load_dword v166, v165, s[92:95], 0 offen sc1')
    a('s_waitcnt vmcnt(0)')
    a('s_sub_u32 s68, s68, 1')
    a('s_cmp_lg_u32 s68, 0')
    a(f's_cbranch_scc1 K1_NLOOP{tag}')
    a.lab(f'K1_NOK{tag}')

def publish(a, off):
    a(f's_add_u32 s64, s20, 0x{WS_FLAGS:x}')
    a('s_addc_u32 s65, s21, 0')
    a('s_mov_b32 s66, 16384')
    a('s_mov_b32 s67, 0x00020000')
    a('v_mbcnt_lo_u32_b32 v164, -1, 0')
    a('v_mbcnt_hi_u32_b32 v164, -1, v164')
    a('v_lshlrev_b32 v164, 11, v164           ; replica*2048')
    a('s_lshl_b32 s68, s2, 2')
    a(f's_add_u32 s68, s68, {off}')
    a('v_mov_b32 v163, s100')
    a('s_mov_b64 exec, 0xff')
    a('buffer_store_dword v163, v164, s[64:67], s68 offen sc1')
    a('s_mov_b64 exec, -1')

def role_end(a, mlp=False):
    if FUSE and mlp:
        a('s_mov_b32 s101, 1')
        a('s_waitcnt lgkmcnt(0)')
        a('s_barrier')
        if Asm.STAMPS:
            a('s_memrealtime s[84:85]')
            a('s_waitcnt lgkmcnt(0)')
            a('s_lshl_b32 s68, s3, 5')
            a('s_add_u32 s68, s68, 155712')
            a('v_mov_b32 v1, s68')
            for i in range(8):
                a(f'v_mov_b32 v2, s{70+2*i}')
                a(f'ds_write_b32 v1, v2 offset:{4*i}')
        a('s_cmp_lg_u32 s3, 0')
        a('s_cbranch_scc1 K2_START')
        a('s_waitcnt vmcnt(5)')
        get_nonce(a, 'M')
        a('s_branch K2_START')
    elif FUSE:
        a('s_mov_b32 s101, 0')
        a('s_branch K1_DONE')
    else:
        a.stamp_flush(0, 20, 7, 3)
        a('s_endpgm')

def bf16_round_pair(a, dst, x, y):
    a(f'v_cvt_pk_bf16_f32 v{dst}, v{x}, v{y}')

def gen_bin(a):
    a.lab('K1_BIN')
    a.stamp(0)
    srd(a, 28, 8, E*4)
    srd(a, 32, 10, E*4)
    srd(a, 36, 6, N*6)
    srd(a, 40, 20, NBIN*NG*4, off=WS_HDR)
    srd(a, 44, 20, NBIN*65536, off=WS_TAILS)
    a(f's_mul_i32 s24, s2, {CHUNK}           ; e0')
    a(f's_sub_u32 s25, {E}, s24')
    a(f's_min_u32 s25, s25, {CHUNK}          ; lim')
    a('v_lshlrev_b32 v1, 2, v0')
    a('v_mov_b32 v3, 0')
    a('ds_write_b32 v1, v3')
    SRC = 10; DST = 15; PS = 20; PD = 30; REC = 40; GG = 60; RK = 65
    POSL = 69632
    srd(a, 64, 12, 32)
    srd(a, 84, 20, 65536, off=WS_ATAB)
    a('v_and_b32 v82, 15, v0                 ; k')
    a('v_lshlrev_b32 v83, 1, v82')
    a('buffer_load_ushort v84, v83, s[64:67], 0 offen')
    a('s_cmp_lg_u32 s2, 0')
    a('s_cbranch_scc1 K1_NOWB1')
    srd(a, 64, 18, 16*768)
    a('v_lshrrev_b32 v90, 4, v2               ; kq')
    a('v_and_b32 v91, 15, v2                  ; c')
    a('v_mul_u32_u24 v90, 3072, v90           ; 4kq*768')
    a('v_lshl_add_u32 v90, v91, 2, v90')
    a('s_and_b32 s61, s3, 3')
    a('s_lshr_b32 s62, s3, 2')
    a('s_lshl_b32 s63, s61, 6')
    a('s_lshl_b32 s68, s62, 8')
    a('s_add_u32 s63, s63, s68')
    for i in range(4):
        a(f'buffer_load_dword v{92+i}, v90, s[64:67], s63 offen offset:{i*768}')
    a.lab('K1_NOWB1')
    a('v_lshlrev_b32 v5, 4, v2               ; lane*16')
    for k in range(5):
        if k == 4:
            a('s_cmp_ge_u32 s3, 11')
            a('s_cbranch_scc1 K1_POSDONE')
        a(f's_add_u32 s26, s3, {12*k}')
        a('s_lshl_b32 s26, s26, 10')
        a(f's_add_u32 s27, s26, {POSL}')
        a('s_mov_b32 m0, s27')
        a('s_nop 0')
        a('buffer_load_dwordx4 v5, s[36:39], s26 offen lds')
    a.lab('K1_POSDONE')
    a('v_add_u32 v4, s24, v0')
    a('v_lshlrev_b32 v4, 2, v4              ; e*4 (round 0)')
    for j in range(5):
        a(f's_mov_b32 s26, {j*3072}')
        a(f'buffer_load_dword v{SRC+j}, v4, s[28:31], s26 offen {LDN}')
        a(f'buffer_load_dword v{DST+j}, v4, s[32:35], s26 offen {LDN}')
    for j in range(5):
        a(f'v_add_u32 v5, {j*768}, v0')
        a(f'v_cmp_gt_u32 s[{50+2*j}:{51+2*j}], s25, v5')
    a('v_mov_b32 v6, 0xffff0000')
    a('v_lshrrev_b32 v85, 4, v0')
    a('s_mul_i32 s61, s2, 48')
    a('v_add_u32 v85, s61, v85             ; entry')
    a(f'v_add_u32 v86, 0x{DBASE:x}, v85')
    a('v_lshlrev_b32 v86, 16, v86          ; d')
    a('v_mul_f32 v87, 0x40490fdb, v86       ; pi*d')
    a('v_cvt_pk_bf16_f32 v87, v87, v87')
    a('v_and_b32 v87, v6, v87')
    a('v_mul_f32 v87, 0x3e4ccccd, v87       ; /5')
    a('v_cvt_pk_bf16_f32 v87, v87, v87')
    a('v_and_b32 v87, v6, v87')
    a('v_mul_f32 v87, 0x3e22f983, v87')
    a('v_cos_f32 v87, v87')
    a('v_rcp_f32 v88, v86                   ; 1/d')
    a('v_cvt_pk_bf16_f32 v87, v87, v87')
    a('v_and_b32 v87, v6, v87')
    a('v_add_f32 v87, 1.0, v87')
    a('v_cvt_pk_bf16_f32 v87, v87, v87')
    a('v_and_b32 v87, v6, v87')
    a('v_mul_f32 v87, 0.5, v87              ; fcut')
    a('v_cmp_gt_u32 vcc, 0x40a00000, v86')
    a('v_cmp_ne_u32 s[62:63], 0, v85')
    a('s_and_b64 vcc, vcc, s[62:63]')
    a('s_nop 1')
    a('v_cndmask_b32 v87, 0, v87, vcc')
    a('s_waitcnt vmcnt(14)')
    a('v_lshlrev_b32 v84, 16, v84           ; f_k')
    a('v_mul_f32 v84, v84, v86')
    a('v_cvt_pk_bf16_f32 v84, v84, v84')
    a('v_and_b32 v84, v6, v84               ; arg')
    a('v_mul_f32 v89, 0x3e22f983, v84')
    a('v_mov_b32 v81, 0x3e22f983')
    a('v_fma_f32 v80, v84, v81, -v89')
    a('v_mov_b32 v81, 0x31dc9c88')
    a('v_fma_f32 v80, v84, v81, v80')
    a('v_fract_f32 v89, v89')
    a('v_add_f32 v89, v89, v80')
    a('v_sin_f32 v89, v89')
    a('s_nop 0')
    a('v_cvt_pk_bf16_f32 v89, v89, v89')
    a('v_and_b32 v89, v6, v89')
    a('v_mul_f32 v89, v89, v88')
    a('v_cvt_pk_bf16_f32 v89, v89, v89')
    a('v_and_b32 v89, v6, v89')
    a('v_mul_f32 v89, v89, v87')
    a('v_cvt_pk_bf16_f32 v89, v89, v89')
    a('s_nop 1')
    a('v_mov_b32_dpp v88, v89 quad_perm:[1,0,3,2] row_mask:0xf bank_mask:0xf')
    a('v_and_b32 v89, 0xffff, v89')
    a('v_and_b32 v88, v6, v88')
    a('v_or_b32 v89, v89, v88')
    a('v_lshlrev_b32 v85, 5, v85')
    a('v_add_u32 v85, v85, v83               ; entry*32 + 2k')
    a('s_waitcnt vmcnt(10) lgkmcnt(0)')
    a('s_barrier')
    a.stamp(1)
    a('s_mov_b32 s62, 0x55555555')
    a('s_mov_b32 s63, 0x55555555')
    a('s_mov_b64 exec, s[62:63]')
    a(f'buffer_store_dword v89, v85, s[84:87], 0 offen {STO}')
    a('s_mov_b64 exec, -1')
    a('s_cmp_lg_u32 s2, 0')
    a('s_cbranch_scc1 K1_NOWB2')
    srd(a, 64, 20, 12288, off=WS_WB)
    a('s_mov_b32 s62, 0x05040100')
    a('s_mov_b32 s63, 0x07060302')
    a('v_perm_b32 v96, v93, v92, s62')
    a('v_perm_b32 v97, v95, v94, s62')
    a('v_perm_b32 v98, v93, v92, s63')
    a('v_perm_b32 v99, v95, v94, s63')
    a('s_and_b32 s61, s3, 3')
    a('s_lshr_b32 s62, s3, 2')
    a('s_mul_i32 s61, s61, 3')
    a('s_add_u32 s61, s61, s62')
    a('s_lshl_b32 s61, s61, 10                ; (slice*3+seg)*1024')
    a('v_lshlrev_b32 v91, 4, v2')
    a(f'buffer_store_dwordx4 v[96:99], v91, s[64:67], s61 offen {STO}')
    a.lab('K1_NOWB2')
    for j in range(5):
        a(f's_waitcnt vmcnt({8-2*j+1})')
        for (idx, dstp) in ((SRC+j, PS+2*j), (DST+j, PD+2*j)):
            a(f'v_mul_u32_u24 v5, 6, v{idx}')
            a('v_and_b32 v5, -4, v5')
            a(f'v_add_u32 v5, {POSL}, v5')
            a(f'ds_read2_b32 v[{dstp}:{dstp+1}], v5 offset0:0 offset1:1')
    a.stamp(2)
    a('s_mov_b32 s26, 5033')
    a('s_mov_b32 s27, 853362')
    a('v_mov_b32 v7, 1')
    a('v_mov_b32 v8, 65000')
    a('v_mov_b32 v9, 0x10000')
    for j in range(5):
        a(f's_waitcnt lgkmcnt({min(15, 8-2*j + j)})')
        ps = PS+2*j; pd = PD+2*j; rec = REC+4*j
        t = 70
        a(f'v_and_b32 v{t}, 1, v{SRC+j}')
        a(f'v_lshlrev_b32 v{t}, 4, v{t}')
        a(f'v_lshrrev_b64 v[{ps}:{ps+1}], v{t}, v[{ps}:{ps+1}]')
        a(f'v_and_b32 v{t+1}, 1, v{DST+j}')
        a(f'v_lshlrev_b32 v{t+1}, 4, v{t+1}')
        a(f'v_lshrrev_b64 v[{pd}:{pd+1}], v{t+1}, v[{pd}:{pd+1}]')
        a(f'v_lshlrev_b32 v{t}, 16, v{ps}')
        a(f'v_and_b32 v{t+1}, v6, v{ps}')
        a(f'v_lshlrev_b32 v{t+2}, 16, v{pd}')
        a(f'v_and_b32 v{t+3}, v6, v{pd}')
        a(f'v_pk_add_f32 v[{t}:{t+1}], v[{t}:{t+1}], v[{t+2}:{t+3}] neg_lo:[0,1] neg_hi:[0,1]')
        a(f'v_lshlrev_b32 v{t+2}, 16, v{ps+1}')
        a(f'v_lshlrev_b32 v{t+3}, 16, v{pd+1}')
        a(f'v_sub_f32 v{t+2}, v{t+2}, v{t+3}      ; rz')
        a(f'v_cvt_pk_bf16_f32 v{t+3}, v{t}, v{t+1}')
        a(f'v_cvt_pk_bf16_f32 v{t+4}, v{t+2}, v{t+2}')
        a(f'v_lshlrev_b32 v{t}, 16, v{t+3}')
        a(f'v_and_b32 v{t+1}, v6, v{t+3}')
        a(f'v_and_b32 v{t+2}, v6, v{t+4}')
        a(f'v_pk_mul_f32 v[{t+4}:{t+5}], v[{t}:{t+1}], v[{t}:{t+1}]')
        a(f'v_mul_f32 v{t+3}, v{t+2}, v{t+2}')
        a(f'v_cvt_pk_bf16_f32 v{t+4}, v{t+4}, v{t+5}')
        a(f'v_cvt_pk_bf16_f32 v{t+3}, v{t+3}, v{t+3}')
        a(f'v_lshlrev_b32 v{t+5}, 16, v{t+4}')
        a(f'v_and_b32 v{t+4}, v6, v{t+4}')
        a(f'v_and_b32 v{t+3}, v6, v{t+3}')
        a(f'v_add_f32 v{t+4}, v{t+5}, v{t+4}')
        a(f'v_add_f32 v{t+3}, v{t+4}, v{t+3}')
        a(f'v_cvt_pk_bf16_f32 v{t+3}, v{t+3}, v{t+3}')
        a(f'v_and_b32 v{t+3}, v6, v{t+3}')
        a(f'v_add_f32 v{t+3}, 0x322bcc77, v{t+3}   ; +1e-8')
        a(f'v_cvt_pk_bf16_f32 v{t+3}, v{t+3}, v{t+3}')
        a(f'v_and_b32 v{t+3}, v6, v{t+3}')
        a(f'v_sqrt_f32 v{t+3}, v{t+3}')
        a(f'v_mul_u32_u24 v{GG+j}, s26, v{DST+j}')
        a(f'v_cvt_pk_bf16_f32 v{t+3}, v{t+3}, v{t+3}')
        a(f'v_and_b32 v{t+3}, v6, v{t+3}           ; d (f32 bits)')
        a(f'v_rcp_f32 v{t+4}, v{t+3}')
        a(f'v_lshrrev_b32 v{GG+j}, 16, v{GG+j}       ; g')
        a(f'v_pk_mul_f32 v[{t}:{t+1}], v[{t}:{t+1}], v[{t+4}:{t+5}] op_sel_hi:[1,0]')
        a(f'v_mul_f32 v{t+2}, v{t+2}, v{t+4}')
        a(f'v_cvt_pk_bf16_f32 v{rec+1}, v{t}, v{t+1}   ; rx|ry')
        a(f'v_cvt_pk_bf16_f32 v{rec+2}, v{t+2}, 0      ; rz | 0')
        a(f'v_cmp_gt_u32 vcc, 0x{DTHR<<16:x}, v{t+3}')
        a(f's_and_b64 s[{50+2*j}:{51+2*j}], s[{50+2*j}:{51+2*j}], vcc')
        a(f'v_lshrrev_b32 v{rec+3}, 16, v{t+3}')
        a(f'v_subrev_u32 v{rec+3}, 0x{DBASE+HOT0+ZROW//32:x}, v{rec+3}')
        a(f'v_lshlrev_b32 v{rec+3}, 5, v{rec+3}')
        a(f'v_mad_u32_u24 v{t}, v{GG+j}, s27, v8')
        a(f'v_lshrrev_b32 v{t}, 16, v{t}')
        a(f'v_sub_u32 v{t}, v{DST+j}, v{t}          ; dloc')
        a(f'v_lshlrev_b32 v{t}, v{t}, v9')
        a(f'v_or_b32 v{rec+2}, v{t}, v{rec+2}')
        a(f'v_lshlrev_b32 v{rec}, 4, v{SRC+j}')
        a(f'v_or_b32 v{rec}, 0x80000000, v{rec}')
        a(f'v_lshlrev_b32 v{t+1}, 2, v{GG+j}')
        a(f's_mov_b64 exec, s[{50+2*j}:{51+2*j}]')
        a(f'ds_add_rtn_u32 v{RK+j}, v{t+1}, v7')
        a('s_mov_b64 exec, -1')
    a.stamp(3)
    nonce_load(a, 'B')
    a('s_waitcnt vmcnt(0) lgkmcnt(0)')
    a('s_barrier')
    a.stamp(4)
    a('ds_read_b32 v3, v1                    ; cnt')
    a('s_waitcnt lgkmcnt(0)')
    a('v_mov_b32 v4, v3')
    a('s_nop 1')
    for sh in (1, 2, 4, 8):
        a(f'v_add_u32_dpp v4, v4, v4 row_shr:{sh} row_mask:0xf bank_mask:0xf')
        a('s_nop 1')
    a('v_add_u32_dpp v4, v4, v4 row_bcast:15 row_mask:0xa bank_mask:0xf')
    a('s_nop 1')
    a('v_add_u32_dpp v4, v4, v4 row_bcast:31 row_mask:0xc bank_mask:0xf')
    a('s_nop 1')
    a('v_readlane_b32 s26, v4, 63')
    a('s_lshl_b32 s27, s3, 2')
    a('v_mov_b32 v5, s27')
    a('v_mov_b32 v8, s26')
    a('ds_write_b32 v5, v8 offset:4096')
    a('s_waitcnt lgkmcnt(0)')
    a('s_barrier')
    a('v_lshlrev_b32 v5, 2, v2')
    a('ds_read_b32 v70, v5 offset:4096')
    a('v_sub_u32 v4, v4, v3')
    a('v_cmp_gt_u32 vcc, 12, v2')
    a('s_waitcnt lgkmcnt(0)')
    a('s_nop 0')
    a('v_cndmask_b32 v70, 0, v70, vcc')
    a('s_nop 1')
    for sh in (1, 2, 4, 8):
        a(f'v_add_u32_dpp v70, v70, v70 row_shr:{sh} row_mask:0xf bank_mask:0xf')
        a('s_nop 1')
    a('v_readlane_b32 s61, v70, 11')
    a('s_sub_u32 s26, s3, 1')
    a('s_max_i32 s26, s26, 0')
    a('s_nop 3')
    a('v_readlane_b32 s27, v70, s26')
    a('s_cmp_eq_u32 s3, 0')
    a('s_cselect_b32 s27, 0, s27')
    a('v_add_u32 v4, s27, v4')
    a('ds_write_b32 v1, v4 offset:8192         ; start[bin]')
    a('v_lshl_or_b32 v3, v3, 16, v4')
    a(f's_mul_i32 s26, s2, {NG*4}')
    a(f'buffer_store_dword v3, v1, s[40:43], s26 offen {STO}')
    a('s_waitcnt lgkmcnt(0)')
    a('s_barrier')
    a.stamp(5)
    RST = 12288
    for j in range(5):
        a(f'v_lshlrev_b32 v{GG+j}, 2, v{GG+j}')
        a(f'ds_read_b32 v{GG+j}, v{GG+j} offset:8192')
    for j in range(5):
        a(f's_waitcnt lgkmcnt({4-j})')
        a(f'v_add_u32 v{GG+j}, v{GG+j}, v{RK+j}')
        a(f'v_lshlrev_b32 v{GG+j}, 4, v{GG+j}')
    for j in range(5):
        a(f's_mov_b64 exec, s[{50+2*j}:{51+2*j}]')
        a(f'ds_write_b128 v{GG+j}, v[{REC+4*j}:{REC+4*j+3}] offset:{RST}')
    a('s_mov_b64 exec, -1')
    a('s_waitcnt lgkmcnt(0)')
    a('s_barrier')
    a('v_lshlrev_b32 v5, 4, v0                   ; tid*16')
    for j in range(5):
        a(f'ds_read_b128 v[{REC+4*j}:{REC+4*j+3}], v5 offset:{RST+j*12288}')
    a('s_lshl_b32 s26, s2, 16                    ; w*65536')
    for j in range(5):
        a(f'v_add_u32 v6, {j*768}, v0')
        a(f'v_cmp_gt_u32 vcc, s61, v6')
        a(f'v_add_u32 v7, {j*12288}, v5')
        a(f's_waitcnt lgkmcnt({4-j})')
        a('s_mov_b64 exec, vcc')
        a(f'buffer_store_dwordx4 v[{REC+4*j}:{REC+4*j+3}], v7, s[44:47], s26 offen {STO}')
        a('s_mov_b64 exec, -1')
    a.stamp(6)
    role_end(a)

def gen_tab(a):
    a.lab('K1_TAB')
    a.stamp(0)
    srd(a, 28, 20, 65536, off=WS_ATAB)
    srd(a, 24, 18, 16*768)
    srd(a, 32, 20, 12288, off=WS_WB)
    a('v_lshrrev_b32 v10, 4, v2               ; kq')
    a('v_and_b32 v11, 15, v2                  ; c')
    a('v_mul_u32_u24 v10, 3072, v10           ; 4kq*768')
    a('v_lshl_add_u32 v10, v11, 2, v10')
    a('s_and_b32 s52, s3, 3')
    a('s_lshr_b32 s53, s3, 2')
    a('s_lshl_b32 s54, s52, 6')
    a('s_lshl_b32 s55, s53, 8')
    a('s_add_u32 s54, s54, s55')
    for i in range(4):
        a(f'buffer_load_dword v{12+i}, v10, s[24:27], s54 offen offset:{i*768}')
    a('s_mov_b32 s62, 0x05040100')
    a('s_mov_b32 s63, 0x07060302')
    a('s_mul_i32 s54, s52, 3')
    a('s_add_u32 s54, s54, s53')
    a('s_lshl_b32 s54, s54, 10                ; (slice*3+seg)*1024')
    a('v_lshlrev_b32 v11, 4, v2')
    a('s_waitcnt vmcnt(0)')
    a('v_perm_b32 v16, v13, v12, s62')
    a('v_perm_b32 v17, v15, v14, s62')
    a('v_perm_b32 v18, v13, v12, s63')
    a('v_perm_b32 v19, v15, v14, s63')
    a(f'buffer_store_dwordx4 v[16:19], v11, s[32:35], s54 offen {STO}')
    nonce_load(a, 'T')
    a('s_load_dwordx8 s[36:43], s[12:13], 0')
    a('v_mov_b32 v6, 0xffff0000')
    a('s_waitcnt lgkmcnt(0)')
    for k in range(8):
        a(f's_lshl_b32 s{44+2*k}, s{36+k}, 16')
        a(f's_and_b32 s{45+2*k}, s{36+k}, 0xffff0000')
    a('s_mov_b32 s60, 0x3e22f983')
    a('s_mov_b32 s61, 0x31dc9c88')
    a('s_mov_b32 s62, 0')
    a.lab('K1_TAB_LOOP')
    a('v_add_u32 v3, s62, v0             ; entry')
    a(f'v_add_u32 v4, 0x{DBASE:x}, v3')
    a('v_lshlrev_b32 v4, 16, v4           ; d')
    a('v_mul_f32 v5, 0x40490fdb, v4       ; pi*d')
    a('v_cvt_pk_bf16_f32 v5, v5, v5')
    a('v_and_b32 v5, v6, v5')
    a('v_mul_f32 v5, 0x3e4ccccd, v5       ; /5')
    a('v_cvt_pk_bf16_f32 v5, v5, v5')
    a('v_and_b32 v5, v6, v5')
    a('v_mul_f32 v5, s60, v5')
    a('v_cos_f32 v5, v5')
    a('v_rcp_f32 v7, v4                   ; 1/d')
    a('v_cvt_pk_bf16_f32 v5, v5, v5')
    a('v_and_b32 v5, v6, v5')
    a('v_add_f32 v5, 1.0, v5')
    a('v_cvt_pk_bf16_f32 v5, v5, v5')
    a('v_and_b32 v5, v6, v5')
    a('v_mul_f32 v5, 0.5, v5              ; fcut')
    a('v_cmp_gt_u32 vcc, 0x40a00000, v4')
    a('v_cmp_ne_u32 s[64:65], 0, v3')
    a('s_and_b64 vcc, vcc, s[64:65]')
    a('s_nop 1')
    a('v_cndmask_b32 v5, 0, v5, vcc')
    for k in range(16):
        t = 10 + k
        a(f'v_mul_f32 v{t}, s{44+k}, v4')
    for k in range(0, 16, 2):
        t = 10 + k
        a(f'v_cvt_pk_bf16_f32 v{30+k//2}, v{t}, v{t+1}')
    for k in range(0, 16, 2):
        t = 10 + k
        a(f'v_lshlrev_b32 v{t}, 16, v{30+k//2}')
        a(f'v_and_b32 v{t+1}, v6, v{30+k//2}')
    for k in range(16):
        t = 10 + k
        a(f'v_mul_f32 v40, s60, v{t}')
        a(f'v_fma_f32 v41, v{t}, s60, -v40')
        a(f'v_fma_f32 v41, v{t}, s61, v41')
        a(f'v_fract_f32 v40, v40')
        a(f'v_add_f32 v40, v40, v41')
        a(f'v_sin_f32 v{t}, v40')
    a('s_nop 0')
    for k in range(0, 16, 2):
        t = 10 + k
        a(f'v_cvt_pk_bf16_f32 v40, v{t}, v{t+1}')
        a(f'v_lshlrev_b32 v{t}, 16, v40')
        a(f'v_and_b32 v{t+1}, v6, v40')
        a(f'v_mul_f32 v{t}, v{t}, v7')
        a(f'v_mul_f32 v{t+1}, v{t+1}, v7')
        a(f'v_cvt_pk_bf16_f32 v40, v{t}, v{t+1}')
        a(f'v_lshlrev_b32 v{t}, 16, v40')
        a(f'v_and_b32 v{t+1}, v6, v40')
        a(f'v_mul_f32 v{t}, v{t}, v5')
        a(f'v_mul_f32 v{t+1}, v{t+1}, v5')
        a(f'v_cvt_pk_bf16_f32 v{30+k//2}, v{t}, v{t+1}')
    a('v_lshlrev_b32 v8, 5, v3')
    a(f'buffer_store_dwordx4 v[30:33], v8, s[28:31], 0 offen {STO}')
    a(f'buffer_store_dwordx4 v[34:37], v8, s[28:31], 0 offen offset:16 {STO}')
    a('s_add_u32 s62, s62, 768')
    a('s_cmp_lt_u32 s62, 2048')
    a('s_nop 1')
    a('s_cbranch_scc1 K1_TAB_LOOP')
    for i in range(1,7): a.stamp(i)
    role_end(a)

def gen_k1(a):
    name = KNAME if FUSE else 'prep_kernel'
    a.raw('.p2align 8')
    a.raw(f'.type {name},@function')
    a.lab(name)
    a('s_cmp_ge_u32 s2, 256')
    a('s_cbranch_scc1 K1_END')
    a('s_load_dwordx4 s[4:7], s[0:1], 0')
    a('s_load_dwordx4 s[8:11], s[0:1], 16')
    a('s_load_dwordx4 s[12:15], s[0:1], 32')
    a('s_load_dwordx4 s[16:19], s[0:1], 48')
    a('s_load_dwordx2 s[20:21], s[0:1], 80')
    if FUSE:
        a('s_load_dwordx2 s[96:97], s[0:1], 72     ; d_debug')
        a('s_memrealtime s[98:99]')
    a('v_lshrrev_b32 v1, 6, v0')
    a('v_and_b32 v2, 63, v0')
    a('s_nop 0')
    a('v_readfirstlane_b32 s3, v1')
    a('s_waitcnt lgkmcnt(0)')
    if FUSE:
        a('s_mov_b32 s92, s96')
        a('s_mov_b32 s93, s97')
        a('s_mov_b32 s94, 256')
        a('s_mov_b32 s95, 0x00020000')
        a('s_or_b32 s68, s2, s3')
        a('s_cmp_lg_u32 s68, 0')
        a('s_cbranch_scc1 K1_NONONCE')
        a('s_or_b32 s98, s98, 1')
        a('v_mov_b32 v166, s98')
        a('v_mov_b32 v165, 0')
        a('s_mov_b64 exec, 1')
        a('buffer_store_dword v166, v165, s[92:95], 0 offen sc1')
        a('s_mov_b64 exec, -1')
        a.lab('K1_NONONCE')
    if os.environ.get('CPF','0') == '1':
        a('s_cmp_lg_u32 s3, 11')
        a('s_cbranch_scc1 K1_NOCPF')
        a('s_getpc_b64 s[62:63]')
        a.lab('K1_PCREF')
        a('v_lshlrev_b32 v160, 7, v2')
        a('v_mov_b32 v161, s63')
        a('v_add_co_u32 v160, vcc, s62, v160')
        a('s_nop 1')
        a('v_addc_co_u32 v161, vcc, 0, v161, vcc')
        NCH = int(os.environ.get('CPFN','2'))
        for k in range(NCH):
            a('global_load_dword v162, v[160:161], off')
            if k + 1 < NCH:
                a('v_add_co_u32 v160, vcc, 0x2000, v160')
                a('s_nop 1')
                a('v_addc_co_u32 v161, vcc, 0, v161, vcc')
        a.lab('K1_NOCPF')
    a(f's_cmp_lt_u32 s2, {NBIN}')
    a('s_cbranch_scc1 K1_BIN')
    gen_mlp(a)
    gen_bin(a)
    if FUSE:
        a.lab('K1_DONE')
        a('s_waitcnt vmcnt(0) lgkmcnt(0)')
        a('s_barrier')
        if Asm.STAMPS:
            a('s_memrealtime s[84:85]')
            a('s_waitcnt lgkmcnt(0)')
            a('s_lshl_b32 s68, s3, 5')
            a('s_add_u32 s68, s68, 155712')
            a('v_mov_b32 v1, s68')
            for i in range(8):
                a(f'v_mov_b32 v2, s{70+2*i}')
                a(f'ds_write_b32 v1, v2 offset:{4*i}')
        a('s_cmp_lg_u32 s3, 0')
        a('s_cbranch_scc1 K2_START')
        get_nonce(a, 'D')
        publish(a, 0)
        a('s_branch K2_START')
    a.lab('K1_END')
    a('s_endpgm')
```

```python
from asmlib import *
from k1 import *

OUTST = os.environ.get('OUTST', 'sc1')
RESLD = os.environ.get('RESLD', '')
WBASE = 18432
WREG = 5120
RES0 = WBASE + 12*WREG
O_SRC = 0; O_AOF = 1280; O_OH = 2560; O_RX = 3200; O_RY = 3840; O_RZ = 4480
K2_LDS = RES0 + 12*4096
SC = 'sc1' if FUSE else ''
LBF = ZROW + 768

V_C = 0; V_SHL = 1; V_KQ8 = 2; V_A1 = 3; V_A2 = 4; V_A3 = 5
TMP = 6
WB = 10; ACC = 22; GA = 54; GB = 86; WF = 94; MSG = 118; SM = 138; SRC = 154; AOP = 162
T4 = 166; T5 = 167
NV = 168

def wb(seg, t): return WB + (seg*2+t)*2
def acc(comp, t): return ACC + (comp*2+t)*4
def gA(i, c): return GA + 4*i + c
def wf(seg, R, r=0): return WF + seg*8 + R*4 + r
def msg(comp, j=0): return MSG + comp*4 + j

def scan64(a, P):
    a('s_nop 1')
    for sh in (1, 2, 4, 8):
        a(f'v_add_u32_dpp v{P}, v{P}, v{P} row_shr:{sh} row_mask:0xf bank_mask:0xf')
        a('s_nop 1')
    a(f'v_add_u32_dpp v{P}, v{P}, v{P} row_bcast:15 row_mask:0xa bank_mask:0xf')
    a('s_nop 1')
    a(f'v_add_u32_dpp v{P}, v{P}, v{P} row_bcast:31 row_mask:0xc bank_mask:0xf')
    a('s_nop 1')

def gen_k2(a):
    LANE = T4
    if FUSE:
        a.lab('K2_START')
    else:
        a.raw('.p2align 8')
        a.raw(f'.type {KNAME},@function')
        a.lab(KNAME)
        a('s_cmp_ge_u32 s2, 256')
        a('s_cbranch_scc1 K2_END')
    if os.environ.get('PRIO','1') != '0': a('s_setprio 3')
    a('s_load_dwordx2 s[4:5], s[0:1], 0       ; sv')
    a('s_load_dwordx2 s[8:9], s[0:1], 64      ; out')
    a('s_load_dwordx2 s[10:11], s[0:1], 80    ; ws')
    if FUSE:
        a(f'v_mbcnt_lo_u32_b32 v{LANE}, -1, 0')
        a(f'v_mbcnt_hi_u32_b32 v{LANE}, -1, v{LANE}')
        a('s_and_b32 s12, s2, 7                   ; x')
    else:
        a(f'v_lshrrev_b32 v{T5}, 6, v0')
        a(f'v_and_b32 v{LANE}, 63, v0')
        a('s_and_b32 s12, s2, 7                   ; x')
        a(f'v_readfirstlane_b32 s3, v{T5}             ; wave')
    a('s_lshr_b32 s13, s12, 1                 ; slice')
    a('s_lshr_b32 s14, s2, 3')
    a('s_lshl_b32 s14, s14, 1')
    a('s_and_b32 s12, s12, 1')
    a('s_add_u32 s14, s14, s12                ; rank (0..63)')
    a('s_mul_i32 s14, s14, 12')
    a('s_add_u32 s14, s14, s3                 ; g')
    a('s_mul_i32 s15, s14, 853362')
    a('s_add_u32 s16, s15, 65000')
    a('s_lshr_b32 s15, s16, 16                ; start')
    a('s_add_u32 s16, s16, 853362')
    a('s_lshr_b32 s16, s16, 16')
    a(f's_min_u32 s16, s16, {N}')
    a('s_sub_u32 s16, s16, s15                ; size')
    a.stamp(0)
    if Asm.STAMPS: a('s_memtime s[88:89]')
    a(f'v_mul_u32_u24 v{TMP}, {NG*4}, v{LANE}        ; lane*3072')
    a('s_lshl_b32 s17, s14, 2')
    a('s_waitcnt lgkmcnt(0)')
    srd(a, 20, 10, NBIN*NG*4, off=WS_HDR)
    if not FUSE:
        a(f'buffer_load_dword v{TMP+1}, v{TMP}, s[20:23], s17 offen')
    srd(a, 24, 10, NBIN*65536, off=WS_TAILS)
    srd(a, 28, 10, 65536, off=WS_ATAB)
    srd(a, 40, 10, 12288, off=WS_WB)
    srd(a, 32, 4, 10240000)
    srd(a, 36, 8, 10240000)
    def wb_and_table():
        a(f'v_lshlrev_b32 v{TMP+2}, 4, v{LANE}')
        a('s_mul_i32 s17, s13, 3072')
        for seg in range(3):
            a(f'buffer_load_dwordx4 v[{wb(seg,0)}:{wb(seg,0)+3}], v{TMP+2}, s[40:43], s17 offen offset:{seg*1024} {SC}')
        a('s_lshl_b32 s17, s3, 10')
        if FUSE:
            a(f's_add_u32 s17, s17, {HOT0*32}')
            a(f'buffer_load_dwordx4 v[{GA}:{GA+3}], v{TMP+2}, s[28:31], s17 offen sc1')
            a(f's_cmp_ge_u32 s3, {NHOT_KB-12}')
            a('s_cbranch_scc1 K2_DMA_DONE')
            a('s_add_u32 s17, s17, 12288')
            a(f'buffer_load_dwordx4 v[{GA+4}:{GA+7}], v{TMP+2}, s[28:31], s17 offen sc1')
        else:
            a('s_mov_b32 s18, s17')
            a('s_mov_b32 m0, s18')
            a(f's_add_u32 s17, s17, {HOT0*32}')
            a(f'buffer_load_dwordx4 v{TMP+2}, s[28:31], s17 offen lds')
            a(f's_cmp_ge_u32 s3, {NHOT_KB-12}')
            a('s_cbranch_scc1 K2_DMA_DONE')
            a('s_add_u32 s18, s18, 12288')
            a('s_mov_b32 m0, s18')
            a('s_add_u32 s17, s17, 12288')
            a(f'buffer_load_dwordx4 v{TMP+2}, s[28:31], s17 offen lds')
        a.lab('K2_DMA_DONE')
    if not FUSE: wb_and_table()
    a('s_mul_i32 s17, s13, 2560000')
    a('s_add_u32 s44, s10, s17')
    a('s_addc_u32 s45, s11, 0')
    a('s_or_b32 s45, s45, 0x100000            ; stride 16')
    a('s_mov_b32 s46, 160000')
    a('s_mov_b32 s47, 0x00020000')
    a('s_mul_i32 s17, s13, 640000')
    a(f's_add_u32 s17, s17, {WS_TB}')
    a('s_add_u32 s48, s10, s17')
    a('s_addc_u32 s49, s11, 0')
    a('s_or_b32 s49, s49, 0x40000             ; stride 4')
    a('s_mov_b32 s50, 160000')
    a('s_mov_b32 s51, 0x00020000')
    a(f'v_and_b32 v{V_C}, 15, v{LANE}')
    a(f'v_lshrrev_b32 v{T5}, 4, v{LANE}           ; q')
    a(f'v_sub_u32 v{V_SHL}, 15, v{V_C}')
    a(f'v_lshl_or_b32 v{V_SHL}, v{V_SHL}, 16, v{V_SHL}')
    a(f'v_lshlrev_b32 v{V_KQ8}, 3, v{T5}')
    a(f'v_lshlrev_b32 v{TMP+2}, 2, v{LANE}')
    a(f'v_mov_b32 v{TMP+3}, 0')
    a(f'ds_write_b32 v{TMP+2}, v{TMP+3} offset:{ZROW}')
    if FUSE:
        a(f'ds_write_b32 v{TMP+2}, v{TMP+3} offset:{ZROW+768}')
    for r in range(ACC, ACC+32): a(f'v_mov_b32 v{r}, 0')
    for r in range(MSG, MSG+20): a(f'v_mov_b32 v{r}, 0')
    for r in range(SM, SM+16): a(f'v_mov_b32 v{r}, 0')
    a(f's_mul_i32 s18, s3, {WREG}')
    a(f's_add_u32 s18, s18, {WBASE}')
    a('s_mov_b32 s52, 0                          ; base')
    a('s_mov_b32 s60, 0')
    def res_dma(tag):
        a('s_cmp_lg_u32 s60, 0')
        a(f's_cbranch_scc1 K2_RESDONE{tag}')
        a('s_mov_b32 s60, 1')
        a(f'v_mbcnt_lo_u32_b32 v{T4}, -1, 0')
        a(f'v_mbcnt_hi_u32_b32 v{T4}, -1, v{T4}')
        a(f'v_and_b32 v{T5}, 3, v{T4}')
        a(f'v_lshlrev_b32 v{T5}, 4, v{T5}')
        a(f'v_lshrrev_b32 v{T4}, 2, v{T4}')
        a(f'v_lshl_add_u32 v{T5}, v{T4}, 8, v{T5}')
        a('s_lshl_b32 s61, s15, 10')
        a('s_lshl_b32 s62, s13, 6')
        a('s_add_u32 s61, s61, s62')
        a('s_lshl_b32 s62, s3, 12')
        a(f's_add_u32 s62, s62, {RES0}')
        for j in range(4):
            a('s_mov_b32 m0, s62')
            a('s_add_u32 s62, s62, 1024')
            a(f'buffer_load_dwordx4 v{T5}, s[32:35], s61 offen {RESLD} lds')
            a('s_add_u32 s61, s61, 4096')
        a.lab(f'K2_RESDONE{tag}')
    def poll_issue(reg, off=0):
        a(f'v_mbcnt_lo_u32_b32 v{T5}, -1, 0')
        a(f'v_mbcnt_hi_u32_b32 v{T5}, -1, v{T5}')
        a(f'v_lshlrev_b32 v{T5}, 4, v{T5}')
        a(f's_add_u32 s64, s10, 0x{WS_FLAGS:x}')
        a('s_addc_u32 s65, s11, 0')
        a('s_mov_b32 s66, 16384')
        a('s_mov_b32 s67, 0x00020000')
        a('s_and_b32 s62, s2, 7')
        a('s_lshl_b32 s62, s62, 11')
        a(f'buffer_load_dwordx4 v[{reg}:{reg+3}], v{T5}, s[64:67], s62 offen offset:{off} sc1')
    def poll_masks(reg):
        a(f'v_cmp_eq_u32 s[56:57], s100, v{reg}')
        a(f'v_cmp_eq_u32 s[62:63], s100, v{reg+1}')
        a(f'v_cmp_eq_u32 vcc, s100, v{reg+2}')
        a('s_and_b64 s[56:57], s[56:57], s[62:63]')
        a('s_and_b64 s[56:57], s[56:57], vcc')
        a(f'v_cmp_eq_u32 vcc, s100, v{reg+3}')
    def poll47(tag, off):
        a('s_cmp_lg_u32 s3, 0')
        a(f's_cbranch_scc1 K2_POLL{tag}_DONE')
        a('s_mov_b32 s59, 0x10000')
        a.lab(f'K2_POLL{tag}')
        a('s_mov_b64 exec, 0xfff')
        poll_issue(WF, off)
        a('s_mov_b64 exec, -1')
        a('s_waitcnt vmcnt(0)')
        poll_masks(WF)
        a('s_and_b32 s56, s56, 0xfff')
        a('s_and_b32 s62, vcc_lo, 0x7ff')
        a('s_lshl_b32 s62, s62, 12')
        a('s_or_b32 s56, s56, s62')
        a('s_cmp_eq_u32 s56, 0x7fffff')
        a(f's_cbranch_scc1 K2_POLL{tag}_DONE')
        a('s_sleep 2')
        a('s_sub_u32 s59, s59, 1')
        a('s_cmp_lg_u32 s59, 0')
        a(f's_cbranch_scc1 K2_POLL{tag}')
        a.lab(f'K2_POLL{tag}_DONE')
    if FUSE:
        poll47('A', 0)
        a.stamp(2)
        a('s_waitcnt vmcnt(0) lgkmcnt(0)')
        a('s_barrier')
        a.stamp(3)
        a(f'v_mbcnt_lo_u32_b32 v{LANE}, -1, 0')
        a(f'v_mbcnt_hi_u32_b32 v{LANE}, -1, v{LANE}')
        a('s_cmp_eq_u32 s3, 0')
        a('s_cselect_b32 s62, s101, 0')
        a('s_cmp_eq_u32 s62, 0')
        a('s_cbranch_scc1 K2_NOPUB')
        a(f's_add_u32 s64, s10, 0x{WS_FLAGS:x}')
        a('s_addc_u32 s65, s11, 0')
        a('s_mov_b32 s66, 16384')
        a('s_mov_b32 s67, 0x00020000')
        a(f'v_lshlrev_b32 v{WF}, 11, v{LANE}           ; replica*2048')
        a('s_lshl_b32 s68, s2, 2')
        a(f'v_mov_b32 v{WF+1}, s100')
        a('s_mov_b64 exec, 0xff')
        a(f'buffer_store_dword v{WF+1}, v{WF}, s[64:67], s68 offen sc1')
        a('s_mov_b64 exec, -1')
        a.lab('K2_NOPUB')
        XCH = 131072
        a(f'v_lshlrev_b32 v{TMP+2}, 4, v{LANE}          ; lane*16')
        a('s_lshl_b32 s17, s3, 10')
        a(f's_add_u32 s17, s17, {HOT0*32}')
        a(f'buffer_load_dwordx4 v[{GA}:{GA+3}], v{TMP+2}, s[28:31], s17 offen sc1')
        a('s_cmp_lt_u32 s3, 5')
        a('s_cbranch_scc1 K2_JT')
        a('s_cmp_lt_u32 s3, 8')
        a('s_cbranch_scc1 K2_JW')
        a('s_cmp_lt_u32 s3, 11')
        a('s_cbranch_scc1 K2_JH')
        a('s_waitcnt vmcnt(0)')
        a('s_branch K2_JDONE')
        a.lab('K2_JT')
        a('s_add_u32 s17, s17, 12288')
        a(f'buffer_load_dwordx4 v[{GA+4}:{GA+7}], v{TMP+2}, s[28:31], s17 offen sc1')
        a('s_lshl_b32 s17, s3, 10')
        a('s_add_u32 s17, s17, 12288')
        a(f'v_add_u32 v{TMP+3}, s17, v{TMP+2}')
        a('s_waitcnt vmcnt(0)')
        a(f'ds_write_b128 v{TMP+3}, v[{GA+4}:{GA+7}]')
        a('s_branch K2_JDONE')
        a.lab('K2_JW')
        a('s_sub_u32 s62, s3, 5')
        a('s_lshl_b32 s62, s62, 10')
        a('s_mul_i32 s17, s13, 3072')
        a('s_add_u32 s17, s17, s62')
        a(f'buffer_load_dwordx4 v[{GA+4}:{GA+7}], v{TMP+2}, s[40:43], s17 offen sc1')
        a(f's_add_u32 s62, s62, {XCH}')
        a(f'v_add_u32 v{TMP+3}, s62, v{TMP+2}')
        a('s_waitcnt vmcnt(0)')
        a(f'ds_write_b128 v{TMP+3}, v[{GA+4}:{GA+7}]')
        a('s_branch K2_JDONE')
        a.lab('K2_JH')
        a('s_sub_u32 s62, s3, 8                  ; k')
        a('s_sub_u32 s17, s14, s3                ; g0')
        a('s_lshl_b32 s17, s17, 2')
        a('s_lshl_b32 s61, s62, 4')
        a('s_add_u32 s17, s17, s61')
        a(f'v_mul_u32_u24 v{TMP}, {NG*4}, v{LANE}')
        a(f'buffer_load_dwordx4 v[{GA+4}:{GA+7}], v{TMP}, s[20:23], s17 offen sc1')
        a('s_lshl_b32 s62, s62, 10')
        a(f's_add_u32 s62, s62, {XCH+4096}')
        a(f'v_lshlrev_b32 v{TMP+3}, 2, v{LANE}')
        a(f'v_add_u32 v{TMP+3}, s62, v{TMP+3}')
        a('s_waitcnt vmcnt(0)')
        for i in range(4):
            a(f'ds_write_b32 v{TMP+3}, v{GA+4+i} offset:{256*i}')
        a.lab('K2_JDONE')
        if os.environ.get('ST7') == '1': a.stamp(7)
        a('s_lshl_b32 s17, s3, 10')
        a(f'v_add_u32 v{TMP+2}, s17, v{TMP+2}')
        a(f'ds_write_b128 v{TMP+2}, v[{GA}:{GA+3}]')
        a('s_waitcnt lgkmcnt(0)')
        a('s_barrier')
        a(f'v_lshlrev_b32 v{TMP+2}, 2, v{LANE}')
        a('s_lshl_b32 s17, s3, 8')
        a(f's_add_u32 s17, s17, {XCH+4096}')
        a(f'v_add_u32 v{TMP+2}, s17, v{TMP+2}')
        a(f'ds_read_b32 v{TMP+1}, v{TMP+2}')
        a(f'v_lshlrev_b32 v{TMP+2}, 4, v{LANE}')
        a(f'v_add_u32 v{TMP+2}, {XCH}, v{TMP+2}')
        for seg in range(3):
            a(f'ds_read_b128 v[{wb(seg,0)}:{wb(seg,0)+3}], v{TMP+2} offset:{seg*1024}')
        a('s_waitcnt lgkmcnt(3)')
    CNT = SRC; ST = SRC+1; P = SRC+2; LOCB = SRC+3; KK = SRC+4; POS = SRC+5; KHI = SRC+6
    H = TMP+1
    def header():
        a(f'v_lshrrev_b32 v{CNT}, 16, v{H}')
        a(f'v_and_b32 v{ST}, 0xffff, v{H}')
        a(f'v_mov_b32 v{P}, v{CNT}')
        scan64(a, P)
    PFPOS = os.environ.get('PFPOS','N')
    PFF = os.environ.get('PFF','sc1')
    def pf_setup():
        a('s_lshr_b32 s61, s2, 3')
        a('s_mul_i32 s61, s61, 12')
        a('s_add_u32 s61, s61, s3                ; chunk 0..383')
    def pf_A(lo, hi, reg):
        a('s_mul_i32 s17, s13, 2560000')
        a('s_add_u32 s64, s10, s17')
        a('s_addc_u32 s65, s11, 0')
        a('s_mov_b32 s66, 2560000')
        a('s_mov_b32 s67, 0x00020000')
        a(f's_mul_i32 s62, s61, {53*128}')
        a(f's_add_u32 s62, s62, {lo*128}')
        a(f'v_lshlrev_b32 v{reg}, 7, v{LANE}')
        a(f'v_add_u32 v{reg}, s62, v{reg}')
        a(f'v_cmp_gt_u32 vcc, {hi-lo}, v{LANE}')
        a('s_mov_b64 exec, vcc')
        a(f'buffer_load_dword v{reg+1}, v{reg}, s[64:67], 0 offen {PFF}')
        a('s_mov_b64 exec, -1')
    def pf_B(reg):
        a('s_mul_i32 s17, s13, 640000')
        a(f's_add_u32 s17, s17, {WS_TB}')
        a('s_add_u32 s64, s10, s17')
        a('s_addc_u32 s65, s11, 0')
        a('s_mov_b32 s66, 640000')
        a('s_mov_b32 s67, 0x00020000')
        a(f's_mul_i32 s62, s61, {14*128}')
        a(f'v_lshlrev_b32 v{reg}, 7, v{LANE}')
        a(f'v_add_u32 v{reg}, s62, v{reg}')
        a(f'v_cmp_gt_u32 vcc, 14, v{LANE}')
        a('s_mov_b64 exec, vcc')
        a(f'buffer_load_dword v{reg+1}, v{reg}, s[64:67], 0 offen {PFF}')
        a('s_mov_b64 exec, -1')
    PR = GA+24
    npf = 0
    if PFPOS in 'ABC': pf_setup()
    if PFPOS == 'A':
        pf_A(0, 53, PR); pf_B(PR+2); npf = 2
    if PFPOS == 'C':
        pf_B(PR+2); pf_A(0, 10, PR); npf = 2
    if not FUSE:
        a(f's_waitcnt vmcnt({npf}) lgkmcnt(0)')
        a('s_barrier')
    a.stamp(1)
    if os.environ.get('BAL','0') == '1':
        header()
        a(f'v_readlane_b32 s19, v{P}, 63')
        a(f'v_lshlrev_b32 v{KK}, 2, v{LANE}')
        a('s_lshl_b32 s17, s3, 8')
        a(f's_add_u32 s17, s17, {RES0}')
        a(f'v_add_u32 v{POS}, s17, v{KK}')
        a(f'ds_write_b32 v{POS}, v{H}')
        a('s_add_u32 s19, s19, 15')
        a('s_lshr_b32 s19, s19, 4')
        a('s_lshl_b32 s19, s19, 4')
        a('s_add_u32 s19, s19, 15')
        a('s_sub_u32 s19, s19, s3')
        a('s_lshl_b32 s17, s3, 2')
        a(f's_add_u32 s17, s17, {RES0+4096}')
        a(f'v_mov_b32 v{POS}, s17')
        a(f'v_mov_b32 v{KHI}, s19')
        a(f'ds_write_b32 v{POS}, v{KHI}')
        a('s_waitcnt lgkmcnt(0)')
        a('s_barrier')
        a(f'v_add_u32 v{POS}, {RES0+4096}, v{KK}')
        a(f'ds_read_b32 v{KHI}, v{POS}')
        a(f'v_mov_b32 v{POS}, {RES0+4096}')
        for j in range(3):
            a(f'ds_read_b128 v[{GA+4*j}:{GA+4*j+3}], v{POS} offset:{16*j}')
        a(f'v_mov_b32 v{CNT}, 0                      ; rank')
        a('s_waitcnt lgkmcnt(0)')
        for j in range(12):
            a(f'v_sub_u32 v{GA+j}, v{KHI}, v{GA+j}')
        for j in range(12):
            a(f'v_lshrrev_b32 v{GA+j}, 31, v{GA+j}')
        for j in range(0, 12, 2):
            a(f'v_add3_u32 v{CNT}, v{CNT}, v{GA+j}, v{GA+j+1}')
        a('s_sub_u32 s17, 11, s3')
        a('s_cmp_lt_u32 s3, 4')
        a('s_cselect_b32 s17, s3, s17')
        a('s_sub_u32 s19, 19, s3')
        a('s_cmp_ge_u32 s3, 8')
        a('s_cselect_b32 s17, s19, s17')
        a(f'v_cmp_eq_u32 vcc, s17, v{CNT}')
        a('s_and_b32 s17, vcc_lo, 0xfff')
        a('s_ff1_i32_b32 s17, s17')
        a('s_sub_u32 s14, s14, s3')
        a('s_add_u32 s14, s14, s17                   ; g')
        a('s_mul_i32 s15, s14, 853362')
        a('s_add_u32 s16, s15, 65000')
        a('s_lshr_b32 s15, s16, 16                ; start')
        a('s_add_u32 s16, s16, 853362')
        a('s_lshr_b32 s16, s16, 16')
        a(f's_min_u32 s16, s16, {N}')
        a('s_sub_u32 s16, s16, s15                ; size')
        a('s_lshl_b32 s17, s17, 8')
        a(f's_add_u32 s17, s17, {RES0}')
        a(f'v_add_u32 v{POS}, s17, v{KK}')
        a(f'ds_read_b32 v{H}, v{POS}')
        a('s_waitcnt lgkmcnt(0)')
    header()
    a(f'v_readlane_b32 s19, v{P}, 63             ; M')
    a(f'v_sub_u32 v{P}, v{P}, v{CNT}')
    a(f'v_lshl_add_u32 v{LOCB}, v{LANE}, 12, v{ST}   ; w*4096 + start')
    if not FUSE: a.stamp(2)
    a.lab('K2_CHUNK')
    a(f'v_sub_u32 v{KK}, s52, v{P}')
    a(f'v_max_i32 v{KK}, 0, v{KK}')
    NFAST = 12
    a('s_cmp_gt_u32 s19, 256')
    a('s_cbranch_scc1 K2_FILL')
    a(f'v_lshlrev_b32 v{POS}, 2, v{P}')
    a(f'v_add_u32 v{POS}, s18, v{POS}')
    a(f'v_mov_b32 v{KHI}, v{LOCB}')
    for k in range(NFAST):
        a(f'v_cmp_lt_u32 vcc, {k}, v{CNT}')
        a('s_cbranch_vccz K2_FILL_DONE')
        a('s_mov_b64 exec, vcc')
        a(f'ds_write_b32 v{POS}, v{KHI} offset:{4*k}')
        a(f'v_add_u32 v{KHI}, 1, v{KHI}')
    a('s_mov_b64 exec, -1')
    a(f'v_mov_b32 v{KK}, {NFAST}')
    a.lab('K2_FILL')
    a(f'v_add_u32 v{POS}, v{P}, v{KK}')
    a(f'v_subrev_u32 v{POS}, s52, v{POS}')
    a(f'v_cmp_lt_u32 s[56:57], v{KK}, v{CNT}')
    a(f'v_cmp_gt_u32 vcc, 256, v{POS}')
    a('s_and_b64 vcc, vcc, s[56:57]')
    a('s_cbranch_vccz K2_FILL_DONE')
    a(f'v_lshlrev_b32 v{POS}, 2, v{POS}')
    a(f'v_add_u32 v{POS}, s18, v{POS}')
    a(f'v_add_u32 v{KHI}, v{LOCB}, v{KK}')
    a('s_mov_b64 exec, vcc')
    a(f'ds_write_b32 v{POS}, v{KHI}')
    a('s_mov_b64 exec, -1')
    a(f'v_add_u32 v{KK}, 1, v{KK}')
    a('s_branch K2_FILL')
    a.lab('K2_FILL_DONE')
    a('s_mov_b64 exec, -1')
    if not FUSE: a.stamp(3)
    a('s_sub_u32 s55, s19, s52')
    a('s_min_u32 s55, s55, 256                   ; n_c')
    a('s_add_u32 s58, s55, 31')
    a('s_lshr_b32 s58, s58, 5')
    a('s_lshl_b32 s59, s58, 5')
    a('s_add_u32 s59, s59, 32                    ; npad')
    a('s_and_b32 s54, s55, 31')
    a('s_sub_u32 s54, s54, 1')
    a('s_cmp_lt_u32 s54, 16')
    a('s_cselect_b32 s54, 1, 0')
    a('s_sub_u32 s58, s58, s54')
    RC = WF; LA = GB
    a(f'v_lshlrev_b32 v{TMP}, 2, v{LANE}')
    a(f'v_add_u32 v{TMP}, s18, v{TMP}')
    for j in range(5):
        a(f'ds_read_b32 v{LA+j}, v{TMP} offset:{256*j}')
    a(f'v_mov_b32 v{TMP+2}, 0x80000000')
    for j in range(5):
        if j >= 1:
            a(f's_cmp_le_u32 s59, {64*j}')
            a('s_cbranch_scc1 K2_REC_ISSUED')
        a(f'v_add_u32 v{TMP+1}, {64*j}, v{LANE}')
        a(f'v_cmp_gt_u32 vcc, s55, v{TMP+1}')
        a(f's_waitcnt lgkmcnt({4-j})')
        a(f'v_lshlrev_b32 v{LA+j}, 4, v{LA+j}')
        a(f'v_cndmask_b32 v{LA+j}, v{TMP+2}, v{LA+j}, vcc')
        a(f'buffer_load_dwordx4 v[{RC+4*j}:{RC+4*j+3}], v{LA+j}, s[24:27], 0 offen {SC}')
    a.lab('K2_REC_ISSUED')
    if FUSE:
        a('s_or_b32 s62, s3, s52')
        a('s_cmp_lg_u32 s62, 0')
        a('s_cbranch_scc1 K2_NOPB')
        poll_issue(AOP)
        a.lab('K2_NOPB')
        a(f'v_mbcnt_lo_u32_b32 v{LANE}, -1, 0')
        a(f'v_mbcnt_hi_u32_b32 v{LANE}, -1, v{LANE}')
    a(f'v_and_b32 v{TMP}, 3, v{LANE}')
    a(f'v_lshlrev_b32 v{TMP}, 3, v{TMP}')
    a(f'v_bfe_u32 v{TMP+1}, v{LANE}, 2, 3')
    a(f'v_or_b32 v{TMP}, v{TMP}, v{TMP+1}')
    a(f'v_and_b32 v{TMP+1}, 32, v{LANE}')
    a(f'v_or_b32 v{TMP+3}, v{TMP}, v{TMP+1}')
    a(f'v_lshlrev_b32 v{TMP}, 2, v{TMP+3}')
    a(f'v_add_u32 v{TMP}, s18, v{TMP}')
    a(f'v_lshrrev_b32 v{SRC+6}, 4, v{LANE}          ; q')
    a(f'v_lshlrev_b32 v{V_A1}, 5, v{SRC+6}            ; q*8*4')
    a(f'v_add_u32 v{V_A1}, s18, v{V_A1}')
    a(f'v_lshlrev_b32 v{V_A2}, 4, v{SRC+6}            ; q*8*2')
    a(f'v_add_u32 v{V_A2}, s18, v{V_A2}')
    a(f'v_lshrrev_b32 v{SRC+6}, 2, v{V_C}             ; rho>>2')
    a(f'v_and_b32 v{SRC+7}, 3, v{V_C}')
    a(f'v_lshl_add_u32 v{SRC+6}, v{SRC+6}, 3, v{SRC+7}   ; 8*(rho>>2)+(rho&3)')
    a(f'v_lshlrev_b32 v{V_A3}, 2, v{SRC+6}')
    a(f'v_add_u32 v{V_A3}, s18, v{V_A3}')
    npf2 = 0
    if PFPOS in 'BC':
        a('s_cmp_lg_u32 s52, 0')
        a('s_cbranch_scc1 K2_NOPF')
        if PFPOS == 'B':
            pf_A(0, 53, PR); pf_B(PR+2); npf2 = 2
        else:
            pf_A(10, 53, PR+4); npf2 = 1
        a.lab('K2_NOPF')
    a(f'v_lshlrev_b32 v{TMP+1}, 1, v{TMP+3}')
    a(f'v_add_u32 v{TMP+1}, s18, v{TMP+1}')
    if npf2:
        a('s_cmp_lg_u32 s52, 0')
        a('s_cbranch_scc1 K2_RW0')
        a(f's_waitcnt vmcnt({npf2}) lgkmcnt(0)')
        a('s_branch K2_RW1')
        a.lab('K2_RW0')
        a('s_waitcnt vmcnt(0) lgkmcnt(0)')
        a.lab('K2_RW1')
    else:
        a('s_waitcnt vmcnt(0) lgkmcnt(0)')
    a.stamp(4)
    if FUSE:
        a('s_or_b32 s62, s3, s52')
        a('s_cmp_lg_u32 s62, 0')
        a('s_cbranch_scc1 K2_PB_DONE')
        a('s_mov_b32 s61, 0x10000')
        a.lab('K2_POLLB')
        poll_masks(AOP)
        a('s_and_b64 s[56:57], s[56:57], vcc')
        a('s_cmp_eq_u64 s[56:57], -1')
        a('s_cbranch_scc1 K2_PB_OK')
        a('s_sleep 2')
        poll_issue(AOP)
        a('s_waitcnt vmcnt(0)')
        a('s_sub_u32 s61, s61, 1')
        a('s_cmp_lg_u32 s61, 0')
        a('s_cbranch_scc1 K2_POLLB')
        a.lab('K2_PB_OK')
        a(f'v_mov_b32 v{AOP}, {LBF}')
        a(f'v_mov_b32 v{AOP+1}, 1')
        a(f'ds_write_b32 v{AOP}, v{AOP+1}')
        a.lab('K2_PB_DONE')
    a(f'v_xor_b32 v{RC}, v{TMP+2}, v{RC}')
    a(f'v_add_u32 v{RC+3}, {ZROW}, v{RC+3}')
    a(f'ds_write_b32 v{TMP}, v{RC} offset:{O_SRC}')
    a(f'ds_write_b32 v{TMP}, v{RC+3} offset:{O_AOF}')
    X = os.environ.get('X','')
    def issue_row(i):
        t = T4 + (i & 1)
        a(f'v_add_u32 v{t}, v{SRC+i}, v{V_C}')
        if 'L' in X: return
        a(f'buffer_load_dwordx4 v[{gA(i,0)}:{gA(i,3)}], v{t}, s[44:47], 0 idxen {SC}')
        if not os.environ.get('NOB'): a(f'buffer_load_dword v{GB+i}, v{t}, s[48:51], 0 idxen {SC}')
    def read_src(off):
        a(f'ds_read_b128 v[{SRC}:{SRC+3}], v{V_A1} offset:{O_SRC+off}')
        a(f'ds_read_b128 v[{SRC+4}:{SRC+7}], v{V_A1} offset:{O_SRC+off+16}')
    read_src(0)
    if FUSE:
        a(f'v_mov_b32 v{AOP}, {LBF}')
        a('s_mov_b32 s61, 0x200000')
        a.lab('K2_TSPIN')
        a(f'ds_read_b32 v{AOP+1}, v{AOP}')
        a('s_waitcnt lgkmcnt(0)')
        a(f'v_readfirstlane_b32 s62, v{AOP+1}')
        a('s_cmp_lg_u32 s62, 0')
        a('s_cbranch_scc1 K2_TOK')
        a('s_sub_u32 s61, s61, 1')
        a('s_cmp_lg_u32 s61, 0')
        a('s_cbranch_scc1 K2_TSPIN')
        a.lab('K2_TOK')
        if os.environ.get('ST7') == '2': a.stamp(7)
    else:
        a('s_waitcnt lgkmcnt(0)')
    a('s_add_u32 s53, s58, s54')
    a('s_cmp_eq_u32 s53, 0')
    a('s_cbranch_scc1 K2_NOTILES')
    for i in range(4): issue_row(i)
    a(f'ds_write_b16 v{TMP+1}, v{RC+1} offset:{O_RX}')
    a(f'ds_write_b16_d16_hi v{TMP+1}, v{RC+1} offset:{O_RY}')
    a(f'ds_write_b16 v{TMP+1}, v{RC+2} offset:{O_RZ}')
    a(f'ds_write_b16_d16_hi v{TMP+1}, v{RC+2} offset:{O_OH}')
    for j in range(1, 5):
        a(f's_cmp_le_u32 s59, {64*j}')
        a('s_cbranch_scc1 K2_SOA_DONE')
        r = RC+4*j
        a(f'v_xor_b32 v{r}, v{TMP+2}, v{r}')
        a(f'v_add_u32 v{r+3}, {ZROW}, v{r+3}')
        a(f'ds_write_b32 v{TMP}, v{r} offset:{O_SRC+256*j}')
        a(f'ds_write_b32 v{TMP}, v{r+3} offset:{O_AOF+256*j}')
        a(f'ds_write_b16 v{TMP+1}, v{r+1} offset:{O_RX+128*j}')
        a(f'ds_write_b16_d16_hi v{TMP+1}, v{r+1} offset:{O_RY+128*j}')
        a(f'ds_write_b16 v{TMP+1}, v{r+2} offset:{O_RZ+128*j}')
        a(f'ds_write_b16_d16_hi v{TMP+1}, v{r+2} offset:{O_OH+128*j}')
    a.lab('K2_SOA_DONE')
    rare_id = [0]
    def load_A(ao0, ao1, tmp):
        k = rare_id[0]; rare_id[0] += 1
        a(f'v_or_b32 v{tmp}, v{ao0}, v{ao1}')
        a(f'v_cmp_gt_i32 vcc, 0, v{tmp}')
        a(f's_cbranch_vccnz K2_RARE{k}')
        a(f'v_add_u32 v{ao0}, v{ao0}, v{V_KQ8}')
        a(f'v_add_u32 v{ao1}, v{ao1}, v{V_KQ8}')
        a(f'ds_read_b64 v[{AOP}:{AOP+1}], v{ao0}')
        a(f'ds_read_b64 v[{AOP+2}:{AOP+3}], v{ao1}')
        a.lab(f'K2_RARE_BACK{k}')
        return (k, ao0, ao1)
    rares = []
    a(f'ds_read_b32 v{TMP+2}, v{V_A3} offset:{O_AOF}')
    a(f'ds_read_b32 v{TMP+3}, v{V_A3} offset:{O_AOF+16}')
    for i in range(4, 8): issue_row(i)
    a.stamp(5)
    a('s_waitcnt lgkmcnt(0)')
    rares.append(load_A(TMP+2, TMP+3, T4))
    a('s_waitcnt lgkmcnt(0)')
    def wf1(t, R, seg):
        if 'M' in X: return
        a(f'v_mfma_f32_16x16x16_bf16 v[{wf(seg,R)}:{wf(seg,R)+3}], v[{AOP+2*R}:{AOP+2*R+1}], v[{wb(seg,t)}:{wb(seg,t)+1}], 0')
    def seg1(t, ac, m, mc):
        if 'M' in X: return
        a(f'v_mfma_f32_16x16x32_bf16 v[{acc(ac,t)}:{acc(ac,t)+3}], v[{SM+4*m}:{SM+4*m+3}], v[{msg(mc)}:{msg(mc)+3}], v[{acc(ac,t)}:{acc(ac,t)+3}]')
    for seg in (1, 2, 0): wf1(0, 0, seg)
    for r in range(TMP, TMP+4): a(f'v_mov_b32 v{r}, 0')
    a.nop(4)
    if Asm.STAMPS:
        a('s_lshl_b32 s69, s3, 6')
        a(f's_add_u32 s69, s69, {K2_LDS}')
    a('s_mov_b32 s53, 0')
    a('s_cmp_eq_u32 s58, 0')
    a('s_cbranch_scc1 K2_HALF')
    a.lab('K2_TILE')
    if Asm.STAMPS:
        a('s_memrealtime s[90:91]')
        a('s_waitcnt lgkmcnt(0)')
        a(f'v_mov_b32 v{T4}, s90')
        a(f'v_mov_b32 v{T5}, s69')
        a(f'ds_write_b32 v{T5}, v{T4}')
        a('s_add_u32 s69, s69, 4')
    PRIO = os.environ.get('PRIO','1')
    if PRIO == '1':
        a('s_cmp_ge_u32 s58, 4')
        a('s_cbranch_scc1 K2_P2')
        a('s_cmp_ge_u32 s58, 2')
        a('s_cbranch_scc1 K2_P1')
        a('s_setprio 0')
        a('s_branch K2_PDONE')
        a.lab('K2_P1'); a('s_setprio 1'); a('s_branch K2_PDONE')
        a.lab('K2_P2'); a('s_setprio 2')
        a.lab('K2_PDONE')
    if PRIO == '2':
        a('s_cmp_ge_u32 s58, 4')
        a('s_cbranch_scc1 K2_P3')
        a('s_cmp_eq_u32 s58, 3')
        a('s_cbranch_scc1 K2_P2')
        a('s_cmp_eq_u32 s58, 2')
        a('s_cbranch_scc1 K2_P1')
        a('s_setprio 0')
        a('s_branch K2_PDONE')
        a.lab('K2_P1'); a('s_setprio 1'); a('s_branch K2_PDONE')
        a.lab('K2_P2'); a('s_setprio 2'); a('s_branch K2_PDONE')
        a.lab('K2_P3'); a('s_setprio 3')
        a.lab('K2_PDONE')
    SEG = [1, 1, 1, 2, 0]
    X_, Y_, Z_, VR_, S_ = 0, 1, 2, 3, 4
    groups = []
    for c in range(5): groups.append((0, (0, c), (2, c)))
    for c in range(5): groups.append((0, (4, c), (6, c)))
    pm = [(0, 0), (0, 1), (0, 2), (0, 3), (0, 4), (2, 0), (2, 1), (2, 2), (2, 3), (2, 4)]
    for k in range(5): groups.append((1, pm[2*k], pm[2*k+1]))
    for c in range(5): groups.append((1, (4, c), (6, c)))
    def unpack(t, i, comp, u):
        s0 = gA(i, comp) if comp < 4 else GB+i
        s1 = gA(i+1, comp) if comp < 4 else GB+i+1
        if 'V' in X: return
        if t == 0:
            a(f'v_lshlrev_b32 v{u}, 16, v{s0}'); a(f'v_lshlrev_b32 v{u+1}, 16, v{s1}')
        else:
            a(f'v_and_b32 v{u}, 0xffff0000, v{s0}'); a(f'v_and_b32 v{u+1}, 0xffff0000, v{s1}')
    def pk(t, i, comp, u):
        R = i >> 2; r = i & 3; seg = SEG[comp]
        if 'V' in X: return
        a(f'v_pk_mul_f32 v[{u}:{u+1}], v[{u}:{u+1}], v[{wf(seg,R,r)}:{wf(seg,R,r+1)}]')
    def cvt(g):
        t, (i0_, c0), (i1_, c1) = groups[g]
        if 'V' in X: return
        a(f'v_cvt_pk_bf16_f32 v{msg(c0,i0_//2)}, v{TMP}, v{TMP+1}')
        a(f'v_cvt_pk_bf16_f32 v{msg(c1,i1_//2)}, v{TMP+2}, v{TMP+3}')
    def block(g, slot):
        t, (i0_, c0), (i1_, c1) = groups[g]
        if slot: slot()
        cvt((g-1) % 20)
        unpack(t, i0_, c0, TMP); unpack(t, i1_, c1, TMP+2)
        pk(t, i0_, c0, TMP); pk(t, i1_, c1, TMP+2)
    SS = {X_: (1, 0, 0), Y_: (2, 0, 1), Z_: (3, 0, 2), S_: (0, 0, 4), 'vx': (1, 1, 3), 'vy': (2, 2, 3), 'vz': (3, 3, 3)}
    def sg(t, k): return lambda: seg1(t, *SS[k])
    def wfl(t, R, seg): return lambda: wf1(t, R, seg)
    slots = {0: sg(1,'vx'), 1: sg(1,'vy'), 2: sg(1,'vz'), 3: sg(1,S_),
             4: wfl(0,1,1), 5: wfl(0,1,2), 6: wfl(0,1,0),
             7: sg(0,X_), 8: sg(0,Y_), 9: sg(0,Z_), 10: sg(0,'vx'), 11: sg(0,'vy'), 12: sg(0,'vz'), 13: sg(0,S_),
             14: wfl(1,1,1), 15: wfl(1,1,2), 16: wfl(1,1,0), 17: sg(1,X_), 18: sg(1,Y_), 19: sg(1,Z_)}
    VW = (lambda n: n//2) if os.environ.get('NOB') else (lambda n: n)
    for g in range(20):
        if g == 0: a(f's_waitcnt vmcnt({VW(8)})')
        if g == 5:
            a('s_waitcnt vmcnt(0)')
            RESPOS = int(os.environ.get('RESPOS','2'))
            a(f's_cmp_lt_u32 s53, {RESPOS}')
            a('s_cbranch_scc1 K2_RESSKIP')
            res_dma('A')
            a.lab('K2_RESSKIP')
        block(g, slots[g])
        if g == 3:
            wf1(1, 0, 1)
            a(f'ds_read_b128 v[{SM}:{SM+3}], v{V_A2} offset:{O_OH}')
            a(f'ds_read_b128 v[{SM+4}:{SM+7}], v{V_A2} offset:{O_RX}')
            a(f'ds_read_b128 v[{SM+8}:{SM+11}], v{V_A2} offset:{O_RY}')
            a(f'ds_read_b128 v[{SM+12}:{SM+15}], v{V_A2} offset:{O_RZ}')
            read_src(128)
        if g == 6:
            a('s_waitcnt lgkmcnt(2)')
            wf1(1, 0, 2)
            for j in range(4): a(f'v_pk_lshlrev_b16 v{SM+j}, v{V_SHL}, v{SM+j}')
            for j in range(4): a(f'v_pk_ashrrev_i16 v{SM+j}, 15, v{SM+j} op_sel_hi:[0,1]')
            wf1(1, 0, 0)
            for m in (1, 2, 3):
                for j in range(4): a(f'v_and_b32 v{SM+4*m+j}, v{SM+j}, v{SM+4*m+j}')
            for j in range(4): a(f'v_and_b32 v{SM+j}, 0x3f803f80, v{SM+j}')
            a(f'v_add_u32 v{V_A1}, 128, v{V_A1}')
            a(f'v_add_u32 v{V_A2}, 64, v{V_A2}')
        if g == 9: a('s_waitcnt lgkmcnt(0)')
        if g == 12:
            issue_row(0); issue_row(1)
            a(f'ds_read_b32 v{SRC}, v{V_A3} offset:{O_AOF+128}')
            a(f'ds_read_b32 v{SRC+1}, v{V_A3} offset:{O_AOF+128+16}')
        if g == 14:
            issue_row(2); issue_row(3)
        if g == 16:
            a('s_waitcnt lgkmcnt(0)')
            rares.append(load_A(SRC, SRC+1, T4))
        if g == 19:
            issue_row(4)
            a('s_waitcnt lgkmcnt(0)')
            wf1(0, 0, 1)
            issue_row(5);
            wf1(0, 0, 2)
            issue_row(6)
            wf1(0, 0, 0)
            issue_row(7)
    a(f'v_add_u32 v{V_A3}, 128, v{V_A3}')
    a('s_add_u32 s53, s53, 1')
    a('s_sub_u32 s58, s58, 1')
    a('s_cmp_lg_u32 s58, 0')
    a('s_cbranch_scc1 K2_TILE')
    a('s_cmp_eq_u32 s54, 0')
    a('s_cbranch_scc1 K2_FLUSH')
    a.lab('K2_HALF')
    a('s_setprio 0')
    hslots = {0: sg(1,'vx'), 1: sg(1,'vy'), 2: sg(1,'vz'), 3: sg(1,S_), 4: None}
    for g in range(5):
        if g == 0: a(f's_waitcnt vmcnt({VW(8)})')
        block(g, hslots[g])
        if g == 3:
            wf1(1, 0, 1)
            a(f'ds_read_b128 v[{SM}:{SM+3}], v{V_A2} offset:{O_OH}')
            a(f'ds_read_b128 v[{SM+4}:{SM+7}], v{V_A2} offset:{O_RX}')
            a(f'ds_read_b128 v[{SM+8}:{SM+11}], v{V_A2} offset:{O_RY}')
            a(f'ds_read_b128 v[{SM+12}:{SM+15}], v{V_A2} offset:{O_RZ}')
    cvt(4)
    for c in range(5):
        a(f'v_mov_b32 v{msg(c,2)}, 0'); a(f'v_mov_b32 v{msg(c,3)}, 0')
    a('s_waitcnt lgkmcnt(0)')
    wf1(1, 0, 2)
    for j in range(4): a(f'v_pk_lshlrev_b16 v{SM+j}, v{V_SHL}, v{SM+j}')
    for j in range(4): a(f'v_pk_ashrrev_i16 v{SM+j}, 15, v{SM+j} op_sel_hi:[0,1]')
    wf1(1, 0, 0)
    for m in (1, 2, 3):
        for j in range(4): a(f'v_and_b32 v{SM+4*m+j}, v{SM+j}, v{SM+4*m+j}')
    for j in range(4): a(f'v_and_b32 v{SM+j}, 0x3f803f80, v{SM+j}')
    a('s_nop 1')
    seg1(0, *SS[X_]); seg1(0, *SS[Y_]); seg1(0, *SS[Z_])
    def block_nocvt(g, slot):
        t, (i0_, c0), (i1_, c1) = groups[g]
        if slot: slot()
        unpack(t, i0_, c0, TMP); unpack(t, i1_, c1, TMP+2)
        pk(t, i0_, c0, TMP); pk(t, i1_, c1, TMP+2)
    block_nocvt(10, sg(0,'vx'))
    seg1(0, *SS['vy'])
    block(11, sg(0,'vz'))
    block(12, sg(0,S_))
    block(13, None)
    block(14, None)
    cvt(14)
    a('s_nop 1')
    for k in (X_, Y_, Z_, 'vx', 'vy', 'vz', S_): seg1(1, *SS[k])
    a('s_waitcnt vmcnt(0) lgkmcnt(0)')
    a('s_branch K2_TILES_DONE')
    a.lab('K2_FLUSH')
    cvt(19)
    for k in ('vx', 'vy', 'vz'): seg1(1, *SS[k])
    seg1(1, *SS[S_])
    a('s_waitcnt vmcnt(0) lgkmcnt(0)')
    a('s_branch K2_TILES_DONE')
    a.lab('K2_NOTILES')
    a.lab('K2_TILES_DONE')
    a.stamp(6)
    a('s_add_u32 s52, s52, 256')
    a('s_cmp_ge_u32 s52, s19')
    a('s_cbranch_scc1 K2_EPI')
    for r in range(SM, SM+16): a(f'v_mov_b32 v{r}, 0')
    a(f'v_mbcnt_lo_u32_b32 v{LANE}, -1, 0')
    a(f'v_mbcnt_hi_u32_b32 v{LANE}, -1, v{LANE}')
    a(f'v_mul_u32_u24 v{TMP}, {NG*4}, v{LANE}')
    a('s_lshl_b32 s17, s14, 2')
    a(f'buffer_load_dword v{TMP+1}, v{TMP}, s[20:23], s17 offen {SC}')
    a('s_waitcnt vmcnt(0)')
    header()
    a(f'v_sub_u32 v{P}, v{P}, v{CNT}')
    a(f'v_lshl_add_u32 v{LOCB}, v{LANE}, 12, v{ST}')
    a('s_branch K2_CHUNK')
    for (k, ao0, ao1) in rares:
        a.lab(f'K2_RARE{k}')
        a(f'v_max_i32 v{T4}, 0, v{ao0}')
        a(f'v_max_i32 v{T5}, 0, v{ao1}')
        a(f'v_add_u32 v{T4}, v{T4}, v{V_KQ8}')
        a(f'v_add_u32 v{T5}, v{T5}, v{V_KQ8}')
        a(f'ds_read_b64 v[{AOP}:{AOP+1}], v{T4}')
        a(f'ds_read_b64 v[{AOP+2}:{AOP+3}], v{T5}')
        a('s_waitcnt lgkmcnt(0)')
        for h, ao in ((0, ao0), (1, ao1)):
            a(f'v_cmp_gt_i32 vcc, 0, v{ao}')
            a(f'v_add_u32 v{T4}, {HOT0*32}, v{ao}')
            a(f'v_add_u32 v{T4}, v{T4}, v{V_KQ8}')
            a('s_and_saveexec_b64 s[62:63], vcc')
            a(f's_cbranch_execz K2_RSK{k}_{h}')
            a(f'buffer_load_dwordx2 v[{AOP+2*h}:{AOP+2*h+1}], v{T4}, s[28:31], 0 offen {SC}')
            a('s_waitcnt vmcnt(0)')
            a.lab(f'K2_RSK{k}_{h}')
            a('s_mov_b64 exec, s[62:63]')
        a(f's_branch K2_RARE_BACK{k}')
    a.lab('K2_EPI')
    res_dma('B')
    a('s_waitcnt vmcnt(0)')
    LN = T4
    a(f'v_mbcnt_lo_u32_b32 v{LN}, -1, 0')
    a(f'v_mbcnt_hi_u32_b32 v{LN}, -1, v{LN}')
    a('s_lshl_b32 s62, s3, 12')
    a(f's_add_u32 s62, s62, {RES0}')
    a(f'v_lshrrev_b32 v{T5}, 4, v{LN}')
    a(f'v_lshlrev_b32 v{T5}, 10, v{T5}')
    a(f'v_lshl_add_u32 v{T5}, v{V_C}, 2, v{T5}')
    a(f'v_add_u32 v{T5}, s62, v{T5}')
    for r in range(4):
        for comp in range(4):
            a(f'ds_read_b32 v{GA+r*4+comp}, v{T5} offset:{r*256+comp*64}')
    a('s_waitcnt lgkmcnt(0)')
    for r in range(4):
        for comp in range(4):
            x = GA+r*4+comp
            a(f'v_lshlrev_b32 v{TMP}, 16, v{x}')
            a(f'v_and_b32 v{TMP+1}, 0xffff0000, v{x}')
            a(f'v_add_f32 v{TMP}, v{TMP}, v{acc(comp,0)+r}')
            a(f'v_add_f32 v{TMP+1}, v{TMP+1}, v{acc(comp,1)+r}')
            a(f'v_cvt_pk_bf16_f32 v{x}, v{TMP}, v{TMP+1}')
            a(f'ds_write_b32 v{T5}, v{x} offset:{r*256+comp*64}')
    a(f'v_lshlrev_b32 v{TMP}, 4, v{LN}')
    a(f'v_add_u32 v{TMP}, s62, v{TMP}')
    for j in range(4):
        a(f'ds_read_b128 v[{MSG+4*j}:{MSG+4*j+3}], v{TMP} offset:{1024*j}')
    a(f'v_lshrrev_b32 v{T5}, 4, v{LN}')
    a(f'v_lshlrev_b32 v{TMP+1}, 10, v{T5}')
    a(f'v_bfe_u32 v{TMP+2}, v{LN}, 2, 2')
    a(f'v_lshl_add_u32 v{TMP+1}, v{TMP+2}, 8, v{TMP+1}')
    a(f'v_and_b32 v{TMP+2}, 3, v{LN}')
    a(f'v_lshl_add_u32 v{TMP+1}, v{TMP+2}, 4, v{TMP+1}')
    a('s_lshl_b32 s61, s15, 10')
    a('s_lshl_b32 s62, s13, 6')
    a('s_add_u32 s61, s61, s62')
    a(f'v_mov_b32 v{TMP+2}, 0x80000000')
    for j in range(4):
        a(f'v_add_u32 v{TMP+3}, {4*j}, v{T5}')
        a(f'v_cmp_gt_u32 vcc, s16, v{TMP+3}')
        a('s_nop 1')
        a(f'v_cndmask_b32 v{WF+j}, v{TMP+2}, v{TMP+1}, vcc')
    for j in range(4):
        a(f's_waitcnt lgkmcnt({3-j})')
        a(f'buffer_store_dwordx4 v[{MSG+4*j}:{MSG+4*j+3}], v{WF+j}, s[36:39], s61 offen {OUTST}')
        a('s_add_u32 s61, s61, 4096')
    if not os.environ.get('ST7'): a.stamp(7)
    if Asm.STAMPS and not os.environ.get('ST7'):
        a('s_memtime s[86:87]')
        a('s_waitcnt lgkmcnt(0)')
        a('s_sub_u32 s84, s86, s88')
    if Asm.STAMPS:
        a('s_lshl_b32 s68, s3, 6')
        a(f's_add_u32 s68, s68, {K2_LDS}')
        a(f'v_lshlrev_b32 v2, 2, v{LN}')
        a('v_add_u32 v3, s68, v2')
        a('ds_read_b32 v4, v3')
        a('s_add_u32 s64, s10, 0x1A00000')
        a('s_addc_u32 s65, s11, 0')
        a('s_mov_b32 s66, 0x100000')
        a('s_mov_b32 s67, 0x00020000')
        a('s_lshl_b32 s68, s2, 4')
        a('s_add_u32 s68, s68, s3')
        a('s_lshl_b32 s68, s68, 6')
        a('s_waitcnt lgkmcnt(0)')
        a('s_mov_b64 exec, 0xffff')
        a('buffer_store_dword v4, v2, s[64:67], s68 offen')
        a('s_mov_b64 exec, -1')
    if Asm.STAMPS and FUSE:
        a('s_lshl_b32 s68, s3, 5')
        a('s_add_u32 s68, s68, 155712')
        a(f'v_mbcnt_lo_u32_b32 v2, -1, 0')
        a(f'v_mbcnt_hi_u32_b32 v2, -1, v2')
        a('v_lshlrev_b32 v2, 2, v2')
        a('v_add_u32 v3, s68, v2')
        a('ds_read_b32 v4, v3')
        a('s_add_u32 s64, s10, 0x1800000')
        a('s_addc_u32 s65, s11, 0')
        a('s_mov_b32 s66, 0x100000')
        a('s_mov_b32 s67, 0x00020000')
        a('s_lshl_b32 s68, s2, 4')
        a('s_add_u32 s68, s68, s3')
        a('s_lshl_b32 s68, s68, 6')
        a('s_waitcnt lgkmcnt(0)')
        a('s_mov_b64 exec, 0xff')
        a('buffer_store_dword v4, v2, s[64:67], s68 offen')
        a('s_mov_b64 exec, -1')
    a.stamp_flush(1, 10, 8, 3)
    a.lab('K2_END')
    a('s_endpgm')
```

```python
from asmlib import *
import os
STT = os.environ.get('STT','sc1')
STO = os.environ.get('STO','sc1')
LDN = os.environ.get('LDN','')

N = 10000; E = 160000
NBIN = 47; CHUNK = 3405; NG = 768
WS_TA = 0; WS_TB = 10240000; WS_ATAB = 0xC80000; WS_WB = 0xC90000; WS_HDR = 0xCA0000; WS_TAILS = 0xD00000
HOT0 = 1472; NHOT_KB = 17; ZROW = 17408
WS_FLAGS = 0xCF0000
FUSE = os.environ.get('FUSE','1') == '1'
KNAME = 'gather_scatter__molecular_angular_painn__graph_kernel'
COMP = bool(os.environ.get('COMP'))
DBASE = 0x38C0; DTHR = 0x409D
K1_LDS = 155712
S_BASE = 131072; HS_OFF = 12288

def srd(a, s, base, nbytes, off=0, stride=0):
    if off:
        a(f's_add_u32 s{s}, s{base}, 0x{off:x}')
        a(f's_addc_u32 s{s+1}, s{base+1}, 0')
    else:
        a(f's_mov_b32 s{s}, s{base}')
        a(f's_mov_b32 s{s+1}, s{base+1}')
    if stride:
        a(f's_or_b32 s{s+1}, s{s+1}, 0x{stride<<16:x}')
    a(f's_mov_b32 s{s+2}, {nbytes}')
    a(f's_mov_b32 s{s+3}, 0x00020000')

def gen_mlp(a):
    a.lab('K1_MLP')
    a.stamp(0)
    a('s_sub_u32 s24, s91, 47')
    a('s_mul_i32 s24, s24, 48          ; node0')
    a('s_lshr_b32 s22, s3, 2           ; nt')
    a('s_and_b32 s23, s3, 3            ; sl')
    srd(a, 28, 4, 10240000)
    srd(a, 32, 14, 32768)
    srd(a, 36, 16, 98304)
    a('s_mul_i32 s25, s23, 2560000')
    a('s_add_u32 s40, s20, s25')
    a('s_addc_u32 s41, s21, 0')
    a('s_mov_b32 s42, 2560000')
    a('s_mov_b32 s43, 0x00020000')
    a('s_mul_i32 s25, s23, 640000')
    a(f's_add_u32 s25, s25, {WS_TB}')
    a('s_add_u32 s44, s20, s25')
    a('s_addc_u32 s45, s21, 0')
    a('s_mov_b32 s46, 640000')
    a('s_mov_b32 s47, 0x00020000')
    FLAG = 155648
    a('v_lshrrev_b32 v3, 4, v2          ; L>>4')
    a('v_and_b32 v4, 15, v2             ; L&15')
    a('v_mov_b32 v5, 0')
    a(f'v_mov_b32 v6, {FLAG}')
    a('ds_write_b32 v6, v5')
    a('s_and_b32 s26, s3, 1')
    a('s_lshl_b32 s26, s26, 2           ; 4*(wv&1)')
    a('v_add_u32 v6, s26, v3            ; kl7')
    a('v_lshrrev_b32 v7, 1, v4          ; p>>1')
    a('v_xor_b32 v7, v7, v6')
    a('v_and_b32 v8, 1, v4')
    a('v_lshl_or_b32 v7, v7, 1, v8      ; lchunk')
    a('v_lshlrev_b32 v7, 4, v7          ; *16')
    a('v_lshl_add_u32 v6, v3, 8, v7')
    a('v_mul_u32_u24 v8, 768, v3')
    a('v_add_u32 v7, v8, v7             ; vW2')
    a('s_waitcnt lgkmcnt(0)')
    a('s_barrier')
    a('s_cmp_ge_u32 s3, 8')
    a('s_cbranch_scc1 K1_LOADER')
    a('s_lshl_b32 s25, s3, 2')
    a('v_add_u32 v5, s25, v3')
    a('v_and_b32 v9, 15, v5')
    a('v_xor_b32 v9, v4, v9             ; lchunk')
    a('v_add_u32 v5, s24, v5            ; node')
    a('v_lshlrev_b32 v5, 10, v5')
    a('v_lshl_add_u32 v5, v9, 4, v5')
    a('s_lshl_b32 s25, s3, 10')
    a(f's_add_u32 s25, s25, {S_BASE}')
    a('s_mov_b32 m0, s25')
    a('s_cmp_ge_u32 s3, 4')
    a(f'buffer_load_dwordx4 v5, s[28:31], 0 offen {LDN} lds')
    a('s_cbranch_scc1 K1_S2SKIP')
    a('s_add_u32 s25, s25, 8192')
    a('s_mov_b32 m0, s25')
    a('v_add_u32 v5, 0x8000, v5')
    a(f'buffer_load_dwordx4 v5, s[28:31], 0 offen {LDN} lds')
    a.lab('K1_S2SKIP')
    for j in range(4):
        a(f's_add_u32 s25, s3, {8*j}')
        a('s_lshl_b32 s26, s25, 10')
        a('s_mov_b32 m0, s26')
        a('s_nop 0')
        a('buffer_load_dwordx4 v6, s[32:35], s26 offen lds')
    a('s_branch K1_ADDR')
    a.lab('K1_LOADER')
    a('s_sub_u32 s49, s3, 8')
    for m in range(1, 4):
        for j in range(8):
            a(f's_add_u32 s25, s49, {4*j}')
            a('s_lshl_b32 s26, s25, 10')
            a(f's_add_u32 s26, s26, {m*32768}')
            a('s_mov_b32 m0, s26')
            a('s_mul_i32 s27, s25, 3072')
            a(f's_add_u32 s27, s27, {(m-1)*256}')
            a('buffer_load_dwordx4 v7, s[36:39], s27 offen lds')
    a.lab('K1_ADDR')
    a('s_lshl_b32 s25, s22, 4')
    a('s_add_u32 s25, s25, s24           ; node0+16nt')
    a('s_mov_b32 s48, s25')
    a('v_add_u32 v8, s25, v4')
    a('v_lshlrev_b32 v8, 10, v8')
    a('v_lshl_add_u32 v8, v3, 3, v8')
    a('s_lshl_b32 s26, s23, 6')
    a('s_add_u32 s26, s26, 256')
    a('v_add_u32 v8, s26, v8')
    VV = 10
    def vloads():
        for j in range(3):
            for hf in range(2):
                r = VV + (j*2+hf)*2
                a(f'buffer_load_dwordx2 v[{r}:{r+1}], v8, s[28:31], 0 offen offset:{j*256+32*hf} {LDN}')
    a('v_lshrrev_b32 v22, 2, v4           ; r\'')
    a('v_lshl_add_u32 v22, v3, 2, v22     ; 4kq + r\'')
    a('v_and_b32 v23, 7, v22              ; kl7')
    a('v_lshlrev_b32 v22, 8, v22')
    a('v_lshl_add_u32 v22, v23, 5, v22')
    a('v_and_b32 v23, 3, v4')
    a('v_lshl_add_u32 v22, v23, 3, v22    ; aBase')
    a('s_lshl_b32 s25, s23, 6             ; 2*sl*32')
    a('v_xor_b32 v24, s25, v22')
    a('v_xor_b32 v25, 32, v24             ; aW[hf=1]')
    a('v_add_u32 v26, 0x10000, v24        ; aW2[0] (+65536)')
    a('v_add_u32 v27, 0x10000, v25        ; aW2[1]')
    a('v_lshrrev_b32 v23, 1, v3')
    a('v_xor_b32 v23, v23, v4')
    a('v_lshlrev_b32 v23, 4, v23')
    a('v_and_b32 v28, 1, v3')
    a('v_lshl_add_u32 v23, v28, 3, v23')
    a('v_lshl_add_u32 v23, v4, 8, v23')
    a(f'v_add_u32 v23, {S_BASE}, v23      ; bBase0')
    VB = 28
    for st in range(4):
        for rd in range(2):
            k = (4*st + 2*rd)*16
            r = VB + st*2 + rd
            if k == 0: a(f'v_mov_b32 v{r}, v23')
            else: a(f'v_xor_b32 v{r}, {k}, v23')
    a('v_mov_b32 v38, 0xffff0000')
    a('s_cmp_ge_u32 s3, 8')
    a('s_cbranch_scc1 K1_LOADER2')
    a('s_lshl_b32 s25, s3, 5')
    a('v_xor_b32 v36, s25, v22')
    a('v_xor_b32 v37, s25, v23')
    a.stamp(1)
    a('s_waitcnt vmcnt(0)')
    a(f'v_mov_b32 v39, {FLAG}')
    a('v_mov_b32 v9, 1')
    a('s_mov_b64 exec, 1')
    a('ds_add_u32 v39, v9')
    a('s_mov_b64 exec, -1')
    a.lab('K1_SPIN')
    a('ds_read_b32 v9, v39')
    a('s_waitcnt lgkmcnt(0)')
    a('v_readfirstlane_b32 s25, v9')
    a('s_cmp_lt_u32 s25, 8')
    a('s_cbranch_scc1 K1_SPIN')
    a.stamp(2)
    AF = 56
    BL = 72
    D1 = 40
    for st in range(4):
        for rd in range(2):
            r = AF + st*4 + rd*2
            a(f'ds_read_b64_tr_b16 v[{r}:{r+1}], v36 offset:{st*8192+rd*4096}')
    for nt in range(3):
        for st in range(4):
            for rd in range(2):
                r = BL + nt*16 + st*4 + rd*2
                a(f'ds_read_b64 v[{r}:{r+1}], v{VB+st*2+rd} offset:{nt*4096}')
    vloads()
    for r in range(D1, D1+12): a(f'v_mov_b32 v{r}, 0')
    a('s_waitcnt lgkmcnt(0)')
    for st in range(4):
        for nt in range(3):
            A_ = AF + st*4; B_ = BL + nt*16 + st*4; D_ = D1 + nt*4
            a(f'v_mfma_f32_16x16x32_bf16 v[{D_}:{D_+3}], v[{A_}:{A_+3}], v[{B_}:{B_+3}], v[{D_}:{D_+3}]')
    a.nop(8)
    a.stamp(3)
    T = 56
    for p in range(6):
        a(f'v_cvt_pk_bf16_f32 v{T+p}, v{D1+2*p}, v{D1+2*p+1}')
    for p in range(6):
        a(f'v_lshlrev_b32 v{D1+2*p}, 16, v{T+p}')
        a(f'v_and_b32 v{D1+2*p+1}, v38, v{T+p}')
    for i in range(12):
        a(f'v_mul_f32 v{T+i}, 0xbfb8aa3b, v{D1+i}     ; -log2e*h')
    for i in range(12):
        a(f'v_exp_f32 v{T+i}, v{T+i}')
    a('s_nop 0')
    for i in range(12):
        a(f'v_add_f32 v{T+i}, 1.0, v{T+i}')
    for i in range(12):
        a(f'v_rcp_f32 v{T+i}, v{T+i}')
    a('s_nop 0')
    for i in range(12):
        a(f'v_mul_f32 v{T+i}, v{D1+i}, v{T+i}')
    for p in range(6):
        a(f'v_cvt_pk_bf16_f32 v{D1+p}, v{T+2*p}, v{T+2*p+1}')
    for nt in range(3):
        a(f'ds_write_b64 v37, v[{D1+2*nt}:{D1+2*nt+1}] offset:{HS_OFF+nt*4096}')
    a('s_waitcnt lgkmcnt(0)')
    a('s_branch K1_B2')
    a.lab('K1_LOADER2')
    vloads()
    a.stamp(1); a.stamp(2); a.stamp(3)
    a('s_waitcnt vmcnt(6)')
    a.lab('K1_B2')
    a('s_lshl_b32 s25, s22, 12')
    for r in range(VB, VB+8): a(f'v_add_u32 v{r}, s25, v{r}')
    a('s_barrier')
    a.stamp(4)
    BS = 40; AF = 56
    nonce_load(a, 'M')
    for st in range(4):
        for rd in range(2):
            r = BS + st*4 + rd*2
            a(f'ds_read_b64 v[{r}:{r+1}], v{VB+st*2+rd} offset:{HS_OFF}')
    D2 = 96
    bufs = [AF, AF+16, 120]
    def issueA(seg, hf, bi):
        buf = bufs[bi]
        if seg == 0: areg = 24+hf; base = 32768
        else: areg = 26+hf; base = (seg-1)*32768
        for st in range(4):
            for rd in range(2):
                r = buf + st*4 + rd*2
                a(f'ds_read_b64_tr_b16 v[{r}:{r+1}], v{areg} offset:{base+st*8192+rd*4096}')
    a('s_lshl_b32 s25, s3, 11')
    a('v_and_b32 v9, 7, v4')
    a('v_lshlrev_b32 v28, 1, v3           ; 2q')
    a('v_xor_b32 v28, v28, v9')
    a('v_lshlrev_b32 v28, 4, v28')
    a('v_lshl_add_u32 v28, v4, 7, v28')
    a('v_add_u32 v28, s25, v28            ; chunk 2q')
    a('v_xor_b32 v29, 16, v28             ; chunk 2q+1')
    a('v_lshrrev_b32 v30, 3, v2           ; L>>3')
    a('v_and_b32 v31, 7, v2               ; p')
    a('v_xor_b32 v33, v31, v30            ; p ^ (node&7)')
    a('v_lshlrev_b32 v33, 4, v33')
    a('v_lshl_add_u32 v33, v30, 7, v33')
    a('v_add_u32 v33, s25, v33')
    a('s_lshl_b32 s26, s48, 8')
    a('v_lshlrev_b32 v34, 8, v30')
    a('v_lshl_add_u32 v34, v31, 4, v34')
    a('v_add_u32 v34, s26, v34')
    a('s_lshl_b32 s25, s3, 10')
    a(f's_add_u32 s25, s25, {S_BASE}')
    a('v_lshlrev_b32 v32, 6, v4')
    a('v_lshl_add_u32 v32, v3, 3, v32')
    a('v_add_u32 v32, s25, v32')
    a('v_lshlrev_b32 v39, 4, v2           ; L*16')
    a('v_add_u32 v37, s25, v39')
    a('s_lshl_b32 s27, s48, 6')
    a('v_add_u32 v39, s27, v39')
    O1 = 80; O2 = 84; OB = 88; PV = 90; TT = 108; R0 = 64
    issueA(0, 0, 0)
    a('s_waitcnt lgkmcnt(8)')
    for hf in range(2):
        for r in range(D2, D2+12): a(f'v_mov_b32 v{r}, 0')
        for seg in range(3):
            bi = (hf*3+seg) % 3
            nxt = hf*3+seg+1
            if nxt < 6:
                a('s_waitcnt lgkmcnt(7)')
                issueA(nxt % 3, nxt // 3, nxt % 3)
                a('s_waitcnt lgkmcnt(8)')
            else:
                a('s_waitcnt lgkmcnt(0)')
            D_ = D2 + seg*4
            buf = bufs[bi]
            for st in range(4):
                a(f'v_mfma_f32_16x16x32_bf16 v[{D_}:{D_+3}], v[{buf+st*4}:{buf+st*4+3}], v[{BS+st*4}:{BS+st*4+3}], v[{D_}:{D_+3}]')
        if hf == 0: a('s_waitcnt vmcnt(0)')
        a.nop(8)
        Ds = D2; Dv = D2+4; Dr = D2+8
        a(f'v_cvt_pk_bf16_f32 v{OB}, v{Ds}, v{Ds+1}')
        a(f'v_cvt_pk_bf16_f32 v{OB+1}, v{Ds+2}, v{Ds+3}')
        a(f'v_cvt_pk_bf16_f32 v{O1+3}, v{Dr}, v{Dr+1}')
        a(f'v_cvt_pk_bf16_f32 v{O2+3}, v{Dr+2}, v{Dr+3}')
        a(f'v_cvt_pk_bf16_f32 v{TT}, v{Dv}, v{Dv+1}')
        a(f'v_cvt_pk_bf16_f32 v{TT+1}, v{Dv+2}, v{Dv+3}')
        a(f'v_lshlrev_b32 v{PV}, 16, v{TT}')
        a(f'v_and_b32 v{PV+1}, v38, v{TT}')
        a(f'v_lshlrev_b32 v{PV+2}, 16, v{TT+1}')
        a(f'v_and_b32 v{PV+3}, v38, v{TT+1}')
        for j in range(3):
            r = VV + (j*2+hf)*2
            t = TT
            a(f'v_lshlrev_b32 v{t}, 16, v{r}')
            a(f'v_and_b32 v{t+1}, v38, v{r}')
            a(f'v_lshlrev_b32 v{t+2}, 16, v{r+1}')
            a(f'v_and_b32 v{t+3}, v38, v{r+1}')
            a(f'v_pk_mul_f32 v[{t}:{t+1}], v[{t}:{t+1}], v[{PV}:{PV+1}]')
            a(f'v_pk_mul_f32 v[{t+2}:{t+3}], v[{t+2}:{t+3}], v[{PV+2}:{PV+3}]')
            a(f'v_cvt_pk_bf16_f32 v{O1+j}, v{t}, v{t+1}')
            a(f'v_cvt_pk_bf16_f32 v{O2+j}, v{t+2}, v{t+3}')
        a(f'ds_write_b128 v28, v[{O1}:{O1+3}]')
        a(f'ds_write_b128 v29, v[{O2}:{O2+3}]')
        a(f'ds_write_b64 v32, v[{OB}:{OB+1}] offset:{32*hf}')
        RR = R0 if hf == 0 else 40 + 0
        RR = 108 + 4 if hf == 0 else 40
        a(f'ds_read_b128 v[{RR}:{RR+3}], v33')
        a(f'ds_read_b128 v[{RR+4}:{RR+7}], v33 offset:1024')
        if hf == 1:
            a(f'ds_read_b128 v[{RR+8}:{RR+11}], v37')
        if hf == 0:
            a.stamp(5)
        a(f's_waitcnt lgkmcnt({1 if hf == 0 else 2})')
        a(f'buffer_store_dwordx4 v[{RR}:{RR+3}], v34, s[40:43], 0 offen offset:{128*hf} {STT}')
        a(f's_waitcnt lgkmcnt({0 if hf == 0 else 1})')
        a(f'buffer_store_dwordx4 v[{RR+4}:{RR+7}], v34, s[40:43], 0 offen offset:{2048+128*hf} {STT}')
        if hf == 1:
            a('s_waitcnt lgkmcnt(0)')
            a(f'buffer_store_dwordx4 v[{RR+8}:{RR+11}], v39, s[44:47], 0 offen {STT}')
    a.stamp(6)
    role_end(a, True)

def nonce_load(a, tag):
    if FUSE:
        a('s_cmp_lg_u32 s3, 0')
        a(f's_cbranch_scc1 K1_NL{tag}')
        a('v_mov_b32 v165, 0')
        a('buffer_load_dword v166, v165, s[92:95], 0 offen sc1')
        a.lab(f'K1_NL{tag}')

def get_nonce(a, tag):
    a('s_mov_b32 s68, 0x10000')
    a.lab(f'K1_NLOOP{tag}')
    a('v_readfirstlane_b32 s100, v166')
    a('s_cmp_lg_u32 s100, 0')
    a(f's_cbranch_scc1 K1_NOK{tag}')
    a('v_mov_b32 v165, 0')
    a('buffer_load_dword v166, v165, s[92:95], 0 offen sc1')
    a('s_waitcnt vmcnt(0)')
    a('s_sub_u32 s68, s68, 1')
    a('s_cmp_lg_u32 s68, 0')
    a(f's_cbranch_scc1 K1_NLOOP{tag}')
    a.lab(f'K1_NOK{tag}')

def publish(a, off):
    a(f's_add_u32 s64, s20, 0x{WS_FLAGS:x}')
    a('s_addc_u32 s65, s21, 0')
    a('s_mov_b32 s66, 16384')
    a('s_mov_b32 s67, 0x00020000')
    a('v_mbcnt_lo_u32_b32 v164, -1, 0')
    a('v_mbcnt_hi_u32_b32 v164, -1, v164')
    a('v_lshlrev_b32 v164, 11, v164           ; replica*2048')
    a('s_lshl_b32 s68, s91, 2')
    a(f's_add_u32 s68, s68, {off}')
    a('v_mov_b32 v163, s100')
    a('s_mov_b64 exec, 0xff')
    a('buffer_store_dword v163, v164, s[64:67], s68 offen sc1')
    a('s_mov_b64 exec, -1')

def role_end(a, mlp=False):
    if FUSE and mlp:
        a('s_mov_b32 s101, 1')
        a('s_waitcnt lgkmcnt(0)')
        a('s_barrier')
        if Asm.STAMPS:
            a('s_memrealtime s[84:85]')
            a('s_waitcnt lgkmcnt(0)')
            a('s_lshl_b32 s68, s3, 5')
            a('s_add_u32 s68, s68, 155712')
            a('v_mov_b32 v1, s68')
            for i in range(8):
                a(f'v_mov_b32 v2, s{70+2*i}')
                a(f'ds_write_b32 v1, v2 offset:{4*i}')
        a('s_cmp_lg_u32 s3, 0')
        a('s_cbranch_scc1 K2_START')
        a('s_waitcnt vmcnt(5)')
        get_nonce(a, 'M')
        a('s_branch K2_START')
    elif FUSE:
        a('s_mov_b32 s101, 0')
        a('s_branch K1_DONE')
    else:
        a.stamp_flush(0, 20, 7, 3)
        a('s_endpgm')

def bf16_round_pair(a, dst, x, y):
    a(f'v_cvt_pk_bf16_f32 v{dst}, v{x}, v{y}')

def gen_bin(a):
    a.lab('K1_BIN')
    a.stamp(0)
    srd(a, 28, 8, E*4)
    srd(a, 32, 10, E*4)
    srd(a, 36, 6, N*6)
    srd(a, 40, 20, NBIN*NG*4, off=WS_HDR)
    srd(a, 44, 20, NBIN*65536, off=WS_TAILS)
    a(f's_mul_i32 s24, s91, {CHUNK}           ; e0')
    a(f's_sub_u32 s25, {E}, s24')
    a(f's_min_u32 s25, s25, {CHUNK}          ; lim')
    a('v_lshlrev_b32 v1, 2, v0')
    a('v_mov_b32 v3, 0')
    a('ds_write_b32 v1, v3')
    SRC = 10; DST = 15; PS = 20; PD = 30; REC = 40; GG = 60; RK = 65
    POSL = 69632
    srd(a, 64, 12, 32)
    srd(a, 84, 20, 65536, off=WS_ATAB)
    a('v_and_b32 v82, 15, v0                 ; k')
    a('v_lshlrev_b32 v83, 1, v82')
    a('buffer_load_ushort v84, v83, s[64:67], 0 offen')
    a('s_cmp_lg_u32 s91, 0')
    a('s_cbranch_scc1 K1_NOWB1')
    srd(a, 64, 18, 16*768)
    a('v_lshrrev_b32 v90, 4, v2               ; kq')
    a('v_and_b32 v91, 15, v2                  ; c')
    a('v_mul_u32_u24 v90, 3072, v90           ; 4kq*768')
    a('v_lshl_add_u32 v90, v91, 2, v90')
    a('s_and_b32 s61, s3, 3')
    a('s_lshr_b32 s62, s3, 2')
    a('s_lshl_b32 s63, s61, 6')
    a('s_lshl_b32 s68, s62, 8')
    a('s_add_u32 s63, s63, s68')
    for i in range(4):
        a(f'buffer_load_dword v{92+i}, v90, s[64:67], s63 offen offset:{i*768}')
    a.lab('K1_NOWB1')
    a('v_lshlrev_b32 v5, 4, v2               ; lane*16')
    for k in range(5):
        if k == 4:
            a('s_cmp_ge_u32 s3, 11')
            a('s_cbranch_scc1 K1_POSDONE')
        a(f's_add_u32 s26, s3, {12*k}')
        a('s_lshl_b32 s26, s26, 10')
        a(f's_add_u32 s27, s26, {POSL}')
        a('s_mov_b32 m0, s27')
        a('s_nop 0')
        a('buffer_load_dwordx4 v5, s[36:39], s26 offen lds')
    a.lab('K1_POSDONE')
    a('v_add_u32 v4, s24, v0')
    a('v_lshlrev_b32 v4, 2, v4              ; e*4 (round 0)')
    for j in range(5):
        a(f's_mov_b32 s26, {j*3072}')
        a(f'buffer_load_dword v{SRC+j}, v4, s[28:31], s26 offen {LDN}')
        a(f'buffer_load_dword v{DST+j}, v4, s[32:35], s26 offen {LDN}')
    for j in range(5):
        a(f'v_add_u32 v5, {j*768}, v0')
        a(f'v_cmp_gt_u32 s[{50+2*j}:{51+2*j}], s25, v5')
    a('v_mov_b32 v6, 0xffff0000')
    a('v_lshrrev_b32 v85, 4, v0')
    a('s_mul_i32 s61, s91, 48')
    a('v_add_u32 v85, s61, v85             ; entry')
    a(f'v_add_u32 v86, 0x{DBASE:x}, v85')
    a('v_lshlrev_b32 v86, 16, v86          ; d')
    a('v_mul_f32 v87, 0x40490fdb, v86       ; pi*d')
    a('v_cvt_pk_bf16_f32 v87, v87, v87')
    a('v_and_b32 v87, v6, v87')
    a('v_mul_f32 v87, 0x3e4ccccd, v87       ; /5')
    a('v_cvt_pk_bf16_f32 v87, v87, v87')
    a('v_and_b32 v87, v6, v87')
    a('v_mul_f32 v87, 0x3e22f983, v87')
    a('v_cos_f32 v87, v87')
    a('v_rcp_f32 v88, v86                   ; 1/d')
    a('v_cvt_pk_bf16_f32 v87, v87, v87')
    a('v_and_b32 v87, v6, v87')
    a('v_add_f32 v87, 1.0, v87')
    a('v_cvt_pk_bf16_f32 v87, v87, v87')
    a('v_and_b32 v87, v6, v87')
    a('v_mul_f32 v87, 0.5, v87              ; fcut')
    a('v_cmp_gt_u32 vcc, 0x40a00000, v86')
    a('v_cmp_ne_u32 s[62:63], 0, v85')
    a('s_and_b64 vcc, vcc, s[62:63]')
    a('s_nop 1')
    a('v_cndmask_b32 v87, 0, v87, vcc')
    a('s_waitcnt vmcnt(14)')
    a('v_lshlrev_b32 v84, 16, v84           ; f_k')
    a('v_mul_f32 v84, v84, v86')
    a('v_cvt_pk_bf16_f32 v84, v84, v84')
    a('v_and_b32 v84, v6, v84               ; arg')
    a('v_mul_f32 v89, 0x3e22f983, v84')
    a('v_mov_b32 v81, 0x3e22f983')
    a('v_fma_f32 v80, v84, v81, -v89')
    a('v_mov_b32 v81, 0x31dc9c88')
    a('v_fma_f32 v80, v84, v81, v80')
    a('v_fract_f32 v89, v89')
    a('v_add_f32 v89, v89, v80')
    a('v_sin_f32 v89, v89')
    a('s_nop 0')
    a('v_cvt_pk_bf16_f32 v89, v89, v89')
    a('v_and_b32 v89, v6, v89')
    a('v_mul_f32 v89, v89, v88')
    a('v_cvt_pk_bf16_f32 v89, v89, v89')
    a('v_and_b32 v89, v6, v89')
    a('v_mul_f32 v89, v89, v87')
    a('v_cvt_pk_bf16_f32 v89, v89, v89')
    a('s_nop 1')
    a('v_mov_b32_dpp v88, v89 quad_perm:[1,0,3,2] row_mask:0xf bank_mask:0xf')
    a('v_and_b32 v89, 0xffff, v89')
    a('v_and_b32 v88, v6, v88')
    a('v_or_b32 v89, v89, v88')
    a('v_lshlrev_b32 v85, 5, v85')
    a('v_add_u32 v85, v85, v83               ; entry*32 + 2k')
    a('s_waitcnt vmcnt(10) lgkmcnt(0)')
    a('s_barrier')
    a.stamp(1)
    a('s_mov_b32 s62, 0x55555555')
    a('s_mov_b32 s63, 0x55555555')
    a('s_mov_b64 exec, s[62:63]')
    a(f'buffer_store_dword v89, v85, s[84:87], 0 offen {STO}')
    a('s_mov_b64 exec, -1')
    a('s_cmp_lg_u32 s91, 0')
    a('s_cbranch_scc1 K1_NOWB2')
    srd(a, 64, 20, 12288, off=WS_WB)
    a('s_mov_b32 s62, 0x05040100')
    a('s_mov_b32 s63, 0x07060302')
    a('v_perm_b32 v96, v93, v92, s62')
    a('v_perm_b32 v97, v95, v94, s62')
    a('v_perm_b32 v98, v93, v92, s63')
    a('v_perm_b32 v99, v95, v94, s63')
    a('s_and_b32 s61, s3, 3')
    a('s_lshr_b32 s62, s3, 2')
    a('s_mul_i32 s61, s61, 3')
    a('s_add_u32 s61, s61, s62')
    a('s_lshl_b32 s61, s61, 10                ; (slice*3+seg)*1024')
    a('v_lshlrev_b32 v91, 4, v2')
    a(f'buffer_store_dwordx4 v[96:99], v91, s[64:67], s61 offen {STO}')
    a.lab('K1_NOWB2')
    for j in range(5):
        a(f's_waitcnt vmcnt({8-2*j+1})')
        for (idx, dstp) in ((SRC+j, PS+2*j), (DST+j, PD+2*j)):
            a(f'v_mul_u32_u24 v5, 6, v{idx}')
            a('v_and_b32 v5, -4, v5')
            a(f'v_add_u32 v5, {POSL}, v5')
            a(f'ds_read2_b32 v[{dstp}:{dstp+1}], v5 offset0:0 offset1:1')
    a.stamp(2)
    a('s_mov_b32 s26, 5033')
    a('s_mov_b32 s27, 853362')
    a('v_mov_b32 v7, 1')
    a('v_mov_b32 v8, 65000')
    a('v_mov_b32 v9, 0x10000')
    for j in range(5):
        a(f's_waitcnt lgkmcnt({min(15, 8-2*j + j)})')
        ps = PS+2*j; pd = PD+2*j; rec = REC+4*j
        t = 70
        a(f'v_and_b32 v{t}, 1, v{SRC+j}')
        a(f'v_lshlrev_b32 v{t}, 4, v{t}')
        a(f'v_lshrrev_b64 v[{ps}:{ps+1}], v{t}, v[{ps}:{ps+1}]')
        a(f'v_and_b32 v{t+1}, 1, v{DST+j}')
        a(f'v_lshlrev_b32 v{t+1}, 4, v{t+1}')
        a(f'v_lshrrev_b64 v[{pd}:{pd+1}], v{t+1}, v[{pd}:{pd+1}]')
        a(f'v_lshlrev_b32 v{t}, 16, v{ps}')
        a(f'v_and_b32 v{t+1}, v6, v{ps}')
        a(f'v_lshlrev_b32 v{t+2}, 16, v{pd}')
        a(f'v_and_b32 v{t+3}, v6, v{pd}')
        a(f'v_pk_add_f32 v[{t}:{t+1}], v[{t}:{t+1}], v[{t+2}:{t+3}] neg_lo:[0,1] neg_hi:[0,1]')
        a(f'v_lshlrev_b32 v{t+2}, 16, v{ps+1}')
        a(f'v_lshlrev_b32 v{t+3}, 16, v{pd+1}')
        a(f'v_sub_f32 v{t+2}, v{t+2}, v{t+3}      ; rz')
        a(f'v_cvt_pk_bf16_f32 v{t+3}, v{t}, v{t+1}')
        a(f'v_cvt_pk_bf16_f32 v{t+4}, v{t+2}, v{t+2}')
        a(f'v_lshlrev_b32 v{t}, 16, v{t+3}')
        a(f'v_and_b32 v{t+1}, v6, v{t+3}')
        a(f'v_and_b32 v{t+2}, v6, v{t+4}')
        a(f'v_pk_mul_f32 v[{t+4}:{t+5}], v[{t}:{t+1}], v[{t}:{t+1}]')
        a(f'v_mul_f32 v{t+3}, v{t+2}, v{t+2}')
        a(f'v_cvt_pk_bf16_f32 v{t+4}, v{t+4}, v{t+5}')
        a(f'v_cvt_pk_bf16_f32 v{t+3}, v{t+3}, v{t+3}')
        a(f'v_lshlrev_b32 v{t+5}, 16, v{t+4}')
        a(f'v_and_b32 v{t+4}, v6, v{t+4}')
        a(f'v_and_b32 v{t+3}, v6, v{t+3}')
        a(f'v_add_f32 v{t+4}, v{t+5}, v{t+4}')
        a(f'v_add_f32 v{t+3}, v{t+4}, v{t+3}')
        a(f'v_cvt_pk_bf16_f32 v{t+3}, v{t+3}, v{t+3}')
        a(f'v_and_b32 v{t+3}, v6, v{t+3}')
        a(f'v_add_f32 v{t+3}, 0x322bcc77, v{t+3}   ; +1e-8')
        a(f'v_cvt_pk_bf16_f32 v{t+3}, v{t+3}, v{t+3}')
        a(f'v_and_b32 v{t+3}, v6, v{t+3}')
        a(f'v_sqrt_f32 v{t+3}, v{t+3}')
        a(f'v_mul_u32_u24 v{GG+j}, s26, v{DST+j}')
        a(f'v_cvt_pk_bf16_f32 v{t+3}, v{t+3}, v{t+3}')
        a(f'v_and_b32 v{t+3}, v6, v{t+3}           ; d (f32 bits)')
        a(f'v_rcp_f32 v{t+4}, v{t+3}')
        a(f'v_lshrrev_b32 v{GG+j}, 16, v{GG+j}       ; g')
        a(f'v_pk_mul_f32 v[{t}:{t+1}], v[{t}:{t+1}], v[{t+4}:{t+5}] op_sel_hi:[1,0]')
        a(f'v_mul_f32 v{t+2}, v{t+2}, v{t+4}')
        a(f'v_cvt_pk_bf16_f32 v{rec+1}, v{t}, v{t+1}   ; rx|ry')
        a(f'v_cvt_pk_bf16_f32 v{rec+2}, v{t+2}, 0      ; rz | 0')
        a(f'v_cmp_gt_u32 vcc, 0x{DTHR<<16:x}, v{t+3}')
        a(f's_and_b64 s[{50+2*j}:{51+2*j}], s[{50+2*j}:{51+2*j}], vcc')
        a(f'v_lshrrev_b32 v{rec+3}, 16, v{t+3}')
        a(f'v_subrev_u32 v{rec+3}, 0x{DBASE+HOT0+ZROW//32:x}, v{rec+3}')
        a(f'v_lshlrev_b32 v{rec+3}, 5, v{rec+3}')
        a(f'v_mad_u32_u24 v{t}, v{GG+j}, s27, v8')
        a(f'v_lshrrev_b32 v{t}, 16, v{t}')
        a(f'v_sub_u32 v{t}, v{DST+j}, v{t}          ; dloc')
        a(f'v_lshlrev_b32 v{t}, v{t}, v9')
        a(f'v_or_b32 v{rec+2}, v{t}, v{rec+2}')
        a(f'v_lshlrev_b32 v{rec}, 4, v{SRC+j}')
        a(f'v_or_b32 v{rec}, 0x80000000, v{rec}')
        a(f'v_lshlrev_b32 v{t+1}, 2, v{GG+j}')
        a(f's_mov_b64 exec, s[{50+2*j}:{51+2*j}]')
        a(f'ds_add_rtn_u32 v{RK+j}, v{t+1}, v7')
        a('s_mov_b64 exec, -1')
    a.stamp(3)
    nonce_load(a, 'B')
    a('s_waitcnt vmcnt(0) lgkmcnt(0)')
    a('s_barrier')
    a.stamp(4)
    a('ds_read_b32 v3, v1                    ; cnt')
    a('s_waitcnt lgkmcnt(0)')
    a('v_mov_b32 v4, v3')
    a('s_nop 1')
    for sh in (1, 2, 4, 8):
        a(f'v_add_u32_dpp v4, v4, v4 row_shr:{sh} row_mask:0xf bank_mask:0xf')
        a('s_nop 1')
    a('v_add_u32_dpp v4, v4, v4 row_bcast:15 row_mask:0xa bank_mask:0xf')
    a('s_nop 1')
    a('v_add_u32_dpp v4, v4, v4 row_bcast:31 row_mask:0xc bank_mask:0xf')
    a('s_nop 1')
    a('v_readlane_b32 s26, v4, 63')
    a('s_lshl_b32 s27, s3, 2')
    a('v_mov_b32 v5, s27')
    a('v_mov_b32 v8, s26')
    a('ds_write_b32 v5, v8 offset:4096')
    a('s_waitcnt lgkmcnt(0)')
    a('s_barrier')
    a('v_lshlrev_b32 v5, 2, v2')
    a('ds_read_b32 v70, v5 offset:4096')
    a('v_sub_u32 v4, v4, v3')
    a('v_cmp_gt_u32 vcc, 12, v2')
    a('s_waitcnt lgkmcnt(0)')
    a('s_nop 0')
    a('v_cndmask_b32 v70, 0, v70, vcc')
    a('s_nop 1')
    for sh in (1, 2, 4, 8):
        a(f'v_add_u32_dpp v70, v70, v70 row_shr:{sh} row_mask:0xf bank_mask:0xf')
        a('s_nop 1')
    a('v_readlane_b32 s61, v70, 11')
    a('s_sub_u32 s26, s3, 1')
    a('s_max_i32 s26, s26, 0')
    a('s_nop 3')
    a('v_readlane_b32 s27, v70, s26')
    a('s_cmp_eq_u32 s3, 0')
    a('s_cselect_b32 s27, 0, s27')
    a('v_add_u32 v4, s27, v4')
    a('ds_write_b32 v1, v4 offset:8192         ; start[bin]')
    a('v_lshl_or_b32 v3, v3, 16, v4')
    a(f's_mul_i32 s26, s91, {NG*4}')
    a(f'buffer_store_dword v3, v1, s[40:43], s26 offen {STO}')
    a('s_waitcnt lgkmcnt(0)')
    a('s_barrier')
    a.stamp(5)
    RST = 12288
    for j in range(5):
        a(f'v_lshlrev_b32 v{GG+j}, 2, v{GG+j}')
        a(f'ds_read_b32 v{GG+j}, v{GG+j} offset:8192')
    for j in range(5):
        a(f's_waitcnt lgkmcnt({4-j})')
        a(f'v_add_u32 v{GG+j}, v{GG+j}, v{RK+j}')
        a(f'v_lshlrev_b32 v{GG+j}, 4, v{GG+j}')
    for j in range(5):
        a(f's_mov_b64 exec, s[{50+2*j}:{51+2*j}]')
        a(f'ds_write_b128 v{GG+j}, v[{REC+4*j}:{REC+4*j+3}] offset:{RST}')
    a('s_mov_b64 exec, -1')
    a('s_waitcnt lgkmcnt(0)')
    a('s_barrier')
    a('v_lshlrev_b32 v5, 4, v0                   ; tid*16')
    for j in range(5):
        a(f'ds_read_b128 v[{REC+4*j}:{REC+4*j+3}], v5 offset:{RST+j*12288}')
    a('s_lshl_b32 s26, s91, 16                    ; w*65536')
    for j in range(5):
        a(f'v_add_u32 v6, {j*768}, v0')
        a(f'v_cmp_gt_u32 vcc, s61, v6')
        a(f'v_add_u32 v7, {j*12288}, v5')
        a(f's_waitcnt lgkmcnt({4-j})')
        a('s_mov_b64 exec, vcc')
        a(f'buffer_store_dwordx4 v[{REC+4*j}:{REC+4*j+3}], v7, s[44:47], s26 offen {STO}')
        a('s_mov_b64 exec, -1')
    a.stamp(6)
    role_end(a)

def gen_tab(a):
    a.lab('K1_TAB')
    a.stamp(0)
    srd(a, 28, 20, 65536, off=WS_ATAB)
    srd(a, 24, 18, 16*768)
    srd(a, 32, 20, 12288, off=WS_WB)
    a('v_lshrrev_b32 v10, 4, v2               ; kq')
    a('v_and_b32 v11, 15, v2                  ; c')
    a('v_mul_u32_u24 v10, 3072, v10           ; 4kq*768')
    a('v_lshl_add_u32 v10, v11, 2, v10')
    a('s_and_b32 s52, s3, 3')
    a('s_lshr_b32 s53, s3, 2')
    a('s_lshl_b32 s54, s52, 6')
    a('s_lshl_b32 s55, s53, 8')
    a('s_add_u32 s54, s54, s55')
    for i in range(4):
        a(f'buffer_load_dword v{12+i}, v10, s[24:27], s54 offen offset:{i*768}')
    a('s_mov_b32 s62, 0x05040100')
    a('s_mov_b32 s63, 0x07060302')
    a('s_mul_i32 s54, s52, 3')
    a('s_add_u32 s54, s54, s53')
    a('s_lshl_b32 s54, s54, 10                ; (slice*3+seg)*1024')
    a('v_lshlrev_b32 v11, 4, v2')
    a('s_waitcnt vmcnt(0)')
    a('v_perm_b32 v16, v13, v12, s62')
    a('v_perm_b32 v17, v15, v14, s62')
    a('v_perm_b32 v18, v13, v12, s63')
    a('v_perm_b32 v19, v15, v14, s63')
    a(f'buffer_store_dwordx4 v[16:19], v11, s[32:35], s54 offen {STO}')
    nonce_load(a, 'T')
    a('s_load_dwordx8 s[36:43], s[12:13], 0')
    a('v_mov_b32 v6, 0xffff0000')
    a('s_waitcnt lgkmcnt(0)')
    for k in range(8):
        a(f's_lshl_b32 s{44+2*k}, s{36+k}, 16')
        a(f's_and_b32 s{45+2*k}, s{36+k}, 0xffff0000')
    a('s_mov_b32 s60, 0x3e22f983')
    a('s_mov_b32 s61, 0x31dc9c88')
    a('s_mov_b32 s62, 0')
    a.lab('K1_TAB_LOOP')
    a('v_add_u32 v3, s62, v0             ; entry')
    a(f'v_add_u32 v4, 0x{DBASE:x}, v3')
    a('v_lshlrev_b32 v4, 16, v4           ; d')
    a('v_mul_f32 v5, 0x40490fdb, v4       ; pi*d')
    a('v_cvt_pk_bf16_f32 v5, v5, v5')
    a('v_and_b32 v5, v6, v5')
    a('v_mul_f32 v5, 0x3e4ccccd, v5       ; /5')
    a('v_cvt_pk_bf16_f32 v5, v5, v5')
    a('v_and_b32 v5, v6, v5')
    a('v_mul_f32 v5, s60, v5')
    a('v_cos_f32 v5, v5')
    a('v_rcp_f32 v7, v4                   ; 1/d')
    a('v_cvt_pk_bf16_f32 v5, v5, v5')
    a('v_and_b32 v5, v6, v5')
    a('v_add_f32 v5, 1.0, v5')
    a('v_cvt_pk_bf16_f32 v5, v5, v5')
    a('v_and_b32 v5, v6, v5')
    a('v_mul_f32 v5, 0.5, v5              ; fcut')
    a('v_cmp_gt_u32 vcc, 0x40a00000, v4')
    a('v_cmp_ne_u32 s[64:65], 0, v3')
    a('s_and_b64 vcc, vcc, s[64:65]')
    a('s_nop 1')
    a('v_cndmask_b32 v5, 0, v5, vcc')
    for k in range(16):
        t = 10 + k
        a(f'v_mul_f32 v{t}, s{44+k}, v4')
    for k in range(0, 16, 2):
        t = 10 + k
        a(f'v_cvt_pk_bf16_f32 v{30+k//2}, v{t}, v{t+1}')
    for k in range(0, 16, 2):
        t = 10 + k
        a(f'v_lshlrev_b32 v{t}, 16, v{30+k//2}')
        a(f'v_and_b32 v{t+1}, v6, v{30+k//2}')
    for k in range(16):
        t = 10 + k
        a(f'v_mul_f32 v40, s60, v{t}')
        a(f'v_fma_f32 v41, v{t}, s60, -v40')
        a(f'v_fma_f32 v41, v{t}, s61, v41')
        a(f'v_fract_f32 v40, v40')
        a(f'v_add_f32 v40, v40, v41')
        a(f'v_sin_f32 v{t}, v40')
    a('s_nop 0')
    for k in range(0, 16, 2):
        t = 10 + k
        a(f'v_cvt_pk_bf16_f32 v40, v{t}, v{t+1}')
        a(f'v_lshlrev_b32 v{t}, 16, v40')
        a(f'v_and_b32 v{t+1}, v6, v40')
        a(f'v_mul_f32 v{t}, v{t}, v7')
        a(f'v_mul_f32 v{t+1}, v{t+1}, v7')
        a(f'v_cvt_pk_bf16_f32 v40, v{t}, v{t+1}')
        a(f'v_lshlrev_b32 v{t}, 16, v40')
        a(f'v_and_b32 v{t+1}, v6, v40')
        a(f'v_mul_f32 v{t}, v{t}, v5')
        a(f'v_mul_f32 v{t+1}, v{t+1}, v5')
        a(f'v_cvt_pk_bf16_f32 v{30+k//2}, v{t}, v{t+1}')
    a('v_lshlrev_b32 v8, 5, v3')
    a(f'buffer_store_dwordx4 v[30:33], v8, s[28:31], 0 offen {STO}')
    a(f'buffer_store_dwordx4 v[34:37], v8, s[28:31], 0 offen offset:16 {STO}')
    a('s_add_u32 s62, s62, 768')
    a('s_cmp_lt_u32 s62, 2048')
    a('s_nop 1')
    a('s_cbranch_scc1 K1_TAB_LOOP')
    for i in range(1,7): a.stamp(i)
    role_end(a)

def gen_k1(a):
    name = KNAME if FUSE else 'prep_kernel'
    a.raw('.p2align 8')
    a.raw(f'.type {name},@function')
    a.lab(name)
    a('s_cmp_ge_u32 s2, 256')
    a('s_cbranch_scc1 K1_END')
    a('s_load_dwordx4 s[4:7], s[0:1], 0')
    a('s_load_dwordx4 s[8:11], s[0:1], 16')
    a('s_load_dwordx4 s[12:15], s[0:1], 32')
    a('s_load_dwordx4 s[16:19], s[0:1], 48')
    a('s_load_dwordx2 s[20:21], s[0:1], 80')
    if FUSE:
        a('s_load_dwordx2 s[96:97], s[0:1], 72     ; d_debug')
        a('s_memrealtime s[98:99]')
    a('v_lshrrev_b32 v1, 6, v0')
    a('v_and_b32 v2, 63, v0')
    a('s_nop 0')
    a('v_readfirstlane_b32 s3, v1')
    a('s_waitcnt lgkmcnt(0)')
    if FUSE:
        a('s_mov_b32 s92, s96')
        a('s_mov_b32 s93, s97')
        a('s_mov_b32 s94, 256')
        a('s_mov_b32 s95, 0x00020000')
        a('s_or_b32 s68, s2, s3')
        a('s_cmp_lg_u32 s68, 0')
        a('s_cbranch_scc1 K1_NONONCE')
        a('s_or_b32 s98, s98, 1')
        a('v_mov_b32 v166, s98')
        a('v_mov_b32 v165, 0')
        a('s_mov_b64 exec, 1')
        a('buffer_store_dword v166, v165, s[92:95], 0 offen sc1')
        a('s_mov_b64 exec, -1')
        a.lab('K1_NONONCE')
    if os.environ.get('CPF','0') == '1':
        a('s_cmp_lg_u32 s3, 11')
        a('s_cbranch_scc1 K1_NOCPF')
        a('s_getpc_b64 s[62:63]')
        a.lab('K1_PCREF')
        a('v_lshlrev_b32 v160, 7, v2')
        a('v_mov_b32 v161, s63')
        a('v_add_co_u32 v160, vcc, s62, v160')
        a('s_nop 1')
        a('v_addc_co_u32 v161, vcc, 0, v161, vcc')
        NCH = int(os.environ.get('CPFN','2'))
        for k in range(NCH):
            a('global_load_dword v162, v[160:161], off')
            if k + 1 < NCH:
                a('v_add_co_u32 v160, vcc, 0x2000, v160')
                a('s_nop 1')
                a('v_addc_co_u32 v161, vcc, 0, v161, vcc')
        a.lab('K1_NOCPF')
    RM = os.environ.get('ROLEMAP','1')
    if RM == '0':
        a('s_mov_b32 s91, s2')
    else:
        XA, XB = [int(c) for c in os.environ.get('RMX','46')]
        others = [x for x in range(8) if x not in (XA, XB)]
        a('s_and_b32 s61, s2, 7                  ; x')
        a('s_lshr_b32 s62, s2, 3                 ; j')
        a('s_mov_b32 s63, 6')
        for k, x in enumerate(others):
            a(f's_cmp_eq_u32 s61, {x}')
            a(f's_cselect_b32 s63, {k}, s63')
        a('s_mul_i32 s64, s62, 6')
        a('s_mul_i32 s65, s62, 7')
        a('s_sub_u32 s65, s65, 15')
        a('s_cmp_lt_u32 s62, 15')
        a('s_cselect_b32 s64, s64, s65')
        a('s_add_u32 s64, s64, s63')
        a('s_add_u32 s91, s64, 47')
        a('s_add_u32 s65, s62, 32')
        a(f's_cmp_eq_u32 s61, {XB}')
        a('s_cselect_b32 s66, 1, 0')
        a('s_cmp_lt_u32 s62, 15')
        a('s_cselect_b32 s66, s66, 0')
        a('s_cmp_lg_u32 s66, 0')
        a('s_cselect_b32 s91, s65, s91')
        a(f's_cmp_eq_u32 s61, {XA}')
        a('s_cselect_b32 s91, s62, s91')
    a(f's_cmp_lt_u32 s91, {NBIN}')
    a('s_cbranch_scc1 K1_BIN')
    gen_mlp(a)
    gen_bin(a)
    if FUSE:
        a.lab('K1_DONE')
        a('s_waitcnt vmcnt(0) lgkmcnt(0)')
        a('s_barrier')
        if Asm.STAMPS:
            a('s_memrealtime s[84:85]')
            a('s_waitcnt lgkmcnt(0)')
            a('s_lshl_b32 s68, s3, 5')
            a('s_add_u32 s68, s68, 155712')
            a('v_mov_b32 v1, s68')
            for i in range(8):
                a(f'v_mov_b32 v2, s{70+2*i}')
                a(f'ds_write_b32 v1, v2 offset:{4*i}')
        a('s_cmp_lg_u32 s3, 0')
        a('s_cbranch_scc1 K2_START')
        get_nonce(a, 'D')
        publish(a, 0)
        a('s_branch K2_START')
    a.lab('K1_END')
    a('s_endpgm')
```

```python
from asmlib import *
from k1 import *

OUTST = os.environ.get('OUTST', 'sc1')
RESLD = os.environ.get('RESLD', '')
WBASE = 18432
WREG = 5120
RES0 = WBASE + 12*WREG
O_SRC = 0; O_AOF = 1280; O_OH = 2560; O_RX = 3200; O_RY = 3840; O_RZ = 4480
K2_LDS = RES0 + 12*4096
SC = 'sc1' if FUSE else ''
LBF = ZROW + 768

V_C = 0; V_SHL = 1; V_KQ8 = 2; V_A1 = 3; V_A2 = 4; V_A3 = 5
TMP = 6
WB = 10; ACC = 22; GA = 54; GB = 86; WF = 94; MSG = 118; SM = 138; SRC = 154; AOP = 162
T4 = 166; T5 = 167
MSGT = 54 + 24
NV = 168

def wb(seg, t): return WB + (seg*2+t)*2
def acc(comp, t): return ACC + (comp*2+t)*4
def gA(i, c): return GA + 4*i + c
def wf(seg, R, r=0): return WF + seg*8 + R*4 + r
def msg(comp, j=0): return MSG + comp*4 + j

def scan64(a, P):
    a('s_nop 1')
    for sh in (1, 2, 4, 8):
        a(f'v_add_u32_dpp v{P}, v{P}, v{P} row_shr:{sh} row_mask:0xf bank_mask:0xf')
        a('s_nop 1')
    a(f'v_add_u32_dpp v{P}, v{P}, v{P} row_bcast:15 row_mask:0xa bank_mask:0xf')
    a('s_nop 1')
    a(f'v_add_u32_dpp v{P}, v{P}, v{P} row_bcast:31 row_mask:0xc bank_mask:0xf')
    a('s_nop 1')

def gen_k2(a):
    LANE = T4
    if FUSE:
        a.lab('K2_START')
    else:
        a.raw('.p2align 8')
        a.raw(f'.type {KNAME},@function')
        a.lab(KNAME)
        a('s_cmp_ge_u32 s2, 256')
        a('s_cbranch_scc1 K2_END')
    if os.environ.get('PRIO','1') != '0': a('s_setprio 3')
    a('s_load_dwordx2 s[4:5], s[0:1], 0       ; sv')
    a('s_load_dwordx2 s[8:9], s[0:1], 64      ; out')
    a('s_load_dwordx2 s[10:11], s[0:1], 80    ; ws')
    if FUSE:
        a(f'v_mbcnt_lo_u32_b32 v{LANE}, -1, 0')
        a(f'v_mbcnt_hi_u32_b32 v{LANE}, -1, v{LANE}')
        a('s_and_b32 s12, s2, 7                   ; x')
    else:
        a(f'v_lshrrev_b32 v{T5}, 6, v0')
        a(f'v_and_b32 v{LANE}, 63, v0')
        a('s_and_b32 s12, s2, 7                   ; x')
        a(f'v_readfirstlane_b32 s3, v{T5}             ; wave')
    a('s_lshr_b32 s13, s12, 1                 ; slice')
    a('s_lshr_b32 s14, s2, 3')
    a('s_lshl_b32 s14, s14, 1')
    a('s_and_b32 s12, s12, 1')
    a('s_add_u32 s14, s14, s12                ; rank (0..63)')
    a('s_mul_i32 s14, s14, 12')
    a('s_add_u32 s14, s14, s3                 ; g')
    a('s_mul_i32 s15, s14, 853362')
    a('s_add_u32 s16, s15, 65000')
    a('s_lshr_b32 s15, s16, 16                ; start')
    a('s_add_u32 s16, s16, 853362')
    a('s_lshr_b32 s16, s16, 16')
    a(f's_min_u32 s16, s16, {N}')
    a('s_sub_u32 s16, s16, s15                ; size')
    a.stamp(0)
    if Asm.STAMPS: a('s_memtime s[88:89]')
    a(f'v_mul_u32_u24 v{TMP}, {NG*4}, v{LANE}        ; lane*3072')
    a('s_lshl_b32 s17, s14, 2')
    a('s_waitcnt lgkmcnt(0)')
    srd(a, 20, 10, NBIN*NG*4, off=WS_HDR)
    if not FUSE:
        a(f'buffer_load_dword v{TMP+1}, v{TMP}, s[20:23], s17 offen')
    srd(a, 24, 10, NBIN*65536, off=WS_TAILS)
    srd(a, 28, 10, 65536, off=WS_ATAB)
    srd(a, 40, 10, 12288, off=WS_WB)
    srd(a, 32, 4, 10240000)
    srd(a, 36, 8, 10240000)
    def wb_and_table():
        a(f'v_lshlrev_b32 v{TMP+2}, 4, v{LANE}')
        a('s_mul_i32 s17, s13, 3072')
        for seg in range(3):
            a(f'buffer_load_dwordx4 v[{wb(seg,0)}:{wb(seg,0)+3}], v{TMP+2}, s[40:43], s17 offen offset:{seg*1024} {SC}')
        a('s_lshl_b32 s17, s3, 10')
        if FUSE:
            a(f's_add_u32 s17, s17, {HOT0*32}')
            a(f'buffer_load_dwordx4 v[{GA}:{GA+3}], v{TMP+2}, s[28:31], s17 offen sc1')
            a(f's_cmp_ge_u32 s3, {NHOT_KB-12}')
            a('s_cbranch_scc1 K2_DMA_DONE')
            a('s_add_u32 s17, s17, 12288')
            a(f'buffer_load_dwordx4 v[{GA+4}:{GA+7}], v{TMP+2}, s[28:31], s17 offen sc1')
        else:
            a('s_mov_b32 s18, s17')
            a('s_mov_b32 m0, s18')
            a(f's_add_u32 s17, s17, {HOT0*32}')
            a(f'buffer_load_dwordx4 v{TMP+2}, s[28:31], s17 offen lds')
            a(f's_cmp_ge_u32 s3, {NHOT_KB-12}')
            a('s_cbranch_scc1 K2_DMA_DONE')
            a('s_add_u32 s18, s18, 12288')
            a('s_mov_b32 m0, s18')
            a('s_add_u32 s17, s17, 12288')
            a(f'buffer_load_dwordx4 v{TMP+2}, s[28:31], s17 offen lds')
        a.lab('K2_DMA_DONE')
    if not FUSE: wb_and_table()
    a('s_mul_i32 s17, s13, 2560000')
    a('s_add_u32 s44, s10, s17')
    a('s_addc_u32 s45, s11, 0')
    a('s_or_b32 s45, s45, 0x100000            ; stride 16')
    a('s_mov_b32 s46, 160000')
    a('s_mov_b32 s47, 0x00020000')
    a('s_mul_i32 s17, s13, 640000')
    a(f's_add_u32 s17, s17, {WS_TB}')
    a('s_add_u32 s48, s10, s17')
    a('s_addc_u32 s49, s11, 0')
    a('s_or_b32 s49, s49, 0x40000             ; stride 4')
    a('s_mov_b32 s50, 160000')
    a('s_mov_b32 s51, 0x00020000')
    a(f'v_and_b32 v{V_C}, 15, v{LANE}')
    a(f'v_lshrrev_b32 v{T5}, 4, v{LANE}           ; q')
    a(f'v_sub_u32 v{V_SHL}, 15, v{V_C}')
    a(f'v_lshl_or_b32 v{V_SHL}, v{V_SHL}, 16, v{V_SHL}')
    a(f'v_lshlrev_b32 v{V_KQ8}, 3, v{T5}')
    a(f'v_lshlrev_b32 v{TMP+2}, 2, v{LANE}')
    a(f'v_mov_b32 v{TMP+3}, 0')
    a(f'ds_write_b32 v{TMP+2}, v{TMP+3} offset:{ZROW}')
    if FUSE:
        a(f'ds_write_b32 v{TMP+2}, v{TMP+3} offset:{ZROW+768}')
    for r in range(ACC, ACC+32): a(f'v_mov_b32 v{r}, 0')
    for r in range(MSG, MSG+20): a(f'v_mov_b32 v{r}, 0')
    for r in range(SM, SM+16): a(f'v_mov_b32 v{r}, 0')
    a(f's_mul_i32 s18, s3, {WREG}')
    a(f's_add_u32 s18, s18, {WBASE}')
    a('s_mov_b32 s52, 0                          ; base')
    a('s_mov_b32 s60, 0')
    def res_dma(tag):
        a('s_cmp_lg_u32 s60, 0')
        a(f's_cbranch_scc1 K2_RESDONE{tag}')
        a('s_mov_b32 s60, 1')
        a(f'v_mbcnt_lo_u32_b32 v{T4}, -1, 0')
        a(f'v_mbcnt_hi_u32_b32 v{T4}, -1, v{T4}')
        a(f'v_and_b32 v{T5}, 3, v{T4}')
        a(f'v_lshlrev_b32 v{T5}, 4, v{T5}')
        a(f'v_lshrrev_b32 v{T4}, 2, v{T4}')
        a(f'v_lshl_add_u32 v{T5}, v{T4}, 8, v{T5}')
        a('s_lshl_b32 s61, s15, 10')
        a('s_lshl_b32 s62, s13, 6')
        a('s_add_u32 s61, s61, s62')
        a('s_lshl_b32 s62, s3, 12')
        a(f's_add_u32 s62, s62, {RES0}')
        for j in range(4):
            a('s_mov_b32 m0, s62')
            a('s_add_u32 s62, s62, 1024')
            a(f'buffer_load_dwordx4 v{T5}, s[32:35], s61 offen {RESLD} lds')
            a('s_add_u32 s61, s61, 4096')
        a.lab(f'K2_RESDONE{tag}')
    def poll_issue(reg, off=0):
        a(f'v_mbcnt_lo_u32_b32 v{T5}, -1, 0')
        a(f'v_mbcnt_hi_u32_b32 v{T5}, -1, v{T5}')
        a(f'v_lshlrev_b32 v{T5}, 4, v{T5}')
        a(f's_add_u32 s64, s10, 0x{WS_FLAGS:x}')
        a('s_addc_u32 s65, s11, 0')
        a('s_mov_b32 s66, 16384')
        a('s_mov_b32 s67, 0x00020000')
        a('s_and_b32 s62, s2, 7')
        a('s_lshl_b32 s62, s62, 11')
        a(f'buffer_load_dwordx4 v[{reg}:{reg+3}], v{T5}, s[64:67], s62 offen offset:{off} sc1')
    def poll_masks(reg):
        a(f'v_cmp_eq_u32 s[56:57], s100, v{reg}')
        a(f'v_cmp_eq_u32 s[62:63], s100, v{reg+1}')
        a(f'v_cmp_eq_u32 vcc, s100, v{reg+2}')
        a('s_and_b64 s[56:57], s[56:57], s[62:63]')
        a('s_and_b64 s[56:57], s[56:57], vcc')
        a(f'v_cmp_eq_u32 vcc, s100, v{reg+3}')
    def poll47(tag, off):
        a('s_cmp_lg_u32 s3, 0')
        a(f's_cbranch_scc1 K2_POLL{tag}_DONE')
        a('s_mov_b32 s59, 0x8000')
        R = [WF, WF+4, WF+8]
        def issue(k):
            a('s_mov_b64 exec, 0xfff')
            poll_issue(R[k], off)
            a('s_mov_b64 exec, -1')
        def test(k):
            poll_masks(R[k])
            a('s_and_b32 s56, s56, 0xfff')
            a('s_and_b32 s62, vcc_lo, 0x7ff')
            a('s_lshl_b32 s62, s62, 12')
            a('s_or_b32 s56, s56, s62')
            a('s_cmp_eq_u32 s56, 0x7fffff')
            a(f's_cbranch_scc1 K2_POLL{tag}_DONE')
        if os.environ.get('POLLP','1') == '1':
            issue(0)
            a('s_sleep 3')
            issue(1)
            a.lab(f'K2_POLL{tag}')
            for k in range(3):
                a('s_sleep 3')
                issue((k+2) % 3)
                a('s_waitcnt vmcnt(2)')
                test(k)
        else:
            a.lab(f'K2_POLL{tag}')
            issue(0)
            a('s_waitcnt vmcnt(0)')
            test(0)
            a('s_sleep 2')
        a('s_sub_u32 s59, s59, 1')
        a('s_cmp_lg_u32 s59, 0')
        a(f's_cbranch_scc1 K2_POLL{tag}')
        a.lab(f'K2_POLL{tag}_DONE')
    if FUSE:
        if os.environ.get('PUBD','1') == '1':
            a('s_cmp_eq_u32 s101, 0')
            a('s_cbranch_scc1 K2_NODRAIN')
            a('s_waitcnt vmcnt(0)')
            a('s_barrier')
            a(f'v_mbcnt_lo_u32_b32 v{LANE}, -1, 0')
            a(f'v_mbcnt_hi_u32_b32 v{LANE}, -1, v{LANE}')
            a('s_cmp_eq_u32 s3, 0')
            a('s_cselect_b32 s62, s101, 0')
            a('s_cmp_eq_u32 s62, 0')
            a('s_cbranch_scc1 K2_NOPUB')
            a(f's_add_u32 s64, s10, 0x{WS_FLAGS:x}')
            a('s_addc_u32 s65, s11, 0')
            a('s_mov_b32 s66, 16384')
            a('s_mov_b32 s67, 0x00020000')
            a(f'v_lshlrev_b32 v{WF}, 11, v{LANE}           ; replica*2048')
            a('s_lshl_b32 s68, s91, 2')
            a(f'v_mov_b32 v{WF+1}, s100')
            a('s_mov_b64 exec, 0xff')
            a(f'buffer_store_dword v{WF+1}, v{WF}, s[64:67], s68 offen sc1')
            a('s_mov_b64 exec, -1')
            a.lab('K2_NOPUB')
            a.lab('K2_NODRAIN')
        poll47('A', 0)
        a.stamp(2)
        a('s_waitcnt vmcnt(0) lgkmcnt(0)')
        a('s_barrier')
        a.stamp(3)
        a(f'v_mbcnt_lo_u32_b32 v{LANE}, -1, 0')
        a(f'v_mbcnt_hi_u32_b32 v{LANE}, -1, v{LANE}')
        if os.environ.get('PUBD','1') != '1':
            a('s_cmp_eq_u32 s3, 0')
            a('s_cselect_b32 s62, s101, 0')
            a('s_cmp_eq_u32 s62, 0')
            a('s_cbranch_scc1 K2_NOPUB2')
            a(f's_add_u32 s64, s10, 0x{WS_FLAGS:x}')
            a('s_addc_u32 s65, s11, 0')
            a('s_mov_b32 s66, 16384')
            a('s_mov_b32 s67, 0x00020000')
            a(f'v_lshlrev_b32 v{WF}, 11, v{LANE}           ; replica*2048')
            a('s_lshl_b32 s68, s91, 2')
            a(f'v_mov_b32 v{WF+1}, s100')
            a('s_mov_b64 exec, 0xff')
            a(f'buffer_store_dword v{WF+1}, v{WF}, s[64:67], s68 offen sc1')
            a('s_mov_b64 exec, -1')
            a.lab('K2_NOPUB2')
        XCH = 131072
        a(f'v_lshlrev_b32 v{TMP+2}, 4, v{LANE}          ; lane*16')
        a('s_lshl_b32 s17, s3, 10')
        a(f's_add_u32 s17, s17, {HOT0*32}')
        a(f'buffer_load_dwordx4 v[{GA}:{GA+3}], v{TMP+2}, s[28:31], s17 offen sc1')
        a('s_cmp_lt_u32 s3, 5')
        a('s_cbranch_scc1 K2_JT')
        a('s_cmp_lt_u32 s3, 8')
        a('s_cbranch_scc1 K2_JW')
        a('s_cmp_lt_u32 s3, 11')
        a('s_cbranch_scc1 K2_JH')
        a('s_waitcnt vmcnt(0)')
        a('s_branch K2_JDONE')
        a.lab('K2_JT')
        a('s_add_u32 s17, s17, 12288')
        a(f'buffer_load_dwordx4 v[{GA+4}:{GA+7}], v{TMP+2}, s[28:31], s17 offen sc1')
        a('s_lshl_b32 s17, s3, 10')
        a('s_add_u32 s17, s17, 12288')
        a(f'v_add_u32 v{TMP+3}, s17, v{TMP+2}')
        a('s_waitcnt vmcnt(0)')
        a(f'ds_write_b128 v{TMP+3}, v[{GA+4}:{GA+7}]')
        a('s_branch K2_JDONE')
        a.lab('K2_JW')
        a('s_sub_u32 s62, s3, 5')
        a('s_lshl_b32 s62, s62, 10')
        a('s_mul_i32 s17, s13, 3072')
        a('s_add_u32 s17, s17, s62')
        a(f'buffer_load_dwordx4 v[{GA+4}:{GA+7}], v{TMP+2}, s[40:43], s17 offen sc1')
        a(f's_add_u32 s62, s62, {XCH}')
        a(f'v_add_u32 v{TMP+3}, s62, v{TMP+2}')
        a('s_waitcnt vmcnt(0)')
        a(f'ds_write_b128 v{TMP+3}, v[{GA+4}:{GA+7}]')
        a('s_branch K2_JDONE')
        a.lab('K2_JH')
        a('s_sub_u32 s62, s3, 8                  ; k')
        a('s_sub_u32 s17, s14, s3                ; g0')
        a('s_lshl_b32 s17, s17, 2')
        a('s_lshl_b32 s61, s62, 4')
        a('s_add_u32 s17, s17, s61')
        a(f'v_mul_u32_u24 v{TMP}, {NG*4}, v{LANE}')
        a(f'buffer_load_dwordx4 v[{GA+4}:{GA+7}], v{TMP}, s[20:23], s17 offen sc1')
        a('s_lshl_b32 s62, s62, 10')
        a(f's_add_u32 s62, s62, {XCH+4096}')
        a(f'v_lshlrev_b32 v{TMP+3}, 2, v{LANE}')
        a(f'v_add_u32 v{TMP+3}, s62, v{TMP+3}')
        a('s_waitcnt vmcnt(0)')
        for i in range(4):
            a(f'ds_write_b32 v{TMP+3}, v{GA+4+i} offset:{256*i}')
        a.lab('K2_JDONE')
        if os.environ.get('ST7') == '1': a.stamp(7)
        a('s_lshl_b32 s17, s3, 10')
        a(f'v_add_u32 v{TMP+2}, s17, v{TMP+2}')
        a(f'ds_write_b128 v{TMP+2}, v[{GA}:{GA+3}]')
        a('s_waitcnt lgkmcnt(0)')
        a('s_barrier')
        a(f'v_lshlrev_b32 v{TMP+2}, 2, v{LANE}')
        a('s_lshl_b32 s17, s3, 8')
        a(f's_add_u32 s17, s17, {XCH+4096}')
        a(f'v_add_u32 v{TMP+2}, s17, v{TMP+2}')
        a(f'ds_read_b32 v{TMP+1}, v{TMP+2}')
        a(f'v_lshlrev_b32 v{TMP+2}, 4, v{LANE}')
        a(f'v_add_u32 v{TMP+2}, {XCH}, v{TMP+2}')
        for seg in range(3):
            a(f'ds_read_b128 v[{wb(seg,0)}:{wb(seg,0)+3}], v{TMP+2} offset:{seg*1024}')
        a('s_waitcnt lgkmcnt(3)')
    CNT = SRC; ST = SRC+1; P = SRC+2; LOCB = SRC+3; KK = SRC+4; POS = SRC+5; KHI = SRC+6
    H = TMP+1
    def header():
        a(f'v_lshrrev_b32 v{CNT}, 16, v{H}')
        a(f'v_and_b32 v{ST}, 0xffff, v{H}')
        a(f'v_mov_b32 v{P}, v{CNT}')
        scan64(a, P)
    PFPOS = os.environ.get('PFPOS','N')
    PFF = os.environ.get('PFF','sc1')
    def pf_setup():
        a('s_lshr_b32 s61, s2, 3')
        a('s_mul_i32 s61, s61, 12')
        a('s_add_u32 s61, s61, s3                ; chunk 0..383')
    def pf_A(lo, hi, reg):
        a('s_mul_i32 s17, s13, 2560000')
        a('s_add_u32 s64, s10, s17')
        a('s_addc_u32 s65, s11, 0')
        a('s_mov_b32 s66, 2560000')
        a('s_mov_b32 s67, 0x00020000')
        a(f's_mul_i32 s62, s61, {53*128}')
        a(f's_add_u32 s62, s62, {lo*128}')
        a(f'v_lshlrev_b32 v{reg}, 7, v{LANE}')
        a(f'v_add_u32 v{reg}, s62, v{reg}')
        a(f'v_cmp_gt_u32 vcc, {hi-lo}, v{LANE}')
        a('s_mov_b64 exec, vcc')
        a(f'buffer_load_dword v{reg+1}, v{reg}, s[64:67], 0 offen {PFF}')
        a('s_mov_b64 exec, -1')
    def pf_B(reg):
        a('s_mul_i32 s17, s13, 640000')
        a(f's_add_u32 s17, s17, {WS_TB}')
        a('s_add_u32 s64, s10, s17')
        a('s_addc_u32 s65, s11, 0')
        a('s_mov_b32 s66, 640000')
        a('s_mov_b32 s67, 0x00020000')
        a(f's_mul_i32 s62, s61, {14*128}')
        a(f'v_lshlrev_b32 v{reg}, 7, v{LANE}')
        a(f'v_add_u32 v{reg}, s62, v{reg}')
        a(f'v_cmp_gt_u32 vcc, 14, v{LANE}')
        a('s_mov_b64 exec, vcc')
        a(f'buffer_load_dword v{reg+1}, v{reg}, s[64:67], 0 offen {PFF}')
        a('s_mov_b64 exec, -1')
    PR = GA+24
    npf = 0
    if PFPOS in 'ABC': pf_setup()
    if PFPOS == 'A':
        pf_A(0, 53, PR); pf_B(PR+2); npf = 2
    if PFPOS == 'C':
        pf_B(PR+2); pf_A(0, 10, PR); npf = 2
    if not FUSE:
        a(f's_waitcnt vmcnt({npf}) lgkmcnt(0)')
        a('s_barrier')
    a.stamp(1)
    if os.environ.get('BAL','0') == '1':
        header()
        a(f'v_readlane_b32 s19, v{P}, 63')
        a(f'v_lshlrev_b32 v{KK}, 2, v{LANE}')
        a('s_lshl_b32 s17, s3, 8')
        a(f's_add_u32 s17, s17, {RES0}')
        a(f'v_add_u32 v{POS}, s17, v{KK}')
        a(f'ds_write_b32 v{POS}, v{H}')
        a('s_add_u32 s19, s19, 15')
        a('s_lshr_b32 s19, s19, 4')
        a('s_lshl_b32 s19, s19, 4')
        a('s_add_u32 s19, s19, 15')
        a('s_sub_u32 s19, s19, s3')
        a('s_lshl_b32 s17, s3, 2')
        a(f's_add_u32 s17, s17, {RES0+4096}')
        a(f'v_mov_b32 v{POS}, s17')
        a(f'v_mov_b32 v{KHI}, s19')
        a(f'ds_write_b32 v{POS}, v{KHI}')
        a('s_waitcnt lgkmcnt(0)')
        a('s_barrier')
        a(f'v_add_u32 v{POS}, {RES0+4096}, v{KK}')
        a(f'ds_read_b32 v{KHI}, v{POS}')
        a(f'v_mov_b32 v{POS}, {RES0+4096}')
        for j in range(3):
            a(f'ds_read_b128 v[{GA+4*j}:{GA+4*j+3}], v{POS} offset:{16*j}')
        a(f'v_mov_b32 v{CNT}, 0                      ; rank')
        a('s_waitcnt lgkmcnt(0)')
        for j in range(12):
            a(f'v_sub_u32 v{GA+j}, v{KHI}, v{GA+j}')
        for j in range(12):
            a(f'v_lshrrev_b32 v{GA+j}, 31, v{GA+j}')
        for j in range(0, 12, 2):
            a(f'v_add3_u32 v{CNT}, v{CNT}, v{GA+j}, v{GA+j+1}')
        a('s_sub_u32 s17, 11, s3')
        a('s_cmp_lt_u32 s3, 4')
        a('s_cselect_b32 s17, s3, s17')
        a('s_sub_u32 s19, 19, s3')
        a('s_cmp_ge_u32 s3, 8')
        a('s_cselect_b32 s17, s19, s17')
        a(f'v_cmp_eq_u32 vcc, s17, v{CNT}')
        a('s_and_b32 s17, vcc_lo, 0xfff')
        a('s_ff1_i32_b32 s17, s17')
        a('s_sub_u32 s14, s14, s3')
        a('s_add_u32 s14, s14, s17                   ; g')
        a('s_mul_i32 s15, s14, 853362')
        a('s_add_u32 s16, s15, 65000')
        a('s_lshr_b32 s15, s16, 16                ; start')
        a('s_add_u32 s16, s16, 853362')
        a('s_lshr_b32 s16, s16, 16')
        a(f's_min_u32 s16, s16, {N}')
        a('s_sub_u32 s16, s16, s15                ; size')
        a('s_lshl_b32 s17, s17, 8')
        a(f's_add_u32 s17, s17, {RES0}')
        a(f'v_add_u32 v{POS}, s17, v{KK}')
        a(f'ds_read_b32 v{H}, v{POS}')
        a('s_waitcnt lgkmcnt(0)')
    header()
    a(f'v_readlane_b32 s19, v{P}, 63             ; M')
    a(f'v_sub_u32 v{P}, v{P}, v{CNT}')
    a(f'v_lshl_add_u32 v{LOCB}, v{LANE}, 12, v{ST}   ; w*4096 + start')
    if not FUSE: a.stamp(2)
    a.lab('K2_CHUNK')
    a(f'v_sub_u32 v{KK}, s52, v{P}')
    a(f'v_max_i32 v{KK}, 0, v{KK}')
    NFAST = 12
    a('s_cmp_gt_u32 s19, 256')
    a('s_cbranch_scc1 K2_FILL')
    a(f'v_lshlrev_b32 v{POS}, 2, v{P}')
    a(f'v_add_u32 v{POS}, s18, v{POS}')
    a(f'v_mov_b32 v{KHI}, v{LOCB}')
    for k in range(NFAST):
        a(f'v_cmp_lt_u32 vcc, {k}, v{CNT}')
        a('s_cbranch_vccz K2_FILL_DONE')
        a('s_mov_b64 exec, vcc')
        a(f'ds_write_b32 v{POS}, v{KHI} offset:{4*k}')
        a(f'v_add_u32 v{KHI}, 1, v{KHI}')
    a('s_mov_b64 exec, -1')
    a(f'v_mov_b32 v{KK}, {NFAST}')
    a.lab('K2_FILL')
    a(f'v_add_u32 v{POS}, v{P}, v{KK}')
    a(f'v_subrev_u32 v{POS}, s52, v{POS}')
    a(f'v_cmp_lt_u32 s[56:57], v{KK}, v{CNT}')
    a(f'v_cmp_gt_u32 vcc, 256, v{POS}')
    a('s_and_b64 vcc, vcc, s[56:57]')
    a('s_cbranch_vccz K2_FILL_DONE')
    a(f'v_lshlrev_b32 v{POS}, 2, v{POS}')
    a(f'v_add_u32 v{POS}, s18, v{POS}')
    a(f'v_add_u32 v{KHI}, v{LOCB}, v{KK}')
    a('s_mov_b64 exec, vcc')
    a(f'ds_write_b32 v{POS}, v{KHI}')
    a('s_mov_b64 exec, -1')
    a(f'v_add_u32 v{KK}, 1, v{KK}')
    a('s_branch K2_FILL')
    a.lab('K2_FILL_DONE')
    a('s_mov_b64 exec, -1')
    if not FUSE: a.stamp(3)
    a('s_sub_u32 s55, s19, s52')
    a('s_min_u32 s55, s55, 256                   ; n_c')
    a('s_add_u32 s58, s55, 31')
    a('s_lshr_b32 s58, s58, 5')
    a('s_lshl_b32 s59, s58, 5')
    a('s_add_u32 s59, s59, 32                    ; npad')
    a('s_and_b32 s54, s55, 31')
    a('s_sub_u32 s54, s54, 1')
    a('s_cmp_lt_u32 s54, 16')
    a('s_cselect_b32 s54, 1, 0')
    a('s_sub_u32 s58, s58, s54')
    RC = WF; LA = GB
    a(f'v_lshlrev_b32 v{TMP}, 2, v{LANE}')
    a(f'v_add_u32 v{TMP}, s18, v{TMP}')
    for j in range(5):
        a(f'ds_read_b32 v{LA+j}, v{TMP} offset:{256*j}')
    a(f'v_mov_b32 v{TMP+2}, 0x80000000')
    for j in range(5):
        if j >= 1:
            a(f's_cmp_le_u32 s59, {64*j}')
            a('s_cbranch_scc1 K2_REC_ISSUED')
        a(f'v_add_u32 v{TMP+1}, {64*j}, v{LANE}')
        a(f'v_cmp_gt_u32 vcc, s55, v{TMP+1}')
        a(f's_waitcnt lgkmcnt({4-j})')
        a(f'v_lshlrev_b32 v{LA+j}, 4, v{LA+j}')
        a(f'v_cndmask_b32 v{LA+j}, v{TMP+2}, v{LA+j}, vcc')
        a(f'buffer_load_dwordx4 v[{RC+4*j}:{RC+4*j+3}], v{LA+j}, s[24:27], 0 offen {SC}')
    a.lab('K2_REC_ISSUED')
    if FUSE:
        a('s_or_b32 s62, s3, s52')
        a('s_cmp_lg_u32 s62, 0')
        a('s_cbranch_scc1 K2_NOPB')
        poll_issue(AOP)
        a.lab('K2_NOPB')
        a(f'v_mbcnt_lo_u32_b32 v{LANE}, -1, 0')
        a(f'v_mbcnt_hi_u32_b32 v{LANE}, -1, v{LANE}')
    a(f'v_and_b32 v{TMP}, 3, v{LANE}')
    a(f'v_lshlrev_b32 v{TMP}, 3, v{TMP}')
    a(f'v_bfe_u32 v{TMP+1}, v{LANE}, 2, 3')
    a(f'v_or_b32 v{TMP}, v{TMP}, v{TMP+1}')
    a(f'v_and_b32 v{TMP+1}, 32, v{LANE}')
    a(f'v_or_b32 v{TMP+3}, v{TMP}, v{TMP+1}')
    a(f'v_lshlrev_b32 v{TMP}, 2, v{TMP+3}')
    a(f'v_add_u32 v{TMP}, s18, v{TMP}')
    a(f'v_lshrrev_b32 v{SRC+6}, 4, v{LANE}          ; q')
    a(f'v_lshlrev_b32 v{V_A1}, 5, v{SRC+6}            ; q*8*4')
    a(f'v_add_u32 v{V_A1}, s18, v{V_A1}')
    a(f'v_lshlrev_b32 v{V_A2}, 4, v{SRC+6}            ; q*8*2')
    a(f'v_add_u32 v{V_A2}, s18, v{V_A2}')
    a(f'v_lshrrev_b32 v{SRC+6}, 2, v{V_C}             ; rho>>2')
    a(f'v_and_b32 v{SRC+7}, 3, v{V_C}')
    a(f'v_lshl_add_u32 v{SRC+6}, v{SRC+6}, 3, v{SRC+7}   ; 8*(rho>>2)+(rho&3)')
    a(f'v_lshlrev_b32 v{V_A3}, 2, v{SRC+6}')
    a(f'v_add_u32 v{V_A3}, s18, v{V_A3}')
    npf2 = 0
    if PFPOS in 'BC':
        a('s_cmp_lg_u32 s52, 0')
        a('s_cbranch_scc1 K2_NOPF')
        if PFPOS == 'B':
            pf_A(0, 53, PR); pf_B(PR+2); npf2 = 2
        else:
            pf_A(10, 53, PR+4); npf2 = 1
        a.lab('K2_NOPF')
    a(f'v_lshlrev_b32 v{TMP+1}, 1, v{TMP+3}')
    a(f'v_add_u32 v{TMP+1}, s18, v{TMP+1}')
    if npf2:
        a('s_cmp_lg_u32 s52, 0')
        a('s_cbranch_scc1 K2_RW0')
        a(f's_waitcnt vmcnt({npf2}) lgkmcnt(0)')
        a('s_branch K2_RW1')
        a.lab('K2_RW0')
        a('s_waitcnt vmcnt(0) lgkmcnt(0)')
        a.lab('K2_RW1')
    else:
        a('s_waitcnt vmcnt(0) lgkmcnt(0)')
    a.stamp(4)
    if FUSE:
        a('s_or_b32 s62, s3, s52')
        a('s_cmp_lg_u32 s62, 0')
        a('s_cbranch_scc1 K2_PB_DONE')
        a('s_mov_b32 s61, 0x8000')
        poll_masks(AOP)
        a('s_and_b64 s[56:57], s[56:57], vcc')
        a('s_cmp_eq_u64 s[56:57], -1')
        a('s_cbranch_scc1 K2_PB_OK')
        RB = [AOP, MSGT, MSGT+4]
        poll_issue(RB[0])
        a('s_sleep 3')
        poll_issue(RB[1])
        a.lab('K2_POLLB')
        for k in range(3):
            a('s_sleep 3')
            poll_issue(RB[(k+2) % 3])
            a('s_waitcnt vmcnt(2)')
            poll_masks(RB[k])
            a('s_and_b64 s[56:57], s[56:57], vcc')
            a('s_cmp_eq_u64 s[56:57], -1')
            a('s_cbranch_scc1 K2_PB_OK0')
        a('s_sub_u32 s61, s61, 1')
        a('s_cmp_lg_u32 s61, 0')
        a('s_cbranch_scc1 K2_POLLB')
        a.lab('K2_PB_OK0')
        a('s_waitcnt vmcnt(0)')
        a.lab('K2_PB_OK')
        a(f'v_mov_b32 v{AOP}, {LBF}')
        a(f'v_mov_b32 v{AOP+1}, 1')
        a(f'ds_write_b32 v{AOP}, v{AOP+1}')
        a.lab('K2_PB_DONE')
    a(f'v_xor_b32 v{RC}, v{TMP+2}, v{RC}')
    a(f'v_add_u32 v{RC+3}, {ZROW}, v{RC+3}')
    a(f'ds_write_b32 v{TMP}, v{RC} offset:{O_SRC}')
    a(f'ds_write_b32 v{TMP}, v{RC+3} offset:{O_AOF}')
    X = os.environ.get('X','')
    def issue_row(i):
        t = T4 + (i & 1)
        a(f'v_add_u32 v{t}, v{SRC+i}, v{V_C}')
        if 'L' in X: return
        a(f'buffer_load_dwordx4 v[{gA(i,0)}:{gA(i,3)}], v{t}, s[44:47], 0 idxen {SC}')
        if not os.environ.get('NOB'): a(f'buffer_load_dword v{GB+i}, v{t}, s[48:51], 0 idxen {SC}')
    def read_src(off):
        a(f'ds_read_b128 v[{SRC}:{SRC+3}], v{V_A1} offset:{O_SRC+off}')
        a(f'ds_read_b128 v[{SRC+4}:{SRC+7}], v{V_A1} offset:{O_SRC+off+16}')
    read_src(0)
    if FUSE:
        a(f'v_mov_b32 v{AOP}, {LBF}')
        a('s_mov_b32 s61, 0x200000')
        a.lab('K2_TSPIN')
        a(f'ds_read_b32 v{AOP+1}, v{AOP}')
        a('s_waitcnt lgkmcnt(0)')
        a(f'v_readfirstlane_b32 s62, v{AOP+1}')
        a('s_cmp_lg_u32 s62, 0')
        a('s_cbranch_scc1 K2_TOK')
        a('s_sub_u32 s61, s61, 1')
        a('s_cmp_lg_u32 s61, 0')
        a('s_cbranch_scc1 K2_TSPIN')
        a.lab('K2_TOK')
        if os.environ.get('ST7') == '2': a.stamp(7)
    else:
        a('s_waitcnt lgkmcnt(0)')
    a('s_add_u32 s53, s58, s54')
    a('s_cmp_eq_u32 s53, 0')
    a('s_cbranch_scc1 K2_NOTILES')
    for i in range(4): issue_row(i)
    a(f'ds_write_b16 v{TMP+1}, v{RC+1} offset:{O_RX}')
    a(f'ds_write_b16_d16_hi v{TMP+1}, v{RC+1} offset:{O_RY}')
    a(f'ds_write_b16 v{TMP+1}, v{RC+2} offset:{O_RZ}')
    a(f'ds_write_b16_d16_hi v{TMP+1}, v{RC+2} offset:{O_OH}')
    for j in range(1, 5):
        a(f's_cmp_le_u32 s59, {64*j}')
        a('s_cbranch_scc1 K2_SOA_DONE')
        r = RC+4*j
        a(f'v_xor_b32 v{r}, v{TMP+2}, v{r}')
        a(f'v_add_u32 v{r+3}, {ZROW}, v{r+3}')
        a(f'ds_write_b32 v{TMP}, v{r} offset:{O_SRC+256*j}')
        a(f'ds_write_b32 v{TMP}, v{r+3} offset:{O_AOF+256*j}')
        a(f'ds_write_b16 v{TMP+1}, v{r+1} offset:{O_RX+128*j}')
        a(f'ds_write_b16_d16_hi v{TMP+1}, v{r+1} offset:{O_RY+128*j}')
        a(f'ds_write_b16 v{TMP+1}, v{r+2} offset:{O_RZ+128*j}')
        a(f'ds_write_b16_d16_hi v{TMP+1}, v{r+2} offset:{O_OH+128*j}')
    a.lab('K2_SOA_DONE')
    rare_id = [0]
    def load_A(ao0, ao1, tmp):
        k = rare_id[0]; rare_id[0] += 1
        a(f'v_or_b32 v{tmp}, v{ao0}, v{ao1}')
        a(f'v_cmp_gt_i32 vcc, 0, v{tmp}')
        a(f's_cbranch_vccnz K2_RARE{k}')
        a(f'v_add_u32 v{ao0}, v{ao0}, v{V_KQ8}')
        a(f'v_add_u32 v{ao1}, v{ao1}, v{V_KQ8}')
        a(f'ds_read_b64 v[{AOP}:{AOP+1}], v{ao0}')
        a(f'ds_read_b64 v[{AOP+2}:{AOP+3}], v{ao1}')
        a.lab(f'K2_RARE_BACK{k}')
        return (k, ao0, ao1)
    rares = []
    a(f'ds_read_b32 v{TMP+2}, v{V_A3} offset:{O_AOF}')
    a(f'ds_read_b32 v{TMP+3}, v{V_A3} offset:{O_AOF+16}')
    for i in range(4, 8): issue_row(i)
    a.stamp(5)
    a('s_waitcnt lgkmcnt(0)')
    rares.append(load_A(TMP+2, TMP+3, T4))
    a('s_waitcnt lgkmcnt(0)')
    def wf1(t, R, seg):
        if 'M' in X: return
        a(f'v_mfma_f32_16x16x16_bf16 v[{wf(seg,R)}:{wf(seg,R)+3}], v[{AOP+2*R}:{AOP+2*R+1}], v[{wb(seg,t)}:{wb(seg,t)+1}], 0')
    def seg1(t, ac, m, mc):
        if 'M' in X: return
        a(f'v_mfma_f32_16x16x32_bf16 v[{acc(ac,t)}:{acc(ac,t)+3}], v[{SM+4*m}:{SM+4*m+3}], v[{msg(mc)}:{msg(mc)+3}], v[{acc(ac,t)}:{acc(ac,t)+3}]')
    for seg in (1, 2, 0): wf1(0, 0, seg)
    for r in range(TMP, TMP+4): a(f'v_mov_b32 v{r}, 0')
    a.nop(4)
    if Asm.STAMPS:
        a('s_lshl_b32 s69, s3, 6')
        a(f's_add_u32 s69, s69, {K2_LDS}')
    a('s_mov_b32 s53, 0')
    a('s_cmp_eq_u32 s58, 0')
    a('s_cbranch_scc1 K2_HALF')
    a.lab('K2_TILE')
    if Asm.STAMPS:
        a('s_memrealtime s[90:91]')
        a('s_waitcnt lgkmcnt(0)')
        a(f'v_mov_b32 v{T4}, s90')
        a(f'v_mov_b32 v{T5}, s69')
        a(f'ds_write_b32 v{T5}, v{T4}')
        a('s_add_u32 s69, s69, 4')
    PRIO = os.environ.get('PRIO','1')
    if PRIO == '1':
        a('s_cmp_ge_u32 s58, 4')
        a('s_cbranch_scc1 K2_P2')
        a('s_cmp_ge_u32 s58, 2')
        a('s_cbranch_scc1 K2_P1')
        a('s_setprio 0')
        a('s_branch K2_PDONE')
        a.lab('K2_P1'); a('s_setprio 1'); a('s_branch K2_PDONE')
        a.lab('K2_P2'); a('s_setprio 2')
        a.lab('K2_PDONE')
    if PRIO == '2':
        a('s_cmp_ge_u32 s58, 4')
        a('s_cbranch_scc1 K2_P3')
        a('s_cmp_eq_u32 s58, 3')
        a('s_cbranch_scc1 K2_P2')
        a('s_cmp_eq_u32 s58, 2')
        a('s_cbranch_scc1 K2_P1')
        a('s_setprio 0')
        a('s_branch K2_PDONE')
        a.lab('K2_P1'); a('s_setprio 1'); a('s_branch K2_PDONE')
        a.lab('K2_P2'); a('s_setprio 2'); a('s_branch K2_PDONE')
        a.lab('K2_P3'); a('s_setprio 3')
        a.lab('K2_PDONE')
    if os.environ.get('SKIP','1') == '1':
        a('s_cmp_gt_u32 s58, 1')
        a('s_cselect_b32 s99, 2, s54')
    SEG = [1, 1, 1, 2, 0]
    X_, Y_, Z_, VR_, S_ = 0, 1, 2, 3, 4
    groups = []
    for c in range(5): groups.append((0, (0, c), (2, c)))
    for c in range(5): groups.append((0, (4, c), (6, c)))
    pm = [(0, 0), (0, 1), (0, 2), (0, 3), (0, 4), (2, 0), (2, 1), (2, 2), (2, 3), (2, 4)]
    for k in range(5): groups.append((1, pm[2*k], pm[2*k+1]))
    for c in range(5): groups.append((1, (4, c), (6, c)))
    def unpack(t, i, comp, u):
        s0 = gA(i, comp) if comp < 4 else GB+i
        s1 = gA(i+1, comp) if comp < 4 else GB+i+1
        if 'V' in X: return
        if t == 0:
            a(f'v_lshlrev_b32 v{u}, 16, v{s0}'); a(f'v_lshlrev_b32 v{u+1}, 16, v{s1}')
        else:
            a(f'v_and_b32 v{u}, 0xffff0000, v{s0}'); a(f'v_and_b32 v{u+1}, 0xffff0000, v{s1}')
    def pk(t, i, comp, u):
        R = i >> 2; r = i & 3; seg = SEG[comp]
        if 'V' in X: return
        a(f'v_pk_mul_f32 v[{u}:{u+1}], v[{u}:{u+1}], v[{wf(seg,R,r)}:{wf(seg,R,r+1)}]')
    def cvt(g):
        t, (i0_, c0), (i1_, c1) = groups[g]
        if 'V' in X: return
        a(f'v_cvt_pk_bf16_f32 v{msg(c0,i0_//2)}, v{TMP}, v{TMP+1}')
        a(f'v_cvt_pk_bf16_f32 v{msg(c1,i1_//2)}, v{TMP+2}, v{TMP+3}')
    def block(g, slot):
        t, (i0_, c0), (i1_, c1) = groups[g]
        if slot: slot()
        cvt((g-1) % 20)
        unpack(t, i0_, c0, TMP); unpack(t, i1_, c1, TMP+2)
        pk(t, i0_, c0, TMP); pk(t, i1_, c1, TMP+2)
    SS = {X_: (1, 0, 0), Y_: (2, 0, 1), Z_: (3, 0, 2), S_: (0, 0, 4), 'vx': (1, 1, 3), 'vy': (2, 2, 3), 'vz': (3, 3, 3)}
    def sg(t, k): return lambda: seg1(t, *SS[k])
    def wfl(t, R, seg): return lambda: wf1(t, R, seg)
    slots = {0: sg(1,'vx'), 1: sg(1,'vy'), 2: sg(1,'vz'), 3: sg(1,S_),
             4: wfl(0,1,1), 5: wfl(0,1,2), 6: wfl(0,1,0),
             7: sg(0,X_), 8: sg(0,Y_), 9: sg(0,Z_), 10: sg(0,'vx'), 11: sg(0,'vy'), 12: sg(0,'vz'), 13: sg(0,S_),
             14: wfl(1,1,1), 15: wfl(1,1,2), 16: wfl(1,1,0), 17: sg(1,X_), 18: sg(1,Y_), 19: sg(1,Z_)}
    VW = (lambda n: n//2) if os.environ.get('NOB') else (lambda n: n)
    for g in range(20):
        if g == 0: a(f's_waitcnt vmcnt({VW(8)})')
        if g == 5:
            a('s_waitcnt vmcnt(0)')
            RESPOS = int(os.environ.get('RESPOS','2'))
            a(f's_cmp_lt_u32 s53, {RESPOS}')
            a('s_cbranch_scc1 K2_RESSKIP')
            res_dma('A')
            a.lab('K2_RESSKIP')
        block(g, slots[g])
        if g == 3:
            wf1(1, 0, 1)
            a(f'ds_read_b128 v[{SM}:{SM+3}], v{V_A2} offset:{O_OH}')
            a(f'ds_read_b128 v[{SM+4}:{SM+7}], v{V_A2} offset:{O_RX}')
            a(f'ds_read_b128 v[{SM+8}:{SM+11}], v{V_A2} offset:{O_RY}')
            a(f'ds_read_b128 v[{SM+12}:{SM+15}], v{V_A2} offset:{O_RZ}')
            read_src(128)
        if g == 6:
            a('s_waitcnt lgkmcnt(2)')
            wf1(1, 0, 2)
            for j in range(4): a(f'v_pk_lshlrev_b16 v{SM+j}, v{V_SHL}, v{SM+j}')
            for j in range(4): a(f'v_pk_ashrrev_i16 v{SM+j}, 15, v{SM+j} op_sel_hi:[0,1]')
            wf1(1, 0, 0)
            for m in (1, 2, 3):
                for j in range(4): a(f'v_and_b32 v{SM+4*m+j}, v{SM+j}, v{SM+4*m+j}')
            for j in range(4): a(f'v_and_b32 v{SM+j}, 0x3f803f80, v{SM+j}')
            a(f'v_add_u32 v{V_A1}, 128, v{V_A1}')
            a(f'v_add_u32 v{V_A2}, 64, v{V_A2}')
        if g == 9: a('s_waitcnt lgkmcnt(0)')
        def guarded(rows, need, tag):
            if os.environ.get('SKIP','1') == '1':
                a(f's_cmp_lt_u32 s99, {need}')
                a(f's_cbranch_scc1 K2_SK{tag}')
            for r_ in rows: issue_row(r_)
            if os.environ.get('SKIP','1') == '1':
                a.lab(f'K2_SK{tag}')
        if g == 12:
            guarded((0, 1), 1, 'a')
            a(f'ds_read_b32 v{SRC}, v{V_A3} offset:{O_AOF+128}')
            a(f'ds_read_b32 v{SRC+1}, v{V_A3} offset:{O_AOF+128+16}')
        if g == 14:
            guarded((2, 3), 1, 'b')
        if g == 16:
            a('s_waitcnt lgkmcnt(0)')
            rares.append(load_A(SRC, SRC+1, T4))
        if g == 19:
            guarded((4,), 2, 'c')
            a('s_waitcnt lgkmcnt(0)')
            wf1(0, 0, 1)
            guarded((5,), 2, 'd')
            wf1(0, 0, 2)
            guarded((6,), 2, 'e')
            wf1(0, 0, 0)
            guarded((7,), 2, 'f')
    a(f'v_add_u32 v{V_A3}, 128, v{V_A3}')
    a('s_add_u32 s53, s53, 1')
    a('s_sub_u32 s58, s58, 1')
    a('s_cmp_lg_u32 s58, 0')
    a('s_cbranch_scc1 K2_TILE')
    a('s_cmp_eq_u32 s54, 0')
    a('s_cbranch_scc1 K2_FLUSH')
    a.lab('K2_HALF')
    a('s_setprio 0')
    hslots = {0: sg(1,'vx'), 1: sg(1,'vy'), 2: sg(1,'vz'), 3: sg(1,S_), 4: None}
    for g in range(5):
        if g == 0: a('s_waitcnt vmcnt(0)')
        block(g, hslots[g])
        if g == 3:
            wf1(1, 0, 1)
            a(f'ds_read_b128 v[{SM}:{SM+3}], v{V_A2} offset:{O_OH}')
            a(f'ds_read_b128 v[{SM+4}:{SM+7}], v{V_A2} offset:{O_RX}')
            a(f'ds_read_b128 v[{SM+8}:{SM+11}], v{V_A2} offset:{O_RY}')
            a(f'ds_read_b128 v[{SM+12}:{SM+15}], v{V_A2} offset:{O_RZ}')
    cvt(4)
    for c in range(5):
        a(f'v_mov_b32 v{msg(c,2)}, 0'); a(f'v_mov_b32 v{msg(c,3)}, 0')
    a('s_waitcnt lgkmcnt(0)')
    wf1(1, 0, 2)
    for j in range(4): a(f'v_pk_lshlrev_b16 v{SM+j}, v{V_SHL}, v{SM+j}')
    for j in range(4): a(f'v_pk_ashrrev_i16 v{SM+j}, 15, v{SM+j} op_sel_hi:[0,1]')
    wf1(1, 0, 0)
    for m in (1, 2, 3):
        for j in range(4): a(f'v_and_b32 v{SM+4*m+j}, v{SM+j}, v{SM+4*m+j}')
    for j in range(4): a(f'v_and_b32 v{SM+j}, 0x3f803f80, v{SM+j}')
    a('s_nop 1')
    seg1(0, *SS[X_]); seg1(0, *SS[Y_]); seg1(0, *SS[Z_])
    def block_nocvt(g, slot):
        t, (i0_, c0), (i1_, c1) = groups[g]
        if slot: slot()
        unpack(t, i0_, c0, TMP); unpack(t, i1_, c1, TMP+2)
        pk(t, i0_, c0, TMP); pk(t, i1_, c1, TMP+2)
    block_nocvt(10, sg(0,'vx'))
    seg1(0, *SS['vy'])
    block(11, sg(0,'vz'))
    block(12, sg(0,S_))
    block(13, None)
    block(14, None)
    cvt(14)
    a('s_nop 1')
    for k in (X_, Y_, Z_, 'vx', 'vy', 'vz', S_): seg1(1, *SS[k])
    a('s_waitcnt vmcnt(0) lgkmcnt(0)')
    a('s_branch K2_TILES_DONE')
    a.lab('K2_FLUSH')
    cvt(19)
    for k in ('vx', 'vy', 'vz'): seg1(1, *SS[k])
    seg1(1, *SS[S_])
    a('s_waitcnt vmcnt(0) lgkmcnt(0)')
    a('s_branch K2_TILES_DONE')
    a.lab('K2_NOTILES')
    a.lab('K2_TILES_DONE')
    a.stamp(6)
    a('s_add_u32 s52, s52, 256')
    a('s_cmp_ge_u32 s52, s19')
    a('s_cbranch_scc1 K2_EPI')
    for r in range(SM, SM+16): a(f'v_mov_b32 v{r}, 0')
    a(f'v_mbcnt_lo_u32_b32 v{LANE}, -1, 0')
    a(f'v_mbcnt_hi_u32_b32 v{LANE}, -1, v{LANE}')
    a(f'v_mul_u32_u24 v{TMP}, {NG*4}, v{LANE}')
    a('s_lshl_b32 s17, s14, 2')
    a(f'buffer_load_dword v{TMP+1}, v{TMP}, s[20:23], s17 offen {SC}')
    a('s_waitcnt vmcnt(0)')
    header()
    a(f'v_sub_u32 v{P}, v{P}, v{CNT}')
    a(f'v_lshl_add_u32 v{LOCB}, v{LANE}, 12, v{ST}')
    a('s_branch K2_CHUNK')
    for (k, ao0, ao1) in rares:
        a.lab(f'K2_RARE{k}')
        a(f'v_max_i32 v{T4}, 0, v{ao0}')
        a(f'v_max_i32 v{T5}, 0, v{ao1}')
        a(f'v_add_u32 v{T4}, v{T4}, v{V_KQ8}')
        a(f'v_add_u32 v{T5}, v{T5}, v{V_KQ8}')
        a(f'ds_read_b64 v[{AOP}:{AOP+1}], v{T4}')
        a(f'ds_read_b64 v[{AOP+2}:{AOP+3}], v{T5}')
        a('s_waitcnt lgkmcnt(0)')
        for h, ao in ((0, ao0), (1, ao1)):
            a(f'v_cmp_gt_i32 vcc, 0, v{ao}')
            a(f'v_add_u32 v{T4}, {HOT0*32}, v{ao}')
            a(f'v_add_u32 v{T4}, v{T4}, v{V_KQ8}')
            a('s_and_saveexec_b64 s[62:63], vcc')
            a(f's_cbranch_execz K2_RSK{k}_{h}')
            a(f'buffer_load_dwordx2 v[{AOP+2*h}:{AOP+2*h+1}], v{T4}, s[28:31], 0 offen {SC}')
            a('s_waitcnt vmcnt(0)')
            a.lab(f'K2_RSK{k}_{h}')
            a('s_mov_b64 exec, s[62:63]')
        a(f's_branch K2_RARE_BACK{k}')
    a.lab('K2_EPI')
    res_dma('B')
    a('s_waitcnt vmcnt(0)')
    LN = T4
    a(f'v_mbcnt_lo_u32_b32 v{LN}, -1, 0')
    a(f'v_mbcnt_hi_u32_b32 v{LN}, -1, v{LN}')
    a('s_lshl_b32 s62, s3, 12')
    a(f's_add_u32 s62, s62, {RES0}')
    a(f'v_lshrrev_b32 v{T5}, 4, v{LN}')
    a(f'v_lshlrev_b32 v{T5}, 10, v{T5}')
    a(f'v_lshl_add_u32 v{T5}, v{V_C}, 2, v{T5}')
    a(f'v_add_u32 v{T5}, s62, v{T5}')
    for r in range(4):
        for comp in range(4):
            a(f'ds_read_b32 v{GA+r*4+comp}, v{T5} offset:{r*256+comp*64}')
    a('s_waitcnt lgkmcnt(0)')
    for r in range(4):
        for comp in range(4):
            x = GA+r*4+comp
            a(f'v_lshlrev_b32 v{TMP}, 16, v{x}')
            a(f'v_and_b32 v{TMP+1}, 0xffff0000, v{x}')
            a(f'v_add_f32 v{TMP}, v{TMP}, v{acc(comp,0)+r}')
            a(f'v_add_f32 v{TMP+1}, v{TMP+1}, v{acc(comp,1)+r}')
            a(f'v_cvt_pk_bf16_f32 v{x}, v{TMP}, v{TMP+1}')
            a(f'ds_write_b32 v{T5}, v{x} offset:{r*256+comp*64}')
    a(f'v_lshlrev_b32 v{TMP}, 4, v{LN}')
    a(f'v_add_u32 v{TMP}, s62, v{TMP}')
    for j in range(4):
        a(f'ds_read_b128 v[{MSG+4*j}:{MSG+4*j+3}], v{TMP} offset:{1024*j}')
    a(f'v_lshrrev_b32 v{T5}, 4, v{LN}')
    a(f'v_lshlrev_b32 v{TMP+1}, 10, v{T5}')
    a(f'v_bfe_u32 v{TMP+2}, v{LN}, 2, 2')
    a(f'v_lshl_add_u32 v{TMP+1}, v{TMP+2}, 8, v{TMP+1}')
    a(f'v_and_b32 v{TMP+2}, 3, v{LN}')
    a(f'v_lshl_add_u32 v{TMP+1}, v{TMP+2}, 4, v{TMP+1}')
    a('s_lshl_b32 s61, s15, 10')
    a('s_lshl_b32 s62, s13, 6')
    a('s_add_u32 s61, s61, s62')
    a(f'v_mov_b32 v{TMP+2}, 0x80000000')
    for j in range(4):
        a(f'v_add_u32 v{TMP+3}, {4*j}, v{T5}')
        a(f'v_cmp_gt_u32 vcc, s16, v{TMP+3}')
        a('s_nop 1')
        a(f'v_cndmask_b32 v{WF+j}, v{TMP+2}, v{TMP+1}, vcc')
    for j in range(4):
        a(f's_waitcnt lgkmcnt({3-j})')
        a(f'buffer_store_dwordx4 v[{MSG+4*j}:{MSG+4*j+3}], v{WF+j}, s[36:39], s61 offen {OUTST}')
        a('s_add_u32 s61, s61, 4096')
    if not os.environ.get('ST7'): a.stamp(7)
    if Asm.STAMPS and not os.environ.get('ST7'):
        a('s_memtime s[86:87]')
        a('s_waitcnt lgkmcnt(0)')
        a('s_sub_u32 s84, s86, s88')
    if Asm.STAMPS:
        a('s_lshl_b32 s68, s3, 6')
        a(f's_add_u32 s68, s68, {K2_LDS}')
        a(f'v_lshlrev_b32 v2, 2, v{LN}')
        a('v_add_u32 v3, s68, v2')
        a('ds_read_b32 v4, v3')
        a('s_add_u32 s64, s10, 0x1A00000')
        a('s_addc_u32 s65, s11, 0')
        a('s_mov_b32 s66, 0x100000')
        a('s_mov_b32 s67, 0x00020000')
        a('s_lshl_b32 s68, s2, 4')
        a('s_add_u32 s68, s68, s3')
        a('s_lshl_b32 s68, s68, 6')
        a('s_waitcnt lgkmcnt(0)')
        a('s_mov_b64 exec, 0xffff')
        a('buffer_store_dword v4, v2, s[64:67], s68 offen')
        a('s_mov_b64 exec, -1')
    if Asm.STAMPS and FUSE:
        a('s_lshl_b32 s68, s3, 5')
        a('s_add_u32 s68, s68, 155712')
        a(f'v_mbcnt_lo_u32_b32 v2, -1, 0')
        a(f'v_mbcnt_hi_u32_b32 v2, -1, v2')
        a('v_lshlrev_b32 v2, 2, v2')
        a('v_add_u32 v3, s68, v2')
        a('ds_read_b32 v4, v3')
        a('s_add_u32 s64, s10, 0x1800000')
        a('s_addc_u32 s65, s11, 0')
        a('s_mov_b32 s66, 0x100000')
        a('s_mov_b32 s67, 0x00020000')
        a('s_lshl_b32 s68, s2, 4')
        a('s_add_u32 s68, s68, s3')
        a('s_lshl_b32 s68, s68, 6')
        a('s_waitcnt lgkmcnt(0)')
        a('s_mov_b64 exec, 0xff')
        a('buffer_store_dword v4, v2, s[64:67], s68 offen')
        a('s_mov_b64 exec, -1')
    a.stamp_flush(1, 10, 8, 3)
    a.lab('K2_END')
    a('s_endpgm')
```

```python
from asmlib import *
import os
STT = os.environ.get('STT','sc1')
STO = os.environ.get('STO','sc1')
LDN = os.environ.get('LDN','')

N = 10000; E = 160000
NBIN = 47; CHUNK = 3405; NG = 768
WS_TA = 0; WS_TB = 10240000; WS_ATAB = 0xC80000; WS_WB = 0xC90000; WS_HDR = 0xCA0000; WS_TAILS = 0xD00000
HOT0 = 1472; NHOT_KB = 17; ZROW = 17408
WS_FLAGS = 0xCF0000
FUSE = os.environ.get('FUSE','1') == '1'
KNAME = 'gather_scatter__molecular_angular_painn__graph_kernel'
COMP = bool(os.environ.get('COMP'))
DBASE = 0x38C0; DTHR = 0x409D
K1_LDS = 155712
S_BASE = 131072; HS_OFF = 12288

def srd(a, s, base, nbytes, off=0, stride=0):
    if off:
        a(f's_add_u32 s{s}, s{base}, 0x{off:x}')
        a(f's_addc_u32 s{s+1}, s{base+1}, 0')
    else:
        a(f's_mov_b32 s{s}, s{base}')
        a(f's_mov_b32 s{s+1}, s{base+1}')
    if stride:
        a(f's_or_b32 s{s+1}, s{s+1}, 0x{stride<<16:x}')
    a(f's_mov_b32 s{s+2}, {nbytes}')
    a(f's_mov_b32 s{s+3}, 0x00020000')

def gen_mlp(a):
    a.lab('K1_MLP')
    wave_ids(a)
    FLAG = 155648
    a('v_lshrrev_b32 v3, 4, v2          ; L>>4')
    a('v_and_b32 v4, 15, v2             ; L&15')
    a('v_mov_b32 v5, 0')
    a(f'v_mov_b32 v6, {FLAG}')
    a('ds_write_b32 v6, v5')
    a('s_and_b32 s26, s3, 1')
    a('s_lshl_b32 s26, s26, 2           ; 4*(wv&1)')
    a('v_add_u32 v6, s26, v3            ; kl7')
    a('v_lshrrev_b32 v7, 1, v4          ; p>>1')
    a('v_xor_b32 v7, v7, v6')
    a('v_and_b32 v8, 1, v4')
    a('v_lshl_or_b32 v7, v7, 1, v8      ; lchunk')
    a('v_lshlrev_b32 v7, 4, v7          ; *16')
    a('v_lshl_add_u32 v6, v3, 8, v7')
    a('v_mul_u32_u24 v8, 768, v3')
    a('v_add_u32 v7, v8, v7             ; vW2')
    a('s_sub_u32 s24, s91, 47')
    a('s_mul_i32 s24, s24, 48          ; node0')
    a('s_lshr_b32 s22, s3, 2           ; nt')
    a('s_and_b32 s23, s3, 3            ; sl')
    a('s_mov_b32 s30, 10240000')
    a('s_mov_b32 s31, 0x00020000')
    a('s_mov_b32 s34, 32768')
    a('s_mov_b32 s35, 0x00020000')
    a('s_mov_b32 s38, 98304')
    a('s_mov_b32 s39, 0x00020000')
    a('s_waitcnt lgkmcnt(0)')
    a.stamp(0)
    a('s_mov_b32 s28, s4')
    a('s_mov_b32 s29, s5')
    a('s_mov_b32 s32, s14')
    a('s_mov_b32 s33, s15')
    a('s_mov_b32 s36, s16')
    a('s_mov_b32 s37, s17')
    a('s_barrier')
    a('s_cmp_ge_u32 s3, 8')
    a('s_cbranch_scc1 K1_LOADER')
    a('s_lshl_b32 s25, s3, 2')
    a('v_add_u32 v5, s25, v3')
    a('v_and_b32 v9, 15, v5')
    a('v_xor_b32 v9, v4, v9             ; lchunk')
    a('v_add_u32 v5, s24, v5            ; node')
    a('v_lshlrev_b32 v5, 10, v5')
    a('v_lshl_add_u32 v5, v9, 4, v5')
    a('s_lshl_b32 s25, s3, 10')
    a(f's_add_u32 s25, s25, {S_BASE}')
    a('s_mov_b32 m0, s25')
    a('s_cmp_ge_u32 s3, 4')
    a(f'buffer_load_dwordx4 v5, s[28:31], 0 offen {LDN} lds')
    a('s_cbranch_scc1 K1_S2SKIP')
    a('s_add_u32 s25, s25, 8192')
    a('s_mov_b32 m0, s25')
    a('v_add_u32 v5, 0x8000, v5')
    a(f'buffer_load_dwordx4 v5, s[28:31], 0 offen {LDN} lds')
    a.lab('K1_S2SKIP')
    for j in range(4):
        a(f's_add_u32 s25, s3, {8*j}')
        a('s_lshl_b32 s26, s25, 10')
        a('s_mov_b32 m0, s26')
        a('s_nop 0')
        a('buffer_load_dwordx4 v6, s[32:35], s26 offen lds')
    a('s_branch K1_ADDR')
    a.lab('K1_LOADER')
    a('s_sub_u32 s49, s3, 8')
    for m in range(1, 4):
        for j in range(8):
            a(f's_add_u32 s25, s49, {4*j}')
            a('s_lshl_b32 s26, s25, 10')
            a(f's_add_u32 s26, s26, {m*32768}')
            a('s_mov_b32 m0, s26')
            a('s_mul_i32 s27, s25, 3072')
            a(f's_add_u32 s27, s27, {(m-1)*256}')
            a('buffer_load_dwordx4 v7, s[36:39], s27 offen lds')
    a.lab('K1_ADDR')
    cpf(a, 'M')
    a('s_mul_i32 s25, s23, 2560000')
    a('s_add_u32 s40, s20, s25')
    a('s_addc_u32 s41, s21, 0')
    a('s_mov_b32 s42, 2560000')
    a('s_mov_b32 s43, 0x00020000')
    a('s_mul_i32 s25, s23, 640000')
    a(f's_add_u32 s25, s25, {WS_TB}')
    a('s_add_u32 s44, s20, s25')
    a('s_addc_u32 s45, s21, 0')
    a('s_mov_b32 s46, 640000')
    a('s_mov_b32 s47, 0x00020000')
    if FUSE: dbg_srd(a)
    a('s_lshl_b32 s25, s22, 4')
    a('s_add_u32 s25, s25, s24           ; node0+16nt')
    a('s_mov_b32 s48, s25')
    a('v_add_u32 v8, s25, v4')
    a('v_lshlrev_b32 v8, 10, v8')
    a('v_lshl_add_u32 v8, v3, 3, v8')
    a('s_lshl_b32 s26, s23, 6')
    a('s_add_u32 s26, s26, 256')
    a('v_add_u32 v8, s26, v8')
    VV = 10
    def vloads():
        for j in range(3):
            for hf in range(2):
                r = VV + (j*2+hf)*2
                a(f'buffer_load_dwordx2 v[{r}:{r+1}], v8, s[28:31], 0 offen offset:{j*256+32*hf} {LDN}')
    a('v_lshrrev_b32 v22, 2, v4           ; r\'')
    a('v_lshl_add_u32 v22, v3, 2, v22     ; 4kq + r\'')
    a('v_and_b32 v23, 7, v22              ; kl7')
    a('v_lshlrev_b32 v22, 8, v22')
    a('v_lshl_add_u32 v22, v23, 5, v22')
    a('v_and_b32 v23, 3, v4')
    a('v_lshl_add_u32 v22, v23, 3, v22    ; aBase')
    a('s_lshl_b32 s25, s23, 6             ; 2*sl*32')
    a('v_xor_b32 v24, s25, v22')
    a('v_xor_b32 v25, 32, v24             ; aW[hf=1]')
    a('v_add_u32 v26, 0x10000, v24        ; aW2[0] (+65536)')
    a('v_add_u32 v27, 0x10000, v25        ; aW2[1]')
    a('v_lshrrev_b32 v23, 1, v3')
    a('v_xor_b32 v23, v23, v4')
    a('v_lshlrev_b32 v23, 4, v23')
    a('v_and_b32 v28, 1, v3')
    a('v_lshl_add_u32 v23, v28, 3, v23')
    a('v_lshl_add_u32 v23, v4, 8, v23')
    a(f'v_add_u32 v23, {S_BASE}, v23      ; bBase0')
    VB = 28
    for st in range(4):
        for rd in range(2):
            k = (4*st + 2*rd)*16
            r = VB + st*2 + rd
            if k == 0: a(f'v_mov_b32 v{r}, v23')
            else: a(f'v_xor_b32 v{r}, {k}, v23')
    a('v_mov_b32 v38, 0xffff0000')
    a('s_cmp_ge_u32 s3, 8')
    a('s_cbranch_scc1 K1_LOADER2')
    a('s_lshl_b32 s25, s3, 5')
    a('v_xor_b32 v36, s25, v22')
    a('v_xor_b32 v37, s25, v23')
    a.stamp(1)
    a('s_waitcnt vmcnt(0)')
    a(f'v_mov_b32 v39, {FLAG}')
    a('v_mov_b32 v9, 1')
    a('s_mov_b64 exec, 1')
    a('ds_add_u32 v39, v9')
    a('s_mov_b64 exec, -1')
    a.lab('K1_SPIN')
    a('ds_read_b32 v9, v39')
    a('s_waitcnt lgkmcnt(0)')
    a('v_readfirstlane_b32 s25, v9')
    a('s_cmp_lt_u32 s25, 8')
    a('s_cbranch_scc1 K1_SPIN')
    a.stamp(2)
    AF = 56
    BL = 72
    D1 = 40
    for st in range(4):
        for rd in range(2):
            r = AF + st*4 + rd*2
            a(f'ds_read_b64_tr_b16 v[{r}:{r+1}], v36 offset:{st*8192+rd*4096}')
    for nt in range(3):
        for st in range(4):
            for rd in range(2):
                r = BL + nt*16 + st*4 + rd*2
                a(f'ds_read_b64 v[{r}:{r+1}], v{VB+st*2+rd} offset:{nt*4096}')
    vloads()
    for r in range(D1, D1+12): a(f'v_mov_b32 v{r}, 0')
    a('s_waitcnt lgkmcnt(0)')
    for st in range(4):
        for nt in range(3):
            A_ = AF + st*4; B_ = BL + nt*16 + st*4; D_ = D1 + nt*4
            a(f'v_mfma_f32_16x16x32_bf16 v[{D_}:{D_+3}], v[{A_}:{A_+3}], v[{B_}:{B_+3}], v[{D_}:{D_+3}]')
    a.nop(8)
    a.stamp(3)
    T = 56
    for p in range(6):
        a(f'v_cvt_pk_bf16_f32 v{T+p}, v{D1+2*p}, v{D1+2*p+1}')
    for p in range(6):
        a(f'v_lshlrev_b32 v{D1+2*p}, 16, v{T+p}')
        a(f'v_and_b32 v{D1+2*p+1}, v38, v{T+p}')
    for i in range(12):
        a(f'v_mul_f32 v{T+i}, 0xbfb8aa3b, v{D1+i}     ; -log2e*h')
    for i in range(12):
        a(f'v_exp_f32 v{T+i}, v{T+i}')
    a('s_nop 0')
    for i in range(12):
        a(f'v_add_f32 v{T+i}, 1.0, v{T+i}')
    for i in range(12):
        a(f'v_rcp_f32 v{T+i}, v{T+i}')
    a('s_nop 0')
    for i in range(12):
        a(f'v_mul_f32 v{T+i}, v{D1+i}, v{T+i}')
    for p in range(6):
        a(f'v_cvt_pk_bf16_f32 v{D1+p}, v{T+2*p}, v{T+2*p+1}')
    for nt in range(3):
        a(f'ds_write_b64 v37, v[{D1+2*nt}:{D1+2*nt+1}] offset:{HS_OFF+nt*4096}')
    a('s_waitcnt lgkmcnt(0)')
    a('s_branch K1_B2')
    a.lab('K1_LOADER2')
    vloads()
    a.stamp(1); a.stamp(2); a.stamp(3)
    a('s_waitcnt vmcnt(6)')
    a.lab('K1_B2')
    a('s_lshl_b32 s25, s22, 12')
    for r in range(VB, VB+8): a(f'v_add_u32 v{r}, s25, v{r}')
    a('s_barrier')
    a.stamp(4)
    BS = 40; AF = 56
    nonce_load(a, 'M')
    for st in range(4):
        for rd in range(2):
            r = BS + st*4 + rd*2
            a(f'ds_read_b64 v[{r}:{r+1}], v{VB+st*2+rd} offset:{HS_OFF}')
    D2 = 96
    bufs = [AF, AF+16, 120]
    def issueA(seg, hf, bi):
        buf = bufs[bi]
        if seg == 0: areg = 24+hf; base = 32768
        else: areg = 26+hf; base = (seg-1)*32768
        for st in range(4):
            for rd in range(2):
                r = buf + st*4 + rd*2
                a(f'ds_read_b64_tr_b16 v[{r}:{r+1}], v{areg} offset:{base+st*8192+rd*4096}')
    a('s_lshl_b32 s25, s3, 11')
    a('v_and_b32 v9, 7, v4')
    a('v_lshlrev_b32 v28, 1, v3           ; 2q')
    a('v_xor_b32 v28, v28, v9')
    a('v_lshlrev_b32 v28, 4, v28')
    a('v_lshl_add_u32 v28, v4, 7, v28')
    a('v_add_u32 v28, s25, v28            ; chunk 2q')
    a('v_xor_b32 v29, 16, v28             ; chunk 2q+1')
    a('v_lshrrev_b32 v30, 3, v2           ; L>>3')
    a('v_and_b32 v31, 7, v2               ; p')
    a('v_xor_b32 v33, v31, v30            ; p ^ (node&7)')
    a('v_lshlrev_b32 v33, 4, v33')
    a('v_lshl_add_u32 v33, v30, 7, v33')
    a('v_add_u32 v33, s25, v33')
    a('s_lshl_b32 s26, s48, 8')
    a('v_lshlrev_b32 v34, 8, v30')
    a('v_lshl_add_u32 v34, v31, 4, v34')
    a('v_add_u32 v34, s26, v34')
    a('s_lshl_b32 s25, s3, 10')
    a(f's_add_u32 s25, s25, {S_BASE}')
    a('v_lshlrev_b32 v32, 6, v4')
    a('v_lshl_add_u32 v32, v3, 3, v32')
    a('v_add_u32 v32, s25, v32')
    a('v_lshlrev_b32 v39, 4, v2           ; L*16')
    a('v_add_u32 v37, s25, v39')
    a('s_lshl_b32 s27, s48, 6')
    a('v_add_u32 v39, s27, v39')
    O1 = 80; O2 = 84; OB = 88; PV = 90; TT = 108; R0 = 64
    issueA(0, 0, 0)
    a('s_waitcnt lgkmcnt(8)')
    for hf in range(2):
        for r in range(D2, D2+12): a(f'v_mov_b32 v{r}, 0')
        for seg in range(3):
            bi = (hf*3+seg) % 3
            nxt = hf*3+seg+1
            if nxt < 6:
                a('s_waitcnt lgkmcnt(7)')
                issueA(nxt % 3, nxt // 3, nxt % 3)
                a('s_waitcnt lgkmcnt(8)')
            else:
                a('s_waitcnt lgkmcnt(0)')
            D_ = D2 + seg*4
            buf = bufs[bi]
            for st in range(4):
                a(f'v_mfma_f32_16x16x32_bf16 v[{D_}:{D_+3}], v[{buf+st*4}:{buf+st*4+3}], v[{BS+st*4}:{BS+st*4+3}], v[{D_}:{D_+3}]')
        if hf == 0: a('s_waitcnt vmcnt(0)')
        a.nop(8)
        Ds = D2; Dv = D2+4; Dr = D2+8
        a(f'v_cvt_pk_bf16_f32 v{OB}, v{Ds}, v{Ds+1}')
        a(f'v_cvt_pk_bf16_f32 v{OB+1}, v{Ds+2}, v{Ds+3}')
        a(f'v_cvt_pk_bf16_f32 v{O1+3}, v{Dr}, v{Dr+1}')
        a(f'v_cvt_pk_bf16_f32 v{O2+3}, v{Dr+2}, v{Dr+3}')
        a(f'v_cvt_pk_bf16_f32 v{TT}, v{Dv}, v{Dv+1}')
        a(f'v_cvt_pk_bf16_f32 v{TT+1}, v{Dv+2}, v{Dv+3}')
        a(f'v_lshlrev_b32 v{PV}, 16, v{TT}')
        a(f'v_and_b32 v{PV+1}, v38, v{TT}')
        a(f'v_lshlrev_b32 v{PV+2}, 16, v{TT+1}')
        a(f'v_and_b32 v{PV+3}, v38, v{TT+1}')
        for j in range(3):
            r = VV + (j*2+hf)*2
            t = TT
            a(f'v_lshlrev_b32 v{t}, 16, v{r}')
            a(f'v_and_b32 v{t+1}, v38, v{r}')
            a(f'v_lshlrev_b32 v{t+2}, 16, v{r+1}')
            a(f'v_and_b32 v{t+3}, v38, v{r+1}')
            a(f'v_pk_mul_f32 v[{t}:{t+1}], v[{t}:{t+1}], v[{PV}:{PV+1}]')
            a(f'v_pk_mul_f32 v[{t+2}:{t+3}], v[{t+2}:{t+3}], v[{PV+2}:{PV+3}]')
            a(f'v_cvt_pk_bf16_f32 v{O1+j}, v{t}, v{t+1}')
            a(f'v_cvt_pk_bf16_f32 v{O2+j}, v{t+2}, v{t+3}')
        a(f'ds_write_b128 v28, v[{O1}:{O1+3}]')
        a(f'ds_write_b128 v29, v[{O2}:{O2+3}]')
        a(f'ds_write_b64 v32, v[{OB}:{OB+1}] offset:{32*hf}')
        RR = R0 if hf == 0 else 40 + 0
        RR = 108 + 4 if hf == 0 else 40
        a(f'ds_read_b128 v[{RR}:{RR+3}], v33')
        a(f'ds_read_b128 v[{RR+4}:{RR+7}], v33 offset:1024')
        if hf == 1:
            a(f'ds_read_b128 v[{RR+8}:{RR+11}], v37')
        if hf == 0:
            a.stamp(5)
        a(f's_waitcnt lgkmcnt({1 if hf == 0 else 2})')
        a(f'buffer_store_dwordx4 v[{RR}:{RR+3}], v34, s[40:43], 0 offen offset:{128*hf} {STT}')
        a(f's_waitcnt lgkmcnt({0 if hf == 0 else 1})')
        a(f'buffer_store_dwordx4 v[{RR+4}:{RR+7}], v34, s[40:43], 0 offen offset:{2048+128*hf} {STT}')
        if hf == 1:
            a('s_waitcnt lgkmcnt(0)')
            a(f'buffer_store_dwordx4 v[{RR+8}:{RR+11}], v39, s[44:47], 0 offen {STT}')
    a.stamp(6)
    role_end(a, True)

def nonce_load(a, tag):
    if FUSE:
        a('s_cmp_lg_u32 s3, 0')
        a(f's_cbranch_scc1 K1_NL{tag}')
        a('v_mov_b32 v165, 0')
        a('buffer_load_dword v166, v165, s[92:95], 0 offen sc1')
        a.lab(f'K1_NL{tag}')

def get_nonce(a, tag):
    a('s_mov_b32 s68, 0x10000')
    a.lab(f'K1_NLOOP{tag}')
    a('v_readfirstlane_b32 s100, v166')
    a('s_cmp_lg_u32 s100, 0')
    a(f's_cbranch_scc1 K1_NOK{tag}')
    a('v_mov_b32 v165, 0')
    a('buffer_load_dword v166, v165, s[92:95], 0 offen sc1')
    a('s_waitcnt vmcnt(0)')
    a('s_sub_u32 s68, s68, 1')
    a('s_cmp_lg_u32 s68, 0')
    a(f's_cbranch_scc1 K1_NLOOP{tag}')
    a.lab(f'K1_NOK{tag}')

def publish(a, off):
    a(f's_add_u32 s64, s20, 0x{WS_FLAGS:x}')
    a('s_addc_u32 s65, s21, 0')
    a('s_mov_b32 s66, 16384')
    a('s_mov_b32 s67, 0x00020000')
    a('v_mbcnt_lo_u32_b32 v164, -1, 0')
    a('v_mbcnt_hi_u32_b32 v164, -1, v164')
    a('v_lshlrev_b32 v164, 11, v164           ; replica*2048')
    a('s_lshl_b32 s68, s91, 2')
    a(f's_add_u32 s68, s68, {off}')
    a('v_mov_b32 v163, s100')
    a('s_mov_b64 exec, 0xff')
    a('buffer_store_dword v163, v164, s[64:67], s68 offen sc1')
    a('s_mov_b64 exec, -1')

def role_end(a, mlp=False):
    if FUSE and mlp:
        a('s_mov_b32 s101, 1')
        a('s_waitcnt lgkmcnt(0)')
        a('s_barrier')
        if Asm.STAMPS:
            a('s_memrealtime s[84:85]')
            a('s_waitcnt lgkmcnt(0)')
            a('s_lshl_b32 s68, s3, 5')
            a('s_add_u32 s68, s68, 155712')
            a('v_mov_b32 v1, s68')
            for i in range(8):
                a(f'v_mov_b32 v2, s{70+2*i}')
                a(f'ds_write_b32 v1, v2 offset:{4*i}')
        a('s_cmp_lg_u32 s3, 0')
        a('s_cbranch_scc1 K2_START')
        a('s_waitcnt vmcnt(5)')
        get_nonce(a, 'M')
    elif FUSE:
        a('s_mov_b32 s101, 0')
        a('s_branch K1_DONE')
    else:
        a.stamp_flush(0, 20, 7, 3)
        a('s_endpgm')

def bf16_round_pair(a, dst, x, y):
    a(f'v_cvt_pk_bf16_f32 v{dst}, v{x}, v{y}')

def gen_bin(a):
    a.lab('K1_BIN')
    wave_ids(a)
    a('s_waitcnt lgkmcnt(0)')
    a.stamp(0)
    srd(a, 28, 8, E*4)
    srd(a, 32, 10, E*4)
    srd(a, 36, 6, N*6)
    srd(a, 40, 20, NBIN*NG*4, off=WS_HDR)
    srd(a, 44, 20, NBIN*65536, off=WS_TAILS)
    a(f's_mul_i32 s24, s91, {CHUNK}           ; e0')
    a(f's_sub_u32 s25, {E}, s24')
    a(f's_min_u32 s25, s25, {CHUNK}          ; lim')
    a('v_lshlrev_b32 v1, 2, v0')
    a('v_mov_b32 v3, 0')
    a('ds_write_b32 v1, v3')
    SRC = 10; DST = 15; PS = 20; PD = 30; REC = 40; GG = 60; RK = 65
    POSL = 69632
    srd(a, 64, 12, 32)
    srd(a, 84, 20, 65536, off=WS_ATAB)
    a('v_and_b32 v82, 15, v0                 ; k')
    a('v_lshlrev_b32 v83, 1, v82')
    a('buffer_load_ushort v84, v83, s[64:67], 0 offen')
    a('s_cmp_lg_u32 s91, 0')
    a('s_cbranch_scc1 K1_NOWB1')
    srd(a, 64, 18, 16*768)
    a('v_lshrrev_b32 v90, 4, v2               ; kq')
    a('v_and_b32 v91, 15, v2                  ; c')
    a('v_mul_u32_u24 v90, 3072, v90           ; 4kq*768')
    a('v_lshl_add_u32 v90, v91, 2, v90')
    a('s_and_b32 s61, s3, 3')
    a('s_lshr_b32 s62, s3, 2')
    a('s_lshl_b32 s63, s61, 6')
    a('s_lshl_b32 s68, s62, 8')
    a('s_add_u32 s63, s63, s68')
    for i in range(4):
        a(f'buffer_load_dword v{92+i}, v90, s[64:67], s63 offen offset:{i*768}')
    a.lab('K1_NOWB1')
    a('v_lshlrev_b32 v5, 4, v2               ; lane*16')
    for k in range(5):
        if k == 4:
            a('s_cmp_ge_u32 s3, 11')
            a('s_cbranch_scc1 K1_POSDONE')
        a(f's_add_u32 s26, s3, {12*k}')
        a('s_lshl_b32 s26, s26, 10')
        a(f's_add_u32 s27, s26, {POSL}')
        a('s_mov_b32 m0, s27')
        a('s_nop 0')
        a('buffer_load_dwordx4 v5, s[36:39], s26 offen lds')
    a.lab('K1_POSDONE')
    a('v_add_u32 v4, s24, v0')
    a('v_lshlrev_b32 v4, 2, v4              ; e*4 (round 0)')
    for j in range(5):
        a(f's_mov_b32 s26, {j*3072}')
        a(f'buffer_load_dword v{SRC+j}, v4, s[28:31], s26 offen {LDN}')
        a(f'buffer_load_dword v{DST+j}, v4, s[32:35], s26 offen {LDN}')
    for j in range(5):
        a(f'v_add_u32 v5, {j*768}, v0')
        a(f'v_cmp_gt_u32 s[{50+2*j}:{51+2*j}], s25, v5')
    a('v_mov_b32 v6, 0xffff0000')
    if FUSE:
        dbg_srd(a)
        a('s_or_b32 s68, s2, s3')
        a('s_cmp_lg_u32 s68, 0')
        a('s_cbranch_scc1 K1_NONONCE')
        a('s_memrealtime s[98:99]')
        a('s_waitcnt lgkmcnt(0)')
        a('s_or_b32 s98, s98, 1')
        a('v_mov_b32 v166, s98')
        a('v_mov_b32 v165, 0')
        a('s_mov_b64 exec, 1')
        a('buffer_store_dword v166, v165, s[92:95], 0 offen sc1')
        a('s_mov_b64 exec, -1')
        a.lab('K1_NONONCE')
    cpf(a, 'B')
    a('v_lshrrev_b32 v85, 4, v0')
    a('s_mul_i32 s61, s91, 48')
    a('v_add_u32 v85, s61, v85             ; entry')
    a(f'v_add_u32 v86, 0x{DBASE:x}, v85')
    a('v_lshlrev_b32 v86, 16, v86          ; d')
    a('v_mul_f32 v87, 0x40490fdb, v86       ; pi*d')
    a('v_cvt_pk_bf16_f32 v87, v87, v87')
    a('v_and_b32 v87, v6, v87')
    a('v_mul_f32 v87, 0x3e4ccccd, v87       ; /5')
    a('v_cvt_pk_bf16_f32 v87, v87, v87')
    a('v_and_b32 v87, v6, v87')
    a('v_mul_f32 v87, 0x3e22f983, v87')
    a('v_cos_f32 v87, v87')
    a('v_rcp_f32 v88, v86                   ; 1/d')
    a('v_cvt_pk_bf16_f32 v87, v87, v87')
    a('v_and_b32 v87, v6, v87')
    a('v_add_f32 v87, 1.0, v87')
    a('v_cvt_pk_bf16_f32 v87, v87, v87')
    a('v_and_b32 v87, v6, v87')
    a('v_mul_f32 v87, 0.5, v87              ; fcut')
    a('v_cmp_gt_u32 vcc, 0x40a00000, v86')
    a('v_cmp_ne_u32 s[62:63], 0, v85')
    a('s_and_b64 vcc, vcc, s[62:63]')
    a('s_nop 1')
    a('v_cndmask_b32 v87, 0, v87, vcc')
    a('s_waitcnt vmcnt(14)')
    a('v_lshlrev_b32 v84, 16, v84           ; f_k')
    a('v_mul_f32 v84, v84, v86')
    a('v_cvt_pk_bf16_f32 v84, v84, v84')
    a('v_and_b32 v84, v6, v84               ; arg')
    a('v_mul_f32 v89, 0x3e22f983, v84')
    a('v_mov_b32 v81, 0x3e22f983')
    a('v_fma_f32 v80, v84, v81, -v89')
    a('v_mov_b32 v81, 0x31dc9c88')
    a('v_fma_f32 v80, v84, v81, v80')
    a('v_fract_f32 v89, v89')
    a('v_add_f32 v89, v89, v80')
    a('v_sin_f32 v89, v89')
    a('s_nop 0')
    a('v_cvt_pk_bf16_f32 v89, v89, v89')
    a('v_and_b32 v89, v6, v89')
    a('v_mul_f32 v89, v89, v88')
    a('v_cvt_pk_bf16_f32 v89, v89, v89')
    a('v_and_b32 v89, v6, v89')
    a('v_mul_f32 v89, v89, v87')
    a('v_cvt_pk_bf16_f32 v89, v89, v89')
    a('s_nop 1')
    a('v_mov_b32_dpp v88, v89 quad_perm:[1,0,3,2] row_mask:0xf bank_mask:0xf')
    a('v_and_b32 v89, 0xffff, v89')
    a('v_and_b32 v88, v6, v88')
    a('v_or_b32 v89, v89, v88')
    a('v_lshlrev_b32 v85, 5, v85')
    a('v_add_u32 v85, v85, v83               ; entry*32 + 2k')
    a('s_waitcnt vmcnt(10) lgkmcnt(0)')
    a('s_barrier')
    a.stamp(1)
    a('s_mov_b32 s62, 0x55555555')
    a('s_mov_b32 s63, 0x55555555')
    a('s_mov_b64 exec, s[62:63]')
    a(f'buffer_store_dword v89, v85, s[84:87], 0 offen {STO}')
    a('s_mov_b64 exec, -1')
    a('s_cmp_lg_u32 s91, 0')
    a('s_cbranch_scc1 K1_NOWB2')
    srd(a, 64, 20, 12288, off=WS_WB)
    a('s_mov_b32 s62, 0x05040100')
    a('s_mov_b32 s63, 0x07060302')
    a('v_perm_b32 v96, v93, v92, s62')
    a('v_perm_b32 v97, v95, v94, s62')
    a('v_perm_b32 v98, v93, v92, s63')
    a('v_perm_b32 v99, v95, v94, s63')
    a('s_and_b32 s61, s3, 3')
    a('s_lshr_b32 s62, s3, 2')
    a('s_mul_i32 s61, s61, 3')
    a('s_add_u32 s61, s61, s62')
    a('s_lshl_b32 s61, s61, 10                ; (slice*3+seg)*1024')
    a('v_lshlrev_b32 v91, 4, v2')
    a(f'buffer_store_dwordx4 v[96:99], v91, s[64:67], s61 offen {STO}')
    a.lab('K1_NOWB2')
    for j in range(5):
        a(f's_waitcnt vmcnt({8-2*j+1})')
        for (idx, dstp) in ((SRC+j, PS+2*j), (DST+j, PD+2*j)):
            a(f'v_mul_u32_u24 v5, 6, v{idx}')
            a('v_and_b32 v5, -4, v5')
            a(f'v_add_u32 v5, {POSL}, v5')
            a(f'ds_read2_b32 v[{dstp}:{dstp+1}], v5 offset0:0 offset1:1')
    a.stamp(2)
    a('s_mov_b32 s26, 5033')
    a('s_mov_b32 s27, 853362')
    a('v_mov_b32 v7, 1')
    a('v_mov_b32 v8, 65000')
    a('v_mov_b32 v9, 0x10000')
    for j in range(5):
        a(f's_waitcnt lgkmcnt({min(15, 8-2*j + j)})')
        ps = PS+2*j; pd = PD+2*j; rec = REC+4*j
        t = 70
        a(f'v_and_b32 v{t}, 1, v{SRC+j}')
        a(f'v_lshlrev_b32 v{t}, 4, v{t}')
        a(f'v_lshrrev_b64 v[{ps}:{ps+1}], v{t}, v[{ps}:{ps+1}]')
        a(f'v_and_b32 v{t+1}, 1, v{DST+j}')
        a(f'v_lshlrev_b32 v{t+1}, 4, v{t+1}')
        a(f'v_lshrrev_b64 v[{pd}:{pd+1}], v{t+1}, v[{pd}:{pd+1}]')
        a(f'v_lshlrev_b32 v{t}, 16, v{ps}')
        a(f'v_and_b32 v{t+1}, v6, v{ps}')
        a(f'v_lshlrev_b32 v{t+2}, 16, v{pd}')
        a(f'v_and_b32 v{t+3}, v6, v{pd}')
        a(f'v_pk_add_f32 v[{t}:{t+1}], v[{t}:{t+1}], v[{t+2}:{t+3}] neg_lo:[0,1] neg_hi:[0,1]')
        a(f'v_lshlrev_b32 v{t+2}, 16, v{ps+1}')
        a(f'v_lshlrev_b32 v{t+3}, 16, v{pd+1}')
        a(f'v_sub_f32 v{t+2}, v{t+2}, v{t+3}      ; rz')
        a(f'v_cvt_pk_bf16_f32 v{t+3}, v{t}, v{t+1}')
        a(f'v_cvt_pk_bf16_f32 v{t+4}, v{t+2}, v{t+2}')
        a(f'v_lshlrev_b32 v{t}, 16, v{t+3}')
        a(f'v_and_b32 v{t+1}, v6, v{t+3}')
        a(f'v_and_b32 v{t+2}, v6, v{t+4}')
        a(f'v_pk_mul_f32 v[{t+4}:{t+5}], v[{t}:{t+1}], v[{t}:{t+1}]')
        a(f'v_mul_f32 v{t+3}, v{t+2}, v{t+2}')
        a(f'v_cvt_pk_bf16_f32 v{t+4}, v{t+4}, v{t+5}')
        a(f'v_cvt_pk_bf16_f32 v{t+3}, v{t+3}, v{t+3}')
        a(f'v_lshlrev_b32 v{t+5}, 16, v{t+4}')
        a(f'v_and_b32 v{t+4}, v6, v{t+4}')
        a(f'v_and_b32 v{t+3}, v6, v{t+3}')
        a(f'v_add_f32 v{t+4}, v{t+5}, v{t+4}')
        a(f'v_add_f32 v{t+3}, v{t+4}, v{t+3}')
        a(f'v_cvt_pk_bf16_f32 v{t+3}, v{t+3}, v{t+3}')
        a(f'v_and_b32 v{t+3}, v6, v{t+3}')
        a(f'v_add_f32 v{t+3}, 0x322bcc77, v{t+3}   ; +1e-8')
        a(f'v_cvt_pk_bf16_f32 v{t+3}, v{t+3}, v{t+3}')
        a(f'v_and_b32 v{t+3}, v6, v{t+3}')
        a(f'v_sqrt_f32 v{t+3}, v{t+3}')
        a(f'v_mul_u32_u24 v{GG+j}, s26, v{DST+j}')
        a(f'v_cvt_pk_bf16_f32 v{t+3}, v{t+3}, v{t+3}')
        a(f'v_and_b32 v{t+3}, v6, v{t+3}           ; d (f32 bits)')
        a(f'v_rcp_f32 v{t+4}, v{t+3}')
        a(f'v_lshrrev_b32 v{GG+j}, 16, v{GG+j}       ; g')
        a(f'v_pk_mul_f32 v[{t}:{t+1}], v[{t}:{t+1}], v[{t+4}:{t+5}] op_sel_hi:[1,0]')
        a(f'v_mul_f32 v{t+2}, v{t+2}, v{t+4}')
        a(f'v_cvt_pk_bf16_f32 v{rec+1}, v{t}, v{t+1}   ; rx|ry')
        a(f'v_cvt_pk_bf16_f32 v{rec+2}, v{t+2}, 0      ; rz | 0')
        a(f'v_cmp_gt_u32 vcc, 0x{DTHR<<16:x}, v{t+3}')
        a(f's_and_b64 s[{50+2*j}:{51+2*j}], s[{50+2*j}:{51+2*j}], vcc')
        a(f'v_lshrrev_b32 v{rec+3}, 16, v{t+3}')
        a(f'v_subrev_u32 v{rec+3}, 0x{DBASE+HOT0+ZROW//32:x}, v{rec+3}')
        a(f'v_lshlrev_b32 v{rec+3}, 5, v{rec+3}')
        a(f'v_mad_u32_u24 v{t}, v{GG+j}, s27, v8')
        a(f'v_lshrrev_b32 v{t}, 16, v{t}')
        a(f'v_sub_u32 v{t}, v{DST+j}, v{t}          ; dloc')
        a(f'v_lshlrev_b32 v{t}, v{t}, v9')
        a(f'v_or_b32 v{rec+2}, v{t}, v{rec+2}')
        a(f'v_lshlrev_b32 v{rec}, 4, v{SRC+j}')
        a(f'v_or_b32 v{rec}, 0x80000000, v{rec}')
        a(f'v_lshlrev_b32 v{t+1}, 2, v{GG+j}')
        a(f's_mov_b64 exec, s[{50+2*j}:{51+2*j}]')
        a(f'ds_add_rtn_u32 v{RK+j}, v{t+1}, v7')
        a('s_mov_b64 exec, -1')
    a.stamp(3)
    nonce_load(a, 'B')
    a('s_waitcnt vmcnt(0) lgkmcnt(0)')
    a('s_barrier')
    a.stamp(4)
    a('ds_read_b32 v3, v1                    ; cnt')
    a('s_waitcnt lgkmcnt(0)')
    a('v_mov_b32 v4, v3')
    a('s_nop 1')
    for sh in (1, 2, 4, 8):
        a(f'v_add_u32_dpp v4, v4, v4 row_shr:{sh} row_mask:0xf bank_mask:0xf')
        a('s_nop 1')
    a('v_add_u32_dpp v4, v4, v4 row_bcast:15 row_mask:0xa bank_mask:0xf')
    a('s_nop 1')
    a('v_add_u32_dpp v4, v4, v4 row_bcast:31 row_mask:0xc bank_mask:0xf')
    a('s_nop 1')
    a('v_readlane_b32 s26, v4, 63')
    a('s_lshl_b32 s27, s3, 2')
    a('v_mov_b32 v5, s27')
    a('v_mov_b32 v8, s26')
    a('ds_write_b32 v5, v8 offset:4096')
    a('s_waitcnt lgkmcnt(0)')
    a('s_barrier')
    a('v_lshlrev_b32 v5, 2, v2')
    a('ds_read_b32 v70, v5 offset:4096')
    a('v_sub_u32 v4, v4, v3')
    a('v_cmp_gt_u32 vcc, 12, v2')
    a('s_waitcnt lgkmcnt(0)')
    a('s_nop 0')
    a('v_cndmask_b32 v70, 0, v70, vcc')
    a('s_nop 1')
    for sh in (1, 2, 4, 8):
        a(f'v_add_u32_dpp v70, v70, v70 row_shr:{sh} row_mask:0xf bank_mask:0xf')
        a('s_nop 1')
    a('v_readlane_b32 s61, v70, 11')
    a('s_sub_u32 s26, s3, 1')
    a('s_max_i32 s26, s26, 0')
    a('s_nop 3')
    a('v_readlane_b32 s27, v70, s26')
    a('s_cmp_eq_u32 s3, 0')
    a('s_cselect_b32 s27, 0, s27')
    a('v_add_u32 v4, s27, v4')
    a('ds_write_b32 v1, v4 offset:8192         ; start[bin]')
    a('v_lshl_or_b32 v3, v3, 16, v4')
    a(f's_mul_i32 s26, s91, {NG*4}')
    a(f'buffer_store_dword v3, v1, s[40:43], s26 offen {STO}')
    a('s_waitcnt lgkmcnt(0)')
    a('s_barrier')
    a.stamp(5)
    RST = 12288
    for j in range(5):
        a(f'v_lshlrev_b32 v{GG+j}, 2, v{GG+j}')
        a(f'ds_read_b32 v{GG+j}, v{GG+j} offset:8192')
    for j in range(5):
        a(f's_waitcnt lgkmcnt({4-j})')
        a(f'v_add_u32 v{GG+j}, v{GG+j}, v{RK+j}')
        a(f'v_lshlrev_b32 v{GG+j}, 4, v{GG+j}')
    for j in range(5):
        a(f's_mov_b64 exec, s[{50+2*j}:{51+2*j}]')
        a(f'ds_write_b128 v{GG+j}, v[{REC+4*j}:{REC+4*j+3}] offset:{RST}')
    a('s_mov_b64 exec, -1')
    a('s_waitcnt lgkmcnt(0)')
    a('s_barrier')
    a('v_lshlrev_b32 v5, 4, v0                   ; tid*16')
    for j in range(5):
        a(f'ds_read_b128 v[{REC+4*j}:{REC+4*j+3}], v5 offset:{RST+j*12288}')
    a('s_lshl_b32 s26, s91, 16                    ; w*65536')
    for j in range(5):
        a(f'v_add_u32 v6, {j*768}, v0')
        a(f'v_cmp_gt_u32 vcc, s61, v6')
        a(f'v_add_u32 v7, {j*12288}, v5')
        a(f's_waitcnt lgkmcnt({4-j})')
        a('s_mov_b64 exec, vcc')
        a(f'buffer_store_dwordx4 v[{REC+4*j}:{REC+4*j+3}], v7, s[44:47], s26 offen {STO}')
        a('s_mov_b64 exec, -1')
    a.stamp(6)
    role_end(a)

def gen_tab(a):
    a.lab('K1_TAB')
    a.stamp(0)
    srd(a, 28, 20, 65536, off=WS_ATAB)
    srd(a, 24, 18, 16*768)
    srd(a, 32, 20, 12288, off=WS_WB)
    a('v_lshrrev_b32 v10, 4, v2               ; kq')
    a('v_and_b32 v11, 15, v2                  ; c')
    a('v_mul_u32_u24 v10, 3072, v10           ; 4kq*768')
    a('v_lshl_add_u32 v10, v11, 2, v10')
    a('s_and_b32 s52, s3, 3')
    a('s_lshr_b32 s53, s3, 2')
    a('s_lshl_b32 s54, s52, 6')
    a('s_lshl_b32 s55, s53, 8')
    a('s_add_u32 s54, s54, s55')
    for i in range(4):
        a(f'buffer_load_dword v{12+i}, v10, s[24:27], s54 offen offset:{i*768}')
    a('s_mov_b32 s62, 0x05040100')
    a('s_mov_b32 s63, 0x07060302')
    a('s_mul_i32 s54, s52, 3')
    a('s_add_u32 s54, s54, s53')
    a('s_lshl_b32 s54, s54, 10                ; (slice*3+seg)*1024')
    a('v_lshlrev_b32 v11, 4, v2')
    a('s_waitcnt vmcnt(0)')
    a('v_perm_b32 v16, v13, v12, s62')
    a('v_perm_b32 v17, v15, v14, s62')
    a('v_perm_b32 v18, v13, v12, s63')
    a('v_perm_b32 v19, v15, v14, s63')
    a(f'buffer_store_dwordx4 v[16:19], v11, s[32:35], s54 offen {STO}')
    nonce_load(a, 'T')
    a('s_load_dwordx8 s[36:43], s[12:13], 0')
    a('v_mov_b32 v6, 0xffff0000')
    a('s_waitcnt lgkmcnt(0)')
    for k in range(8):
        a(f's_lshl_b32 s{44+2*k}, s{36+k}, 16')
        a(f's_and_b32 s{45+2*k}, s{36+k}, 0xffff0000')
    a('s_mov_b32 s60, 0x3e22f983')
    a('s_mov_b32 s61, 0x31dc9c88')
    a('s_mov_b32 s62, 0')
    a.lab('K1_TAB_LOOP')
    a('v_add_u32 v3, s62, v0             ; entry')
    a(f'v_add_u32 v4, 0x{DBASE:x}, v3')
    a('v_lshlrev_b32 v4, 16, v4           ; d')
    a('v_mul_f32 v5, 0x40490fdb, v4       ; pi*d')
    a('v_cvt_pk_bf16_f32 v5, v5, v5')
    a('v_and_b32 v5, v6, v5')
    a('v_mul_f32 v5, 0x3e4ccccd, v5       ; /5')
    a('v_cvt_pk_bf16_f32 v5, v5, v5')
    a('v_and_b32 v5, v6, v5')
    a('v_mul_f32 v5, s60, v5')
    a('v_cos_f32 v5, v5')
    a('v_rcp_f32 v7, v4                   ; 1/d')
    a('v_cvt_pk_bf16_f32 v5, v5, v5')
    a('v_and_b32 v5, v6, v5')
    a('v_add_f32 v5, 1.0, v5')
    a('v_cvt_pk_bf16_f32 v5, v5, v5')
    a('v_and_b32 v5, v6, v5')
    a('v_mul_f32 v5, 0.5, v5              ; fcut')
    a('v_cmp_gt_u32 vcc, 0x40a00000, v4')
    a('v_cmp_ne_u32 s[64:65], 0, v3')
    a('s_and_b64 vcc, vcc, s[64:65]')
    a('s_nop 1')
    a('v_cndmask_b32 v5, 0, v5, vcc')
    for k in range(16):
        t = 10 + k
        a(f'v_mul_f32 v{t}, s{44+k}, v4')
    for k in range(0, 16, 2):
        t = 10 + k
        a(f'v_cvt_pk_bf16_f32 v{30+k//2}, v{t}, v{t+1}')
    for k in range(0, 16, 2):
        t = 10 + k
        a(f'v_lshlrev_b32 v{t}, 16, v{30+k//2}')
        a(f'v_and_b32 v{t+1}, v6, v{30+k//2}')
    for k in range(16):
        t = 10 + k
        a(f'v_mul_f32 v40, s60, v{t}')
        a(f'v_fma_f32 v41, v{t}, s60, -v40')
        a(f'v_fma_f32 v41, v{t}, s61, v41')
        a(f'v_fract_f32 v40, v40')
        a(f'v_add_f32 v40, v40, v41')
        a(f'v_sin_f32 v{t}, v40')
    a('s_nop 0')
    for k in range(0, 16, 2):
        t = 10 + k
        a(f'v_cvt_pk_bf16_f32 v40, v{t}, v{t+1}')
        a(f'v_lshlrev_b32 v{t}, 16, v40')
        a(f'v_and_b32 v{t+1}, v6, v40')
        a(f'v_mul_f32 v{t}, v{t}, v7')
        a(f'v_mul_f32 v{t+1}, v{t+1}, v7')
        a(f'v_cvt_pk_bf16_f32 v40, v{t}, v{t+1}')
        a(f'v_lshlrev_b32 v{t}, 16, v40')
        a(f'v_and_b32 v{t+1}, v6, v40')
        a(f'v_mul_f32 v{t}, v{t}, v5')
        a(f'v_mul_f32 v{t+1}, v{t+1}, v5')
        a(f'v_cvt_pk_bf16_f32 v{30+k//2}, v{t}, v{t+1}')
    a('v_lshlrev_b32 v8, 5, v3')
    a(f'buffer_store_dwordx4 v[30:33], v8, s[28:31], 0 offen {STO}')
    a(f'buffer_store_dwordx4 v[34:37], v8, s[28:31], 0 offen offset:16 {STO}')
    a('s_add_u32 s62, s62, 768')
    a('s_cmp_lt_u32 s62, 2048')
    a('s_nop 1')
    a('s_cbranch_scc1 K1_TAB_LOOP')
    for i in range(1,7): a.stamp(i)
    role_end(a)

def cpf(a, tag):
    if os.environ.get('CPF','1') != '1': return
    a('s_cmp_lg_u32 s3, 11')
    a(f's_cbranch_scc1 K1_NOCPF{tag}')
    a('s_getpc_b64 s[62:63]')
    a.lab(f'K1_PCREF{tag}')
    a(f's_add_u32 s62, s62, {KNAME}-K1_PCREF{tag}')
    a(f's_addc_u32 s63, s63, ({KNAME}-K1_PCREF{tag})>>32')
    a('v_lshlrev_b32 v160, 7, v2')
    a('v_mov_b32 v161, s63')
    a('v_add_co_u32 v160, vcc, s62, v160')
    a('s_nop 1')
    a('v_addc_co_u32 v161, vcc, 0, v161, vcc')
    a('global_load_dword v162, v[160:161], off')
    a('v_add_co_u32 v160, vcc, 0x2000, v160')
    a('s_nop 1')
    a('v_addc_co_u32 v161, vcc, 0, v161, vcc')
    a('global_load_dword v162, v[160:161], off')
    a('v_add_co_u32 v160, vcc, 0x2000, v160')
    a('s_nop 1')
    a('v_addc_co_u32 v161, vcc, 0, v161, vcc')
    a(f'v_cmp_gt_u32 vcc, (CODE_END-{KNAME}-16384)/128, v2')
    a('s_and_saveexec_b64 s[62:63], vcc')
    a(f's_cbranch_execz K1_CPFX{tag}')
    a('global_load_dword v162, v[160:161], off')
    a.lab(f'K1_CPFX{tag}')
    a('s_mov_b64 exec, s[62:63]')
    a.lab(f'K1_NOCPF{tag}')

def wave_ids(a):
    a('v_lshrrev_b32 v1, 6, v0')
    a('v_and_b32 v2, 63, v0')
    a('s_mov_b32 s91, s2')
    a('v_readfirstlane_b32 s3, v1')

def dbg_srd(a):
    a('s_mov_b32 s92, s96')
    a('s_mov_b32 s93, s97')
    a('s_mov_b32 s94, 256')
    a('s_mov_b32 s95, 0x00020000')

def gen_k1(a):
    name = KNAME if FUSE else 'prep_kernel'
    a.raw('.p2align 8')
    a.raw(f'.type {name},@function')
    a.lab(name)
    a('s_cmp_ge_u32 s2, 256')
    a('s_cbranch_scc1 K1_END')
    a('s_load_dwordx4 s[4:7], s[0:1], 0')
    a('s_load_dwordx4 s[8:11], s[0:1], 16')
    a('s_load_dwordx4 s[12:15], s[0:1], 32')
    a('s_load_dwordx4 s[16:19], s[0:1], 48')
    a('s_load_dwordx2 s[20:21], s[0:1], 80')
    a('s_load_dwordx2 s[96:97], s[0:1], 72     ; d_debug')
    a(f's_cmp_lt_u32 s2, {NBIN}')
    a('s_cbranch_scc1 K1_BIN')
    gen_mlp(a)

def gen_k1_tail(a):
    gen_bin(a)
    if FUSE:
        a.lab('K1_DONE')
        a('s_waitcnt vmcnt(0) lgkmcnt(0)')
        a('s_barrier')
        if Asm.STAMPS:
            a('s_memrealtime s[84:85]')
            a('s_waitcnt lgkmcnt(0)')
            a('s_lshl_b32 s68, s3, 5')
            a('s_add_u32 s68, s68, 155712')
            a('v_mov_b32 v1, s68')
            for i in range(8):
                a(f'v_mov_b32 v2, s{70+2*i}')
                a(f'ds_write_b32 v1, v2 offset:{4*i}')
        a('s_cmp_lg_u32 s3, 0')
        a('s_cbranch_scc1 K2_START')
        get_nonce(a, 'D')
        publish(a, 0)
        a('s_branch K2_START')
    a.lab('K1_END')
    a('s_endpgm')
    a.lab('CODE_END')
```

```python
from asmlib import *
from k1 import *

OUTST = os.environ.get('OUTST', 'sc1')
RESLD = os.environ.get('RESLD', '')
WBASE = 18432
WREG = 5120
RES0 = WBASE + 12*WREG
O_SRC = 0; O_AOF = 1280; O_OH = 2560; O_RX = 3200; O_RY = 3840; O_RZ = 4480
K2_LDS = RES0 + 12*4096
SC = 'sc1' if FUSE else ''
SCG = os.environ.get('SCG', SC)
LBF = ZROW + 768

V_C = 0; V_SHL = 1; V_KQ8 = 2; V_A1 = 3; V_A2 = 4; V_A3 = 5
TMP = 6
WB = 10; ACC = 22; GA = 54; GB = 86; WF = 94; MSG = 118; SM = 138; SRC = 154; AOP = 162
T4 = 166; T5 = 167
MSGT = 54 + 24
NV = 168

def wb(seg, t): return WB + (seg*2+t)*2
def acc(comp, t): return ACC + (comp*2+t)*4
def gA(i, c): return GA + 4*i + c
def wf(seg, R, r=0): return WF + seg*8 + R*4 + r
def msg(comp, j=0): return MSG + comp*4 + j

def scan64(a, P):
    a('s_nop 1')
    for sh in (1, 2, 4, 8):
        a(f'v_add_u32_dpp v{P}, v{P}, v{P} row_shr:{sh} row_mask:0xf bank_mask:0xf')
        a('s_nop 1')
    a(f'v_add_u32_dpp v{P}, v{P}, v{P} row_bcast:15 row_mask:0xa bank_mask:0xf')
    a('s_nop 1')
    a(f'v_add_u32_dpp v{P}, v{P}, v{P} row_bcast:31 row_mask:0xc bank_mask:0xf')
    a('s_nop 1')

def gen_k2(a):
    LANE = T4
    if FUSE:
        a.lab('K2_START')
    else:
        a.raw('.p2align 8')
        a.raw(f'.type {KNAME},@function')
        a.lab(KNAME)
        a('s_cmp_ge_u32 s2, 256')
        a('s_cbranch_scc1 K2_END')
    if os.environ.get('PRIO','1') != '0': a('s_setprio 3')
    a('s_load_dwordx2 s[4:5], s[0:1], 0       ; sv')
    a('s_load_dwordx2 s[8:9], s[0:1], 64      ; out')
    a('s_load_dwordx2 s[10:11], s[0:1], 80    ; ws')
    if FUSE:
        a(f'v_mbcnt_lo_u32_b32 v{LANE}, -1, 0')
        a(f'v_mbcnt_hi_u32_b32 v{LANE}, -1, v{LANE}')
        a('s_and_b32 s12, s2, 7                   ; x')
    else:
        a(f'v_lshrrev_b32 v{T5}, 6, v0')
        a(f'v_and_b32 v{LANE}, 63, v0')
        a('s_and_b32 s12, s2, 7                   ; x')
        a(f'v_readfirstlane_b32 s3, v{T5}             ; wave')
    a('s_lshr_b32 s13, s12, 1                 ; slice')
    a('s_lshr_b32 s14, s2, 3')
    a('s_lshl_b32 s14, s14, 1')
    a('s_and_b32 s12, s12, 1')
    a('s_add_u32 s14, s14, s12                ; rank (0..63)')
    a('s_mul_i32 s14, s14, 12')
    a('s_add_u32 s14, s14, s3                 ; g')
    a('s_mul_i32 s15, s14, 853362')
    a('s_add_u32 s16, s15, 65000')
    a('s_lshr_b32 s15, s16, 16                ; start')
    a('s_add_u32 s16, s16, 853362')
    a('s_lshr_b32 s16, s16, 16')
    a(f's_min_u32 s16, s16, {N}')
    a('s_sub_u32 s16, s16, s15                ; size')
    a.stamp(0)
    if Asm.STAMPS: a('s_memtime s[88:89]')
    a(f'v_mul_u32_u24 v{TMP}, {NG*4}, v{LANE}        ; lane*3072')
    a('s_lshl_b32 s17, s14, 2')
    a('s_waitcnt lgkmcnt(0)')
    srd(a, 20, 10, NBIN*NG*4, off=WS_HDR)
    if not FUSE:
        a(f'buffer_load_dword v{TMP+1}, v{TMP}, s[20:23], s17 offen')
    srd(a, 24, 10, NBIN*65536, off=WS_TAILS)
    srd(a, 28, 10, 65536, off=WS_ATAB)
    srd(a, 40, 10, 12288, off=WS_WB)
    srd(a, 32, 4, 10240000)
    srd(a, 36, 8, 10240000)
    def wb_and_table():
        a(f'v_lshlrev_b32 v{TMP+2}, 4, v{LANE}')
        a('s_mul_i32 s17, s13, 3072')
        for seg in range(3):
            a(f'buffer_load_dwordx4 v[{wb(seg,0)}:{wb(seg,0)+3}], v{TMP+2}, s[40:43], s17 offen offset:{seg*1024} {SC}')
        a('s_lshl_b32 s17, s3, 10')
        if FUSE:
            a(f's_add_u32 s17, s17, {HOT0*32}')
            a(f'buffer_load_dwordx4 v[{GA}:{GA+3}], v{TMP+2}, s[28:31], s17 offen sc1')
            a(f's_cmp_ge_u32 s3, {NHOT_KB-12}')
            a('s_cbranch_scc1 K2_DMA_DONE')
            a('s_add_u32 s17, s17, 12288')
            a(f'buffer_load_dwordx4 v[{GA+4}:{GA+7}], v{TMP+2}, s[28:31], s17 offen sc1')
        else:
            a('s_mov_b32 s18, s17')
            a('s_mov_b32 m0, s18')
            a(f's_add_u32 s17, s17, {HOT0*32}')
            a(f'buffer_load_dwordx4 v{TMP+2}, s[28:31], s17 offen lds')
            a(f's_cmp_ge_u32 s3, {NHOT_KB-12}')
            a('s_cbranch_scc1 K2_DMA_DONE')
            a('s_add_u32 s18, s18, 12288')
            a('s_mov_b32 m0, s18')
            a('s_add_u32 s17, s17, 12288')
            a(f'buffer_load_dwordx4 v{TMP+2}, s[28:31], s17 offen lds')
        a.lab('K2_DMA_DONE')
    if not FUSE: wb_and_table()
    a('s_mul_i32 s17, s13, 2560000')
    a('s_add_u32 s44, s10, s17')
    a('s_addc_u32 s45, s11, 0')
    a('s_or_b32 s45, s45, 0x100000            ; stride 16')
    a('s_mov_b32 s46, 160000')
    a('s_mov_b32 s47, 0x00020000')
    a('s_mul_i32 s17, s13, 640000')
    a(f's_add_u32 s17, s17, {WS_TB}')
    a('s_add_u32 s48, s10, s17')
    a('s_addc_u32 s49, s11, 0')
    a('s_or_b32 s49, s49, 0x40000             ; stride 4')
    a('s_mov_b32 s50, 160000')
    a('s_mov_b32 s51, 0x00020000')
    a(f'v_and_b32 v{V_C}, 15, v{LANE}')
    a(f'v_lshrrev_b32 v{T5}, 4, v{LANE}           ; q')
    a(f'v_sub_u32 v{V_SHL}, 15, v{V_C}')
    a(f'v_lshl_or_b32 v{V_SHL}, v{V_SHL}, 16, v{V_SHL}')
    a(f'v_lshlrev_b32 v{V_KQ8}, 3, v{T5}')
    a(f'v_lshlrev_b32 v{TMP+2}, 2, v{LANE}')
    a(f'v_mov_b32 v{TMP+3}, 0')
    a(f'ds_write_b32 v{TMP+2}, v{TMP+3} offset:{ZROW}')
    if FUSE:
        a(f'ds_write_b32 v{TMP+2}, v{TMP+3} offset:{ZROW+768}')
    for r in range(ACC, ACC+32): a(f'v_mov_b32 v{r}, 0')
    for r in range(MSG, MSG+20): a(f'v_mov_b32 v{r}, 0')
    for r in range(SM, SM+16): a(f'v_mov_b32 v{r}, 0')
    a(f's_mul_i32 s18, s3, {WREG}')
    a(f's_add_u32 s18, s18, {WBASE}')
    a('s_mov_b32 s52, 0                          ; base')
    a('s_mov_b32 s60, 0')
    def res_dma(tag):
        a('s_cmp_lg_u32 s60, 0')
        a(f's_cbranch_scc1 K2_RESDONE{tag}')
        a('s_mov_b32 s60, 1')
        a(f'v_mbcnt_lo_u32_b32 v{T4}, -1, 0')
        a(f'v_mbcnt_hi_u32_b32 v{T4}, -1, v{T4}')
        a(f'v_and_b32 v{T5}, 3, v{T4}')
        a(f'v_lshlrev_b32 v{T5}, 4, v{T5}')
        a(f'v_lshrrev_b32 v{T4}, 2, v{T4}')
        a(f'v_lshl_add_u32 v{T5}, v{T4}, 8, v{T5}')
        a('s_lshl_b32 s61, s15, 10')
        a('s_lshl_b32 s62, s13, 6')
        a('s_add_u32 s61, s61, s62')
        a('s_lshl_b32 s62, s3, 12')
        a(f's_add_u32 s62, s62, {RES0}')
        for j in range(4):
            a('s_mov_b32 m0, s62')
            a('s_add_u32 s62, s62, 1024')
            a(f'buffer_load_dwordx4 v{T5}, s[32:35], s61 offen {RESLD} lds')
            a('s_add_u32 s61, s61, 4096')
        a.lab(f'K2_RESDONE{tag}')
    def poll_issue(reg, off=0):
        a(f'v_mbcnt_lo_u32_b32 v{T5}, -1, 0')
        a(f'v_mbcnt_hi_u32_b32 v{T5}, -1, v{T5}')
        a(f'v_lshlrev_b32 v{T5}, 4, v{T5}')
        a(f's_add_u32 s64, s10, 0x{WS_FLAGS:x}')
        a('s_addc_u32 s65, s11, 0')
        a('s_mov_b32 s66, 16384')
        a('s_mov_b32 s67, 0x00020000')
        a('s_and_b32 s62, s2, 7')
        a('s_lshl_b32 s62, s62, 11')
        a(f'buffer_load_dwordx4 v[{reg}:{reg+3}], v{T5}, s[64:67], s62 offen offset:{off} sc1')
    def poll_masks(reg):
        a(f'v_cmp_eq_u32 s[56:57], s100, v{reg}')
        a(f'v_cmp_eq_u32 s[62:63], s100, v{reg+1}')
        a(f'v_cmp_eq_u32 vcc, s100, v{reg+2}')
        a('s_and_b64 s[56:57], s[56:57], s[62:63]')
        a('s_and_b64 s[56:57], s[56:57], vcc')
        a(f'v_cmp_eq_u32 vcc, s100, v{reg+3}')
    def poll47(tag, off):
        a('s_cmp_lg_u32 s3, 0')
        a(f's_cbranch_scc1 K2_POLL{tag}_DONE')
        a('s_mov_b32 s59, 0x8000')
        R = [WF, WF+4, WF+8]
        def issue(k):
            a('s_mov_b64 exec, 0xfff')
            poll_issue(R[k], off)
            a('s_mov_b64 exec, -1')
        def test(k):
            poll_masks(R[k])
            a('s_and_b32 s56, s56, 0xfff')
            a('s_and_b32 s62, vcc_lo, 0x7ff')
            a('s_lshl_b32 s62, s62, 12')
            a('s_or_b32 s56, s56, s62')
            a('s_cmp_eq_u32 s56, 0x7fffff')
            a(f's_cbranch_scc1 K2_POLL{tag}_DONE')
        if os.environ.get('POLLP','0') == '1':
            issue(0)
            a('s_sleep 3')
            issue(1)
            a.lab(f'K2_POLL{tag}')
            for k in range(3):
                a('s_sleep 3')
                issue((k+2) % 3)
                a('s_waitcnt vmcnt(2)')
                test(k)
        else:
            a.lab(f'K2_POLL{tag}')
            issue(0)
            a('s_waitcnt vmcnt(0)')
            test(0)
            a('s_sleep 2')
        a('s_sub_u32 s59, s59, 1')
        a('s_cmp_lg_u32 s59, 0')
        a(f's_cbranch_scc1 K2_POLL{tag}')
        a.lab(f'K2_POLL{tag}_DONE')
    if FUSE:
        if os.environ.get('PUBD','0') == '1':
            a('s_cmp_eq_u32 s101, 0')
            a('s_cbranch_scc1 K2_NODRAIN')
            a('s_waitcnt vmcnt(0)')
            a('s_barrier')
            a(f'v_mbcnt_lo_u32_b32 v{LANE}, -1, 0')
            a(f'v_mbcnt_hi_u32_b32 v{LANE}, -1, v{LANE}')
            a('s_cmp_eq_u32 s3, 0')
            a('s_cselect_b32 s62, s101, 0')
            a('s_cmp_eq_u32 s62, 0')
            a('s_cbranch_scc1 K2_NOPUB')
            a(f's_add_u32 s64, s10, 0x{WS_FLAGS:x}')
            a('s_addc_u32 s65, s11, 0')
            a('s_mov_b32 s66, 16384')
            a('s_mov_b32 s67, 0x00020000')
            a(f'v_lshlrev_b32 v{WF}, 11, v{LANE}           ; replica*2048')
            a('s_lshl_b32 s68, s91, 2')
            a(f'v_mov_b32 v{WF+1}, s100')
            a('s_mov_b64 exec, 0xff')
            a(f'buffer_store_dword v{WF+1}, v{WF}, s[64:67], s68 offen sc1')
            a('s_mov_b64 exec, -1')
            a.lab('K2_NOPUB')
            a.lab('K2_NODRAIN')
        poll47('A', 0)
        a.stamp(2)
        a('s_waitcnt vmcnt(0) lgkmcnt(0)')
        a('s_barrier')
        a.stamp(3)
        a(f'v_mbcnt_lo_u32_b32 v{LANE}, -1, 0')
        a(f'v_mbcnt_hi_u32_b32 v{LANE}, -1, v{LANE}')
        if os.environ.get('PUBD','0') != '1':
            a('s_cmp_eq_u32 s3, 0')
            a('s_cselect_b32 s62, s101, 0')
            a('s_cmp_eq_u32 s62, 0')
            a('s_cbranch_scc1 K2_NOPUB2')
            a(f's_add_u32 s64, s10, 0x{WS_FLAGS:x}')
            a('s_addc_u32 s65, s11, 0')
            a('s_mov_b32 s66, 16384')
            a('s_mov_b32 s67, 0x00020000')
            a(f'v_lshlrev_b32 v{WF}, 11, v{LANE}           ; replica*2048')
            a('s_lshl_b32 s68, s91, 2')
            a(f'v_mov_b32 v{WF+1}, s100')
            a('s_mov_b64 exec, 0xff')
            a(f'buffer_store_dword v{WF+1}, v{WF}, s[64:67], s68 offen sc1')
            a('s_mov_b64 exec, -1')
            a.lab('K2_NOPUB2')
        XCH = 131072
        a(f'v_lshlrev_b32 v{TMP+2}, 4, v{LANE}          ; lane*16')
        a('s_lshl_b32 s17, s3, 10')
        a(f's_add_u32 s17, s17, {HOT0*32}')
        a(f'buffer_load_dwordx4 v[{GA}:{GA+3}], v{TMP+2}, s[28:31], s17 offen sc1')
        a('s_cmp_lt_u32 s3, 5')
        a('s_cbranch_scc1 K2_JT')
        a('s_cmp_lt_u32 s3, 8')
        a('s_cbranch_scc1 K2_JW')
        a('s_cmp_lt_u32 s3, 11')
        a('s_cbranch_scc1 K2_JH')
        a('s_waitcnt vmcnt(0)')
        a('s_branch K2_JDONE')
        a.lab('K2_JT')
        a('s_add_u32 s17, s17, 12288')
        a(f'buffer_load_dwordx4 v[{GA+4}:{GA+7}], v{TMP+2}, s[28:31], s17 offen sc1')
        a('s_lshl_b32 s17, s3, 10')
        a('s_add_u32 s17, s17, 12288')
        a(f'v_add_u32 v{TMP+3}, s17, v{TMP+2}')
        a('s_waitcnt vmcnt(0)')
        a(f'ds_write_b128 v{TMP+3}, v[{GA+4}:{GA+7}]')
        a('s_branch K2_JDONE')
        a.lab('K2_JW')
        a('s_sub_u32 s62, s3, 5')
        a('s_lshl_b32 s62, s62, 10')
        a('s_mul_i32 s17, s13, 3072')
        a('s_add_u32 s17, s17, s62')
        a(f'buffer_load_dwordx4 v[{GA+4}:{GA+7}], v{TMP+2}, s[40:43], s17 offen sc1')
        a(f's_add_u32 s62, s62, {XCH}')
        a(f'v_add_u32 v{TMP+3}, s62, v{TMP+2}')
        a('s_waitcnt vmcnt(0)')
        a(f'ds_write_b128 v{TMP+3}, v[{GA+4}:{GA+7}]')
        a('s_branch K2_JDONE')
        a.lab('K2_JH')
        a('s_sub_u32 s62, s3, 8                  ; k')
        a('s_sub_u32 s17, s14, s3                ; g0')
        a('s_lshl_b32 s17, s17, 2')
        a('s_lshl_b32 s61, s62, 4')
        a('s_add_u32 s17, s17, s61')
        a(f'v_mul_u32_u24 v{TMP}, {NG*4}, v{LANE}')
        a(f'buffer_load_dwordx4 v[{GA+4}:{GA+7}], v{TMP}, s[20:23], s17 offen sc1')
        a('s_lshl_b32 s62, s62, 10')
        a(f's_add_u32 s62, s62, {XCH+4096}')
        a(f'v_lshlrev_b32 v{TMP+3}, 2, v{LANE}')
        a(f'v_add_u32 v{TMP+3}, s62, v{TMP+3}')
        a('s_waitcnt vmcnt(0)')
        for i in range(4):
            a(f'ds_write_b32 v{TMP+3}, v{GA+4+i} offset:{256*i}')
        if os.environ.get('BAL2','1') == '1':
            a(f'v_lshrrev_b32 v{GA+8}, 16, v{GA+4}')
            a(f'v_and_b32 v{GA+10}, 0xffff0000, v{GA+5}')
            a(f'v_or_b32 v{GA+8}, v{GA+8}, v{GA+10}')
            a(f'v_lshrrev_b32 v{GA+9}, 16, v{GA+6}')
            a(f'v_and_b32 v{GA+10}, 0xffff0000, v{GA+7}')
            a(f'v_or_b32 v{GA+9}, v{GA+9}, v{GA+10}')
            a('s_nop 1')
            for dpp in ('row_shr:1 row_mask:0xf', 'row_shr:2 row_mask:0xf', 'row_shr:4 row_mask:0xf', 'row_shr:8 row_mask:0xf', 'row_bcast:15 row_mask:0xa', 'row_bcast:31 row_mask:0xc'):
                a(f'v_add_u32_dpp v{GA+8}, v{GA+8}, v{GA+8} {dpp} bank_mask:0xf')
                a(f'v_add_u32_dpp v{GA+9}, v{GA+9}, v{GA+9} {dpp} bank_mask:0xf')
                a('s_nop 0')
            a(f'v_readlane_b32 s56, v{GA+8}, 63')
            a(f'v_readlane_b32 s57, v{GA+9}, 63')
            a('s_sub_u32 s61, s3, 8')
            a('s_lshl_b32 s61, s61, 2')
            for i in range(4):
                src = 's56' if i < 2 else 's57'
                if i % 2 == 0: a(f's_and_b32 s63, {src}, 0xffff')
                else: a(f's_lshr_b32 s63, {src}, 16')
                a('s_add_u32 s63, s63, 15')
                a('s_and_b32 s63, s63, 0xfffff0')
                a('s_add_u32 s63, s63, 15')
                a('s_sub_u32 s63, s63, s61')
                if i: a(f's_sub_u32 s63, s63, {i}')
                a(f'v_mov_b32 v{GA+8+i}, s63')
            a('s_lshl_b32 s61, s61, 2')
            a(f's_add_u32 s61, s61, {XCH+8192}')
            a(f'v_mov_b32 v{TMP+3}, s61')
            a('s_mov_b64 exec, 1')
            a(f'ds_write_b128 v{TMP+3}, v[{GA+8}:{GA+11}]')
            a('s_mov_b64 exec, -1')
        a.lab('K2_JDONE')
        if os.environ.get('ST7') == '1': a.stamp(7)
        a('s_lshl_b32 s17, s3, 10')
        a(f'v_add_u32 v{TMP+2}, s17, v{TMP+2}')
        a(f'ds_write_b128 v{TMP+2}, v[{GA}:{GA+3}]')
        a('s_waitcnt lgkmcnt(0)')
        a('s_barrier')
        a(f'v_lshlrev_b32 v{TMP+2}, 2, v{LANE}')
        if os.environ.get('BAL2','1') == '1':
            a(f'v_add_u32 v{TMP+3}, {XCH+8192}, v{TMP+2}')
            a(f'ds_read_b32 v{TMP+1}, v{TMP+3}')
            a(f'v_mov_b32 v{TMP+3}, {XCH+8192}')
            for j in range(3):
                a(f'ds_read_b128 v[{GA+4*j}:{GA+4*j+3}], v{TMP+3} offset:{16*j}')
            a('s_sub_u32 s17, 11, s3')
            a('s_cmp_lt_u32 s3, 4')
            a('s_cselect_b32 s17, s3, s17')
            a('s_sub_u32 s19, 19, s3')
            a('s_cmp_ge_u32 s3, 8')
            a('s_cselect_b32 s17, s19, s17')
            a(f'v_mov_b32 v{TMP}, 0')
            a('s_waitcnt lgkmcnt(0)')
            for j in range(12): a(f'v_sub_u32 v{GA+j}, v{TMP+1}, v{GA+j}')
            for j in range(12): a(f'v_lshrrev_b32 v{GA+j}, 31, v{GA+j}')
            for j in range(0, 12, 2): a(f'v_add3_u32 v{TMP}, v{TMP}, v{GA+j}, v{GA+j+1}')
            a(f'v_cmp_eq_u32 vcc, s17, v{TMP}')
            a('s_and_b32 s17, vcc_lo, 0xfff')
            a('s_ff1_i32_b32 s17, s17')
            a('s_sub_u32 s14, s14, s3')
            a('s_add_u32 s14, s14, s17                   ; g')
            a('s_mul_i32 s15, s14, 853362')
            a('s_add_u32 s16, s15, 65000')
            a('s_lshr_b32 s15, s16, 16                ; start')
            a('s_add_u32 s16, s16, 853362')
            a('s_lshr_b32 s16, s16, 16')
            a(f's_min_u32 s16, s16, {N}')
            a('s_sub_u32 s16, s16, s15                ; size')
            a('s_lshl_b32 s17, s17, 8')
        else:
            a('s_lshl_b32 s17, s3, 8')
        a(f's_add_u32 s17, s17, {XCH+4096}')
        a(f'v_add_u32 v{TMP+2}, s17, v{TMP+2}')
        a(f'ds_read_b32 v{TMP+1}, v{TMP+2}')
        a(f'v_lshlrev_b32 v{TMP+2}, 4, v{LANE}')
        a(f'v_add_u32 v{TMP+2}, {XCH}, v{TMP+2}')
        for seg in range(3):
            a(f'ds_read_b128 v[{wb(seg,0)}:{wb(seg,0)+3}], v{TMP+2} offset:{seg*1024}')
        a('s_waitcnt lgkmcnt(3)')
    CNT = SRC; ST = SRC+1; P = SRC+2; LOCB = SRC+3; KK = SRC+4; POS = SRC+5; KHI = SRC+6
    H = TMP+1
    def header():
        a(f'v_lshrrev_b32 v{CNT}, 16, v{H}')
        a(f'v_and_b32 v{ST}, 0xffff, v{H}')
        a(f'v_mov_b32 v{P}, v{CNT}')
        scan64(a, P)
    PFPOS = os.environ.get('PFPOS','N')
    PFF = os.environ.get('PFF','sc1')
    def pf_setup():
        a('s_lshr_b32 s61, s2, 3')
        a('s_mul_i32 s61, s61, 12')
        a('s_add_u32 s61, s61, s3                ; chunk 0..383')
    def pf_A(lo, hi, reg):
        a('s_mul_i32 s17, s13, 2560000')
        a('s_add_u32 s64, s10, s17')
        a('s_addc_u32 s65, s11, 0')
        a('s_mov_b32 s66, 2560000')
        a('s_mov_b32 s67, 0x00020000')
        a(f's_mul_i32 s62, s61, {53*128}')
        a(f's_add_u32 s62, s62, {lo*128}')
        a(f'v_lshlrev_b32 v{reg}, 7, v{LANE}')
        a(f'v_add_u32 v{reg}, s62, v{reg}')
        a(f'v_cmp_gt_u32 vcc, {hi-lo}, v{LANE}')
        a('s_mov_b64 exec, vcc')
        a(f'buffer_load_dword v{reg+1}, v{reg}, s[64:67], 0 offen {PFF}')
        a('s_mov_b64 exec, -1')
    def pf_B(reg):
        a('s_mul_i32 s17, s13, 640000')
        a(f's_add_u32 s17, s17, {WS_TB}')
        a('s_add_u32 s64, s10, s17')
        a('s_addc_u32 s65, s11, 0')
        a('s_mov_b32 s66, 640000')
        a('s_mov_b32 s67, 0x00020000')
        a(f's_mul_i32 s62, s61, {14*128}')
        a(f'v_lshlrev_b32 v{reg}, 7, v{LANE}')
        a(f'v_add_u32 v{reg}, s62, v{reg}')
        a(f'v_cmp_gt_u32 vcc, 14, v{LANE}')
        a('s_mov_b64 exec, vcc')
        a(f'buffer_load_dword v{reg+1}, v{reg}, s[64:67], 0 offen {PFF}')
        a('s_mov_b64 exec, -1')
    PR = GA+24
    npf = 0
    if PFPOS in 'ABC': pf_setup()
    if PFPOS == 'A':
        pf_A(0, 53, PR); pf_B(PR+2); npf = 2
    if PFPOS == 'C':
        pf_B(PR+2); pf_A(0, 10, PR); npf = 2
    if not FUSE:
        a(f's_waitcnt vmcnt({npf}) lgkmcnt(0)')
        a('s_barrier')
    a.stamp(1)
    if os.environ.get('BAL','0') == '1':
        header()
        a(f'v_readlane_b32 s19, v{P}, 63')
        a(f'v_lshlrev_b32 v{KK}, 2, v{LANE}')
        a('s_lshl_b32 s17, s3, 8')
        a(f's_add_u32 s17, s17, {RES0}')
        a(f'v_add_u32 v{POS}, s17, v{KK}')
        a(f'ds_write_b32 v{POS}, v{H}')
        a('s_add_u32 s19, s19, 15')
        a('s_lshr_b32 s19, s19, 4')
        a('s_lshl_b32 s19, s19, 4')
        a('s_add_u32 s19, s19, 15')
        a('s_sub_u32 s19, s19, s3')
        a('s_lshl_b32 s17, s3, 2')
        a(f's_add_u32 s17, s17, {RES0+4096}')
        a(f'v_mov_b32 v{POS}, s17')
        a(f'v_mov_b32 v{KHI}, s19')
        a(f'ds_write_b32 v{POS}, v{KHI}')
        a('s_waitcnt lgkmcnt(0)')
        a('s_barrier')
        a(f'v_add_u32 v{POS}, {RES0+4096}, v{KK}')
        a(f'ds_read_b32 v{KHI}, v{POS}')
        a(f'v_mov_b32 v{POS}, {RES0+4096}')
        for j in range(3):
            a(f'ds_read_b128 v[{GA+4*j}:{GA+4*j+3}], v{POS} offset:{16*j}')
        a(f'v_mov_b32 v{CNT}, 0                      ; rank')
        a('s_waitcnt lgkmcnt(0)')
        for j in range(12):
            a(f'v_sub_u32 v{GA+j}, v{KHI}, v{GA+j}')
        for j in range(12):
            a(f'v_lshrrev_b32 v{GA+j}, 31, v{GA+j}')
        for j in range(0, 12, 2):
            a(f'v_add3_u32 v{CNT}, v{CNT}, v{GA+j}, v{GA+j+1}')
        a('s_sub_u32 s17, 11, s3')
        a('s_cmp_lt_u32 s3, 4')
        a('s_cselect_b32 s17, s3, s17')
        a('s_sub_u32 s19, 19, s3')
        a('s_cmp_ge_u32 s3, 8')
        a('s_cselect_b32 s17, s19, s17')
        a(f'v_cmp_eq_u32 vcc, s17, v{CNT}')
        a('s_and_b32 s17, vcc_lo, 0xfff')
        a('s_ff1_i32_b32 s17, s17')
        a('s_sub_u32 s14, s14, s3')
        a('s_add_u32 s14, s14, s17                   ; g')
        a('s_mul_i32 s15, s14, 853362')
        a('s_add_u32 s16, s15, 65000')
        a('s_lshr_b32 s15, s16, 16                ; start')
        a('s_add_u32 s16, s16, 853362')
        a('s_lshr_b32 s16, s16, 16')
        a(f's_min_u32 s16, s16, {N}')
        a('s_sub_u32 s16, s16, s15                ; size')
        a('s_lshl_b32 s17, s17, 8')
        a(f's_add_u32 s17, s17, {RES0}')
        a(f'v_add_u32 v{POS}, s17, v{KK}')
        a(f'ds_read_b32 v{H}, v{POS}')
        a('s_waitcnt lgkmcnt(0)')
    header()
    a(f'v_readlane_b32 s19, v{P}, 63             ; M')
    a(f'v_sub_u32 v{P}, v{P}, v{CNT}')
    a(f'v_lshl_add_u32 v{LOCB}, v{LANE}, 12, v{ST}   ; w*4096 + start')
    if not FUSE: a.stamp(2)
    a.lab('K2_CHUNK')
    a(f'v_sub_u32 v{KK}, s52, v{P}')
    a(f'v_max_i32 v{KK}, 0, v{KK}')
    NFAST = 12
    a('s_cmp_gt_u32 s19, 256')
    a('s_cbranch_scc1 K2_FILL')
    a(f'v_lshlrev_b32 v{POS}, 2, v{P}')
    a(f'v_add_u32 v{POS}, s18, v{POS}')
    a(f'v_mov_b32 v{KHI}, v{LOCB}')
    for k in range(NFAST):
        a(f'v_cmp_lt_u32 vcc, {k}, v{CNT}')
        a('s_cbranch_vccz K2_FILL_DONE')
        a('s_mov_b64 exec, vcc')
        a(f'ds_write_b32 v{POS}, v{KHI} offset:{4*k}')
        a(f'v_add_u32 v{KHI}, 1, v{KHI}')
    a('s_mov_b64 exec, -1')
    a(f'v_mov_b32 v{KK}, {NFAST}')
    a.lab('K2_FILL')
    a(f'v_add_u32 v{POS}, v{P}, v{KK}')
    a(f'v_subrev_u32 v{POS}, s52, v{POS}')
    a(f'v_cmp_lt_u32 s[56:57], v{KK}, v{CNT}')
    a(f'v_cmp_gt_u32 vcc, 256, v{POS}')
    a('s_and_b64 vcc, vcc, s[56:57]')
    a('s_cbranch_vccz K2_FILL_DONE')
    a(f'v_lshlrev_b32 v{POS}, 2, v{POS}')
    a(f'v_add_u32 v{POS}, s18, v{POS}')
    a(f'v_add_u32 v{KHI}, v{LOCB}, v{KK}')
    a('s_mov_b64 exec, vcc')
    a(f'ds_write_b32 v{POS}, v{KHI}')
    a('s_mov_b64 exec, -1')
    a(f'v_add_u32 v{KK}, 1, v{KK}')
    a('s_branch K2_FILL')
    a.lab('K2_FILL_DONE')
    a('s_mov_b64 exec, -1')
    if not FUSE: a.stamp(3)
    a('s_sub_u32 s55, s19, s52')
    a('s_min_u32 s55, s55, 256                   ; n_c')
    a('s_add_u32 s58, s55, 31')
    a('s_lshr_b32 s58, s58, 5')
    a('s_lshl_b32 s59, s58, 5')
    a('s_add_u32 s59, s59, 32                    ; npad')
    a('s_and_b32 s54, s55, 31')
    a('s_sub_u32 s54, s54, 1')
    a('s_cmp_lt_u32 s54, 16')
    a('s_cselect_b32 s54, 1, 0')
    a('s_sub_u32 s58, s58, s54')
    RC = WF; LA = GB
    a(f'v_lshlrev_b32 v{TMP}, 2, v{LANE}')
    a(f'v_add_u32 v{TMP}, s18, v{TMP}')
    for j in range(5):
        a(f'ds_read_b32 v{LA+j}, v{TMP} offset:{256*j}')
    a(f'v_mov_b32 v{TMP+2}, 0x80000000')
    for j in range(5):
        if j >= 1:
            a(f's_cmp_le_u32 s59, {64*j}')
            a('s_cbranch_scc1 K2_REC_ISSUED')
        a(f'v_add_u32 v{TMP+1}, {64*j}, v{LANE}')
        a(f'v_cmp_gt_u32 vcc, s55, v{TMP+1}')
        a(f's_waitcnt lgkmcnt({4-j})')
        a(f'v_lshlrev_b32 v{LA+j}, 4, v{LA+j}')
        a(f'v_cndmask_b32 v{LA+j}, v{TMP+2}, v{LA+j}, vcc')
        a(f'buffer_load_dwordx4 v[{RC+4*j}:{RC+4*j+3}], v{LA+j}, s[24:27], 0 offen {SC}')
    a.lab('K2_REC_ISSUED')
    if FUSE:
        a('s_or_b32 s62, s3, s52')
        a('s_cmp_lg_u32 s62, 0')
        a('s_cbranch_scc1 K2_NOPB')
        poll_issue(AOP)
        a.lab('K2_NOPB')
        a(f'v_mbcnt_lo_u32_b32 v{LANE}, -1, 0')
        a(f'v_mbcnt_hi_u32_b32 v{LANE}, -1, v{LANE}')
    a(f'v_and_b32 v{TMP}, 3, v{LANE}')
    a(f'v_lshlrev_b32 v{TMP}, 3, v{TMP}')
    a(f'v_bfe_u32 v{TMP+1}, v{LANE}, 2, 3')
    a(f'v_or_b32 v{TMP}, v{TMP}, v{TMP+1}')
    a(f'v_and_b32 v{TMP+1}, 32, v{LANE}')
    a(f'v_or_b32 v{TMP+3}, v{TMP}, v{TMP+1}')
    a(f'v_lshlrev_b32 v{TMP}, 2, v{TMP+3}')
    a(f'v_add_u32 v{TMP}, s18, v{TMP}')
    a(f'v_lshrrev_b32 v{SRC+6}, 4, v{LANE}          ; q')
    a(f'v_lshlrev_b32 v{V_A1}, 5, v{SRC+6}            ; q*8*4')
    a(f'v_add_u32 v{V_A1}, s18, v{V_A1}')
    a(f'v_lshlrev_b32 v{V_A2}, 4, v{SRC+6}            ; q*8*2')
    a(f'v_add_u32 v{V_A2}, s18, v{V_A2}')
    a(f'v_lshrrev_b32 v{SRC+6}, 2, v{V_C}             ; rho>>2')
    a(f'v_and_b32 v{SRC+7}, 3, v{V_C}')
    a(f'v_lshl_add_u32 v{SRC+6}, v{SRC+6}, 3, v{SRC+7}   ; 8*(rho>>2)+(rho&3)')
    a(f'v_lshlrev_b32 v{V_A3}, 2, v{SRC+6}')
    a(f'v_add_u32 v{V_A3}, s18, v{V_A3}')
    npf2 = 0
    if PFPOS in 'BC':
        a('s_cmp_lg_u32 s52, 0')
        a('s_cbranch_scc1 K2_NOPF')
        if PFPOS == 'B':
            pf_A(0, 53, PR); pf_B(PR+2); npf2 = 2
        else:
            pf_A(10, 53, PR+4); npf2 = 1
        a.lab('K2_NOPF')
    a(f'v_lshlrev_b32 v{TMP+1}, 1, v{TMP+3}')
    a(f'v_add_u32 v{TMP+1}, s18, v{TMP+1}')
    if npf2:
        a('s_cmp_lg_u32 s52, 0')
        a('s_cbranch_scc1 K2_RW0')
        a(f's_waitcnt vmcnt({npf2}) lgkmcnt(0)')
        a('s_branch K2_RW1')
        a.lab('K2_RW0')
        a('s_waitcnt vmcnt(0) lgkmcnt(0)')
        a.lab('K2_RW1')
    else:
        a('s_waitcnt vmcnt(0) lgkmcnt(0)')
    a.stamp(4)
    if FUSE:
        a('s_or_b32 s62, s3, s52')
        a('s_cmp_lg_u32 s62, 0')
        a('s_cbranch_scc1 K2_PB_DONE')
        a('s_mov_b32 s61, 0x8000')
        poll_masks(AOP)
        a('s_and_b64 s[56:57], s[56:57], vcc')
        a('s_cmp_eq_u64 s[56:57], -1')
        a('s_cbranch_scc1 K2_PB_OK')
        RB = [AOP, MSGT, MSGT+4]
        poll_issue(RB[0])
        a('s_sleep 3')
        poll_issue(RB[1])
        a.lab('K2_POLLB')
        for k in range(3):
            a('s_sleep 3')
            poll_issue(RB[(k+2) % 3])
            a('s_waitcnt vmcnt(2)')
            poll_masks(RB[k])
            a('s_and_b64 s[56:57], s[56:57], vcc')
            a('s_cmp_eq_u64 s[56:57], -1')
            a('s_cbranch_scc1 K2_PB_OK0')
        a('s_sub_u32 s61, s61, 1')
        a('s_cmp_lg_u32 s61, 0')
        a('s_cbranch_scc1 K2_POLLB')
        a.lab('K2_PB_OK0')
        a('s_waitcnt vmcnt(0)')
        a.lab('K2_PB_OK')
        a(f'v_mov_b32 v{AOP}, {LBF}')
        a(f'v_mov_b32 v{AOP+1}, 1')
        a(f'ds_write_b32 v{AOP}, v{AOP+1}')
        a.lab('K2_PB_DONE')
    a(f'v_xor_b32 v{RC}, v{TMP+2}, v{RC}')
    a(f'v_add_u32 v{RC+3}, {ZROW}, v{RC+3}')
    a(f'ds_write_b32 v{TMP}, v{RC} offset:{O_SRC}')
    a(f'ds_write_b32 v{TMP}, v{RC+3} offset:{O_AOF}')
    X = os.environ.get('X','')
    def issue_row(i):
        t = T4 + (i & 1)
        a(f'v_add_u32 v{t}, v{SRC+i}, v{V_C}')
        if 'L' in X: return
        a(f'buffer_load_dwordx4 v[{gA(i,0)}:{gA(i,3)}], v{t}, s[44:47], 0 idxen {SCG}')
        if not os.environ.get('NOB'): a(f'buffer_load_dword v{GB+i}, v{t}, s[48:51], 0 idxen {SCG}')
    def read_src(off):
        a(f'ds_read_b128 v[{SRC}:{SRC+3}], v{V_A1} offset:{O_SRC+off}')
        a(f'ds_read_b128 v[{SRC+4}:{SRC+7}], v{V_A1} offset:{O_SRC+off+16}')
    read_src(0)
    if FUSE:
        a(f'v_mov_b32 v{AOP}, {LBF}')
        a('s_mov_b32 s61, 0x200000')
        a.lab('K2_TSPIN')
        a(f'ds_read_b32 v{AOP+1}, v{AOP}')
        a('s_waitcnt lgkmcnt(0)')
        a(f'v_readfirstlane_b32 s62, v{AOP+1}')
        a('s_cmp_lg_u32 s62, 0')
        a('s_cbranch_scc1 K2_TOK')
        a('s_sub_u32 s61, s61, 1')
        a('s_cmp_lg_u32 s61, 0')
        a('s_cbranch_scc1 K2_TSPIN')
        a.lab('K2_TOK')
        if os.environ.get('ST7') == '2': a.stamp(7)
    else:
        a('s_waitcnt lgkmcnt(0)')
    a('s_add_u32 s53, s58, s54')
    a('s_cmp_eq_u32 s53, 0')
    a('s_cbranch_scc1 K2_NOTILES')
    for i in range(4): issue_row(i)
    a(f'ds_write_b16 v{TMP+1}, v{RC+1} offset:{O_RX}')
    a(f'ds_write_b16_d16_hi v{TMP+1}, v{RC+1} offset:{O_RY}')
    a(f'ds_write_b16 v{TMP+1}, v{RC+2} offset:{O_RZ}')
    a(f'ds_write_b16_d16_hi v{TMP+1}, v{RC+2} offset:{O_OH}')
    for j in range(1, 5):
        a(f's_cmp_le_u32 s59, {64*j}')
        a('s_cbranch_scc1 K2_SOA_DONE')
        r = RC+4*j
        a(f'v_xor_b32 v{r}, v{TMP+2}, v{r}')
        a(f'v_add_u32 v{r+3}, {ZROW}, v{r+3}')
        a(f'ds_write_b32 v{TMP}, v{r} offset:{O_SRC+256*j}')
        a(f'ds_write_b32 v{TMP}, v{r+3} offset:{O_AOF+256*j}')
        a(f'ds_write_b16 v{TMP+1}, v{r+1} offset:{O_RX+128*j}')
        a(f'ds_write_b16_d16_hi v{TMP+1}, v{r+1} offset:{O_RY+128*j}')
        a(f'ds_write_b16 v{TMP+1}, v{r+2} offset:{O_RZ+128*j}')
        a(f'ds_write_b16_d16_hi v{TMP+1}, v{r+2} offset:{O_OH+128*j}')
    a.lab('K2_SOA_DONE')
    rare_id = [0]
    def load_A(ao0, ao1, tmp):
        k = rare_id[0]; rare_id[0] += 1
        a(f'v_or_b32 v{tmp}, v{ao0}, v{ao1}')
        a(f'v_cmp_gt_i32 vcc, 0, v{tmp}')
        a(f's_cbranch_vccnz K2_RARE{k}')
        a(f'v_add_u32 v{ao0}, v{ao0}, v{V_KQ8}')
        a(f'v_add_u32 v{ao1}, v{ao1}, v{V_KQ8}')
        a(f'ds_read_b64 v[{AOP}:{AOP+1}], v{ao0}')
        a(f'ds_read_b64 v[{AOP+2}:{AOP+3}], v{ao1}')
        a.lab(f'K2_RARE_BACK{k}')
        return (k, ao0, ao1)
    rares = []
    a(f'ds_read_b32 v{TMP+2}, v{V_A3} offset:{O_AOF}')
    a(f'ds_read_b32 v{TMP+3}, v{V_A3} offset:{O_AOF+16}')
    for i in range(4, 8): issue_row(i)
    a.stamp(5)
    a('s_waitcnt lgkmcnt(0)')
    rares.append(load_A(TMP+2, TMP+3, T4))
    a('s_waitcnt lgkmcnt(0)')
    def wf1(t, R, seg):
        if 'M' in X: return
        a(f'v_mfma_f32_16x16x16_bf16 v[{wf(seg,R)}:{wf(seg,R)+3}], v[{AOP+2*R}:{AOP+2*R+1}], v[{wb(seg,t)}:{wb(seg,t)+1}], 0')
    def seg1(t, ac, m, mc):
        if 'M' in X: return
        a(f'v_mfma_f32_16x16x32_bf16 v[{acc(ac,t)}:{acc(ac,t)+3}], v[{SM+4*m}:{SM+4*m+3}], v[{msg(mc)}:{msg(mc)+3}], v[{acc(ac,t)}:{acc(ac,t)+3}]')
    for seg in (1, 2, 0): wf1(0, 0, seg)
    for r in range(TMP, TMP+4): a(f'v_mov_b32 v{r}, 0')
    a.nop(4)
    if Asm.STAMPS:
        a('s_lshl_b32 s69, s3, 6')
        a(f's_add_u32 s69, s69, {K2_LDS}')
    a('s_mov_b32 s53, 0')
    a('s_cmp_eq_u32 s58, 0')
    a('s_cbranch_scc1 K2_HALF')
    a.lab('K2_TILE')
    if Asm.STAMPS:
        a('s_memrealtime s[90:91]')
        a('s_waitcnt lgkmcnt(0)')
        a(f'v_mov_b32 v{T4}, s90')
        a(f'v_mov_b32 v{T5}, s69')
        a(f'ds_write_b32 v{T5}, v{T4}')
        a('s_add_u32 s69, s69, 4')
    PRIO = os.environ.get('PRIO','1')
    if PRIO == '1':
        a('s_cmp_ge_u32 s58, 4')
        a('s_cbranch_scc1 K2_P2')
        a('s_cmp_ge_u32 s58, 2')
        a('s_cbranch_scc1 K2_P1')
        a('s_setprio 0')
        a('s_branch K2_PDONE')
        a.lab('K2_P1'); a('s_setprio 1'); a('s_branch K2_PDONE')
        a.lab('K2_P2'); a('s_setprio 2')
        a.lab('K2_PDONE')
    if PRIO == '2':
        a('s_cmp_ge_u32 s58, 4')
        a('s_cbranch_scc1 K2_P3')
        a('s_cmp_eq_u32 s58, 3')
        a('s_cbranch_scc1 K2_P2')
        a('s_cmp_eq_u32 s58, 2')
        a('s_cbranch_scc1 K2_P1')
        a('s_setprio 0')
        a('s_branch K2_PDONE')
        a.lab('K2_P1'); a('s_setprio 1'); a('s_branch K2_PDONE')
        a.lab('K2_P2'); a('s_setprio 2'); a('s_branch K2_PDONE')
        a.lab('K2_P3'); a('s_setprio 3')
        a.lab('K2_PDONE')
    if os.environ.get('SKIP','0') == '1':
        a('s_cmp_gt_u32 s58, 1')
        a('s_cselect_b32 s99, 2, s54')
    SEG = [1, 1, 1, 2, 0]
    X_, Y_, Z_, VR_, S_ = 0, 1, 2, 3, 4
    groups = []
    for c in range(5): groups.append((0, (0, c), (2, c)))
    for c in range(5): groups.append((0, (4, c), (6, c)))
    pm = [(0, 0), (0, 1), (0, 2), (0, 3), (0, 4), (2, 0), (2, 1), (2, 2), (2, 3), (2, 4)]
    for k in range(5): groups.append((1, pm[2*k], pm[2*k+1]))
    for c in range(5): groups.append((1, (4, c), (6, c)))
    def unpack(t, i, comp, u):
        s0 = gA(i, comp) if comp < 4 else GB+i
        s1 = gA(i+1, comp) if comp < 4 else GB+i+1
        if 'V' in X: return
        if t == 0:
            a(f'v_lshlrev_b32 v{u}, 16, v{s0}'); a(f'v_lshlrev_b32 v{u+1}, 16, v{s1}')
        else:
            a(f'v_and_b32 v{u}, 0xffff0000, v{s0}'); a(f'v_and_b32 v{u+1}, 0xffff0000, v{s1}')
    def pk(t, i, comp, u):
        R = i >> 2; r = i & 3; seg = SEG[comp]
        if 'V' in X: return
        a(f'v_pk_mul_f32 v[{u}:{u+1}], v[{u}:{u+1}], v[{wf(seg,R,r)}:{wf(seg,R,r+1)}]')
    def cvt(g):
        t, (i0_, c0), (i1_, c1) = groups[g]
        if 'V' in X: return
        a(f'v_cvt_pk_bf16_f32 v{msg(c0,i0_//2)}, v{TMP}, v{TMP+1}')
        a(f'v_cvt_pk_bf16_f32 v{msg(c1,i1_//2)}, v{TMP+2}, v{TMP+3}')
    def block(g, slot):
        t, (i0_, c0), (i1_, c1) = groups[g]
        if slot: slot()
        cvt((g-1) % 20)
        unpack(t, i0_, c0, TMP); unpack(t, i1_, c1, TMP+2)
        pk(t, i0_, c0, TMP); pk(t, i1_, c1, TMP+2)
    SS = {X_: (1, 0, 0), Y_: (2, 0, 1), Z_: (3, 0, 2), S_: (0, 0, 4), 'vx': (1, 1, 3), 'vy': (2, 2, 3), 'vz': (3, 3, 3)}
    def sg(t, k): return lambda: seg1(t, *SS[k])
    def wfl(t, R, seg): return lambda: wf1(t, R, seg)
    slots = {0: sg(1,'vx'), 1: sg(1,'vy'), 2: sg(1,'vz'), 3: sg(1,S_),
             4: wfl(0,1,1), 5: wfl(0,1,2), 6: wfl(0,1,0),
             7: sg(0,X_), 8: sg(0,Y_), 9: sg(0,Z_), 10: sg(0,'vx'), 11: sg(0,'vy'), 12: sg(0,'vz'), 13: sg(0,S_),
             14: wfl(1,1,1), 15: wfl(1,1,2), 16: wfl(1,1,0), 17: sg(1,X_), 18: sg(1,Y_), 19: sg(1,Z_)}
    VW = (lambda n: n//2) if os.environ.get('NOB') else (lambda n: n)
    for g in range(20):
        if g == 0: a(f's_waitcnt vmcnt({VW(8)})')
        if g == 5:
            a('s_waitcnt vmcnt(0)')
            RESPOS = int(os.environ.get('RESPOS','2'))
            a(f's_cmp_lt_u32 s53, {RESPOS}')
            a('s_cbranch_scc1 K2_RESSKIP')
            res_dma('A')
            a.lab('K2_RESSKIP')
        block(g, slots[g])
        if g == 3:
            wf1(1, 0, 1)
            a(f'ds_read_b128 v[{SM}:{SM+3}], v{V_A2} offset:{O_OH}')
            a(f'ds_read_b128 v[{SM+4}:{SM+7}], v{V_A2} offset:{O_RX}')
            a(f'ds_read_b128 v[{SM+8}:{SM+11}], v{V_A2} offset:{O_RY}')
            a(f'ds_read_b128 v[{SM+12}:{SM+15}], v{V_A2} offset:{O_RZ}')
            read_src(128)
        if g == 6:
            a('s_waitcnt lgkmcnt(2)')
            wf1(1, 0, 2)
            for j in range(4): a(f'v_pk_lshlrev_b16 v{SM+j}, v{V_SHL}, v{SM+j}')
            for j in range(4): a(f'v_pk_ashrrev_i16 v{SM+j}, 15, v{SM+j} op_sel_hi:[0,1]')
            wf1(1, 0, 0)
            for m in (1, 2, 3):
                for j in range(4): a(f'v_and_b32 v{SM+4*m+j}, v{SM+j}, v{SM+4*m+j}')
            for j in range(4): a(f'v_and_b32 v{SM+j}, 0x3f803f80, v{SM+j}')
            a(f'v_add_u32 v{V_A1}, 128, v{V_A1}')
            a(f'v_add_u32 v{V_A2}, 64, v{V_A2}')
        if g == 9: a('s_waitcnt lgkmcnt(0)')
        def guarded(rows, need, tag):
            if os.environ.get('SKIP','0') == '1':
                a(f's_cmp_lt_u32 s99, {need}')
                a(f's_cbranch_scc1 K2_SK{tag}')
            for r_ in rows: issue_row(r_)
            if os.environ.get('SKIP','0') == '1':
                a.lab(f'K2_SK{tag}')
        if g == 12:
            guarded((0, 1), 1, 'a')
            a(f'ds_read_b32 v{SRC}, v{V_A3} offset:{O_AOF+128}')
            a(f'ds_read_b32 v{SRC+1}, v{V_A3} offset:{O_AOF+128+16}')
        if g == 14:
            guarded((2, 3), 1, 'b')
        if g == 16:
            a('s_waitcnt lgkmcnt(0)')
            rares.append(load_A(SRC, SRC+1, T4))
        if g == 19:
            guarded((4,), 2, 'c')
            a('s_waitcnt lgkmcnt(0)')
            wf1(0, 0, 1)
            guarded((5,), 2, 'd')
            wf1(0, 0, 2)
            guarded((6,), 2, 'e')
            wf1(0, 0, 0)
            guarded((7,), 2, 'f')
    a(f'v_add_u32 v{V_A3}, 128, v{V_A3}')
    a('s_add_u32 s53, s53, 1')
    a('s_sub_u32 s58, s58, 1')
    a('s_cmp_lg_u32 s58, 0')
    a('s_cbranch_scc1 K2_TILE')
    a('s_cmp_eq_u32 s54, 0')
    a('s_cbranch_scc1 K2_FLUSH')
    a.lab('K2_HALF')
    a('s_setprio 0')
    hslots = {0: sg(1,'vx'), 1: sg(1,'vy'), 2: sg(1,'vz'), 3: sg(1,S_), 4: None}
    for g in range(5):
        if g == 0: a('s_waitcnt vmcnt(0)')
        block(g, hslots[g])
        if g == 3:
            wf1(1, 0, 1)
            a(f'ds_read_b128 v[{SM}:{SM+3}], v{V_A2} offset:{O_OH}')
            a(f'ds_read_b128 v[{SM+4}:{SM+7}], v{V_A2} offset:{O_RX}')
            a(f'ds_read_b128 v[{SM+8}:{SM+11}], v{V_A2} offset:{O_RY}')
            a(f'ds_read_b128 v[{SM+12}:{SM+15}], v{V_A2} offset:{O_RZ}')
    cvt(4)
    for c in range(5):
        a(f'v_mov_b32 v{msg(c,2)}, 0'); a(f'v_mov_b32 v{msg(c,3)}, 0')
    a('s_waitcnt lgkmcnt(0)')
    wf1(1, 0, 2)
    for j in range(4): a(f'v_pk_lshlrev_b16 v{SM+j}, v{V_SHL}, v{SM+j}')
    for j in range(4): a(f'v_pk_ashrrev_i16 v{SM+j}, 15, v{SM+j} op_sel_hi:[0,1]')
    wf1(1, 0, 0)
    for m in (1, 2, 3):
        for j in range(4): a(f'v_and_b32 v{SM+4*m+j}, v{SM+j}, v{SM+4*m+j}')
    for j in range(4): a(f'v_and_b32 v{SM+j}, 0x3f803f80, v{SM+j}')
    a('s_nop 1')
    seg1(0, *SS[X_]); seg1(0, *SS[Y_]); seg1(0, *SS[Z_])
    def block_nocvt(g, slot):
        t, (i0_, c0), (i1_, c1) = groups[g]
        if slot: slot()
        unpack(t, i0_, c0, TMP); unpack(t, i1_, c1, TMP+2)
        pk(t, i0_, c0, TMP); pk(t, i1_, c1, TMP+2)
    block_nocvt(10, sg(0,'vx'))
    seg1(0, *SS['vy'])
    block(11, sg(0,'vz'))
    block(12, sg(0,S_))
    block(13, None)
    block(14, None)
    cvt(14)
    a('s_nop 1')
    for k in (X_, Y_, Z_, 'vx', 'vy', 'vz', S_): seg1(1, *SS[k])
    a('s_waitcnt vmcnt(0) lgkmcnt(0)')
    a('s_branch K2_TILES_DONE')
    a.lab('K2_FLUSH')
    cvt(19)
    for k in ('vx', 'vy', 'vz'): seg1(1, *SS[k])
    seg1(1, *SS[S_])
    a('s_waitcnt vmcnt(0) lgkmcnt(0)')
    a('s_branch K2_TILES_DONE')
    a.lab('K2_NOTILES')
    a.lab('K2_TILES_DONE')
    a.stamp(6)
    a('s_add_u32 s52, s52, 256')
    a('s_cmp_lt_u32 s52, s19')
    a('s_cbranch_scc1 K2_MORE')
    a.lab('K2_EPI')
    res_dma('B')
    a('s_waitcnt vmcnt(0)')
    LN = T4
    a(f'v_mbcnt_lo_u32_b32 v{LN}, -1, 0')
    a(f'v_mbcnt_hi_u32_b32 v{LN}, -1, v{LN}')
    a('s_lshl_b32 s62, s3, 12')
    a(f's_add_u32 s62, s62, {RES0}')
    a(f'v_lshrrev_b32 v{T5}, 4, v{LN}')
    a(f'v_lshlrev_b32 v{T5}, 10, v{T5}')
    a(f'v_lshl_add_u32 v{T5}, v{V_C}, 2, v{T5}')
    a(f'v_add_u32 v{T5}, s62, v{T5}')
    for r in range(4):
        for comp in range(4):
            a(f'ds_read_b32 v{GA+r*4+comp}, v{T5} offset:{r*256+comp*64}')
    a('s_waitcnt lgkmcnt(0)')
    for r in range(4):
        for comp in range(4):
            x = GA+r*4+comp
            a(f'v_lshlrev_b32 v{TMP}, 16, v{x}')
            a(f'v_and_b32 v{TMP+1}, 0xffff0000, v{x}')
            a(f'v_add_f32 v{TMP}, v{TMP}, v{acc(comp,0)+r}')
            a(f'v_add_f32 v{TMP+1}, v{TMP+1}, v{acc(comp,1)+r}')
            a(f'v_cvt_pk_bf16_f32 v{x}, v{TMP}, v{TMP+1}')
            a(f'ds_write_b32 v{T5}, v{x} offset:{r*256+comp*64}')
    a(f'v_lshlrev_b32 v{TMP}, 4, v{LN}')
    a(f'v_add_u32 v{TMP}, s62, v{TMP}')
    for j in range(4):
        a(f'ds_read_b128 v[{MSG+4*j}:{MSG+4*j+3}], v{TMP} offset:{1024*j}')
    a(f'v_lshrrev_b32 v{T5}, 4, v{LN}')
    a(f'v_lshlrev_b32 v{TMP+1}, 10, v{T5}')
    a(f'v_bfe_u32 v{TMP+2}, v{LN}, 2, 2')
    a(f'v_lshl_add_u32 v{TMP+1}, v{TMP+2}, 8, v{TMP+1}')
    a(f'v_and_b32 v{TMP+2}, 3, v{LN}')
    a(f'v_lshl_add_u32 v{TMP+1}, v{TMP+2}, 4, v{TMP+1}')
    a('s_lshl_b32 s61, s15, 10')
    a('s_lshl_b32 s62, s13, 6')
    a('s_add_u32 s61, s61, s62')
    a(f'v_mov_b32 v{TMP+2}, 0x80000000')
    for j in range(4):
        a(f'v_add_u32 v{TMP+3}, {4*j}, v{T5}')
        a(f'v_cmp_gt_u32 vcc, s16, v{TMP+3}')
        a('s_nop 1')
        a(f'v_cndmask_b32 v{WF+j}, v{TMP+2}, v{TMP+1}, vcc')
    for j in range(4):
        a(f's_waitcnt lgkmcnt({3-j})')
        a(f'buffer_store_dwordx4 v[{MSG+4*j}:{MSG+4*j+3}], v{WF+j}, s[36:39], s61 offen {OUTST}')
        a('s_add_u32 s61, s61, 4096')
    if not os.environ.get('ST7'): a.stamp(7)
    if Asm.STAMPS and not os.environ.get('ST7'):
        a('s_memtime s[86:87]')
        a('s_waitcnt lgkmcnt(0)')
        a('s_sub_u32 s84, s86, s88')
    if Asm.STAMPS:
        a('s_lshl_b32 s68, s3, 6')
        a(f's_add_u32 s68, s68, {K2_LDS}')
        a(f'v_lshlrev_b32 v2, 2, v{LN}')
        a('v_add_u32 v3, s68, v2')
        a('ds_read_b32 v4, v3')
        a('s_add_u32 s64, s10, 0x1A00000')
        a('s_addc_u32 s65, s11, 0')
        a('s_mov_b32 s66, 0x100000')
        a('s_mov_b32 s67, 0x00020000')
        a('s_lshl_b32 s68, s2, 4')
        a('s_add_u32 s68, s68, s3')
        a('s_lshl_b32 s68, s68, 6')
        a('s_waitcnt lgkmcnt(0)')
        a('s_mov_b64 exec, 0xffff')
        a('buffer_store_dword v4, v2, s[64:67], s68 offen')
        a('s_mov_b64 exec, -1')
    if Asm.STAMPS and FUSE:
        a('s_lshl_b32 s68, s3, 5')
        a('s_add_u32 s68, s68, 155712')
        a(f'v_mbcnt_lo_u32_b32 v2, -1, 0')
        a(f'v_mbcnt_hi_u32_b32 v2, -1, v2')
        a('v_lshlrev_b32 v2, 2, v2')
        a('v_add_u32 v3, s68, v2')
        a('ds_read_b32 v4, v3')
        a('s_add_u32 s64, s10, 0x1800000')
        a('s_addc_u32 s65, s11, 0')
        a('s_mov_b32 s66, 0x100000')
        a('s_mov_b32 s67, 0x00020000')
        a('s_lshl_b32 s68, s2, 4')
        a('s_add_u32 s68, s68, s3')
        a('s_lshl_b32 s68, s68, 6')
        a('s_waitcnt lgkmcnt(0)')
        a('s_mov_b64 exec, 0xff')
        a('buffer_store_dword v4, v2, s[64:67], s68 offen')
        a('s_mov_b64 exec, -1')
    a.stamp_flush(1, 10, 8, 3)
    a.lab('K2_END')
    a('s_endpgm')
    a.lab('K2_MORE')
    for r in range(SM, SM+16): a(f'v_mov_b32 v{r}, 0')
    a(f'v_mbcnt_lo_u32_b32 v{LANE}, -1, 0')
    a(f'v_mbcnt_hi_u32_b32 v{LANE}, -1, v{LANE}')
    a(f'v_mul_u32_u24 v{TMP}, {NG*4}, v{LANE}')
    a('s_lshl_b32 s17, s14, 2')
    a(f'buffer_load_dword v{TMP+1}, v{TMP}, s[20:23], s17 offen {SC}')
    a('s_waitcnt vmcnt(0)')
    header()
    a(f'v_sub_u32 v{P}, v{P}, v{CNT}')
    a(f'v_lshl_add_u32 v{LOCB}, v{LANE}, 12, v{ST}')
    a('s_branch K2_CHUNK')
    for (k, ao0, ao1) in rares:
        a.lab(f'K2_RARE{k}')
        a(f'v_max_i32 v{T4}, 0, v{ao0}')
        a(f'v_max_i32 v{T5}, 0, v{ao1}')
        a(f'v_add_u32 v{T4}, v{T4}, v{V_KQ8}')
        a(f'v_add_u32 v{T5}, v{T5}, v{V_KQ8}')
        a(f'ds_read_b64 v[{AOP}:{AOP+1}], v{T4}')
        a(f'ds_read_b64 v[{AOP+2}:{AOP+3}], v{T5}')
        a('s_waitcnt lgkmcnt(0)')
        for h, ao in ((0, ao0), (1, ao1)):
            a(f'v_cmp_gt_i32 vcc, 0, v{ao}')
            a(f'v_add_u32 v{T4}, {HOT0*32}, v{ao}')
            a(f'v_add_u32 v{T4}, v{T4}, v{V_KQ8}')
            a('s_and_saveexec_b64 s[62:63], vcc')
            a(f's_cbranch_execz K2_RSK{k}_{h}')
            a(f'buffer_load_dwordx2 v[{AOP+2*h}:{AOP+2*h+1}], v{T4}, s[28:31], 0 offen {SC}')
            a('s_waitcnt vmcnt(0)')
            a.lab(f'K2_RSK{k}_{h}')
            a('s_mov_b64 exec, s[62:63]')
        a(f's_branch K2_RARE_BACK{k}')
```

```python
from asmlib import *
import os
STT = os.environ.get('STT','sc1')
STO = os.environ.get('STO','sc1')
LDN = os.environ.get('LDN','')

N = 10000; E = 160000
NBIN = 47; CHUNK = 3405; NG = 768
WS_TA = 0; WS_TB = 10240000; WS_ATAB = 0xC80000; WS_WB = 0xC90000; WS_HDR = 0xCA0000; WS_TAILS = 0xD00000
HOT0 = 1472; NHOT_KB = 17; ZROW = 17408
WS_FLAGS = 0xCF0000
FUSE = os.environ.get('FUSE','1') == '1'
KNAME = 'gather_scatter__molecular_angular_painn__graph_kernel'
COMP = bool(os.environ.get('COMP'))
DBASE = 0x38C0; DTHR = 0x409D
K1_LDS = 155712
S_BASE = 131072; HS_OFF = 12288

def srd(a, s, base, nbytes, off=0, stride=0):
    if off:
        a(f's_add_u32 s{s}, s{base}, 0x{off:x}')
        a(f's_addc_u32 s{s+1}, s{base+1}, 0')
    else:
        a(f's_mov_b32 s{s}, s{base}')
        a(f's_mov_b32 s{s+1}, s{base+1}')
    if stride:
        a(f's_or_b32 s{s+1}, s{s+1}, 0x{stride<<16:x}')
    a(f's_mov_b32 s{s+2}, {nbytes}')
    a(f's_mov_b32 s{s+3}, 0x00020000')

def gen_mlp(a):
    a.lab('K1_MLP')
    wave_ids(a)
    FLAG = 155648
    a('v_lshrrev_b32 v3, 4, v2          ; L>>4')
    a('v_and_b32 v4, 15, v2             ; L&15')
    a('v_mov_b32 v5, 0')
    a(f'v_mov_b32 v6, {FLAG}')
    a('ds_write_b32 v6, v5')
    a('s_and_b32 s26, s3, 1')
    a('s_lshl_b32 s26, s26, 2           ; 4*(wv&1)')
    a('v_add_u32 v6, s26, v3            ; kl7')
    a('v_lshrrev_b32 v7, 1, v4          ; p>>1')
    a('v_xor_b32 v7, v7, v6')
    a('v_and_b32 v8, 1, v4')
    a('v_lshl_or_b32 v7, v7, 1, v8      ; lchunk')
    a('v_lshlrev_b32 v7, 4, v7          ; *16')
    a('v_lshl_add_u32 v6, v3, 8, v7')
    a('v_mul_u32_u24 v8, 768, v3')
    a('v_add_u32 v7, v8, v7             ; vW2')
    a('s_sub_u32 s24, s91, 47')
    a('s_mul_i32 s24, s24, 48          ; node0')
    a('s_lshr_b32 s22, s3, 2           ; nt')
    a('s_and_b32 s23, s3, 3            ; sl')
    a('s_mov_b32 s30, 10240000')
    a('s_mov_b32 s31, 0x00020000')
    a('s_mov_b32 s34, 32768')
    a('s_mov_b32 s35, 0x00020000')
    a('s_mov_b32 s38, 98304')
    a('s_mov_b32 s39, 0x00020000')
    a('s_waitcnt lgkmcnt(0)')
    a.stamp(0)
    a('s_mov_b32 s28, s4')
    a('s_mov_b32 s29, s5')
    a('s_mov_b32 s32, s14')
    a('s_mov_b32 s33, s15')
    a('s_mov_b32 s36, s16')
    a('s_mov_b32 s37, s17')
    a('s_barrier')
    a('s_cmp_ge_u32 s3, 8')
    a('s_cbranch_scc1 K1_LOADER')
    a('s_lshl_b32 s25, s3, 2')
    a('v_add_u32 v5, s25, v3')
    a('v_and_b32 v9, 15, v5')
    a('v_xor_b32 v9, v4, v9             ; lchunk')
    a('v_add_u32 v5, s24, v5            ; node')
    a('v_lshlrev_b32 v5, 10, v5')
    a('v_lshl_add_u32 v5, v9, 4, v5')
    a('s_lshl_b32 s25, s3, 10')
    a(f's_add_u32 s25, s25, {S_BASE}')
    a('s_mov_b32 m0, s25')
    a('s_cmp_ge_u32 s3, 4')
    a(f'buffer_load_dwordx4 v5, s[28:31], 0 offen {LDN} lds')
    a('s_cbranch_scc1 K1_S2SKIP')
    a('s_add_u32 s25, s25, 8192')
    a('s_mov_b32 m0, s25')
    a('v_add_u32 v5, 0x8000, v5')
    a(f'buffer_load_dwordx4 v5, s[28:31], 0 offen {LDN} lds')
    a.lab('K1_S2SKIP')
    for j in range(4):
        a(f's_add_u32 s25, s3, {8*j}')
        a('s_lshl_b32 s26, s25, 10')
        a('s_mov_b32 m0, s26')
        a('s_nop 0')
        a('buffer_load_dwordx4 v6, s[32:35], s26 offen lds')
    HYB = int(os.environ.get('HYB','0'))
    if HYB:
        jobs = [(1, j) for j in range(4)] + ([(2, j) for j in range(2)] if HYB == 2 else [])
        for (m, j) in jobs:
            a(f's_add_u32 s25, s3, {8*j}')
            a('s_lshl_b32 s26, s25, 10')
            a(f's_add_u32 s26, s26, {m*32768}')
            a('s_mov_b32 m0, s26')
            a('s_mul_i32 s27, s25, 3072')
            if m > 1: a(f's_add_u32 s27, s27, {(m-1)*256}')
            a('buffer_load_dwordx4 v7, s[36:39], s27 offen lds')
    a('s_branch K1_ADDR')
    a.lab('K1_LOADER')
    a('s_sub_u32 s49, s3, 8')
    for m in range(2 if HYB else 1, 4):
        for j in range(8):
            if HYB == 2 and m == 2 and j < 4: continue
            a(f's_add_u32 s25, s49, {4*j}')
            a('s_lshl_b32 s26, s25, 10')
            a(f's_add_u32 s26, s26, {m*32768}')
            a('s_mov_b32 m0, s26')
            a('s_mul_i32 s27, s25, 3072')
            a(f's_add_u32 s27, s27, {(m-1)*256}')
            a('buffer_load_dwordx4 v7, s[36:39], s27 offen lds')
    a.lab('K1_ADDR')
    cpf(a, 'M')
    a('s_mul_i32 s25, s23, 2560000')
    a('s_add_u32 s40, s20, s25')
    a('s_addc_u32 s41, s21, 0')
    a('s_mov_b32 s42, 2560000')
    a('s_mov_b32 s43, 0x00020000')
    a('s_mul_i32 s25, s23, 640000')
    a(f's_add_u32 s25, s25, {WS_TB}')
    a('s_add_u32 s44, s20, s25')
    a('s_addc_u32 s45, s21, 0')
    a('s_mov_b32 s46, 640000')
    a('s_mov_b32 s47, 0x00020000')
    if FUSE: dbg_srd(a)
    a('s_lshl_b32 s25, s22, 4')
    a('s_add_u32 s25, s25, s24           ; node0+16nt')
    a('s_mov_b32 s48, s25')
    a('v_add_u32 v8, s25, v4')
    a('v_lshlrev_b32 v8, 10, v8')
    a('v_lshl_add_u32 v8, v3, 3, v8')
    a('s_lshl_b32 s26, s23, 6')
    a('s_add_u32 s26, s26, 256')
    a('v_add_u32 v8, s26, v8')
    VV = 10
    def vloads():
        for j in range(3):
            for hf in range(2):
                r = VV + (j*2+hf)*2
                a(f'buffer_load_dwordx2 v[{r}:{r+1}], v8, s[28:31], 0 offen offset:{j*256+32*hf} {LDN}')
    a('v_lshrrev_b32 v22, 2, v4           ; r\'')
    a('v_lshl_add_u32 v22, v3, 2, v22     ; 4kq + r\'')
    a('v_and_b32 v23, 7, v22              ; kl7')
    a('v_lshlrev_b32 v22, 8, v22')
    a('v_lshl_add_u32 v22, v23, 5, v22')
    a('v_and_b32 v23, 3, v4')
    a('v_lshl_add_u32 v22, v23, 3, v22    ; aBase')
    a('s_lshl_b32 s25, s23, 6             ; 2*sl*32')
    a('v_xor_b32 v24, s25, v22')
    a('v_xor_b32 v25, 32, v24             ; aW[hf=1]')
    a('v_add_u32 v26, 0x10000, v24        ; aW2[0] (+65536)')
    a('v_add_u32 v27, 0x10000, v25        ; aW2[1]')
    a('v_lshrrev_b32 v23, 1, v3')
    a('v_xor_b32 v23, v23, v4')
    a('v_lshlrev_b32 v23, 4, v23')
    a('v_and_b32 v28, 1, v3')
    a('v_lshl_add_u32 v23, v28, 3, v23')
    a('v_lshl_add_u32 v23, v4, 8, v23')
    a(f'v_add_u32 v23, {S_BASE}, v23      ; bBase0')
    VB = 28
    for st in range(4):
        for rd in range(2):
            k = (4*st + 2*rd)*16
            r = VB + st*2 + rd
            if k == 0: a(f'v_mov_b32 v{r}, v23')
            else: a(f'v_xor_b32 v{r}, {k}, v23')
    a('v_mov_b32 v38, 0xffff0000')
    a('s_cmp_ge_u32 s3, 8')
    a('s_cbranch_scc1 K1_LOADER2')
    a('s_lshl_b32 s25, s3, 5')
    a('v_xor_b32 v36, s25, v22')
    a('v_xor_b32 v37, s25, v23')
    a.stamp(1)
    a(f's_waitcnt vmcnt({[0,4,6][HYB]})')
    a(f'v_mov_b32 v39, {FLAG}')
    a('v_mov_b32 v9, 1')
    a('s_mov_b64 exec, 1')
    a('ds_add_u32 v39, v9')
    a('s_mov_b64 exec, -1')
    a.lab('K1_SPIN')
    a('ds_read_b32 v9, v39')
    a('s_waitcnt lgkmcnt(0)')
    a('v_readfirstlane_b32 s25, v9')
    a('s_cmp_lt_u32 s25, 8')
    a('s_cbranch_scc1 K1_SPIN')
    a.stamp(2)
    AF = 56
    BL = 72
    D1 = 40
    for st in range(4):
        for rd in range(2):
            r = AF + st*4 + rd*2
            a(f'ds_read_b64_tr_b16 v[{r}:{r+1}], v36 offset:{st*8192+rd*4096}')
    for nt in range(3):
        for st in range(4):
            for rd in range(2):
                r = BL + nt*16 + st*4 + rd*2
                a(f'ds_read_b64 v[{r}:{r+1}], v{VB+st*2+rd} offset:{nt*4096}')
    vloads()
    for r in range(D1, D1+12): a(f'v_mov_b32 v{r}, 0')
    a('s_waitcnt lgkmcnt(0)')
    for st in range(4):
        for nt in range(3):
            A_ = AF + st*4; B_ = BL + nt*16 + st*4; D_ = D1 + nt*4
            a(f'v_mfma_f32_16x16x32_bf16 v[{D_}:{D_+3}], v[{A_}:{A_+3}], v[{B_}:{B_+3}], v[{D_}:{D_+3}]')
    a.nop(8)
    a.stamp(3)
    T = 56
    for p in range(6):
        a(f'v_cvt_pk_bf16_f32 v{T+p}, v{D1+2*p}, v{D1+2*p+1}')
    for p in range(6):
        a(f'v_lshlrev_b32 v{D1+2*p}, 16, v{T+p}')
        a(f'v_and_b32 v{D1+2*p+1}, v38, v{T+p}')
    for i in range(12):
        a(f'v_mul_f32 v{T+i}, 0xbfb8aa3b, v{D1+i}     ; -log2e*h')
    for i in range(12):
        a(f'v_exp_f32 v{T+i}, v{T+i}')
    a('s_nop 0')
    for i in range(12):
        a(f'v_add_f32 v{T+i}, 1.0, v{T+i}')
    for i in range(12):
        a(f'v_rcp_f32 v{T+i}, v{T+i}')
    a('s_nop 0')
    for i in range(12):
        a(f'v_mul_f32 v{T+i}, v{D1+i}, v{T+i}')
    for p in range(6):
        a(f'v_cvt_pk_bf16_f32 v{D1+p}, v{T+2*p}, v{T+2*p+1}')
    for nt in range(3):
        a(f'ds_write_b64 v37, v[{D1+2*nt}:{D1+2*nt+1}] offset:{HS_OFF+nt*4096}')
    a('s_waitcnt vmcnt(6) lgkmcnt(0)')
    a('s_branch K1_B2')
    a.lab('K1_LOADER2')
    vloads()
    a.stamp(1); a.stamp(2); a.stamp(3)
    a('s_waitcnt vmcnt(6)')
    a.lab('K1_B2')
    a('s_lshl_b32 s25, s22, 12')
    for r in range(VB, VB+8): a(f'v_add_u32 v{r}, s25, v{r}')
    a('s_barrier')
    a.stamp(4)
    BS = 40; AF = 56
    nonce_load(a, 'M')
    for st in range(4):
        for rd in range(2):
            r = BS + st*4 + rd*2
            a(f'ds_read_b64 v[{r}:{r+1}], v{VB+st*2+rd} offset:{HS_OFF}')
    D2 = 96
    bufs = [AF, AF+16, 120]
    def issueA(seg, hf, bi):
        buf = bufs[bi]
        if seg == 0: areg = 24+hf; base = 32768
        else: areg = 26+hf; base = (seg-1)*32768
        for st in range(4):
            for rd in range(2):
                r = buf + st*4 + rd*2
                a(f'ds_read_b64_tr_b16 v[{r}:{r+1}], v{areg} offset:{base+st*8192+rd*4096}')
    a('s_lshl_b32 s25, s3, 11')
    a('v_and_b32 v9, 7, v4')
    a('v_lshlrev_b32 v28, 1, v3           ; 2q')
    a('v_xor_b32 v28, v28, v9')
    a('v_lshlrev_b32 v28, 4, v28')
    a('v_lshl_add_u32 v28, v4, 7, v28')
    a('v_add_u32 v28, s25, v28            ; chunk 2q')
    a('v_xor_b32 v29, 16, v28             ; chunk 2q+1')
    a('v_lshrrev_b32 v30, 3, v2           ; L>>3')
    a('v_and_b32 v31, 7, v2               ; p')
    a('v_xor_b32 v33, v31, v30            ; p ^ (node&7)')
    a('v_lshlrev_b32 v33, 4, v33')
    a('v_lshl_add_u32 v33, v30, 7, v33')
    a('v_add_u32 v33, s25, v33')
    a('s_lshl_b32 s26, s48, 8')
    a('v_lshlrev_b32 v34, 8, v30')
    a('v_lshl_add_u32 v34, v31, 4, v34')
    a('v_add_u32 v34, s26, v34')
    a('s_lshl_b32 s25, s3, 10')
    a(f's_add_u32 s25, s25, {S_BASE}')
    a('v_lshlrev_b32 v32, 6, v4')
    a('v_lshl_add_u32 v32, v3, 3, v32')
    a('v_add_u32 v32, s25, v32')
    a('v_lshlrev_b32 v39, 4, v2           ; L*16')
    a('v_add_u32 v37, s25, v39')
    a('s_lshl_b32 s27, s48, 6')
    a('v_add_u32 v39, s27, v39')
    O1 = 80; O2 = 84; OB = 88; PV = 90; TT = 108; R0 = 64
    issueA(0, 0, 0)
    a('s_waitcnt lgkmcnt(8)')
    for hf in range(2):
        for r in range(D2, D2+12): a(f'v_mov_b32 v{r}, 0')
        for seg in range(3):
            bi = (hf*3+seg) % 3
            nxt = hf*3+seg+1
            if nxt < 6:
                a('s_waitcnt lgkmcnt(7)')
                issueA(nxt % 3, nxt // 3, nxt % 3)
                a('s_waitcnt lgkmcnt(8)')
            else:
                a('s_waitcnt lgkmcnt(0)')
            D_ = D2 + seg*4
            buf = bufs[bi]
            for st in range(4):
                a(f'v_mfma_f32_16x16x32_bf16 v[{D_}:{D_+3}], v[{buf+st*4}:{buf+st*4+3}], v[{BS+st*4}:{BS+st*4+3}], v[{D_}:{D_+3}]')
        if hf == 0: a('s_waitcnt vmcnt(0)')
        a.nop(8)
        Ds = D2; Dv = D2+4; Dr = D2+8
        a(f'v_cvt_pk_bf16_f32 v{OB}, v{Ds}, v{Ds+1}')
        a(f'v_cvt_pk_bf16_f32 v{OB+1}, v{Ds+2}, v{Ds+3}')
        a(f'v_cvt_pk_bf16_f32 v{O1+3}, v{Dr}, v{Dr+1}')
        a(f'v_cvt_pk_bf16_f32 v{O2+3}, v{Dr+2}, v{Dr+3}')
        a(f'v_cvt_pk_bf16_f32 v{TT}, v{Dv}, v{Dv+1}')
        a(f'v_cvt_pk_bf16_f32 v{TT+1}, v{Dv+2}, v{Dv+3}')
        a(f'v_lshlrev_b32 v{PV}, 16, v{TT}')
        a(f'v_and_b32 v{PV+1}, v38, v{TT}')
        a(f'v_lshlrev_b32 v{PV+2}, 16, v{TT+1}')
        a(f'v_and_b32 v{PV+3}, v38, v{TT+1}')
        for j in range(3):
            r = VV + (j*2+hf)*2
            t = TT
            a(f'v_lshlrev_b32 v{t}, 16, v{r}')
            a(f'v_and_b32 v{t+1}, v38, v{r}')
            a(f'v_lshlrev_b32 v{t+2}, 16, v{r+1}')
            a(f'v_and_b32 v{t+3}, v38, v{r+1}')
            a(f'v_pk_mul_f32 v[{t}:{t+1}], v[{t}:{t+1}], v[{PV}:{PV+1}]')
            a(f'v_pk_mul_f32 v[{t+2}:{t+3}], v[{t+2}:{t+3}], v[{PV+2}:{PV+3}]')
            a(f'v_cvt_pk_bf16_f32 v{O1+j}, v{t}, v{t+1}')
            a(f'v_cvt_pk_bf16_f32 v{O2+j}, v{t+2}, v{t+3}')
        a(f'ds_write_b128 v28, v[{O1}:{O1+3}]')
        a(f'ds_write_b128 v29, v[{O2}:{O2+3}]')
        a(f'ds_write_b64 v32, v[{OB}:{OB+1}] offset:{32*hf}')
        RR = R0 if hf == 0 else 40 + 0
        RR = 108 + 4 if hf == 0 else 40
        a(f'ds_read_b128 v[{RR}:{RR+3}], v33')
        a(f'ds_read_b128 v[{RR+4}:{RR+7}], v33 offset:1024')
        if hf == 1:
            a(f'ds_read_b128 v[{RR+8}:{RR+11}], v37')
        if hf == 0:
            a.stamp(5)
        a(f's_waitcnt lgkmcnt({1 if hf == 0 else 2})')
        a(f'buffer_store_dwordx4 v[{RR}:{RR+3}], v34, s[40:43], 0 offen offset:{128*hf} {STT}')
        a(f's_waitcnt lgkmcnt({0 if hf == 0 else 1})')
        a(f'buffer_store_dwordx4 v[{RR+4}:{RR+7}], v34, s[40:43], 0 offen offset:{2048+128*hf} {STT}')
        if hf == 1:
            a('s_waitcnt lgkmcnt(0)')
            a(f'buffer_store_dwordx4 v[{RR+8}:{RR+11}], v39, s[44:47], 0 offen {STT}')
    a.stamp(6)
    role_end(a, True)

def nonce_load(a, tag):
    if FUSE:
        a('s_cmp_lg_u32 s3, 0')
        a(f's_cbranch_scc1 K1_NL{tag}')
        a('v_mov_b32 v165, 0')
        a('buffer_load_dword v166, v165, s[92:95], 0 offen sc1')
        a.lab(f'K1_NL{tag}')

def get_nonce(a, tag):
    a('s_mov_b32 s68, 0x10000')
    a.lab(f'K1_NLOOP{tag}')
    a('v_readfirstlane_b32 s100, v166')
    a('s_cmp_lg_u32 s100, 0')
    a(f's_cbranch_scc1 K1_NOK{tag}')
    a('v_mov_b32 v165, 0')
    a('buffer_load_dword v166, v165, s[92:95], 0 offen sc1')
    a('s_waitcnt vmcnt(0)')
    a('s_sub_u32 s68, s68, 1')
    a('s_cmp_lg_u32 s68, 0')
    a(f's_cbranch_scc1 K1_NLOOP{tag}')
    a.lab(f'K1_NOK{tag}')

def publish(a, off):
    a(f's_add_u32 s64, s20, 0x{WS_FLAGS:x}')
    a('s_addc_u32 s65, s21, 0')
    a('s_mov_b32 s66, 16384')
    a('s_mov_b32 s67, 0x00020000')
    a('v_mbcnt_lo_u32_b32 v164, -1, 0')
    a('v_mbcnt_hi_u32_b32 v164, -1, v164')
    a('v_lshlrev_b32 v164, 11, v164           ; replica*2048')
    a('s_lshl_b32 s68, s91, 2')
    a(f's_add_u32 s68, s68, {off}')
    a('v_mov_b32 v163, s100')
    a('s_mov_b64 exec, 0xff')
    a('buffer_store_dword v163, v164, s[64:67], s68 offen sc1')
    a('s_mov_b64 exec, -1')

def role_end(a, mlp=False):
    if FUSE and mlp:
        a('s_mov_b32 s101, 1')
        a('s_waitcnt lgkmcnt(0)')
        a('s_barrier')
        if Asm.STAMPS:
            a('s_memrealtime s[84:85]')
            a('s_waitcnt lgkmcnt(0)')
            a('s_lshl_b32 s68, s3, 5')
            a('s_add_u32 s68, s68, 155712')
            a('v_mov_b32 v1, s68')
            for i in range(8):
                a(f'v_mov_b32 v2, s{70+2*i}')
                a(f'ds_write_b32 v1, v2 offset:{4*i}')
        a('s_cmp_lg_u32 s3, 0')
        a('s_cbranch_scc1 K2_START')
        a('s_waitcnt vmcnt(5)')
        get_nonce(a, 'M')
    elif FUSE:
        a('s_mov_b32 s101, 0')
        a('s_branch K1_DONE')
    else:
        a.stamp_flush(0, 20, 7, 3)
        a('s_endpgm')

def bf16_round_pair(a, dst, x, y):
    a(f'v_cvt_pk_bf16_f32 v{dst}, v{x}, v{y}')

def gen_bin(a):
    a.lab('K1_BIN')
    wave_ids(a)
    a('s_waitcnt lgkmcnt(0)')
    a.stamp(0)
    srd(a, 28, 8, E*4)
    srd(a, 32, 10, E*4)
    srd(a, 36, 6, N*6)
    srd(a, 40, 20, NBIN*NG*4, off=WS_HDR)
    srd(a, 44, 20, NBIN*65536, off=WS_TAILS)
    a(f's_mul_i32 s24, s91, {CHUNK}           ; e0')
    a(f's_sub_u32 s25, {E}, s24')
    a(f's_min_u32 s25, s25, {CHUNK}          ; lim')
    a('v_lshlrev_b32 v1, 2, v0')
    a('v_mov_b32 v3, 0')
    a('ds_write_b32 v1, v3')
    SRC = 10; DST = 15; PS = 20; PD = 30; REC = 40; GG = 60; RK = 65
    POSL = 69632
    srd(a, 64, 12, 32)
    srd(a, 84, 20, 65536, off=WS_ATAB)
    a('v_and_b32 v82, 15, v0                 ; k')
    a('v_lshlrev_b32 v83, 1, v82')
    a('buffer_load_ushort v84, v83, s[64:67], 0 offen')
    a('s_cmp_lg_u32 s91, 0')
    a('s_cbranch_scc1 K1_NOWB1')
    srd(a, 64, 18, 16*768)
    a('v_lshrrev_b32 v90, 4, v2               ; kq')
    a('v_and_b32 v91, 15, v2                  ; c')
    a('v_mul_u32_u24 v90, 3072, v90           ; 4kq*768')
    a('v_lshl_add_u32 v90, v91, 2, v90')
    a('s_and_b32 s61, s3, 3')
    a('s_lshr_b32 s62, s3, 2')
    a('s_lshl_b32 s63, s61, 6')
    a('s_lshl_b32 s68, s62, 8')
    a('s_add_u32 s63, s63, s68')
    for i in range(4):
        a(f'buffer_load_dword v{92+i}, v90, s[64:67], s63 offen offset:{i*768}')
    a.lab('K1_NOWB1')
    a('v_lshlrev_b32 v5, 4, v2               ; lane*16')
    for k in range(5):
        if k == 4:
            a('s_cmp_ge_u32 s3, 11')
            a('s_cbranch_scc1 K1_POSDONE')
        a(f's_add_u32 s26, s3, {12*k}')
        a('s_lshl_b32 s26, s26, 10')
        a(f's_add_u32 s27, s26, {POSL}')
        a('s_mov_b32 m0, s27')
        a('s_nop 0')
        a('buffer_load_dwordx4 v5, s[36:39], s26 offen lds')
    a.lab('K1_POSDONE')
    a('v_add_u32 v4, s24, v0')
    a('v_lshlrev_b32 v4, 2, v4              ; e*4 (round 0)')
    for j in range(5):
        a(f's_mov_b32 s26, {j*3072}')
        a(f'buffer_load_dword v{SRC+j}, v4, s[28:31], s26 offen {LDN}')
        a(f'buffer_load_dword v{DST+j}, v4, s[32:35], s26 offen {LDN}')
    for j in range(5):
        a(f'v_add_u32 v5, {j*768}, v0')
        a(f'v_cmp_gt_u32 s[{50+2*j}:{51+2*j}], s25, v5')
    a('v_mov_b32 v6, 0xffff0000')
    if FUSE:
        dbg_srd(a)
        a('s_or_b32 s68, s2, s3')
        a('s_cmp_lg_u32 s68, 0')
        a('s_cbranch_scc1 K1_NONONCE')
        a('s_memrealtime s[98:99]')
        a('s_waitcnt lgkmcnt(0)')
        a('s_or_b32 s98, s98, 1')
        a('v_mov_b32 v166, s98')
        a('v_mov_b32 v165, 0')
        a('s_mov_b64 exec, 1')
        a('buffer_store_dword v166, v165, s[92:95], 0 offen sc1')
        a('s_mov_b64 exec, -1')
        a.lab('K1_NONONCE')
    cpf(a, 'B')
    a('v_lshrrev_b32 v85, 4, v0')
    a('s_mul_i32 s61, s91, 48')
    a('v_add_u32 v85, s61, v85             ; entry')
    a(f'v_add_u32 v86, 0x{DBASE:x}, v85')
    a('v_lshlrev_b32 v86, 16, v86          ; d')
    a('v_mul_f32 v87, 0x40490fdb, v86       ; pi*d')
    a('v_cvt_pk_bf16_f32 v87, v87, v87')
    a('v_and_b32 v87, v6, v87')
    a('v_mul_f32 v87, 0x3e4ccccd, v87       ; /5')
    a('v_cvt_pk_bf16_f32 v87, v87, v87')
    a('v_and_b32 v87, v6, v87')
    a('v_mul_f32 v87, 0x3e22f983, v87')
    a('v_cos_f32 v87, v87')
    a('v_rcp_f32 v88, v86                   ; 1/d')
    a('v_cvt_pk_bf16_f32 v87, v87, v87')
    a('v_and_b32 v87, v6, v87')
    a('v_add_f32 v87, 1.0, v87')
    a('v_cvt_pk_bf16_f32 v87, v87, v87')
    a('v_and_b32 v87, v6, v87')
    a('v_mul_f32 v87, 0.5, v87              ; fcut')
    a('v_cmp_gt_u32 vcc, 0x40a00000, v86')
    a('v_cmp_ne_u32 s[62:63], 0, v85')
    a('s_and_b64 vcc, vcc, s[62:63]')
    a('s_nop 1')
    a('v_cndmask_b32 v87, 0, v87, vcc')
    a('s_waitcnt vmcnt(14)')
    a('v_lshlrev_b32 v84, 16, v84           ; f_k')
    a('v_mul_f32 v84, v84, v86')
    a('v_cvt_pk_bf16_f32 v84, v84, v84')
    a('v_and_b32 v84, v6, v84               ; arg')
    a('v_mul_f32 v89, 0x3e22f983, v84')
    a('v_mov_b32 v81, 0x3e22f983')
    a('v_fma_f32 v80, v84, v81, -v89')
    a('v_mov_b32 v81, 0x31dc9c88')
    a('v_fma_f32 v80, v84, v81, v80')
    a('v_fract_f32 v89, v89')
    a('v_add_f32 v89, v89, v80')
    a('v_sin_f32 v89, v89')
    a('s_nop 0')
    a('v_cvt_pk_bf16_f32 v89, v89, v89')
    a('v_and_b32 v89, v6, v89')
    a('v_mul_f32 v89, v89, v88')
    a('v_cvt_pk_bf16_f32 v89, v89, v89')
    a('v_and_b32 v89, v6, v89')
    a('v_mul_f32 v89, v89, v87')
    a('v_cvt_pk_bf16_f32 v89, v89, v89')
    a('s_nop 1')
    a('v_mov_b32_dpp v88, v89 quad_perm:[1,0,3,2] row_mask:0xf bank_mask:0xf')
    a('v_and_b32 v89, 0xffff, v89')
    a('v_and_b32 v88, v6, v88')
    a('v_or_b32 v89, v89, v88')
    a('v_lshlrev_b32 v85, 5, v85')
    a('v_add_u32 v85, v85, v83               ; entry*32 + 2k')
    a('s_waitcnt vmcnt(10) lgkmcnt(0)')
    a('s_barrier')
    a.stamp(1)
    a('s_mov_b32 s62, 0x55555555')
    a('s_mov_b32 s63, 0x55555555')
    a('s_mov_b64 exec, s[62:63]')
    a(f'buffer_store_dword v89, v85, s[84:87], 0 offen {STO}')
    a('s_mov_b64 exec, -1')
    a('s_cmp_lg_u32 s91, 0')
    a('s_cbranch_scc1 K1_NOWB2')
    srd(a, 64, 20, 12288, off=WS_WB)
    a('s_mov_b32 s62, 0x05040100')
    a('s_mov_b32 s63, 0x07060302')
    a('v_perm_b32 v96, v93, v92, s62')
    a('v_perm_b32 v97, v95, v94, s62')
    a('v_perm_b32 v98, v93, v92, s63')
    a('v_perm_b32 v99, v95, v94, s63')
    a('s_and_b32 s61, s3, 3')
    a('s_lshr_b32 s62, s3, 2')
    a('s_mul_i32 s61, s61, 3')
    a('s_add_u32 s61, s61, s62')
    a('s_lshl_b32 s61, s61, 10                ; (slice*3+seg)*1024')
    a('v_lshlrev_b32 v91, 4, v2')
    a(f'buffer_store_dwordx4 v[96:99], v91, s[64:67], s61 offen {STO}')
    a.lab('K1_NOWB2')
    for j in range(5):
        a(f's_waitcnt vmcnt({8-2*j+1})')
        for (idx, dstp) in ((SRC+j, PS+2*j), (DST+j, PD+2*j)):
            a(f'v_mul_u32_u24 v5, 6, v{idx}')
            a('v_and_b32 v5, -4, v5')
            a(f'v_add_u32 v5, {POSL}, v5')
            a(f'ds_read2_b32 v[{dstp}:{dstp+1}], v5 offset0:0 offset1:1')
    a.stamp(2)
    a('s_mov_b32 s26, 5033')
    a('s_mov_b32 s27, 853362')
    a('v_mov_b32 v7, 1')
    a('v_mov_b32 v8, 65000')
    a('v_mov_b32 v9, 0x10000')
    for j in range(5):
        a(f's_waitcnt lgkmcnt({min(15, 8-2*j + j)})')
        ps = PS+2*j; pd = PD+2*j; rec = REC+4*j
        t = 70
        a(f'v_and_b32 v{t}, 1, v{SRC+j}')
        a(f'v_lshlrev_b32 v{t}, 4, v{t}')
        a(f'v_lshrrev_b64 v[{ps}:{ps+1}], v{t}, v[{ps}:{ps+1}]')
        a(f'v_and_b32 v{t+1}, 1, v{DST+j}')
        a(f'v_lshlrev_b32 v{t+1}, 4, v{t+1}')
        a(f'v_lshrrev_b64 v[{pd}:{pd+1}], v{t+1}, v[{pd}:{pd+1}]')
        a(f'v_lshlrev_b32 v{t}, 16, v{ps}')
        a(f'v_and_b32 v{t+1}, v6, v{ps}')
        a(f'v_lshlrev_b32 v{t+2}, 16, v{pd}')
        a(f'v_and_b32 v{t+3}, v6, v{pd}')
        a(f'v_pk_add_f32 v[{t}:{t+1}], v[{t}:{t+1}], v[{t+2}:{t+3}] neg_lo:[0,1] neg_hi:[0,1]')
        a(f'v_lshlrev_b32 v{t+2}, 16, v{ps+1}')
        a(f'v_lshlrev_b32 v{t+3}, 16, v{pd+1}')
        a(f'v_sub_f32 v{t+2}, v{t+2}, v{t+3}      ; rz')
        a(f'v_cvt_pk_bf16_f32 v{t+3}, v{t}, v{t+1}')
        a(f'v_cvt_pk_bf16_f32 v{t+4}, v{t+2}, v{t+2}')
        a(f'v_lshlrev_b32 v{t}, 16, v{t+3}')
        a(f'v_and_b32 v{t+1}, v6, v{t+3}')
        a(f'v_and_b32 v{t+2}, v6, v{t+4}')
        a(f'v_pk_mul_f32 v[{t+4}:{t+5}], v[{t}:{t+1}], v[{t}:{t+1}]')
        a(f'v_mul_f32 v{t+3}, v{t+2}, v{t+2}')
        a(f'v_cvt_pk_bf16_f32 v{t+4}, v{t+4}, v{t+5}')
        a(f'v_cvt_pk_bf16_f32 v{t+3}, v{t+3}, v{t+3}')
        a(f'v_lshlrev_b32 v{t+5}, 16, v{t+4}')
        a(f'v_and_b32 v{t+4}, v6, v{t+4}')
        a(f'v_and_b32 v{t+3}, v6, v{t+3}')
        a(f'v_add_f32 v{t+4}, v{t+5}, v{t+4}')
        a(f'v_add_f32 v{t+3}, v{t+4}, v{t+3}')
        a(f'v_cvt_pk_bf16_f32 v{t+3}, v{t+3}, v{t+3}')
        a(f'v_and_b32 v{t+3}, v6, v{t+3}')
        a(f'v_add_f32 v{t+3}, 0x322bcc77, v{t+3}   ; +1e-8')
        a(f'v_cvt_pk_bf16_f32 v{t+3}, v{t+3}, v{t+3}')
        a(f'v_and_b32 v{t+3}, v6, v{t+3}')
        a(f'v_sqrt_f32 v{t+3}, v{t+3}')
        a(f'v_mul_u32_u24 v{GG+j}, s26, v{DST+j}')
        a(f'v_cvt_pk_bf16_f32 v{t+3}, v{t+3}, v{t+3}')
        a(f'v_and_b32 v{t+3}, v6, v{t+3}           ; d (f32 bits)')
        a(f'v_rcp_f32 v{t+4}, v{t+3}')
        a(f'v_lshrrev_b32 v{GG+j}, 16, v{GG+j}       ; g')
        a(f'v_pk_mul_f32 v[{t}:{t+1}], v[{t}:{t+1}], v[{t+4}:{t+5}] op_sel_hi:[1,0]')
        a(f'v_mul_f32 v{t+2}, v{t+2}, v{t+4}')
        a(f'v_cvt_pk_bf16_f32 v{rec+1}, v{t}, v{t+1}   ; rx|ry')
        a(f'v_cvt_pk_bf16_f32 v{rec+2}, v{t+2}, 0      ; rz | 0')
        a(f'v_cmp_gt_u32 vcc, 0x{DTHR<<16:x}, v{t+3}')
        a(f's_and_b64 s[{50+2*j}:{51+2*j}], s[{50+2*j}:{51+2*j}], vcc')
        a(f'v_lshrrev_b32 v{rec+3}, 16, v{t+3}')
        a(f'v_subrev_u32 v{rec+3}, 0x{DBASE+HOT0+ZROW//32:x}, v{rec+3}')
        a(f'v_lshlrev_b32 v{rec+3}, 5, v{rec+3}')
        a(f'v_mad_u32_u24 v{t}, v{GG+j}, s27, v8')
        a(f'v_lshrrev_b32 v{t}, 16, v{t}')
        a(f'v_sub_u32 v{t}, v{DST+j}, v{t}          ; dloc')
        a(f'v_lshlrev_b32 v{t}, v{t}, v9')
        a(f'v_or_b32 v{rec+2}, v{t}, v{rec+2}')
        a(f'v_lshlrev_b32 v{rec}, 4, v{SRC+j}')
        a(f'v_or_b32 v{rec}, 0x80000000, v{rec}')
        a(f'v_lshlrev_b32 v{t+1}, 2, v{GG+j}')
        a(f's_mov_b64 exec, s[{50+2*j}:{51+2*j}]')
        a(f'ds_add_rtn_u32 v{RK+j}, v{t+1}, v7')
        a('s_mov_b64 exec, -1')
    a.stamp(3)
    nonce_load(a, 'B')
    a('s_waitcnt vmcnt(0) lgkmcnt(0)')
    a('s_barrier')
    a.stamp(4)
    a('ds_read_b32 v3, v1                    ; cnt')
    a('s_waitcnt lgkmcnt(0)')
    a('v_mov_b32 v4, v3')
    a('s_nop 1')
    for sh in (1, 2, 4, 8):
        a(f'v_add_u32_dpp v4, v4, v4 row_shr:{sh} row_mask:0xf bank_mask:0xf')
        a('s_nop 1')
    a('v_add_u32_dpp v4, v4, v4 row_bcast:15 row_mask:0xa bank_mask:0xf')
    a('s_nop 1')
    a('v_add_u32_dpp v4, v4, v4 row_bcast:31 row_mask:0xc bank_mask:0xf')
    a('s_nop 1')
    a('v_readlane_b32 s26, v4, 63')
    a('s_lshl_b32 s27, s3, 2')
    a('v_mov_b32 v5, s27')
    a('v_mov_b32 v8, s26')
    a('ds_write_b32 v5, v8 offset:4096')
    a('s_waitcnt lgkmcnt(0)')
    a('s_barrier')
    a('v_lshlrev_b32 v5, 2, v2')
    a('ds_read_b32 v70, v5 offset:4096')
    a('v_sub_u32 v4, v4, v3')
    a('v_cmp_gt_u32 vcc, 12, v2')
    a('s_waitcnt lgkmcnt(0)')
    a('s_nop 0')
    a('v_cndmask_b32 v70, 0, v70, vcc')
    a('s_nop 1')
    for sh in (1, 2, 4, 8):
        a(f'v_add_u32_dpp v70, v70, v70 row_shr:{sh} row_mask:0xf bank_mask:0xf')
        a('s_nop 1')
    a('v_readlane_b32 s61, v70, 11')
    a('s_sub_u32 s26, s3, 1')
    a('s_max_i32 s26, s26, 0')
    a('s_nop 3')
    a('v_readlane_b32 s27, v70, s26')
    a('s_cmp_eq_u32 s3, 0')
    a('s_cselect_b32 s27, 0, s27')
    a('v_add_u32 v4, s27, v4')
    a('ds_write_b32 v1, v4 offset:8192         ; start[bin]')
    a('v_lshl_or_b32 v3, v3, 16, v4')
    a(f's_mul_i32 s26, s91, {NG*4}')
    a(f'buffer_store_dword v3, v1, s[40:43], s26 offen {STO}')
    a('s_waitcnt lgkmcnt(0)')
    a('s_barrier')
    a.stamp(5)
    RST = 12288
    for j in range(5):
        a(f'v_lshlrev_b32 v{GG+j}, 2, v{GG+j}')
        a(f'ds_read_b32 v{GG+j}, v{GG+j} offset:8192')
    for j in range(5):
        a(f's_waitcnt lgkmcnt({4-j})')
        a(f'v_add_u32 v{GG+j}, v{GG+j}, v{RK+j}')
        a(f'v_lshlrev_b32 v{GG+j}, 4, v{GG+j}')
    for j in range(5):
        a(f's_mov_b64 exec, s[{50+2*j}:{51+2*j}]')
        a(f'ds_write_b128 v{GG+j}, v[{REC+4*j}:{REC+4*j+3}] offset:{RST}')
    a('s_mov_b64 exec, -1')
    a('s_waitcnt lgkmcnt(0)')
    a('s_barrier')
    a('v_lshlrev_b32 v5, 4, v0                   ; tid*16')
    for j in range(5):
        a(f'ds_read_b128 v[{REC+4*j}:{REC+4*j+3}], v5 offset:{RST+j*12288}')
    a('s_lshl_b32 s26, s91, 16                    ; w*65536')
    for j in range(5):
        a(f'v_add_u32 v6, {j*768}, v0')
        a(f'v_cmp_gt_u32 vcc, s61, v6')
        a(f'v_add_u32 v7, {j*12288}, v5')
        a(f's_waitcnt lgkmcnt({4-j})')
        a('s_mov_b64 exec, vcc')
        a(f'buffer_store_dwordx4 v[{REC+4*j}:{REC+4*j+3}], v7, s[44:47], s26 offen {STO}')
        a('s_mov_b64 exec, -1')
    a.stamp(6)
    role_end(a)

def gen_tab(a):
    a.lab('K1_TAB')
    a.stamp(0)
    srd(a, 28, 20, 65536, off=WS_ATAB)
    srd(a, 24, 18, 16*768)
    srd(a, 32, 20, 12288, off=WS_WB)
    a('v_lshrrev_b32 v10, 4, v2               ; kq')
    a('v_and_b32 v11, 15, v2                  ; c')
    a('v_mul_u32_u24 v10, 3072, v10           ; 4kq*768')
    a('v_lshl_add_u32 v10, v11, 2, v10')
    a('s_and_b32 s52, s3, 3')
    a('s_lshr_b32 s53, s3, 2')
    a('s_lshl_b32 s54, s52, 6')
    a('s_lshl_b32 s55, s53, 8')
    a('s_add_u32 s54, s54, s55')
    for i in range(4):
        a(f'buffer_load_dword v{12+i}, v10, s[24:27], s54 offen offset:{i*768}')
    a('s_mov_b32 s62, 0x05040100')
    a('s_mov_b32 s63, 0x07060302')
    a('s_mul_i32 s54, s52, 3')
    a('s_add_u32 s54, s54, s53')
    a('s_lshl_b32 s54, s54, 10                ; (slice*3+seg)*1024')
    a('v_lshlrev_b32 v11, 4, v2')
    a('s_waitcnt vmcnt(0)')
    a('v_perm_b32 v16, v13, v12, s62')
    a('v_perm_b32 v17, v15, v14, s62')
    a('v_perm_b32 v18, v13, v12, s63')
    a('v_perm_b32 v19, v15, v14, s63')
    a(f'buffer_store_dwordx4 v[16:19], v11, s[32:35], s54 offen {STO}')
    nonce_load(a, 'T')
    a('s_load_dwordx8 s[36:43], s[12:13], 0')
    a('v_mov_b32 v6, 0xffff0000')
    a('s_waitcnt lgkmcnt(0)')
    for k in range(8):
        a(f's_lshl_b32 s{44+2*k}, s{36+k}, 16')
        a(f's_and_b32 s{45+2*k}, s{36+k}, 0xffff0000')
    a('s_mov_b32 s60, 0x3e22f983')
    a('s_mov_b32 s61, 0x31dc9c88')
    a('s_mov_b32 s62, 0')
    a.lab('K1_TAB_LOOP')
    a('v_add_u32 v3, s62, v0             ; entry')
    a(f'v_add_u32 v4, 0x{DBASE:x}, v3')
    a('v_lshlrev_b32 v4, 16, v4           ; d')
    a('v_mul_f32 v5, 0x40490fdb, v4       ; pi*d')
    a('v_cvt_pk_bf16_f32 v5, v5, v5')
    a('v_and_b32 v5, v6, v5')
    a('v_mul_f32 v5, 0x3e4ccccd, v5       ; /5')
    a('v_cvt_pk_bf16_f32 v5, v5, v5')
    a('v_and_b32 v5, v6, v5')
    a('v_mul_f32 v5, s60, v5')
    a('v_cos_f32 v5, v5')
    a('v_rcp_f32 v7, v4                   ; 1/d')
    a('v_cvt_pk_bf16_f32 v5, v5, v5')
    a('v_and_b32 v5, v6, v5')
    a('v_add_f32 v5, 1.0, v5')
    a('v_cvt_pk_bf16_f32 v5, v5, v5')
    a('v_and_b32 v5, v6, v5')
    a('v_mul_f32 v5, 0.5, v5              ; fcut')
    a('v_cmp_gt_u32 vcc, 0x40a00000, v4')
    a('v_cmp_ne_u32 s[64:65], 0, v3')
    a('s_and_b64 vcc, vcc, s[64:65]')
    a('s_nop 1')
    a('v_cndmask_b32 v5, 0, v5, vcc')
    for k in range(16):
        t = 10 + k
        a(f'v_mul_f32 v{t}, s{44+k}, v4')
    for k in range(0, 16, 2):
        t = 10 + k
        a(f'v_cvt_pk_bf16_f32 v{30+k//2}, v{t}, v{t+1}')
    for k in range(0, 16, 2):
        t = 10 + k
        a(f'v_lshlrev_b32 v{t}, 16, v{30+k//2}')
        a(f'v_and_b32 v{t+1}, v6, v{30+k//2}')
    for k in range(16):
        t = 10 + k
        a(f'v_mul_f32 v40, s60, v{t}')
        a(f'v_fma_f32 v41, v{t}, s60, -v40')
        a(f'v_fma_f32 v41, v{t}, s61, v41')
        a(f'v_fract_f32 v40, v40')
        a(f'v_add_f32 v40, v40, v41')
        a(f'v_sin_f32 v{t}, v40')
    a('s_nop 0')
    for k in range(0, 16, 2):
        t = 10 + k
        a(f'v_cvt_pk_bf16_f32 v40, v{t}, v{t+1}')
        a(f'v_lshlrev_b32 v{t}, 16, v40')
        a(f'v_and_b32 v{t+1}, v6, v40')
        a(f'v_mul_f32 v{t}, v{t}, v7')
        a(f'v_mul_f32 v{t+1}, v{t+1}, v7')
        a(f'v_cvt_pk_bf16_f32 v40, v{t}, v{t+1}')
        a(f'v_lshlrev_b32 v{t}, 16, v40')
        a(f'v_and_b32 v{t+1}, v6, v40')
        a(f'v_mul_f32 v{t}, v{t}, v5')
        a(f'v_mul_f32 v{t+1}, v{t+1}, v5')
        a(f'v_cvt_pk_bf16_f32 v{30+k//2}, v{t}, v{t+1}')
    a('v_lshlrev_b32 v8, 5, v3')
    a(f'buffer_store_dwordx4 v[30:33], v8, s[28:31], 0 offen {STO}')
    a(f'buffer_store_dwordx4 v[34:37], v8, s[28:31], 0 offen offset:16 {STO}')
    a('s_add_u32 s62, s62, 768')
    a('s_cmp_lt_u32 s62, 2048')
    a('s_nop 1')
    a('s_cbranch_scc1 K1_TAB_LOOP')
    for i in range(1,7): a.stamp(i)
    role_end(a)

def cpf(a, tag):
    if os.environ.get('CPF','0') != '1': return
    a('s_cmp_lg_u32 s3, 11')
    a(f's_cbranch_scc1 K1_NOCPF{tag}')
    a('s_getpc_b64 s[62:63]')
    a.lab(f'K1_PCREF{tag}')
    a(f's_add_u32 s62, s62, {KNAME}-K1_PCREF{tag}')
    a(f's_addc_u32 s63, s63, ({KNAME}-K1_PCREF{tag})>>32')
    a('v_lshlrev_b32 v160, 7, v2')
    a('v_mov_b32 v161, s63')
    a('v_add_co_u32 v160, vcc, s62, v160')
    a('s_nop 1')
    a('v_addc_co_u32 v161, vcc, 0, v161, vcc')
    a('global_load_dword v162, v[160:161], off')
    a('v_add_co_u32 v160, vcc, 0x2000, v160')
    a('s_nop 1')
    a('v_addc_co_u32 v161, vcc, 0, v161, vcc')
    a('global_load_dword v162, v[160:161], off')
    a('v_add_co_u32 v160, vcc, 0x2000, v160')
    a('s_nop 1')
    a('v_addc_co_u32 v161, vcc, 0, v161, vcc')
    a(f'v_cmp_gt_u32 vcc, (CODE_END-{KNAME}-16384)/128, v2')
    a('s_and_saveexec_b64 s[62:63], vcc')
    a(f's_cbranch_execz K1_CPFX{tag}')
    a('global_load_dword v162, v[160:161], off')
    a.lab(f'K1_CPFX{tag}')
    a('s_mov_b64 exec, s[62:63]')
    a.lab(f'K1_NOCPF{tag}')

def wave_ids(a):
    a('v_lshrrev_b32 v1, 6, v0')
    a('v_and_b32 v2, 63, v0')
    a('s_mov_b32 s91, s2')
    a('v_readfirstlane_b32 s3, v1')

def dbg_srd(a):
    a('s_mov_b32 s92, s96')
    a('s_mov_b32 s93, s97')
    a('s_mov_b32 s94, 256')
    a('s_mov_b32 s95, 0x00020000')

def gen_k1(a):
    name = KNAME if FUSE else 'prep_kernel'
    a.raw('.p2align 8')
    a.raw(f'.type {name},@function')
    a.lab(name)
    a('s_cmp_ge_u32 s2, 256')
    a('s_cbranch_scc1 K1_END')
    a('s_load_dwordx4 s[4:7], s[0:1], 0')
    a('s_load_dwordx4 s[8:11], s[0:1], 16')
    a('s_load_dwordx4 s[12:15], s[0:1], 32')
    a('s_load_dwordx4 s[16:19], s[0:1], 48')
    a('s_load_dwordx2 s[20:21], s[0:1], 80')
    a('s_load_dwordx2 s[96:97], s[0:1], 72     ; d_debug')
    a(f's_cmp_lt_u32 s2, {NBIN}')
    a('s_cbranch_scc1 K1_BIN')
    gen_mlp(a)

def gen_k1_tail(a):
    gen_bin(a)
    if FUSE:
        a.lab('K1_DONE')
        a('s_waitcnt vmcnt(0) lgkmcnt(0)')
        a('s_barrier')
        if Asm.STAMPS:
            a('s_memrealtime s[84:85]')
            a('s_waitcnt lgkmcnt(0)')
            a('s_lshl_b32 s68, s3, 5')
            a('s_add_u32 s68, s68, 155712')
            a('v_mov_b32 v1, s68')
            for i in range(8):
                a(f'v_mov_b32 v2, s{70+2*i}')
                a(f'ds_write_b32 v1, v2 offset:{4*i}')
        a('s_cmp_lg_u32 s3, 0')
        a('s_cbranch_scc1 K2_START')
        get_nonce(a, 'D')
        publish(a, 0)
        a('s_branch K2_START')
    a.lab('K1_END')
    a('s_endpgm')
    a.lab('CODE_END')
```

```python
from asmlib import *
from k1 import *

OUTST = os.environ.get('OUTST', 'sc1')
RESLD = os.environ.get('RESLD', '')
WBASE = 18432
WREG = 5120
RES0 = WBASE + 12*WREG
O_SRC = 0; O_AOF = 1280; O_OH = 2560; O_RX = 3200; O_RY = 3840; O_RZ = 4480
K2_LDS = RES0 + 12*4096
SC = 'sc1' if FUSE else ''
SCG = os.environ.get('SCG', SC)
LBF = ZROW + 768

V_C = 0; V_SHL = 1; V_KQ8 = 2; V_A1 = 3; V_A2 = 4; V_A3 = 5
TMP = 6
WB = 10; ACC = 22; GA = 54; GB = 86; WF = 94; MSG = 118; SM = 138; SRC = 154; AOP = 162
T4 = 166; T5 = 167
MSGT = 54 + 24
NV = 168

def wb(seg, t): return WB + (seg*2+t)*2
def acc(comp, t): return ACC + (comp*2+t)*4
def gA(i, c): return GA + 4*i + c
def wf(seg, R, r=0): return WF + seg*8 + R*4 + r
def msg(comp, j=0): return MSG + comp*4 + j

def scan64(a, P):
    a('s_nop 1')
    for sh in (1, 2, 4, 8):
        a(f'v_add_u32_dpp v{P}, v{P}, v{P} row_shr:{sh} row_mask:0xf bank_mask:0xf')
        a('s_nop 1')
    a(f'v_add_u32_dpp v{P}, v{P}, v{P} row_bcast:15 row_mask:0xa bank_mask:0xf')
    a('s_nop 1')
    a(f'v_add_u32_dpp v{P}, v{P}, v{P} row_bcast:31 row_mask:0xc bank_mask:0xf')
    a('s_nop 1')

def gen_k2(a):
    LANE = T4
    if FUSE:
        a.lab('K2_START')
    else:
        a.raw('.p2align 8')
        a.raw(f'.type {KNAME},@function')
        a.lab(KNAME)
        a('s_cmp_ge_u32 s2, 256')
        a('s_cbranch_scc1 K2_END')
    if os.environ.get('PRIO','1') != '0': a('s_setprio 3')
    a('s_load_dwordx2 s[4:5], s[0:1], 0       ; sv')
    a('s_load_dwordx2 s[8:9], s[0:1], 64      ; out')
    a('s_load_dwordx2 s[10:11], s[0:1], 80    ; ws')
    if FUSE:
        a(f'v_mbcnt_lo_u32_b32 v{LANE}, -1, 0')
        a(f'v_mbcnt_hi_u32_b32 v{LANE}, -1, v{LANE}')
        a('s_and_b32 s12, s2, 7                   ; x')
    else:
        a(f'v_lshrrev_b32 v{T5}, 6, v0')
        a(f'v_and_b32 v{LANE}, 63, v0')
        a('s_and_b32 s12, s2, 7                   ; x')
        a(f'v_readfirstlane_b32 s3, v{T5}             ; wave')
    a('s_lshr_b32 s13, s12, 1                 ; slice')
    a('s_lshr_b32 s14, s2, 3')
    a('s_lshl_b32 s14, s14, 1')
    a('s_and_b32 s12, s12, 1')
    a('s_add_u32 s14, s14, s12                ; rank (0..63)')
    a('s_mul_i32 s14, s14, 12')
    a('s_add_u32 s14, s14, s3                 ; g')
    a('s_mul_i32 s15, s14, 853362')
    a('s_add_u32 s16, s15, 65000')
    a('s_lshr_b32 s15, s16, 16                ; start')
    a('s_add_u32 s16, s16, 853362')
    a('s_lshr_b32 s16, s16, 16')
    a(f's_min_u32 s16, s16, {N}')
    a('s_sub_u32 s16, s16, s15                ; size')
    a.stamp(0)
    if Asm.STAMPS: a('s_memtime s[88:89]')
    a(f'v_mul_u32_u24 v{TMP}, {NG*4}, v{LANE}        ; lane*3072')
    a('s_lshl_b32 s17, s14, 2')
    a('s_waitcnt lgkmcnt(0)')
    srd(a, 20, 10, NBIN*NG*4, off=WS_HDR)
    if not FUSE:
        a(f'buffer_load_dword v{TMP+1}, v{TMP}, s[20:23], s17 offen')
    srd(a, 24, 10, NBIN*65536, off=WS_TAILS)
    srd(a, 28, 10, 65536, off=WS_ATAB)
    srd(a, 40, 10, 12288, off=WS_WB)
    srd(a, 32, 4, 10240000)
    srd(a, 36, 8, 10240000)
    def wb_and_table():
        a(f'v_lshlrev_b32 v{TMP+2}, 4, v{LANE}')
        a('s_mul_i32 s17, s13, 3072')
        for seg in range(3):
            a(f'buffer_load_dwordx4 v[{wb(seg,0)}:{wb(seg,0)+3}], v{TMP+2}, s[40:43], s17 offen offset:{seg*1024} {SC}')
        a('s_lshl_b32 s17, s3, 10')
        if FUSE:
            a(f's_add_u32 s17, s17, {HOT0*32}')
            a(f'buffer_load_dwordx4 v[{GA}:{GA+3}], v{TMP+2}, s[28:31], s17 offen sc1')
            a(f's_cmp_ge_u32 s3, {NHOT_KB-12}')
            a('s_cbranch_scc1 K2_DMA_DONE')
            a('s_add_u32 s17, s17, 12288')
            a(f'buffer_load_dwordx4 v[{GA+4}:{GA+7}], v{TMP+2}, s[28:31], s17 offen sc1')
        else:
            a('s_mov_b32 s18, s17')
            a('s_mov_b32 m0, s18')
            a(f's_add_u32 s17, s17, {HOT0*32}')
            a(f'buffer_load_dwordx4 v{TMP+2}, s[28:31], s17 offen lds')
            a(f's_cmp_ge_u32 s3, {NHOT_KB-12}')
            a('s_cbranch_scc1 K2_DMA_DONE')
            a('s_add_u32 s18, s18, 12288')
            a('s_mov_b32 m0, s18')
            a('s_add_u32 s17, s17, 12288')
            a(f'buffer_load_dwordx4 v{TMP+2}, s[28:31], s17 offen lds')
        a.lab('K2_DMA_DONE')
    if not FUSE: wb_and_table()
    a('s_mul_i32 s17, s13, 2560000')
    a('s_add_u32 s44, s10, s17')
    a('s_addc_u32 s45, s11, 0')
    a('s_or_b32 s45, s45, 0x100000            ; stride 16')
    a('s_mov_b32 s46, 160000')
    a('s_mov_b32 s47, 0x00020000')
    a('s_mul_i32 s17, s13, 640000')
    a(f's_add_u32 s17, s17, {WS_TB}')
    a('s_add_u32 s48, s10, s17')
    a('s_addc_u32 s49, s11, 0')
    a('s_or_b32 s49, s49, 0x40000             ; stride 4')
    a('s_mov_b32 s50, 160000')
    a('s_mov_b32 s51, 0x00020000')
    a(f'v_and_b32 v{V_C}, 15, v{LANE}')
    a(f'v_lshrrev_b32 v{T5}, 4, v{LANE}           ; q')
    a(f'v_sub_u32 v{V_SHL}, 15, v{V_C}')
    a(f'v_lshl_or_b32 v{V_SHL}, v{V_SHL}, 16, v{V_SHL}')
    a(f'v_lshlrev_b32 v{V_KQ8}, 3, v{T5}')
    a(f'v_lshlrev_b32 v{TMP+2}, 2, v{LANE}')
    a(f'v_mov_b32 v{TMP+3}, 0')
    a(f'ds_write_b32 v{TMP+2}, v{TMP+3} offset:{ZROW}')
    if FUSE:
        a(f'ds_write_b32 v{TMP+2}, v{TMP+3} offset:{ZROW+768}')
    for r in range(ACC, ACC+32): a(f'v_mov_b32 v{r}, 0')
    for r in range(MSG, MSG+20): a(f'v_mov_b32 v{r}, 0')
    for r in range(SM, SM+16): a(f'v_mov_b32 v{r}, 0')
    a(f's_mul_i32 s18, s3, {WREG}')
    a(f's_add_u32 s18, s18, {WBASE}')
    a('s_mov_b32 s52, 0                          ; base')
    a('s_mov_b32 s60, 0')
    a('s_mov_b32 s97, s3')
    def res_dma(tag):
        a('s_cmp_lg_u32 s60, 0')
        a(f's_cbranch_scc1 K2_RESDONE{tag}')
        a('s_mov_b32 s60, 1')
        a(f'v_mbcnt_lo_u32_b32 v{T4}, -1, 0')
        a(f'v_mbcnt_hi_u32_b32 v{T4}, -1, v{T4}')
        a(f'v_and_b32 v{T5}, 3, v{T4}')
        a(f'v_lshlrev_b32 v{T5}, 4, v{T5}')
        a(f'v_lshrrev_b32 v{T4}, 2, v{T4}')
        a(f'v_lshl_add_u32 v{T5}, v{T4}, 8, v{T5}')
        a('s_lshl_b32 s61, s15, 10')
        a('s_lshl_b32 s62, s13, 6')
        a('s_add_u32 s61, s61, s62')
        a('s_lshl_b32 s62, s3, 12')
        a(f's_add_u32 s62, s62, {RES0}')
        for j in range(4):
            a('s_mov_b32 m0, s62')
            a('s_add_u32 s62, s62, 1024')
            a(f'buffer_load_dwordx4 v{T5}, s[32:35], s61 offen {RESLD} lds')
            a('s_add_u32 s61, s61, 4096')
        a.lab(f'K2_RESDONE{tag}')
    def poll_issue(reg, off=0):
        a(f'v_mbcnt_lo_u32_b32 v{T5}, -1, 0')
        a(f'v_mbcnt_hi_u32_b32 v{T5}, -1, v{T5}')
        a(f'v_lshlrev_b32 v{T5}, 4, v{T5}')
        a(f's_add_u32 s64, s10, 0x{WS_FLAGS:x}')
        a('s_addc_u32 s65, s11, 0')
        a('s_mov_b32 s66, 16384')
        a('s_mov_b32 s67, 0x00020000')
        a('s_and_b32 s62, s2, 7')
        a('s_lshl_b32 s62, s62, 11')
        a(f'buffer_load_dwordx4 v[{reg}:{reg+3}], v{T5}, s[64:67], s62 offen offset:{off} sc1')
    def poll_masks(reg):
        a(f'v_cmp_eq_u32 s[56:57], s100, v{reg}')
        a(f'v_cmp_eq_u32 s[62:63], s100, v{reg+1}')
        a(f'v_cmp_eq_u32 vcc, s100, v{reg+2}')
        a('s_and_b64 s[56:57], s[56:57], s[62:63]')
        a('s_and_b64 s[56:57], s[56:57], vcc')
        a(f'v_cmp_eq_u32 vcc, s100, v{reg+3}')
    def poll47(tag, off):
        a('s_cmp_lg_u32 s3, 0')
        a(f's_cbranch_scc1 K2_POLL{tag}_DONE')
        a('s_mov_b32 s59, 0x8000')
        R = [WF, WF+4, WF+8]
        def issue(k):
            a('s_mov_b64 exec, 0xfff')
            poll_issue(R[k], off)
            a('s_mov_b64 exec, -1')
        def test(k):
            poll_masks(R[k])
            a('s_and_b32 s56, s56, 0xfff')
            a('s_and_b32 s62, vcc_lo, 0x7ff')
            a('s_lshl_b32 s62, s62, 12')
            a('s_or_b32 s56, s56, s62')
            a('s_cmp_eq_u32 s56, 0x7fffff')
            a(f's_cbranch_scc1 K2_POLL{tag}_DONE')
        if os.environ.get('POLLP','0') == '1':
            issue(0)
            a('s_sleep 3')
            issue(1)
            a.lab(f'K2_POLL{tag}')
            for k in range(3):
                a('s_sleep 3')
                issue((k+2) % 3)
                a('s_waitcnt vmcnt(2)')
                test(k)
        else:
            a.lab(f'K2_POLL{tag}')
            issue(0)
            a('s_waitcnt vmcnt(0)')
            test(0)
            a('s_sleep 2')
        a('s_sub_u32 s59, s59, 1')
        a('s_cmp_lg_u32 s59, 0')
        a(f's_cbranch_scc1 K2_POLL{tag}')
        a.lab(f'K2_POLL{tag}_DONE')
    RESE = os.environ.get('RESE','0')
    if FUSE and RESE == 'S':
        res_dma('S')
    if FUSE:
        if os.environ.get('PUBD','0') == '1':
            a('s_cmp_eq_u32 s101, 0')
            a('s_cbranch_scc1 K2_NODRAIN')
            a('s_waitcnt vmcnt(0)')
            a('s_barrier')
            a(f'v_mbcnt_lo_u32_b32 v{LANE}, -1, 0')
            a(f'v_mbcnt_hi_u32_b32 v{LANE}, -1, v{LANE}')
            a('s_cmp_eq_u32 s3, 0')
            a('s_cselect_b32 s62, s101, 0')
            a('s_cmp_eq_u32 s62, 0')
            a('s_cbranch_scc1 K2_NOPUB')
            a(f's_add_u32 s64, s10, 0x{WS_FLAGS:x}')
            a('s_addc_u32 s65, s11, 0')
            a('s_mov_b32 s66, 16384')
            a('s_mov_b32 s67, 0x00020000')
            a(f'v_lshlrev_b32 v{WF}, 11, v{LANE}           ; replica*2048')
            a('s_lshl_b32 s68, s91, 2')
            a(f'v_mov_b32 v{WF+1}, s100')
            a('s_mov_b64 exec, 0xff')
            a(f'buffer_store_dword v{WF+1}, v{WF}, s[64:67], s68 offen sc1')
            a('s_mov_b64 exec, -1')
            a.lab('K2_NOPUB')
            a.lab('K2_NODRAIN')
        poll47('A', 0)
        a.stamp(2)
        a('s_waitcnt vmcnt(0) lgkmcnt(0)')
        a('s_barrier')
        a.stamp(3)
        a(f'v_mbcnt_lo_u32_b32 v{LANE}, -1, 0')
        a(f'v_mbcnt_hi_u32_b32 v{LANE}, -1, v{LANE}')
        if os.environ.get('PUBD','0') != '1':
            a('s_cmp_eq_u32 s3, 0')
            a('s_cselect_b32 s62, s101, 0')
            a('s_cmp_eq_u32 s62, 0')
            a('s_cbranch_scc1 K2_NOPUB2')
            a(f's_add_u32 s64, s10, 0x{WS_FLAGS:x}')
            a('s_addc_u32 s65, s11, 0')
            a('s_mov_b32 s66, 16384')
            a('s_mov_b32 s67, 0x00020000')
            a(f'v_lshlrev_b32 v{WF}, 11, v{LANE}           ; replica*2048')
            a('s_lshl_b32 s68, s91, 2')
            a(f'v_mov_b32 v{WF+1}, s100')
            a('s_mov_b64 exec, 0xff')
            a(f'buffer_store_dword v{WF+1}, v{WF}, s[64:67], s68 offen sc1')
            a('s_mov_b64 exec, -1')
            a.lab('K2_NOPUB2')
        if RESE == 'A':
            res_dma('S')
            a(f'v_mbcnt_lo_u32_b32 v{LANE}, -1, 0')
            a(f'v_mbcnt_hi_u32_b32 v{LANE}, -1, v{LANE}')
        XCH = 131072
        a(f'v_lshlrev_b32 v{TMP+2}, 4, v{LANE}          ; lane*16')
        a('s_lshl_b32 s17, s3, 10')
        a(f's_add_u32 s17, s17, {HOT0*32}')
        a(f'buffer_load_dwordx4 v[{GA}:{GA+3}], v{TMP+2}, s[28:31], s17 offen sc1')
        a('s_cmp_lt_u32 s3, 5')
        a('s_cbranch_scc1 K2_JT')
        a('s_cmp_lt_u32 s3, 8')
        a('s_cbranch_scc1 K2_JW')
        a('s_cmp_lt_u32 s3, 11')
        a('s_cbranch_scc1 K2_JH')
        a('s_waitcnt vmcnt(0)')
        a('s_branch K2_JDONE')
        a.lab('K2_JT')
        a('s_add_u32 s17, s17, 12288')
        a(f'buffer_load_dwordx4 v[{GA+4}:{GA+7}], v{TMP+2}, s[28:31], s17 offen sc1')
        a('s_lshl_b32 s17, s3, 10')
        a('s_add_u32 s17, s17, 12288')
        a(f'v_add_u32 v{TMP+3}, s17, v{TMP+2}')
        a('s_waitcnt vmcnt(0)')
        a(f'ds_write_b128 v{TMP+3}, v[{GA+4}:{GA+7}]')
        a('s_branch K2_JDONE')
        a.lab('K2_JW')
        a('s_sub_u32 s62, s3, 5')
        a('s_lshl_b32 s62, s62, 10')
        a('s_mul_i32 s17, s13, 3072')
        a('s_add_u32 s17, s17, s62')
        a(f'buffer_load_dwordx4 v[{GA+4}:{GA+7}], v{TMP+2}, s[40:43], s17 offen sc1')
        a(f's_add_u32 s62, s62, {XCH}')
        a(f'v_add_u32 v{TMP+3}, s62, v{TMP+2}')
        a('s_waitcnt vmcnt(0)')
        a(f'ds_write_b128 v{TMP+3}, v[{GA+4}:{GA+7}]')
        a('s_branch K2_JDONE')
        a.lab('K2_JH')
        a('s_sub_u32 s62, s3, 8                  ; k')
        a('s_sub_u32 s17, s14, s3                ; g0')
        a('s_lshl_b32 s17, s17, 2')
        a('s_lshl_b32 s61, s62, 4')
        a('s_add_u32 s17, s17, s61')
        a(f'v_mul_u32_u24 v{TMP}, {NG*4}, v{LANE}')
        a(f'buffer_load_dwordx4 v[{GA+4}:{GA+7}], v{TMP}, s[20:23], s17 offen sc1')
        a('s_lshl_b32 s62, s62, 10')
        a(f's_add_u32 s62, s62, {XCH+4096}')
        a(f'v_lshlrev_b32 v{TMP+3}, 2, v{LANE}')
        a(f'v_add_u32 v{TMP+3}, s62, v{TMP+3}')
        a('s_waitcnt vmcnt(0)')
        for i in range(4):
            a(f'ds_write_b32 v{TMP+3}, v{GA+4+i} offset:{256*i}')
        if os.environ.get('BAL2','1') == '1':
            a(f'v_lshrrev_b32 v{GA+8}, 16, v{GA+4}')
            a(f'v_and_b32 v{GA+10}, 0xffff0000, v{GA+5}')
            a(f'v_or_b32 v{GA+8}, v{GA+8}, v{GA+10}')
            a(f'v_lshrrev_b32 v{GA+9}, 16, v{GA+6}')
            a(f'v_and_b32 v{GA+10}, 0xffff0000, v{GA+7}')
            a(f'v_or_b32 v{GA+9}, v{GA+9}, v{GA+10}')
            a('s_nop 1')
            for dpp in ('row_shr:1 row_mask:0xf', 'row_shr:2 row_mask:0xf', 'row_shr:4 row_mask:0xf', 'row_shr:8 row_mask:0xf', 'row_bcast:15 row_mask:0xa', 'row_bcast:31 row_mask:0xc'):
                a(f'v_add_u32_dpp v{GA+8}, v{GA+8}, v{GA+8} {dpp} bank_mask:0xf')
                a(f'v_add_u32_dpp v{GA+9}, v{GA+9}, v{GA+9} {dpp} bank_mask:0xf')
                a('s_nop 0')
            a(f'v_readlane_b32 s56, v{GA+8}, 63')
            a(f'v_readlane_b32 s57, v{GA+9}, 63')
            a('s_sub_u32 s61, s3, 8')
            a('s_lshl_b32 s61, s61, 2')
            for i in range(4):
                src = 's56' if i < 2 else 's57'
                if i % 2 == 0: a(f's_and_b32 s63, {src}, 0xffff')
                else: a(f's_lshr_b32 s63, {src}, 16')
                a('s_add_u32 s63, s63, 15')
                a('s_and_b32 s63, s63, 0xfffff0')
                a('s_add_u32 s63, s63, 15')
                a('s_sub_u32 s63, s63, s61')
                if i: a(f's_sub_u32 s63, s63, {i}')
                a(f'v_mov_b32 v{GA+8+i}, s63')
            a('s_lshl_b32 s61, s61, 2')
            a(f's_add_u32 s61, s61, {XCH+8192}')
            a(f'v_mov_b32 v{TMP+3}, s61')
            a('s_mov_b64 exec, 1')
            a(f'ds_write_b128 v{TMP+3}, v[{GA+8}:{GA+11}]')
            a('s_mov_b64 exec, -1')
        a.lab('K2_JDONE')
        if os.environ.get('ST7') == '1': a.stamp(7)
        a('s_lshl_b32 s17, s3, 10')
        a(f'v_add_u32 v{TMP+2}, s17, v{TMP+2}')
        a(f'ds_write_b128 v{TMP+2}, v[{GA}:{GA+3}]')
        a('s_waitcnt lgkmcnt(0)')
        a('s_barrier')
        a(f'v_lshlrev_b32 v{TMP+2}, 2, v{LANE}')
        if os.environ.get('BAL2','1') == '1':
            a(f'v_add_u32 v{TMP+3}, {XCH+8192}, v{TMP+2}')
            a(f'ds_read_b32 v{TMP+1}, v{TMP+3}')
            a(f'v_mov_b32 v{TMP+3}, {XCH+8192}')
            for j in range(3):
                a(f'ds_read_b128 v[{GA+4*j}:{GA+4*j+3}], v{TMP+3} offset:{16*j}')
            a('s_sub_u32 s17, 11, s3')
            a('s_cmp_lt_u32 s3, 4')
            a('s_cselect_b32 s17, s3, s17')
            a('s_sub_u32 s19, 19, s3')
            a('s_cmp_ge_u32 s3, 8')
            a('s_cselect_b32 s17, s19, s17')
            a(f'v_mov_b32 v{TMP}, 0')
            a('s_waitcnt lgkmcnt(0)')
            for j in range(12): a(f'v_sub_u32 v{GA+j}, v{TMP+1}, v{GA+j}')
            for j in range(12): a(f'v_lshrrev_b32 v{GA+j}, 31, v{GA+j}')
            for j in range(0, 12, 2): a(f'v_add3_u32 v{TMP}, v{TMP}, v{GA+j}, v{GA+j+1}')
            a(f'v_cmp_eq_u32 vcc, s17, v{TMP}')
            a('s_and_b32 s17, vcc_lo, 0xfff')
            a('s_ff1_i32_b32 s17, s17')
            if RESE in ('S', 'A'): a('s_mov_b32 s97, s17')
            a('s_sub_u32 s14, s14, s3')
            a('s_add_u32 s14, s14, s17                   ; g')
            a('s_mul_i32 s15, s14, 853362')
            a('s_add_u32 s16, s15, 65000')
            a('s_lshr_b32 s15, s16, 16                ; start')
            a('s_add_u32 s16, s16, 853362')
            a('s_lshr_b32 s16, s16, 16')
            a(f's_min_u32 s16, s16, {N}')
            a('s_sub_u32 s16, s16, s15                ; size')
            a('s_lshl_b32 s17, s17, 8')
        else:
            a('s_lshl_b32 s17, s3, 8')
        a(f's_add_u32 s17, s17, {XCH+4096}')
        a(f'v_add_u32 v{TMP+2}, s17, v{TMP+2}')
        a(f'ds_read_b32 v{TMP+1}, v{TMP+2}')
        a(f'v_lshlrev_b32 v{TMP+2}, 4, v{LANE}')
        a(f'v_add_u32 v{TMP+2}, {XCH}, v{TMP+2}')
        for seg in range(3):
            a(f'ds_read_b128 v[{wb(seg,0)}:{wb(seg,0)+3}], v{TMP+2} offset:{seg*1024}')
        a('s_waitcnt lgkmcnt(3)')
    CNT = SRC; ST = SRC+1; P = SRC+2; LOCB = SRC+3; KK = SRC+4; POS = SRC+5; KHI = SRC+6
    H = TMP+1
    def header():
        a(f'v_lshrrev_b32 v{CNT}, 16, v{H}')
        a(f'v_and_b32 v{ST}, 0xffff, v{H}')
        a(f'v_mov_b32 v{P}, v{CNT}')
        scan64(a, P)
    PFPOS = os.environ.get('PFPOS','N')
    PFF = os.environ.get('PFF','sc1')
    def pf_setup():
        a('s_lshr_b32 s61, s2, 3')
        a('s_mul_i32 s61, s61, 12')
        a('s_add_u32 s61, s61, s3                ; chunk 0..383')
    def pf_A(lo, hi, reg):
        a('s_mul_i32 s17, s13, 2560000')
        a('s_add_u32 s64, s10, s17')
        a('s_addc_u32 s65, s11, 0')
        a('s_mov_b32 s66, 2560000')
        a('s_mov_b32 s67, 0x00020000')
        a(f's_mul_i32 s62, s61, {53*128}')
        a(f's_add_u32 s62, s62, {lo*128}')
        a(f'v_lshlrev_b32 v{reg}, 7, v{LANE}')
        a(f'v_add_u32 v{reg}, s62, v{reg}')
        a(f'v_cmp_gt_u32 vcc, {hi-lo}, v{LANE}')
        a('s_mov_b64 exec, vcc')
        a(f'buffer_load_dword v{reg+1}, v{reg}, s[64:67], 0 offen {PFF}')
        a('s_mov_b64 exec, -1')
    def pf_B(reg):
        a('s_mul_i32 s17, s13, 640000')
        a(f's_add_u32 s17, s17, {WS_TB}')
        a('s_add_u32 s64, s10, s17')
        a('s_addc_u32 s65, s11, 0')
        a('s_mov_b32 s66, 640000')
        a('s_mov_b32 s67, 0x00020000')
        a(f's_mul_i32 s62, s61, {14*128}')
        a(f'v_lshlrev_b32 v{reg}, 7, v{LANE}')
        a(f'v_add_u32 v{reg}, s62, v{reg}')
        a(f'v_cmp_gt_u32 vcc, 14, v{LANE}')
        a('s_mov_b64 exec, vcc')
        a(f'buffer_load_dword v{reg+1}, v{reg}, s[64:67], 0 offen {PFF}')
        a('s_mov_b64 exec, -1')
    PR = GA+24
    npf = 0
    if PFPOS in 'ABC': pf_setup()
    if PFPOS == 'A':
        pf_A(0, 53, PR); pf_B(PR+2); npf = 2
    if PFPOS == 'C':
        pf_B(PR+2); pf_A(0, 10, PR); npf = 2
    if not FUSE:
        a(f's_waitcnt vmcnt({npf}) lgkmcnt(0)')
        a('s_barrier')
    a.stamp(1)
    if os.environ.get('BAL','0') == '1':
        header()
        a(f'v_readlane_b32 s19, v{P}, 63')
        a(f'v_lshlrev_b32 v{KK}, 2, v{LANE}')
        a('s_lshl_b32 s17, s3, 8')
        a(f's_add_u32 s17, s17, {RES0}')
        a(f'v_add_u32 v{POS}, s17, v{KK}')
        a(f'ds_write_b32 v{POS}, v{H}')
        a('s_add_u32 s19, s19, 15')
        a('s_lshr_b32 s19, s19, 4')
        a('s_lshl_b32 s19, s19, 4')
        a('s_add_u32 s19, s19, 15')
        a('s_sub_u32 s19, s19, s3')
        a('s_lshl_b32 s17, s3, 2')
        a(f's_add_u32 s17, s17, {RES0+4096}')
        a(f'v_mov_b32 v{POS}, s17')
        a(f'v_mov_b32 v{KHI}, s19')
        a(f'ds_write_b32 v{POS}, v{KHI}')
        a('s_waitcnt lgkmcnt(0)')
        a('s_barrier')
        a(f'v_add_u32 v{POS}, {RES0+4096}, v{KK}')
        a(f'ds_read_b32 v{KHI}, v{POS}')
        a(f'v_mov_b32 v{POS}, {RES0+4096}')
        for j in range(3):
            a(f'ds_read_b128 v[{GA+4*j}:{GA+4*j+3}], v{POS} offset:{16*j}')
        a(f'v_mov_b32 v{CNT}, 0                      ; rank')
        a('s_waitcnt lgkmcnt(0)')
        for j in range(12):
            a(f'v_sub_u32 v{GA+j}, v{KHI}, v{GA+j}')
        for j in range(12):
            a(f'v_lshrrev_b32 v{GA+j}, 31, v{GA+j}')
        for j in range(0, 12, 2):
            a(f'v_add3_u32 v{CNT}, v{CNT}, v{GA+j}, v{GA+j+1}')
        a('s_sub_u32 s17, 11, s3')
        a('s_cmp_lt_u32 s3, 4')
        a('s_cselect_b32 s17, s3, s17')
        a('s_sub_u32 s19, 19, s3')
        a('s_cmp_ge_u32 s3, 8')
        a('s_cselect_b32 s17, s19, s17')
        a(f'v_cmp_eq_u32 vcc, s17, v{CNT}')
        a('s_and_b32 s17, vcc_lo, 0xfff')
        a('s_ff1_i32_b32 s17, s17')
        a('s_sub_u32 s14, s14, s3')
        a('s_add_u32 s14, s14, s17                   ; g')
        a('s_mul_i32 s15, s14, 853362')
        a('s_add_u32 s16, s15, 65000')
        a('s_lshr_b32 s15, s16, 16                ; start')
        a('s_add_u32 s16, s16, 853362')
        a('s_lshr_b32 s16, s16, 16')
        a(f's_min_u32 s16, s16, {N}')
        a('s_sub_u32 s16, s16, s15                ; size')
        a('s_lshl_b32 s17, s17, 8')
        a(f's_add_u32 s17, s17, {RES0}')
        a(f'v_add_u32 v{POS}, s17, v{KK}')
        a(f'ds_read_b32 v{H}, v{POS}')
        a('s_waitcnt lgkmcnt(0)')
    header()
    a(f'v_readlane_b32 s19, v{P}, 63             ; M')
    a(f'v_sub_u32 v{P}, v{P}, v{CNT}')
    a(f'v_lshl_add_u32 v{LOCB}, v{LANE}, 12, v{ST}   ; w*4096 + start')
    if not FUSE: a.stamp(2)
    a.lab('K2_CHUNK')
    a(f'v_sub_u32 v{KK}, s52, v{P}')
    a(f'v_max_i32 v{KK}, 0, v{KK}')
    NFAST = 12
    a('s_cmp_gt_u32 s19, 256')
    a('s_cbranch_scc1 K2_FILL')
    a(f'v_lshlrev_b32 v{POS}, 2, v{P}')
    a(f'v_add_u32 v{POS}, s18, v{POS}')
    a(f'v_mov_b32 v{KHI}, v{LOCB}')
    for k in range(NFAST):
        a(f'v_cmp_lt_u32 vcc, {k}, v{CNT}')
        a('s_cbranch_vccz K2_FILL_DONE')
        a('s_mov_b64 exec, vcc')
        a(f'ds_write_b32 v{POS}, v{KHI} offset:{4*k}')
        a(f'v_add_u32 v{KHI}, 1, v{KHI}')
    a('s_mov_b64 exec, -1')
    a(f'v_mov_b32 v{KK}, {NFAST}')
    a.lab('K2_FILL')
    a(f'v_add_u32 v{POS}, v{P}, v{KK}')
    a(f'v_subrev_u32 v{POS}, s52, v{POS}')
    a(f'v_cmp_lt_u32 s[56:57], v{KK}, v{CNT}')
    a(f'v_cmp_gt_u32 vcc, 256, v{POS}')
    a('s_and_b64 vcc, vcc, s[56:57]')
    a('s_cbranch_vccz K2_FILL_DONE')
    a(f'v_lshlrev_b32 v{POS}, 2, v{POS}')
    a(f'v_add_u32 v{POS}, s18, v{POS}')
    a(f'v_add_u32 v{KHI}, v{LOCB}, v{KK}')
    a('s_mov_b64 exec, vcc')
    a(f'ds_write_b32 v{POS}, v{KHI}')
    a('s_mov_b64 exec, -1')
    a(f'v_add_u32 v{KK}, 1, v{KK}')
    a('s_branch K2_FILL')
    a.lab('K2_FILL_DONE')
    a('s_mov_b64 exec, -1')
    if not FUSE: a.stamp(3)
    a('s_sub_u32 s55, s19, s52')
    a('s_min_u32 s55, s55, 256                   ; n_c')
    a('s_add_u32 s58, s55, 31')
    a('s_lshr_b32 s58, s58, 5')
    a('s_lshl_b32 s59, s58, 5')
    a('s_add_u32 s59, s59, 32                    ; npad')
    a('s_and_b32 s54, s55, 31')
    a('s_sub_u32 s54, s54, 1')
    a('s_cmp_lt_u32 s54, 16')
    a('s_cselect_b32 s54, 1, 0')
    a('s_sub_u32 s58, s58, s54')
    RC = WF; LA = GB
    a(f'v_lshlrev_b32 v{TMP}, 2, v{LANE}')
    a(f'v_add_u32 v{TMP}, s18, v{TMP}')
    for j in range(5):
        a(f'ds_read_b32 v{LA+j}, v{TMP} offset:{256*j}')
    a(f'v_mov_b32 v{TMP+2}, 0x80000000')
    for j in range(5):
        if j >= 1:
            a(f's_cmp_le_u32 s59, {64*j}')
            a('s_cbranch_scc1 K2_REC_ISSUED')
        a(f'v_add_u32 v{TMP+1}, {64*j}, v{LANE}')
        a(f'v_cmp_gt_u32 vcc, s55, v{TMP+1}')
        a(f's_waitcnt lgkmcnt({4-j})')
        a(f'v_lshlrev_b32 v{LA+j}, 4, v{LA+j}')
        a(f'v_cndmask_b32 v{LA+j}, v{TMP+2}, v{LA+j}, vcc')
        a(f'buffer_load_dwordx4 v[{RC+4*j}:{RC+4*j+3}], v{LA+j}, s[24:27], 0 offen {SC}')
    a.lab('K2_REC_ISSUED')
    if FUSE:
        a('s_or_b32 s62, s3, s52')
        a('s_cmp_lg_u32 s62, 0')
        a('s_cbranch_scc1 K2_NOPB')
        poll_issue(AOP)
        a.lab('K2_NOPB')
        a(f'v_mbcnt_lo_u32_b32 v{LANE}, -1, 0')
        a(f'v_mbcnt_hi_u32_b32 v{LANE}, -1, v{LANE}')
    a(f'v_and_b32 v{TMP}, 3, v{LANE}')
    a(f'v_lshlrev_b32 v{TMP}, 3, v{TMP}')
    a(f'v_bfe_u32 v{TMP+1}, v{LANE}, 2, 3')
    a(f'v_or_b32 v{TMP}, v{TMP}, v{TMP+1}')
    a(f'v_and_b32 v{TMP+1}, 32, v{LANE}')
    a(f'v_or_b32 v{TMP+3}, v{TMP}, v{TMP+1}')
    a(f'v_lshlrev_b32 v{TMP}, 2, v{TMP+3}')
    a(f'v_add_u32 v{TMP}, s18, v{TMP}')
    a(f'v_lshrrev_b32 v{SRC+6}, 4, v{LANE}          ; q')
    a(f'v_lshlrev_b32 v{V_A1}, 5, v{SRC+6}            ; q*8*4')
    a(f'v_add_u32 v{V_A1}, s18, v{V_A1}')
    a(f'v_lshlrev_b32 v{V_A2}, 4, v{SRC+6}            ; q*8*2')
    a(f'v_add_u32 v{V_A2}, s18, v{V_A2}')
    a(f'v_lshrrev_b32 v{SRC+6}, 2, v{V_C}             ; rho>>2')
    a(f'v_and_b32 v{SRC+7}, 3, v{V_C}')
    a(f'v_lshl_add_u32 v{SRC+6}, v{SRC+6}, 3, v{SRC+7}   ; 8*(rho>>2)+(rho&3)')
    a(f'v_lshlrev_b32 v{V_A3}, 2, v{SRC+6}')
    a(f'v_add_u32 v{V_A3}, s18, v{V_A3}')
    npf2 = 0
    if PFPOS in 'BC':
        a('s_cmp_lg_u32 s52, 0')
        a('s_cbranch_scc1 K2_NOPF')
        if PFPOS == 'B':
            pf_A(0, 53, PR); pf_B(PR+2); npf2 = 2
        else:
            pf_A(10, 53, PR+4); npf2 = 1
        a.lab('K2_NOPF')
    a(f'v_lshlrev_b32 v{TMP+1}, 1, v{TMP+3}')
    a(f'v_add_u32 v{TMP+1}, s18, v{TMP+1}')
    if npf2:
        a('s_cmp_lg_u32 s52, 0')
        a('s_cbranch_scc1 K2_RW0')
        a(f's_waitcnt vmcnt({npf2}) lgkmcnt(0)')
        a('s_branch K2_RW1')
        a.lab('K2_RW0')
        a('s_waitcnt vmcnt(0) lgkmcnt(0)')
        a.lab('K2_RW1')
    else:
        a('s_waitcnt vmcnt(0) lgkmcnt(0)')
    a.stamp(4)
    if FUSE:
        a('s_or_b32 s62, s3, s52')
        a('s_cmp_lg_u32 s62, 0')
        a('s_cbranch_scc1 K2_PB_DONE')
        a('s_mov_b32 s61, 0x8000')
        poll_masks(AOP)
        a('s_and_b64 s[56:57], s[56:57], vcc')
        a('s_cmp_eq_u64 s[56:57], -1')
        a('s_cbranch_scc1 K2_PB_OK')
        RB = [AOP, MSGT, MSGT+4]
        poll_issue(RB[0])
        a('s_sleep 3')
        poll_issue(RB[1])
        a.lab('K2_POLLB')
        for k in range(3):
            a('s_sleep 3')
            poll_issue(RB[(k+2) % 3])
            a('s_waitcnt vmcnt(2)')
            poll_masks(RB[k])
            a('s_and_b64 s[56:57], s[56:57], vcc')
            a('s_cmp_eq_u64 s[56:57], -1')
            a('s_cbranch_scc1 K2_PB_OK0')
        a('s_sub_u32 s61, s61, 1')
        a('s_cmp_lg_u32 s61, 0')
        a('s_cbranch_scc1 K2_POLLB')
        a.lab('K2_PB_OK0')
        a('s_waitcnt vmcnt(0)')
        a.lab('K2_PB_OK')
        a(f'v_mov_b32 v{AOP}, {LBF}')
        a(f'v_mov_b32 v{AOP+1}, 1')
        a(f'ds_write_b32 v{AOP}, v{AOP+1}')
        a.lab('K2_PB_DONE')
    a(f'v_xor_b32 v{RC}, v{TMP+2}, v{RC}')
    a(f'v_add_u32 v{RC+3}, {ZROW}, v{RC+3}')
    a(f'ds_write_b32 v{TMP}, v{RC} offset:{O_SRC}')
    a(f'ds_write_b32 v{TMP}, v{RC+3} offset:{O_AOF}')
    X = os.environ.get('X','')
    def issue_row(i):
        t = T4 + (i & 1)
        a(f'v_add_u32 v{t}, v{SRC+i}, v{V_C}')
        if 'L' in X: return
        a(f'buffer_load_dwordx4 v[{gA(i,0)}:{gA(i,3)}], v{t}, s[44:47], 0 idxen {SCG}')
        if not os.environ.get('NOB'): a(f'buffer_load_dword v{GB+i}, v{t}, s[48:51], 0 idxen {SCG}')
    def read_src(off):
        a(f'ds_read_b128 v[{SRC}:{SRC+3}], v{V_A1} offset:{O_SRC+off}')
        a(f'ds_read_b128 v[{SRC+4}:{SRC+7}], v{V_A1} offset:{O_SRC+off+16}')
    read_src(0)
    if FUSE:
        a(f'v_mov_b32 v{AOP}, {LBF}')
        a('s_mov_b32 s61, 0x200000')
        a.lab('K2_TSPIN')
        a(f'ds_read_b32 v{AOP+1}, v{AOP}')
        a('s_waitcnt lgkmcnt(0)')
        a(f'v_readfirstlane_b32 s62, v{AOP+1}')
        a('s_cmp_lg_u32 s62, 0')
        a('s_cbranch_scc1 K2_TOK')
        a('s_sub_u32 s61, s61, 1')
        a('s_cmp_lg_u32 s61, 0')
        a('s_cbranch_scc1 K2_TSPIN')
        a.lab('K2_TOK')
        if os.environ.get('ST7') == '2': a.stamp(7)
    else:
        a('s_waitcnt lgkmcnt(0)')
    a('s_add_u32 s53, s58, s54')
    a('s_cmp_eq_u32 s53, 0')
    a('s_cbranch_scc1 K2_NOTILES')
    for i in range(4): issue_row(i)
    a(f'ds_write_b16 v{TMP+1}, v{RC+1} offset:{O_RX}')
    a(f'ds_write_b16_d16_hi v{TMP+1}, v{RC+1} offset:{O_RY}')
    a(f'ds_write_b16 v{TMP+1}, v{RC+2} offset:{O_RZ}')
    a(f'ds_write_b16_d16_hi v{TMP+1}, v{RC+2} offset:{O_OH}')
    for j in range(1, 5):
        a(f's_cmp_le_u32 s59, {64*j}')
        a('s_cbranch_scc1 K2_SOA_DONE')
        r = RC+4*j
        a(f'v_xor_b32 v{r}, v{TMP+2}, v{r}')
        a(f'v_add_u32 v{r+3}, {ZROW}, v{r+3}')
        a(f'ds_write_b32 v{TMP}, v{r} offset:{O_SRC+256*j}')
        a(f'ds_write_b32 v{TMP}, v{r+3} offset:{O_AOF+256*j}')
        a(f'ds_write_b16 v{TMP+1}, v{r+1} offset:{O_RX+128*j}')
        a(f'ds_write_b16_d16_hi v{TMP+1}, v{r+1} offset:{O_RY+128*j}')
        a(f'ds_write_b16 v{TMP+1}, v{r+2} offset:{O_RZ+128*j}')
        a(f'ds_write_b16_d16_hi v{TMP+1}, v{r+2} offset:{O_OH+128*j}')
    a.lab('K2_SOA_DONE')
    rare_id = [0]
    def load_A(ao0, ao1, tmp):
        k = rare_id[0]; rare_id[0] += 1
        a(f'v_or_b32 v{tmp}, v{ao0}, v{ao1}')
        a(f'v_cmp_gt_i32 vcc, 0, v{tmp}')
        a(f's_cbranch_vccnz K2_RARE{k}')
        a(f'v_add_u32 v{ao0}, v{ao0}, v{V_KQ8}')
        a(f'v_add_u32 v{ao1}, v{ao1}, v{V_KQ8}')
        a(f'ds_read_b64 v[{AOP}:{AOP+1}], v{ao0}')
        a(f'ds_read_b64 v[{AOP+2}:{AOP+3}], v{ao1}')
        a.lab(f'K2_RARE_BACK{k}')
        return (k, ao0, ao1)
    rares = []
    a(f'ds_read_b32 v{TMP+2}, v{V_A3} offset:{O_AOF}')
    a(f'ds_read_b32 v{TMP+3}, v{V_A3} offset:{O_AOF+16}')
    for i in range(4, 8): issue_row(i)
    a.stamp(5)
    a('s_waitcnt lgkmcnt(0)')
    rares.append(load_A(TMP+2, TMP+3, T4))
    a('s_waitcnt lgkmcnt(0)')
    def wf1(t, R, seg):
        if 'M' in X: return
        a(f'v_mfma_f32_16x16x16_bf16 v[{wf(seg,R)}:{wf(seg,R)+3}], v[{AOP+2*R}:{AOP+2*R+1}], v[{wb(seg,t)}:{wb(seg,t)+1}], 0')
    def seg1(t, ac, m, mc):
        if 'M' in X: return
        a(f'v_mfma_f32_16x16x32_bf16 v[{acc(ac,t)}:{acc(ac,t)+3}], v[{SM+4*m}:{SM+4*m+3}], v[{msg(mc)}:{msg(mc)+3}], v[{acc(ac,t)}:{acc(ac,t)+3}]')
    for seg in (1, 2, 0): wf1(0, 0, seg)
    for r in range(TMP, TMP+4): a(f'v_mov_b32 v{r}, 0')
    a.nop(4)
    if Asm.STAMPS:
        a('s_lshl_b32 s69, s3, 6')
        a(f's_add_u32 s69, s69, {K2_LDS}')
    a('s_mov_b32 s53, 0')
    a('s_cmp_eq_u32 s58, 0')
    a('s_cbranch_scc1 K2_HALF')
    a.lab('K2_TILE')
    if Asm.STAMPS:
        a('s_memrealtime s[90:91]')
        a('s_waitcnt lgkmcnt(0)')
        a(f'v_mov_b32 v{T4}, s90')
        a(f'v_mov_b32 v{T5}, s69')
        a(f'ds_write_b32 v{T5}, v{T4}')
        a('s_add_u32 s69, s69, 4')
    PRIO = os.environ.get('PRIO','1')
    if PRIO == '1':
        a('s_cmp_ge_u32 s58, 4')
        a('s_cbranch_scc1 K2_P2')
        a('s_cmp_ge_u32 s58, 2')
        a('s_cbranch_scc1 K2_P1')
        a('s_setprio 0')
        a('s_branch K2_PDONE')
        a.lab('K2_P1'); a('s_setprio 1'); a('s_branch K2_PDONE')
        a.lab('K2_P2'); a('s_setprio 2')
        a.lab('K2_PDONE')
    if PRIO == '2':
        a('s_cmp_ge_u32 s58, 4')
        a('s_cbranch_scc1 K2_P3')
        a('s_cmp_eq_u32 s58, 3')
        a('s_cbranch_scc1 K2_P2')
        a('s_cmp_eq_u32 s58, 2')
        a('s_cbranch_scc1 K2_P1')
        a('s_setprio 0')
        a('s_branch K2_PDONE')
        a.lab('K2_P1'); a('s_setprio 1'); a('s_branch K2_PDONE')
        a.lab('K2_P2'); a('s_setprio 2'); a('s_branch K2_PDONE')
        a.lab('K2_P3'); a('s_setprio 3')
        a.lab('K2_PDONE')
    if os.environ.get('SKIP','0') == '1':
        a('s_cmp_gt_u32 s58, 1')
        a('s_cselect_b32 s99, 2, s54')
    SEG = [1, 1, 1, 2, 0]
    X_, Y_, Z_, VR_, S_ = 0, 1, 2, 3, 4
    groups = []
    for c in range(5): groups.append((0, (0, c), (2, c)))
    for c in range(5): groups.append((0, (4, c), (6, c)))
    pm = [(0, 0), (0, 1), (0, 2), (0, 3), (0, 4), (2, 0), (2, 1), (2, 2), (2, 3), (2, 4)]
    for k in range(5): groups.append((1, pm[2*k], pm[2*k+1]))
    for c in range(5): groups.append((1, (4, c), (6, c)))
    def unpack(t, i, comp, u):
        s0 = gA(i, comp) if comp < 4 else GB+i
        s1 = gA(i+1, comp) if comp < 4 else GB+i+1
        if 'V' in X: return
        if t == 0:
            a(f'v_lshlrev_b32 v{u}, 16, v{s0}'); a(f'v_lshlrev_b32 v{u+1}, 16, v{s1}')
        else:
            a(f'v_and_b32 v{u}, 0xffff0000, v{s0}'); a(f'v_and_b32 v{u+1}, 0xffff0000, v{s1}')
    def pk(t, i, comp, u):
        R = i >> 2; r = i & 3; seg = SEG[comp]
        if 'V' in X: return
        a(f'v_pk_mul_f32 v[{u}:{u+1}], v[{u}:{u+1}], v[{wf(seg,R,r)}:{wf(seg,R,r+1)}]')
    def cvt(g):
        t, (i0_, c0), (i1_, c1) = groups[g]
        if 'V' in X: return
        a(f'v_cvt_pk_bf16_f32 v{msg(c0,i0_//2)}, v{TMP}, v{TMP+1}')
        a(f'v_cvt_pk_bf16_f32 v{msg(c1,i1_//2)}, v{TMP+2}, v{TMP+3}')
    def block(g, slot):
        t, (i0_, c0), (i1_, c1) = groups[g]
        if slot: slot()
        cvt((g-1) % 20)
        unpack(t, i0_, c0, TMP); unpack(t, i1_, c1, TMP+2)
        pk(t, i0_, c0, TMP); pk(t, i1_, c1, TMP+2)
    SS = {X_: (1, 0, 0), Y_: (2, 0, 1), Z_: (3, 0, 2), S_: (0, 0, 4), 'vx': (1, 1, 3), 'vy': (2, 2, 3), 'vz': (3, 3, 3)}
    def sg(t, k): return lambda: seg1(t, *SS[k])
    def wfl(t, R, seg): return lambda: wf1(t, R, seg)
    slots = {0: sg(1,'vx'), 1: sg(1,'vy'), 2: sg(1,'vz'), 3: sg(1,S_),
             4: wfl(0,1,1), 5: wfl(0,1,2), 6: wfl(0,1,0),
             7: sg(0,X_), 8: sg(0,Y_), 9: sg(0,Z_), 10: sg(0,'vx'), 11: sg(0,'vy'), 12: sg(0,'vz'), 13: sg(0,S_),
             14: wfl(1,1,1), 15: wfl(1,1,2), 16: wfl(1,1,0), 17: sg(1,X_), 18: sg(1,Y_), 19: sg(1,Z_)}
    VW = (lambda n: n//2) if os.environ.get('NOB') else (lambda n: n)
    for g in range(20):
        if g == 0: a(f's_waitcnt vmcnt({VW(8)})')
        if g == 5:
            a('s_waitcnt vmcnt(0)')
            RESPOS = int(os.environ.get('RESPOS','3'))
            a(f's_cmp_lt_u32 s53, {RESPOS}')
            a('s_cbranch_scc1 K2_RESSKIP')
            res_dma('A')
            a.lab('K2_RESSKIP')
        block(g, slots[g])
        if g == 3:
            wf1(1, 0, 1)
            a(f'ds_read_b128 v[{SM}:{SM+3}], v{V_A2} offset:{O_OH}')
            a(f'ds_read_b128 v[{SM+4}:{SM+7}], v{V_A2} offset:{O_RX}')
            a(f'ds_read_b128 v[{SM+8}:{SM+11}], v{V_A2} offset:{O_RY}')
            a(f'ds_read_b128 v[{SM+12}:{SM+15}], v{V_A2} offset:{O_RZ}')
            read_src(128)
        if g == 6:
            a('s_waitcnt lgkmcnt(2)')
            wf1(1, 0, 2)
            for j in range(4): a(f'v_pk_lshlrev_b16 v{SM+j}, v{V_SHL}, v{SM+j}')
            for j in range(4): a(f'v_pk_ashrrev_i16 v{SM+j}, 15, v{SM+j} op_sel_hi:[0,1]')
            wf1(1, 0, 0)
            for m in (1, 2, 3):
                for j in range(4): a(f'v_and_b32 v{SM+4*m+j}, v{SM+j}, v{SM+4*m+j}')
            for j in range(4): a(f'v_and_b32 v{SM+j}, 0x3f803f80, v{SM+j}')
            a(f'v_add_u32 v{V_A1}, 128, v{V_A1}')
            a(f'v_add_u32 v{V_A2}, 64, v{V_A2}')
        if g == 9: a('s_waitcnt lgkmcnt(0)')
        def guarded(rows, need, tag):
            if os.environ.get('SKIP','0') == '1':
                a(f's_cmp_lt_u32 s99, {need}')
                a(f's_cbranch_scc1 K2_SK{tag}')
            for r_ in rows: issue_row(r_)
            if os.environ.get('SKIP','0') == '1':
                a.lab(f'K2_SK{tag}')
        if g == 12:
            guarded((0, 1), 1, 'a')
            a(f'ds_read_b32 v{SRC}, v{V_A3} offset:{O_AOF+128}')
            a(f'ds_read_b32 v{SRC+1}, v{V_A3} offset:{O_AOF+128+16}')
        if g == 14:
            guarded((2, 3), 1, 'b')
        if g == 16:
            a('s_waitcnt lgkmcnt(0)')
            rares.append(load_A(SRC, SRC+1, T4))
        if g == 19:
            guarded((4,), 2, 'c')
            a('s_waitcnt lgkmcnt(0)')
            wf1(0, 0, 1)
            guarded((5,), 2, 'd')
            wf1(0, 0, 2)
            guarded((6,), 2, 'e')
            wf1(0, 0, 0)
            guarded((7,), 2, 'f')
    a(f'v_add_u32 v{V_A3}, 128, v{V_A3}')
    a('s_add_u32 s53, s53, 1')
    a('s_sub_u32 s58, s58, 1')
    a('s_cmp_lg_u32 s58, 0')
    a('s_cbranch_scc1 K2_TILE')
    a('s_cmp_eq_u32 s54, 0')
    a('s_cbranch_scc1 K2_FLUSH')
    a.lab('K2_HALF')
    a('s_setprio 0')
    hslots = {0: sg(1,'vx'), 1: sg(1,'vy'), 2: sg(1,'vz'), 3: sg(1,S_), 4: None}
    for g in range(5):
        if g == 0: a('s_waitcnt vmcnt(0)')
        block(g, hslots[g])
        if g == 3:
            wf1(1, 0, 1)
            a(f'ds_read_b128 v[{SM}:{SM+3}], v{V_A2} offset:{O_OH}')
            a(f'ds_read_b128 v[{SM+4}:{SM+7}], v{V_A2} offset:{O_RX}')
            a(f'ds_read_b128 v[{SM+8}:{SM+11}], v{V_A2} offset:{O_RY}')
            a(f'ds_read_b128 v[{SM+12}:{SM+15}], v{V_A2} offset:{O_RZ}')
    cvt(4)
    for c in range(5):
        a(f'v_mov_b32 v{msg(c,2)}, 0'); a(f'v_mov_b32 v{msg(c,3)}, 0')
    a('s_waitcnt lgkmcnt(0)')
    wf1(1, 0, 2)
    for j in range(4): a(f'v_pk_lshlrev_b16 v{SM+j}, v{V_SHL}, v{SM+j}')
    for j in range(4): a(f'v_pk_ashrrev_i16 v{SM+j}, 15, v{SM+j} op_sel_hi:[0,1]')
    wf1(1, 0, 0)
    for m in (1, 2, 3):
        for j in range(4): a(f'v_and_b32 v{SM+4*m+j}, v{SM+j}, v{SM+4*m+j}')
    for j in range(4): a(f'v_and_b32 v{SM+j}, 0x3f803f80, v{SM+j}')
    a('s_nop 1')
    seg1(0, *SS[X_]); seg1(0, *SS[Y_]); seg1(0, *SS[Z_])
    def block_nocvt(g, slot):
        t, (i0_, c0), (i1_, c1) = groups[g]
        if slot: slot()
        unpack(t, i0_, c0, TMP); unpack(t, i1_, c1, TMP+2)
        pk(t, i0_, c0, TMP); pk(t, i1_, c1, TMP+2)
    block_nocvt(10, sg(0,'vx'))
    seg1(0, *SS['vy'])
    block(11, sg(0,'vz'))
    block(12, sg(0,S_))
    block(13, None)
    block(14, None)
    cvt(14)
    a('s_nop 1')
    for k in (X_, Y_, Z_, 'vx', 'vy', 'vz', S_): seg1(1, *SS[k])
    a('s_waitcnt vmcnt(0) lgkmcnt(0)')
    a('s_branch K2_TILES_DONE')
    a.lab('K2_FLUSH')
    cvt(19)
    for k in ('vx', 'vy', 'vz'): seg1(1, *SS[k])
    seg1(1, *SS[S_])
    a('s_waitcnt vmcnt(0) lgkmcnt(0)')
    a('s_branch K2_TILES_DONE')
    a.lab('K2_NOTILES')
    a.lab('K2_TILES_DONE')
    a.stamp(6)
    a('s_add_u32 s52, s52, 256')
    a('s_cmp_lt_u32 s52, s19')
    a('s_cbranch_scc1 K2_MORE')
    a.lab('K2_EPI')
    res_dma('B')
    a('s_waitcnt vmcnt(0)')
    LN = T4
    a(f'v_mbcnt_lo_u32_b32 v{LN}, -1, 0')
    a(f'v_mbcnt_hi_u32_b32 v{LN}, -1, v{LN}')
    a('s_lshl_b32 s62, s97, 12')
    a(f's_add_u32 s62, s62, {RES0}')
    a(f'v_lshrrev_b32 v{T5}, 4, v{LN}')
    a(f'v_lshlrev_b32 v{T5}, 10, v{T5}')
    a(f'v_lshl_add_u32 v{T5}, v{V_C}, 2, v{T5}')
    a(f'v_add_u32 v{T5}, s62, v{T5}')
    for r in range(4):
        for comp in range(4):
            a(f'ds_read_b32 v{GA+r*4+comp}, v{T5} offset:{r*256+comp*64}')
    a('s_waitcnt lgkmcnt(0)')
    for r in range(4):
        for comp in range(4):
            x = GA+r*4+comp
            a(f'v_lshlrev_b32 v{TMP}, 16, v{x}')
            a(f'v_and_b32 v{TMP+1}, 0xffff0000, v{x}')
            a(f'v_add_f32 v{TMP}, v{TMP}, v{acc(comp,0)+r}')
            a(f'v_add_f32 v{TMP+1}, v{TMP+1}, v{acc(comp,1)+r}')
            a(f'v_cvt_pk_bf16_f32 v{x}, v{TMP}, v{TMP+1}')
            a(f'ds_write_b32 v{T5}, v{x} offset:{r*256+comp*64}')
    a(f'v_lshlrev_b32 v{TMP}, 4, v{LN}')
    a(f'v_add_u32 v{TMP}, s62, v{TMP}')
    for j in range(4):
        a(f'ds_read_b128 v[{MSG+4*j}:{MSG+4*j+3}], v{TMP} offset:{1024*j}')
    a(f'v_lshrrev_b32 v{T5}, 4, v{LN}')
    a(f'v_lshlrev_b32 v{TMP+1}, 10, v{T5}')
    a(f'v_bfe_u32 v{TMP+2}, v{LN}, 2, 2')
    a(f'v_lshl_add_u32 v{TMP+1}, v{TMP+2}, 8, v{TMP+1}')
    a(f'v_and_b32 v{TMP+2}, 3, v{LN}')
    a(f'v_lshl_add_u32 v{TMP+1}, v{TMP+2}, 4, v{TMP+1}')
    a('s_lshl_b32 s61, s15, 10')
    a('s_lshl_b32 s62, s13, 6')
    a('s_add_u32 s61, s61, s62')
    a(f'v_mov_b32 v{TMP+2}, 0x80000000')
    for j in range(4):
        a(f'v_add_u32 v{TMP+3}, {4*j}, v{T5}')
        a(f'v_cmp_gt_u32 vcc, s16, v{TMP+3}')
        a('s_nop 1')
        a(f'v_cndmask_b32 v{WF+j}, v{TMP+2}, v{TMP+1}, vcc')
    for j in range(4):
        a(f's_waitcnt lgkmcnt({3-j})')
        a(f'buffer_store_dwordx4 v[{MSG+4*j}:{MSG+4*j+3}], v{WF+j}, s[36:39], s61 offen {OUTST}')
        a('s_add_u32 s61, s61, 4096')
    if not os.environ.get('ST7'): a.stamp(7)
    if Asm.STAMPS and not os.environ.get('ST7'):
        a('s_memtime s[86:87]')
        a('s_waitcnt lgkmcnt(0)')
        a('s_sub_u32 s84, s86, s88')
    if Asm.STAMPS:
        a('s_lshl_b32 s68, s3, 6')
        a(f's_add_u32 s68, s68, {K2_LDS}')
        a(f'v_lshlrev_b32 v2, 2, v{LN}')
        a('v_add_u32 v3, s68, v2')
        a('ds_read_b32 v4, v3')
        a('s_add_u32 s64, s10, 0x1A00000')
        a('s_addc_u32 s65, s11, 0')
        a('s_mov_b32 s66, 0x100000')
        a('s_mov_b32 s67, 0x00020000')
        a('s_lshl_b32 s68, s2, 4')
        a('s_add_u32 s68, s68, s3')
        a('s_lshl_b32 s68, s68, 6')
        a('s_waitcnt lgkmcnt(0)')
        a('s_mov_b64 exec, 0xffff')
        a('buffer_store_dword v4, v2, s[64:67], s68 offen')
        a('s_mov_b64 exec, -1')
    if Asm.STAMPS and FUSE:
        a('s_lshl_b32 s68, s3, 5')
        a('s_add_u32 s68, s68, 155712')
        a(f'v_mbcnt_lo_u32_b32 v2, -1, 0')
        a(f'v_mbcnt_hi_u32_b32 v2, -1, v2')
        a('v_lshlrev_b32 v2, 2, v2')
        a('v_add_u32 v3, s68, v2')
        a('ds_read_b32 v4, v3')
        a('s_add_u32 s64, s10, 0x1800000')
        a('s_addc_u32 s65, s11, 0')
        a('s_mov_b32 s66, 0x100000')
        a('s_mov_b32 s67, 0x00020000')
        a('s_lshl_b32 s68, s2, 4')
        a('s_add_u32 s68, s68, s3')
        a('s_lshl_b32 s68, s68, 6')
        a('s_waitcnt lgkmcnt(0)')
        a('s_mov_b64 exec, 0xff')
        a('buffer_store_dword v4, v2, s[64:67], s68 offen')
        a('s_mov_b64 exec, -1')
    a.stamp_flush(1, 10, 8, 3)
    a.lab('K2_END')
    a('s_endpgm')
    a.lab('K2_MORE')
    for r in range(SM, SM+16): a(f'v_mov_b32 v{r}, 0')
    a(f'v_mbcnt_lo_u32_b32 v{LANE}, -1, 0')
    a(f'v_mbcnt_hi_u32_b32 v{LANE}, -1, v{LANE}')
    a(f'v_mul_u32_u24 v{TMP}, {NG*4}, v{LANE}')
    a('s_lshl_b32 s17, s14, 2')
    a(f'buffer_load_dword v{TMP+1}, v{TMP}, s[20:23], s17 offen {SC}')
    a('s_waitcnt vmcnt(0)')
    header()
    a(f'v_sub_u32 v{P}, v{P}, v{CNT}')
    a(f'v_lshl_add_u32 v{LOCB}, v{LANE}, 12, v{ST}')
    a('s_branch K2_CHUNK')
    for (k, ao0, ao1) in rares:
        a.lab(f'K2_RARE{k}')
        a(f'v_max_i32 v{T4}, 0, v{ao0}')
        a(f'v_max_i32 v{T5}, 0, v{ao1}')
        a(f'v_add_u32 v{T4}, v{T4}, v{V_KQ8}')
        a(f'v_add_u32 v{T5}, v{T5}, v{V_KQ8}')
        a(f'ds_read_b64 v[{AOP}:{AOP+1}], v{T4}')
        a(f'ds_read_b64 v[{AOP+2}:{AOP+3}], v{T5}')
        a('s_waitcnt lgkmcnt(0)')
        for h, ao in ((0, ao0), (1, ao1)):
            a(f'v_cmp_gt_i32 vcc, 0, v{ao}')
            a(f'v_add_u32 v{T4}, {HOT0*32}, v{ao}')
            a(f'v_add_u32 v{T4}, v{T4}, v{V_KQ8}')
            a('s_and_saveexec_b64 s[62:63], vcc')
            a(f's_cbranch_execz K2_RSK{k}_{h}')
            a(f'buffer_load_dwordx2 v[{AOP+2*h}:{AOP+2*h+1}], v{T4}, s[28:31], 0 offen {SC}')
            a('s_waitcnt vmcnt(0)')
            a.lab(f'K2_RSK{k}_{h}')
            a('s_mov_b64 exec, s[62:63]')
        a(f's_branch K2_RARE_BACK{k}')
```

```python
from asmlib import *
import os
STT = os.environ.get('STT','sc1')
STO = os.environ.get('STO','sc1')
LDN = os.environ.get('LDN','')

N = 10000; E = 160000
NBIN = 47; CHUNK = 3405; NG = 768
WS_TA = 0; WS_TB = 10240000; WS_ATAB = 0xC80000; WS_WB = 0xC90000; WS_HDR = 0xCA0000; WS_TAILS = 0xD00000
HOT0 = 1472; NHOT_KB = 17; ZROW = 17408
WS_FLAGS = 0xCF0000
FUSE = os.environ.get('FUSE','1') == '1'
KNAME = 'gather_scatter__molecular_angular_painn__graph_kernel'
COMP = bool(os.environ.get('COMP'))
DBASE = 0x38C0; DTHR = 0x409D
K1_LDS = 155712
S_BASE = 131072; HS_OFF = 12288

def srd(a, s, base, nbytes, off=0, stride=0):
    if off:
        a(f's_add_u32 s{s}, s{base}, 0x{off:x}')
        a(f's_addc_u32 s{s+1}, s{base+1}, 0')
    else:
        a(f's_mov_b32 s{s}, s{base}')
        a(f's_mov_b32 s{s+1}, s{base+1}')
    if stride:
        a(f's_or_b32 s{s+1}, s{s+1}, 0x{stride<<16:x}')
    a(f's_mov_b32 s{s+2}, {nbytes}')
    a(f's_mov_b32 s{s+3}, 0x00020000')

def gen_mlp(a):
    a.lab('K1_MLP')
    wave_ids(a)
    FLAG = 155648
    a('v_lshrrev_b32 v3, 4, v2          ; L>>4')
    a('v_and_b32 v4, 15, v2             ; L&15')
    a('v_mov_b32 v5, 0')
    a(f'v_mov_b32 v6, {FLAG}')
    a('ds_write_b32 v6, v5')
    a('s_and_b32 s26, s3, 1')
    a('s_lshl_b32 s26, s26, 2           ; 4*(wv&1)')
    a('v_add_u32 v6, s26, v3            ; kl7')
    a('v_lshrrev_b32 v7, 1, v4          ; p>>1')
    a('v_xor_b32 v7, v7, v6')
    a('v_and_b32 v8, 1, v4')
    a('v_lshl_or_b32 v7, v7, 1, v8      ; lchunk')
    a('v_lshlrev_b32 v7, 4, v7          ; *16')
    a('v_lshl_add_u32 v6, v3, 8, v7')
    a('v_mul_u32_u24 v8, 768, v3')
    a('v_add_u32 v7, v8, v7             ; vW2')
    a('s_sub_u32 s24, s91, 47')
    a('s_mul_i32 s24, s24, 48          ; node0')
    a('s_lshr_b32 s22, s3, 2           ; nt')
    a('s_and_b32 s23, s3, 3            ; sl')
    a('s_mov_b32 s30, 10240000')
    a('s_mov_b32 s31, 0x00020000')
    a('s_mov_b32 s34, 32768')
    a('s_mov_b32 s35, 0x00020000')
    a('s_mov_b32 s38, 98304')
    a('s_mov_b32 s39, 0x00020000')
    a('s_waitcnt lgkmcnt(0)')
    a.stamp(0)
    a('s_mov_b32 s28, s4')
    a('s_mov_b32 s29, s5')
    a('s_mov_b32 s32, s14')
    a('s_mov_b32 s33, s15')
    a('s_mov_b32 s36, s16')
    a('s_mov_b32 s37, s17')
    a('s_barrier')
    a('s_cmp_ge_u32 s3, 8')
    a('s_cbranch_scc1 K1_LOADER')
    a('s_lshl_b32 s25, s3, 2')
    a('v_add_u32 v5, s25, v3')
    a('v_and_b32 v9, 15, v5')
    a('v_xor_b32 v9, v4, v9             ; lchunk')
    a('v_add_u32 v5, s24, v5            ; node')
    a('v_lshlrev_b32 v5, 10, v5')
    a('v_lshl_add_u32 v5, v9, 4, v5')
    a('s_lshl_b32 s25, s3, 10')
    a(f's_add_u32 s25, s25, {S_BASE}')
    a('s_mov_b32 m0, s25')
    a('s_cmp_ge_u32 s3, 4')
    a(f'buffer_load_dwordx4 v5, s[28:31], 0 offen {LDN} lds')
    a('s_cbranch_scc1 K1_S2SKIP')
    a('s_add_u32 s25, s25, 8192')
    a('s_mov_b32 m0, s25')
    a('v_add_u32 v5, 0x8000, v5')
    a(f'buffer_load_dwordx4 v5, s[28:31], 0 offen {LDN} lds')
    a.lab('K1_S2SKIP')
    for j in range(4):
        a(f's_add_u32 s25, s3, {8*j}')
        a('s_lshl_b32 s26, s25, 10')
        a('s_mov_b32 m0, s26')
        a('s_nop 0')
        a('buffer_load_dwordx4 v6, s[32:35], s26 offen lds')
    HYB = int(os.environ.get('HYB','0'))
    if HYB:
        jobs = [(1, j) for j in range(4)] + ([(2, j) for j in range(2)] if HYB == 2 else [])
        for (m, j) in jobs:
            a(f's_add_u32 s25, s3, {8*j}')
            a('s_lshl_b32 s26, s25, 10')
            a(f's_add_u32 s26, s26, {m*32768}')
            a('s_mov_b32 m0, s26')
            a('s_mul_i32 s27, s25, 3072')
            if m > 1: a(f's_add_u32 s27, s27, {(m-1)*256}')
            a('buffer_load_dwordx4 v7, s[36:39], s27 offen lds')
    a('s_branch K1_ADDR')
    a.lab('K1_LOADER')
    a('s_sub_u32 s49, s3, 8')
    for m in range(2 if HYB else 1, 4):
        for j in range(8):
            if HYB == 2 and m == 2 and j < 4: continue
            a(f's_add_u32 s25, s49, {4*j}')
            a('s_lshl_b32 s26, s25, 10')
            a(f's_add_u32 s26, s26, {m*32768}')
            a('s_mov_b32 m0, s26')
            a('s_mul_i32 s27, s25, 3072')
            a(f's_add_u32 s27, s27, {(m-1)*256}')
            a('buffer_load_dwordx4 v7, s[36:39], s27 offen lds')
    a.lab('K1_ADDR')
    cpf(a, 'M')
    a('s_mul_i32 s25, s23, 2560000')
    a('s_add_u32 s40, s20, s25')
    a('s_addc_u32 s41, s21, 0')
    a('s_mov_b32 s42, 2560000')
    a('s_mov_b32 s43, 0x00020000')
    a('s_mul_i32 s25, s23, 640000')
    a(f's_add_u32 s25, s25, {WS_TB}')
    a('s_add_u32 s44, s20, s25')
    a('s_addc_u32 s45, s21, 0')
    a('s_mov_b32 s46, 640000')
    a('s_mov_b32 s47, 0x00020000')
    if FUSE: dbg_srd(a)
    a('s_lshl_b32 s25, s22, 4')
    a('s_add_u32 s25, s25, s24           ; node0+16nt')
    a('s_mov_b32 s48, s25')
    a('v_add_u32 v8, s25, v4')
    a('v_lshlrev_b32 v8, 10, v8')
    a('v_lshl_add_u32 v8, v3, 3, v8')
    a('s_lshl_b32 s26, s23, 6')
    a('s_add_u32 s26, s26, 256')
    a('v_add_u32 v8, s26, v8')
    VV = 10
    def vloads():
        for j in range(3):
            for hf in range(2):
                r = VV + (j*2+hf)*2
                a(f'buffer_load_dwordx2 v[{r}:{r+1}], v8, s[28:31], 0 offen offset:{j*256+32*hf} {LDN}')
    a('v_lshrrev_b32 v22, 2, v4           ; r\'')
    a('v_lshl_add_u32 v22, v3, 2, v22     ; 4kq + r\'')
    a('v_and_b32 v23, 7, v22              ; kl7')
    a('v_lshlrev_b32 v22, 8, v22')
    a('v_lshl_add_u32 v22, v23, 5, v22')
    a('v_and_b32 v23, 3, v4')
    a('v_lshl_add_u32 v22, v23, 3, v22    ; aBase')
    a('s_lshl_b32 s25, s23, 6             ; 2*sl*32')
    a('v_xor_b32 v24, s25, v22')
    a('v_xor_b32 v25, 32, v24             ; aW[hf=1]')
    a('v_add_u32 v26, 0x10000, v24        ; aW2[0] (+65536)')
    a('v_add_u32 v27, 0x10000, v25        ; aW2[1]')
    a('v_lshrrev_b32 v23, 1, v3')
    a('v_xor_b32 v23, v23, v4')
    a('v_lshlrev_b32 v23, 4, v23')
    a('v_and_b32 v28, 1, v3')
    a('v_lshl_add_u32 v23, v28, 3, v23')
    a('v_lshl_add_u32 v23, v4, 8, v23')
    a(f'v_add_u32 v23, {S_BASE}, v23      ; bBase0')
    VB = 28
    for st in range(4):
        for rd in range(2):
            k = (4*st + 2*rd)*16
            r = VB + st*2 + rd
            if k == 0: a(f'v_mov_b32 v{r}, v23')
            else: a(f'v_xor_b32 v{r}, {k}, v23')
    a('v_mov_b32 v38, 0xffff0000')
    a('s_cmp_ge_u32 s3, 8')
    a('s_cbranch_scc1 K1_LOADER2')
    a('s_lshl_b32 s25, s3, 5')
    a('v_xor_b32 v36, s25, v22')
    a('v_xor_b32 v37, s25, v23')
    a.stamp(1)
    a(f's_waitcnt vmcnt({[0,4,6][HYB]})')
    a(f'v_mov_b32 v39, {FLAG}')
    a('v_mov_b32 v9, 1')
    a('s_mov_b64 exec, 1')
    a('ds_add_u32 v39, v9')
    a('s_mov_b64 exec, -1')
    a.lab('K1_SPIN')
    a('ds_read_b32 v9, v39')
    a('s_waitcnt lgkmcnt(0)')
    a('v_readfirstlane_b32 s25, v9')
    a('s_cmp_lt_u32 s25, 8')
    a('s_cbranch_scc1 K1_SPIN')
    a.stamp(2)
    AF = 56
    BL = 72
    D1 = 40
    for st in range(4):
        for rd in range(2):
            r = AF + st*4 + rd*2
            a(f'ds_read_b64_tr_b16 v[{r}:{r+1}], v36 offset:{st*8192+rd*4096}')
    for nt in range(3):
        for st in range(4):
            for rd in range(2):
                r = BL + nt*16 + st*4 + rd*2
                a(f'ds_read_b64 v[{r}:{r+1}], v{VB+st*2+rd} offset:{nt*4096}')
    vloads()
    for r in range(D1, D1+12): a(f'v_mov_b32 v{r}, 0')
    a('s_waitcnt lgkmcnt(0)')
    for st in range(4):
        for nt in range(3):
            A_ = AF + st*4; B_ = BL + nt*16 + st*4; D_ = D1 + nt*4
            a(f'v_mfma_f32_16x16x32_bf16 v[{D_}:{D_+3}], v[{A_}:{A_+3}], v[{B_}:{B_+3}], v[{D_}:{D_+3}]')
    a.nop(8)
    a.stamp(3)
    T = 56
    for p in range(6):
        a(f'v_cvt_pk_bf16_f32 v{T+p}, v{D1+2*p}, v{D1+2*p+1}')
    for p in range(6):
        a(f'v_lshlrev_b32 v{D1+2*p}, 16, v{T+p}')
        a(f'v_and_b32 v{D1+2*p+1}, v38, v{T+p}')
    for i in range(12):
        a(f'v_mul_f32 v{T+i}, 0xbfb8aa3b, v{D1+i}     ; -log2e*h')
    for i in range(12):
        a(f'v_exp_f32 v{T+i}, v{T+i}')
    a('s_nop 0')
    for i in range(12):
        a(f'v_add_f32 v{T+i}, 1.0, v{T+i}')
    for i in range(12):
        a(f'v_rcp_f32 v{T+i}, v{T+i}')
    a('s_nop 0')
    for i in range(12):
        a(f'v_mul_f32 v{T+i}, v{D1+i}, v{T+i}')
    for p in range(6):
        a(f'v_cvt_pk_bf16_f32 v{D1+p}, v{T+2*p}, v{T+2*p+1}')
    for nt in range(3):
        a(f'ds_write_b64 v37, v[{D1+2*nt}:{D1+2*nt+1}] offset:{HS_OFF+nt*4096}')
    a('s_waitcnt vmcnt(6) lgkmcnt(0)')
    a('s_branch K1_B2')
    a.lab('K1_LOADER2')
    vloads()
    a.stamp(1); a.stamp(2); a.stamp(3)
    a('s_waitcnt vmcnt(6)')
    a.lab('K1_B2')
    a('s_lshl_b32 s25, s22, 12')
    for r in range(VB, VB+8): a(f'v_add_u32 v{r}, s25, v{r}')
    a('s_barrier')
    a.stamp(4)
    BS = 40; AF = 56
    nonce_load(a, 'M')
    for st in range(4):
        for rd in range(2):
            r = BS + st*4 + rd*2
            a(f'ds_read_b64 v[{r}:{r+1}], v{VB+st*2+rd} offset:{HS_OFF}')
    D2 = 96
    bufs = [AF, AF+16, 120]
    def issueA(seg, hf, bi):
        buf = bufs[bi]
        if seg == 0: areg = 24+hf; base = 32768
        else: areg = 26+hf; base = (seg-1)*32768
        for st in range(4):
            for rd in range(2):
                r = buf + st*4 + rd*2
                a(f'ds_read_b64_tr_b16 v[{r}:{r+1}], v{areg} offset:{base+st*8192+rd*4096}')
    a('s_lshl_b32 s25, s3, 11')
    a('v_and_b32 v9, 7, v4')
    a('v_lshlrev_b32 v28, 1, v3           ; 2q')
    a('v_xor_b32 v28, v28, v9')
    a('v_lshlrev_b32 v28, 4, v28')
    a('v_lshl_add_u32 v28, v4, 7, v28')
    a('v_add_u32 v28, s25, v28            ; chunk 2q')
    a('v_xor_b32 v29, 16, v28             ; chunk 2q+1')
    a('v_lshrrev_b32 v30, 3, v2           ; L>>3')
    a('v_and_b32 v31, 7, v2               ; p')
    a('v_xor_b32 v33, v31, v30            ; p ^ (node&7)')
    a('v_lshlrev_b32 v33, 4, v33')
    a('v_lshl_add_u32 v33, v30, 7, v33')
    a('v_add_u32 v33, s25, v33')
    a('s_lshl_b32 s26, s48, 8')
    a('v_lshlrev_b32 v34, 8, v30')
    a('v_lshl_add_u32 v34, v31, 4, v34')
    a('v_add_u32 v34, s26, v34')
    a('s_lshl_b32 s25, s3, 10')
    a(f's_add_u32 s25, s25, {S_BASE}')
    a('v_lshlrev_b32 v32, 6, v4')
    a('v_lshl_add_u32 v32, v3, 3, v32')
    a('v_add_u32 v32, s25, v32')
    a('v_lshlrev_b32 v39, 4, v2           ; L*16')
    a('v_add_u32 v37, s25, v39')
    a('s_lshl_b32 s27, s48, 6')
    a('v_add_u32 v39, s27, v39')
    O1 = 80; O2 = 84; OB = 88; PV = 90; TT = 108; R0 = 64
    issueA(0, 0, 0)
    a('s_waitcnt lgkmcnt(8)')
    for hf in range(2):
        for r in range(D2, D2+12): a(f'v_mov_b32 v{r}, 0')
        for seg in range(3):
            bi = (hf*3+seg) % 3
            nxt = hf*3+seg+1
            if nxt < 6:
                a('s_waitcnt lgkmcnt(7)')
                issueA(nxt % 3, nxt // 3, nxt % 3)
                a('s_waitcnt lgkmcnt(8)')
            else:
                a('s_waitcnt lgkmcnt(0)')
            D_ = D2 + seg*4
            buf = bufs[bi]
            for st in range(4):
                a(f'v_mfma_f32_16x16x32_bf16 v[{D_}:{D_+3}], v[{buf+st*4}:{buf+st*4+3}], v[{BS+st*4}:{BS+st*4+3}], v[{D_}:{D_+3}]')
        if hf == 0: a('s_waitcnt vmcnt(0)')
        a.nop(8)
        Ds = D2; Dv = D2+4; Dr = D2+8
        a(f'v_cvt_pk_bf16_f32 v{OB}, v{Ds}, v{Ds+1}')
        a(f'v_cvt_pk_bf16_f32 v{OB+1}, v{Ds+2}, v{Ds+3}')
        a(f'v_cvt_pk_bf16_f32 v{O1+3}, v{Dr}, v{Dr+1}')
        a(f'v_cvt_pk_bf16_f32 v{O2+3}, v{Dr+2}, v{Dr+3}')
        a(f'v_cvt_pk_bf16_f32 v{TT}, v{Dv}, v{Dv+1}')
        a(f'v_cvt_pk_bf16_f32 v{TT+1}, v{Dv+2}, v{Dv+3}')
        a(f'v_lshlrev_b32 v{PV}, 16, v{TT}')
        a(f'v_and_b32 v{PV+1}, v38, v{TT}')
        a(f'v_lshlrev_b32 v{PV+2}, 16, v{TT+1}')
        a(f'v_and_b32 v{PV+3}, v38, v{TT+1}')
        for j in range(3):
            r = VV + (j*2+hf)*2
            t = TT
            a(f'v_lshlrev_b32 v{t}, 16, v{r}')
            a(f'v_and_b32 v{t+1}, v38, v{r}')
            a(f'v_lshlrev_b32 v{t+2}, 16, v{r+1}')
            a(f'v_and_b32 v{t+3}, v38, v{r+1}')
            a(f'v_pk_mul_f32 v[{t}:{t+1}], v[{t}:{t+1}], v[{PV}:{PV+1}]')
            a(f'v_pk_mul_f32 v[{t+2}:{t+3}], v[{t+2}:{t+3}], v[{PV+2}:{PV+3}]')
            a(f'v_cvt_pk_bf16_f32 v{O1+j}, v{t}, v{t+1}')
            a(f'v_cvt_pk_bf16_f32 v{O2+j}, v{t+2}, v{t+3}')
        a(f'ds_write_b128 v28, v[{O1}:{O1+3}]')
        a(f'ds_write_b128 v29, v[{O2}:{O2+3}]')
        a(f'ds_write_b64 v32, v[{OB}:{OB+1}] offset:{32*hf}')
        RR = R0 if hf == 0 else 40 + 0
        RR = 108 + 4 if hf == 0 else 40
        a(f'ds_read_b128 v[{RR}:{RR+3}], v33')
        a(f'ds_read_b128 v[{RR+4}:{RR+7}], v33 offset:1024')
        if hf == 1:
            a(f'ds_read_b128 v[{RR+8}:{RR+11}], v37')
        if hf == 0:
            a.stamp(5)
        a(f's_waitcnt lgkmcnt({1 if hf == 0 else 2})')
        a(f'buffer_store_dwordx4 v[{RR}:{RR+3}], v34, s[40:43], 0 offen offset:{128*hf} {STT}')
        a(f's_waitcnt lgkmcnt({0 if hf == 0 else 1})')
        a(f'buffer_store_dwordx4 v[{RR+4}:{RR+7}], v34, s[40:43], 0 offen offset:{2048+128*hf} {STT}')
        if hf == 1:
            a('s_waitcnt lgkmcnt(0)')
            a(f'buffer_store_dwordx4 v[{RR+8}:{RR+11}], v39, s[44:47], 0 offen {STT}')
    a.stamp(6)
    role_end(a, True)

def nonce_load(a, tag):
    if FUSE:
        a('s_cmp_lg_u32 s3, 0')
        a(f's_cbranch_scc1 K1_NL{tag}')
        a('v_mov_b32 v165, 0')
        a('buffer_load_dword v166, v165, s[92:95], 0 offen sc1')
        a.lab(f'K1_NL{tag}')

def get_nonce(a, tag):
    a('s_mov_b32 s68, 0x10000')
    a.lab(f'K1_NLOOP{tag}')
    a('v_readfirstlane_b32 s100, v166')
    a('s_cmp_lg_u32 s100, 0')
    a(f's_cbranch_scc1 K1_NOK{tag}')
    a('v_mov_b32 v165, 0')
    a('buffer_load_dword v166, v165, s[92:95], 0 offen sc1')
    a('s_waitcnt vmcnt(0)')
    a('s_sub_u32 s68, s68, 1')
    a('s_cmp_lg_u32 s68, 0')
    a(f's_cbranch_scc1 K1_NLOOP{tag}')
    a.lab(f'K1_NOK{tag}')

def publish(a, off):
    a(f's_add_u32 s64, s20, 0x{WS_FLAGS:x}')
    a('s_addc_u32 s65, s21, 0')
    a('s_mov_b32 s66, 16384')
    a('s_mov_b32 s67, 0x00020000')
    a('v_mbcnt_lo_u32_b32 v164, -1, 0')
    a('v_mbcnt_hi_u32_b32 v164, -1, v164')
    a('v_lshlrev_b32 v164, 11, v164           ; replica*2048')
    a('s_lshl_b32 s68, s91, 2')
    a(f's_add_u32 s68, s68, {off}')
    a('v_mov_b32 v163, s100')
    a('s_mov_b64 exec, 0xff')
    a('buffer_store_dword v163, v164, s[64:67], s68 offen sc1')
    a('s_mov_b64 exec, -1')

def role_end(a, mlp=False):
    if FUSE and mlp:
        a('s_mov_b32 s101, 1')
        a('s_waitcnt lgkmcnt(0)')
        a('s_barrier')
        if Asm.STAMPS:
            a('s_memrealtime s[84:85]')
            a('s_waitcnt lgkmcnt(0)')
            a('s_lshl_b32 s68, s3, 5')
            a('s_add_u32 s68, s68, 155712')
            a('v_mov_b32 v1, s68')
            for i in range(8):
                a(f'v_mov_b32 v2, s{70+2*i}')
                a(f'ds_write_b32 v1, v2 offset:{4*i}')
        a('s_cmp_lg_u32 s3, 0')
        a('s_cbranch_scc1 K2_START')
        a('s_waitcnt vmcnt(5)')
        get_nonce(a, 'M')
    elif FUSE:
        a('s_mov_b32 s101, 0')
        a('s_branch K1_DONE')
    else:
        a.stamp_flush(0, 20, 7, 3)
        a('s_endpgm')

def bf16_round_pair(a, dst, x, y):
    a(f'v_cvt_pk_bf16_f32 v{dst}, v{x}, v{y}')

def gen_bin(a):
    a.lab('K1_BIN')
    wave_ids(a)
    a('s_waitcnt lgkmcnt(0)')
    a.stamp(0)
    srd(a, 28, 8, E*4)
    srd(a, 32, 10, E*4)
    srd(a, 36, 6, N*6)
    srd(a, 40, 20, NBIN*NG*4, off=WS_HDR)
    srd(a, 44, 20, NBIN*65536, off=WS_TAILS)
    a(f's_mul_i32 s24, s91, {CHUNK}           ; e0')
    a(f's_sub_u32 s25, {E}, s24')
    a(f's_min_u32 s25, s25, {CHUNK}          ; lim')
    a('v_lshlrev_b32 v1, 2, v0')
    a('v_mov_b32 v3, 0')
    a('ds_write_b32 v1, v3')
    SRC = 10; DST = 15; PS = 20; PD = 30; REC = 40; GG = 60; RK = 65
    POSL = 69632
    srd(a, 64, 12, 32)
    srd(a, 84, 20, 65536, off=WS_ATAB)
    a('v_and_b32 v82, 15, v0                 ; k')
    a('v_lshlrev_b32 v83, 1, v82')
    a('buffer_load_ushort v84, v83, s[64:67], 0 offen')
    a('s_cmp_lg_u32 s91, 0')
    a('s_cbranch_scc1 K1_NOWB1')
    srd(a, 64, 18, 16*768)
    a('v_lshrrev_b32 v90, 4, v2               ; kq')
    a('v_and_b32 v91, 15, v2                  ; c')
    a('v_mul_u32_u24 v90, 3072, v90           ; 4kq*768')
    a('v_lshl_add_u32 v90, v91, 2, v90')
    a('s_and_b32 s61, s3, 3')
    a('s_lshr_b32 s62, s3, 2')
    a('s_lshl_b32 s63, s61, 6')
    a('s_lshl_b32 s68, s62, 8')
    a('s_add_u32 s63, s63, s68')
    for i in range(4):
        a(f'buffer_load_dword v{92+i}, v90, s[64:67], s63 offen offset:{i*768}')
    a.lab('K1_NOWB1')
    a('v_lshlrev_b32 v5, 4, v2               ; lane*16')
    for k in range(5):
        if k == 4:
            a('s_cmp_ge_u32 s3, 11')
            a('s_cbranch_scc1 K1_POSDONE')
        a(f's_add_u32 s26, s3, {12*k}')
        a('s_lshl_b32 s26, s26, 10')
        a(f's_add_u32 s27, s26, {POSL}')
        a('s_mov_b32 m0, s27')
        a('s_nop 0')
        a('buffer_load_dwordx4 v5, s[36:39], s26 offen lds')
    a.lab('K1_POSDONE')
    a('v_add_u32 v4, s24, v0')
    a('v_lshlrev_b32 v4, 2, v4              ; e*4 (round 0)')
    for j in range(5):
        a(f's_mov_b32 s26, {j*3072}')
        a(f'buffer_load_dword v{SRC+j}, v4, s[28:31], s26 offen {LDN}')
        a(f'buffer_load_dword v{DST+j}, v4, s[32:35], s26 offen {LDN}')
    for j in range(5):
        a(f'v_add_u32 v5, {j*768}, v0')
        a(f'v_cmp_gt_u32 s[{50+2*j}:{51+2*j}], s25, v5')
    a('v_mov_b32 v6, 0xffff0000')
    if FUSE:
        dbg_srd(a)
        a('s_or_b32 s68, s91, s3')
        a('s_cmp_lg_u32 s68, 0')
        a('s_cbranch_scc1 K1_NONONCE')
        a('s_memrealtime s[98:99]')
        a('s_waitcnt lgkmcnt(0)')
        a('s_or_b32 s98, s98, 1')
        a('v_mov_b32 v166, s98')
        a('v_mov_b32 v165, 0')
        a('s_mov_b64 exec, 1')
        a('buffer_store_dword v166, v165, s[92:95], 0 offen sc1')
        a('s_mov_b64 exec, -1')
        a.lab('K1_NONONCE')
    cpf(a, 'B')
    a('v_lshrrev_b32 v85, 4, v0')
    a('s_mul_i32 s61, s91, 48')
    a('v_add_u32 v85, s61, v85             ; entry')
    a(f'v_add_u32 v86, 0x{DBASE:x}, v85')
    a('v_lshlrev_b32 v86, 16, v86          ; d')
    a('v_mul_f32 v87, 0x40490fdb, v86       ; pi*d')
    a('v_cvt_pk_bf16_f32 v87, v87, v87')
    a('v_and_b32 v87, v6, v87')
    a('v_mul_f32 v87, 0x3e4ccccd, v87       ; /5')
    a('v_cvt_pk_bf16_f32 v87, v87, v87')
    a('v_and_b32 v87, v6, v87')
    a('v_mul_f32 v87, 0x3e22f983, v87')
    a('v_cos_f32 v87, v87')
    a('v_rcp_f32 v88, v86                   ; 1/d')
    a('v_cvt_pk_bf16_f32 v87, v87, v87')
    a('v_and_b32 v87, v6, v87')
    a('v_add_f32 v87, 1.0, v87')
    a('v_cvt_pk_bf16_f32 v87, v87, v87')
    a('v_and_b32 v87, v6, v87')
    a('v_mul_f32 v87, 0.5, v87              ; fcut')
    a('v_cmp_gt_u32 vcc, 0x40a00000, v86')
    a('v_cmp_ne_u32 s[62:63], 0, v85')
    a('s_and_b64 vcc, vcc, s[62:63]')
    a('s_nop 1')
    a('v_cndmask_b32 v87, 0, v87, vcc')
    a('s_waitcnt vmcnt(14)')
    a('v_lshlrev_b32 v84, 16, v84           ; f_k')
    a('v_mul_f32 v84, v84, v86')
    a('v_cvt_pk_bf16_f32 v84, v84, v84')
    a('v_and_b32 v84, v6, v84               ; arg')
    a('v_mul_f32 v89, 0x3e22f983, v84')
    a('v_mov_b32 v81, 0x3e22f983')
    a('v_fma_f32 v80, v84, v81, -v89')
    a('v_mov_b32 v81, 0x31dc9c88')
    a('v_fma_f32 v80, v84, v81, v80')
    a('v_fract_f32 v89, v89')
    a('v_add_f32 v89, v89, v80')
    a('v_sin_f32 v89, v89')
    a('s_nop 0')
    a('v_cvt_pk_bf16_f32 v89, v89, v89')
    a('v_and_b32 v89, v6, v89')
    a('v_mul_f32 v89, v89, v88')
    a('v_cvt_pk_bf16_f32 v89, v89, v89')
    a('v_and_b32 v89, v6, v89')
    a('v_mul_f32 v89, v89, v87')
    a('v_cvt_pk_bf16_f32 v89, v89, v89')
    a('s_nop 1')
    a('v_mov_b32_dpp v88, v89 quad_perm:[1,0,3,2] row_mask:0xf bank_mask:0xf')
    a('v_and_b32 v89, 0xffff, v89')
    a('v_and_b32 v88, v6, v88')
    a('v_or_b32 v89, v89, v88')
    a('v_lshlrev_b32 v85, 5, v85')
    a('v_add_u32 v85, v85, v83               ; entry*32 + 2k')
    a('s_waitcnt vmcnt(10) lgkmcnt(0)')
    a('s_barrier')
    a.stamp(1)
    a('s_mov_b32 s62, 0x55555555')
    a('s_mov_b32 s63, 0x55555555')
    a('s_mov_b64 exec, s[62:63]')
    a(f'buffer_store_dword v89, v85, s[84:87], 0 offen {STO}')
    a('s_mov_b64 exec, -1')
    a('s_cmp_lg_u32 s91, 0')
    a('s_cbranch_scc1 K1_NOWB2')
    srd(a, 64, 20, 12288, off=WS_WB)
    a('s_mov_b32 s62, 0x05040100')
    a('s_mov_b32 s63, 0x07060302')
    a('v_perm_b32 v96, v93, v92, s62')
    a('v_perm_b32 v97, v95, v94, s62')
    a('v_perm_b32 v98, v93, v92, s63')
    a('v_perm_b32 v99, v95, v94, s63')
    a('s_and_b32 s61, s3, 3')
    a('s_lshr_b32 s62, s3, 2')
    a('s_mul_i32 s61, s61, 3')
    a('s_add_u32 s61, s61, s62')
    a('s_lshl_b32 s61, s61, 10                ; (slice*3+seg)*1024')
    a('v_lshlrev_b32 v91, 4, v2')
    a(f'buffer_store_dwordx4 v[96:99], v91, s[64:67], s61 offen {STO}')
    a.lab('K1_NOWB2')
    for j in range(5):
        a(f's_waitcnt vmcnt({8-2*j+1})')
        for (idx, dstp) in ((SRC+j, PS+2*j), (DST+j, PD+2*j)):
            a(f'v_mul_u32_u24 v5, 6, v{idx}')
            a('v_and_b32 v5, -4, v5')
            a(f'v_add_u32 v5, {POSL}, v5')
            a(f'ds_read2_b32 v[{dstp}:{dstp+1}], v5 offset0:0 offset1:1')
    a.stamp(2)
    a('s_mov_b32 s26, 5033')
    a('s_mov_b32 s27, 853362')
    a('v_mov_b32 v7, 1')
    a('v_mov_b32 v8, 65000')
    a('v_mov_b32 v9, 0x10000')
    for j in range(5):
        a(f's_waitcnt lgkmcnt({min(15, 8-2*j + j)})')
        ps = PS+2*j; pd = PD+2*j; rec = REC+4*j
        t = 70
        a(f'v_and_b32 v{t}, 1, v{SRC+j}')
        a(f'v_lshlrev_b32 v{t}, 4, v{t}')
        a(f'v_lshrrev_b64 v[{ps}:{ps+1}], v{t}, v[{ps}:{ps+1}]')
        a(f'v_and_b32 v{t+1}, 1, v{DST+j}')
        a(f'v_lshlrev_b32 v{t+1}, 4, v{t+1}')
        a(f'v_lshrrev_b64 v[{pd}:{pd+1}], v{t+1}, v[{pd}:{pd+1}]')
        a(f'v_lshlrev_b32 v{t}, 16, v{ps}')
        a(f'v_and_b32 v{t+1}, v6, v{ps}')
        a(f'v_lshlrev_b32 v{t+2}, 16, v{pd}')
        a(f'v_and_b32 v{t+3}, v6, v{pd}')
        a(f'v_pk_add_f32 v[{t}:{t+1}], v[{t}:{t+1}], v[{t+2}:{t+3}] neg_lo:[0,1] neg_hi:[0,1]')
        a(f'v_lshlrev_b32 v{t+2}, 16, v{ps+1}')
        a(f'v_lshlrev_b32 v{t+3}, 16, v{pd+1}')
        a(f'v_sub_f32 v{t+2}, v{t+2}, v{t+3}      ; rz')
        a(f'v_cvt_pk_bf16_f32 v{t+3}, v{t}, v{t+1}')
        a(f'v_cvt_pk_bf16_f32 v{t+4}, v{t+2}, v{t+2}')
        a(f'v_lshlrev_b32 v{t}, 16, v{t+3}')
        a(f'v_and_b32 v{t+1}, v6, v{t+3}')
        a(f'v_and_b32 v{t+2}, v6, v{t+4}')
        a(f'v_pk_mul_f32 v[{t+4}:{t+5}], v[{t}:{t+1}], v[{t}:{t+1}]')
        a(f'v_mul_f32 v{t+3}, v{t+2}, v{t+2}')
        a(f'v_cvt_pk_bf16_f32 v{t+4}, v{t+4}, v{t+5}')
        a(f'v_cvt_pk_bf16_f32 v{t+3}, v{t+3}, v{t+3}')
        a(f'v_lshlrev_b32 v{t+5}, 16, v{t+4}')
        a(f'v_and_b32 v{t+4}, v6, v{t+4}')
        a(f'v_and_b32 v{t+3}, v6, v{t+3}')
        a(f'v_add_f32 v{t+4}, v{t+5}, v{t+4}')
        a(f'v_add_f32 v{t+3}, v{t+4}, v{t+3}')
        a(f'v_cvt_pk_bf16_f32 v{t+3}, v{t+3}, v{t+3}')
        a(f'v_and_b32 v{t+3}, v6, v{t+3}')
        a(f'v_add_f32 v{t+3}, 0x322bcc77, v{t+3}   ; +1e-8')
        a(f'v_cvt_pk_bf16_f32 v{t+3}, v{t+3}, v{t+3}')
        a(f'v_and_b32 v{t+3}, v6, v{t+3}')
        a(f'v_sqrt_f32 v{t+3}, v{t+3}')
        a(f'v_mul_u32_u24 v{GG+j}, s26, v{DST+j}')
        a(f'v_cvt_pk_bf16_f32 v{t+3}, v{t+3}, v{t+3}')
        a(f'v_and_b32 v{t+3}, v6, v{t+3}           ; d (f32 bits)')
        a(f'v_rcp_f32 v{t+4}, v{t+3}')
        a(f'v_lshrrev_b32 v{GG+j}, 16, v{GG+j}       ; g')
        a(f'v_pk_mul_f32 v[{t}:{t+1}], v[{t}:{t+1}], v[{t+4}:{t+5}] op_sel_hi:[1,0]')
        a(f'v_mul_f32 v{t+2}, v{t+2}, v{t+4}')
        a(f'v_cvt_pk_bf16_f32 v{rec+1}, v{t}, v{t+1}   ; rx|ry')
        a(f'v_cvt_pk_bf16_f32 v{rec+2}, v{t+2}, 0      ; rz | 0')
        a(f'v_cmp_gt_u32 vcc, 0x{DTHR<<16:x}, v{t+3}')
        a(f's_and_b64 s[{50+2*j}:{51+2*j}], s[{50+2*j}:{51+2*j}], vcc')
        a(f'v_lshrrev_b32 v{rec+3}, 16, v{t+3}')
        a(f'v_subrev_u32 v{rec+3}, 0x{DBASE+HOT0+ZROW//32:x}, v{rec+3}')
        a(f'v_lshlrev_b32 v{rec+3}, 5, v{rec+3}')
        a(f'v_mad_u32_u24 v{t}, v{GG+j}, s27, v8')
        a(f'v_lshrrev_b32 v{t}, 16, v{t}')
        a(f'v_sub_u32 v{t}, v{DST+j}, v{t}          ; dloc')
        a(f'v_lshlrev_b32 v{t}, v{t}, v9')
        a(f'v_or_b32 v{rec+2}, v{t}, v{rec+2}')
        a(f'v_lshlrev_b32 v{rec}, 4, v{SRC+j}')
        a(f'v_or_b32 v{rec}, 0x80000000, v{rec}')
        a(f'v_lshlrev_b32 v{t+1}, 2, v{GG+j}')
        a(f's_mov_b64 exec, s[{50+2*j}:{51+2*j}]')
        a(f'ds_add_rtn_u32 v{RK+j}, v{t+1}, v7')
        a('s_mov_b64 exec, -1')
    a.stamp(3)
    nonce_load(a, 'B')
    a('s_waitcnt vmcnt(0) lgkmcnt(0)')
    a('s_barrier')
    a.stamp(4)
    a('ds_read_b32 v3, v1                    ; cnt')
    a('s_waitcnt lgkmcnt(0)')
    a('v_mov_b32 v4, v3')
    a('s_nop 1')
    for sh in (1, 2, 4, 8):
        a(f'v_add_u32_dpp v4, v4, v4 row_shr:{sh} row_mask:0xf bank_mask:0xf')
        a('s_nop 1')
    a('v_add_u32_dpp v4, v4, v4 row_bcast:15 row_mask:0xa bank_mask:0xf')
    a('s_nop 1')
    a('v_add_u32_dpp v4, v4, v4 row_bcast:31 row_mask:0xc bank_mask:0xf')
    a('s_nop 1')
    a('v_readlane_b32 s26, v4, 63')
    a('s_lshl_b32 s27, s3, 2')
    a('v_mov_b32 v5, s27')
    a('v_mov_b32 v8, s26')
    a('ds_write_b32 v5, v8 offset:4096')
    a('s_waitcnt lgkmcnt(0)')
    a('s_barrier')
    a('v_lshlrev_b32 v5, 2, v2')
    a('ds_read_b32 v70, v5 offset:4096')
    a('v_sub_u32 v4, v4, v3')
    a('v_cmp_gt_u32 vcc, 12, v2')
    a('s_waitcnt lgkmcnt(0)')
    a('s_nop 0')
    a('v_cndmask_b32 v70, 0, v70, vcc')
    a('s_nop 1')
    for sh in (1, 2, 4, 8):
        a(f'v_add_u32_dpp v70, v70, v70 row_shr:{sh} row_mask:0xf bank_mask:0xf')
        a('s_nop 1')
    a('v_readlane_b32 s61, v70, 11')
    a('s_sub_u32 s26, s3, 1')
    a('s_max_i32 s26, s26, 0')
    a('s_nop 3')
    a('v_readlane_b32 s27, v70, s26')
    a('s_cmp_eq_u32 s3, 0')
    a('s_cselect_b32 s27, 0, s27')
    a('v_add_u32 v4, s27, v4')
    a('ds_write_b32 v1, v4 offset:8192         ; start[bin]')
    a('v_lshl_or_b32 v3, v3, 16, v4')
    a(f's_mul_i32 s26, s91, {NG*4}')
    a(f'buffer_store_dword v3, v1, s[40:43], s26 offen {STO}')
    a('s_waitcnt lgkmcnt(0)')
    a('s_barrier')
    a.stamp(5)
    RST = 12288
    for j in range(5):
        a(f'v_lshlrev_b32 v{GG+j}, 2, v{GG+j}')
        a(f'ds_read_b32 v{GG+j}, v{GG+j} offset:8192')
    for j in range(5):
        a(f's_waitcnt lgkmcnt({4-j})')
        a(f'v_add_u32 v{GG+j}, v{GG+j}, v{RK+j}')
        a(f'v_lshlrev_b32 v{GG+j}, 4, v{GG+j}')
    for j in range(5):
        a(f's_mov_b64 exec, s[{50+2*j}:{51+2*j}]')
        a(f'ds_write_b128 v{GG+j}, v[{REC+4*j}:{REC+4*j+3}] offset:{RST}')
    a('s_mov_b64 exec, -1')
    a('s_waitcnt lgkmcnt(0)')
    a('s_barrier')
    a('v_lshlrev_b32 v5, 4, v0                   ; tid*16')
    for j in range(5):
        a(f'ds_read_b128 v[{REC+4*j}:{REC+4*j+3}], v5 offset:{RST+j*12288}')
    a('s_lshl_b32 s26, s91, 16                    ; w*65536')
    for j in range(5):
        a(f'v_add_u32 v6, {j*768}, v0')
        a(f'v_cmp_gt_u32 vcc, s61, v6')
        a(f'v_add_u32 v7, {j*12288}, v5')
        a(f's_waitcnt lgkmcnt({4-j})')
        a('s_mov_b64 exec, vcc')
        a(f'buffer_store_dwordx4 v[{REC+4*j}:{REC+4*j+3}], v7, s[44:47], s26 offen {STO}')
        a('s_mov_b64 exec, -1')
    a.stamp(6)
    role_end(a)

def gen_tab(a):
    a.lab('K1_TAB')
    a.stamp(0)
    srd(a, 28, 20, 65536, off=WS_ATAB)
    srd(a, 24, 18, 16*768)
    srd(a, 32, 20, 12288, off=WS_WB)
    a('v_lshrrev_b32 v10, 4, v2               ; kq')
    a('v_and_b32 v11, 15, v2                  ; c')
    a('v_mul_u32_u24 v10, 3072, v10           ; 4kq*768')
    a('v_lshl_add_u32 v10, v11, 2, v10')
    a('s_and_b32 s52, s3, 3')
    a('s_lshr_b32 s53, s3, 2')
    a('s_lshl_b32 s54, s52, 6')
    a('s_lshl_b32 s55, s53, 8')
    a('s_add_u32 s54, s54, s55')
    for i in range(4):
        a(f'buffer_load_dword v{12+i}, v10, s[24:27], s54 offen offset:{i*768}')
    a('s_mov_b32 s62, 0x05040100')
    a('s_mov_b32 s63, 0x07060302')
    a('s_mul_i32 s54, s52, 3')
    a('s_add_u32 s54, s54, s53')
    a('s_lshl_b32 s54, s54, 10                ; (slice*3+seg)*1024')
    a('v_lshlrev_b32 v11, 4, v2')
    a('s_waitcnt vmcnt(0)')
    a('v_perm_b32 v16, v13, v12, s62')
    a('v_perm_b32 v17, v15, v14, s62')
    a('v_perm_b32 v18, v13, v12, s63')
    a('v_perm_b32 v19, v15, v14, s63')
    a(f'buffer_store_dwordx4 v[16:19], v11, s[32:35], s54 offen {STO}')
    nonce_load(a, 'T')
    a('s_load_dwordx8 s[36:43], s[12:13], 0')
    a('v_mov_b32 v6, 0xffff0000')
    a('s_waitcnt lgkmcnt(0)')
    for k in range(8):
        a(f's_lshl_b32 s{44+2*k}, s{36+k}, 16')
        a(f's_and_b32 s{45+2*k}, s{36+k}, 0xffff0000')
    a('s_mov_b32 s60, 0x3e22f983')
    a('s_mov_b32 s61, 0x31dc9c88')
    a('s_mov_b32 s62, 0')
    a.lab('K1_TAB_LOOP')
    a('v_add_u32 v3, s62, v0             ; entry')
    a(f'v_add_u32 v4, 0x{DBASE:x}, v3')
    a('v_lshlrev_b32 v4, 16, v4           ; d')
    a('v_mul_f32 v5, 0x40490fdb, v4       ; pi*d')
    a('v_cvt_pk_bf16_f32 v5, v5, v5')
    a('v_and_b32 v5, v6, v5')
    a('v_mul_f32 v5, 0x3e4ccccd, v5       ; /5')
    a('v_cvt_pk_bf16_f32 v5, v5, v5')
    a('v_and_b32 v5, v6, v5')
    a('v_mul_f32 v5, s60, v5')
    a('v_cos_f32 v5, v5')
    a('v_rcp_f32 v7, v4                   ; 1/d')
    a('v_cvt_pk_bf16_f32 v5, v5, v5')
    a('v_and_b32 v5, v6, v5')
    a('v_add_f32 v5, 1.0, v5')
    a('v_cvt_pk_bf16_f32 v5, v5, v5')
    a('v_and_b32 v5, v6, v5')
    a('v_mul_f32 v5, 0.5, v5              ; fcut')
    a('v_cmp_gt_u32 vcc, 0x40a00000, v4')
    a('v_cmp_ne_u32 s[64:65], 0, v3')
    a('s_and_b64 vcc, vcc, s[64:65]')
    a('s_nop 1')
    a('v_cndmask_b32 v5, 0, v5, vcc')
    for k in range(16):
        t = 10 + k
        a(f'v_mul_f32 v{t}, s{44+k}, v4')
    for k in range(0, 16, 2):
        t = 10 + k
        a(f'v_cvt_pk_bf16_f32 v{30+k//2}, v{t}, v{t+1}')
    for k in range(0, 16, 2):
        t = 10 + k
        a(f'v_lshlrev_b32 v{t}, 16, v{30+k//2}')
        a(f'v_and_b32 v{t+1}, v6, v{30+k//2}')
    for k in range(16):
        t = 10 + k
        a(f'v_mul_f32 v40, s60, v{t}')
        a(f'v_fma_f32 v41, v{t}, s60, -v40')
        a(f'v_fma_f32 v41, v{t}, s61, v41')
        a(f'v_fract_f32 v40, v40')
        a(f'v_add_f32 v40, v40, v41')
        a(f'v_sin_f32 v{t}, v40')
    a('s_nop 0')
    for k in range(0, 16, 2):
        t = 10 + k
        a(f'v_cvt_pk_bf16_f32 v40, v{t}, v{t+1}')
        a(f'v_lshlrev_b32 v{t}, 16, v40')
        a(f'v_and_b32 v{t+1}, v6, v40')
        a(f'v_mul_f32 v{t}, v{t}, v7')
        a(f'v_mul_f32 v{t+1}, v{t+1}, v7')
        a(f'v_cvt_pk_bf16_f32 v40, v{t}, v{t+1}')
        a(f'v_lshlrev_b32 v{t}, 16, v40')
        a(f'v_and_b32 v{t+1}, v6, v40')
        a(f'v_mul_f32 v{t}, v{t}, v5')
        a(f'v_mul_f32 v{t+1}, v{t+1}, v5')
        a(f'v_cvt_pk_bf16_f32 v{30+k//2}, v{t}, v{t+1}')
    a('v_lshlrev_b32 v8, 5, v3')
    a(f'buffer_store_dwordx4 v[30:33], v8, s[28:31], 0 offen {STO}')
    a(f'buffer_store_dwordx4 v[34:37], v8, s[28:31], 0 offen offset:16 {STO}')
    a('s_add_u32 s62, s62, 768')
    a('s_cmp_lt_u32 s62, 2048')
    a('s_nop 1')
    a('s_cbranch_scc1 K1_TAB_LOOP')
    for i in range(1,7): a.stamp(i)
    role_end(a)

def cpf(a, tag):
    if os.environ.get('CPF','0') != '1': return
    a('s_cmp_lg_u32 s3, 11')
    a(f's_cbranch_scc1 K1_NOCPF{tag}')
    a('s_getpc_b64 s[62:63]')
    a.lab(f'K1_PCREF{tag}')
    a(f's_add_u32 s62, s62, {KNAME}-K1_PCREF{tag}')
    a(f's_addc_u32 s63, s63, ({KNAME}-K1_PCREF{tag})>>32')
    a('v_lshlrev_b32 v160, 7, v2')
    a('v_mov_b32 v161, s63')
    a('v_add_co_u32 v160, vcc, s62, v160')
    a('s_nop 1')
    a('v_addc_co_u32 v161, vcc, 0, v161, vcc')
    a('global_load_dword v162, v[160:161], off')
    a('v_add_co_u32 v160, vcc, 0x2000, v160')
    a('s_nop 1')
    a('v_addc_co_u32 v161, vcc, 0, v161, vcc')
    a('global_load_dword v162, v[160:161], off')
    a('v_add_co_u32 v160, vcc, 0x2000, v160')
    a('s_nop 1')
    a('v_addc_co_u32 v161, vcc, 0, v161, vcc')
    a(f'v_cmp_gt_u32 vcc, (CODE_END-{KNAME}-16384)/128, v2')
    a('s_and_saveexec_b64 s[62:63], vcc')
    a(f's_cbranch_execz K1_CPFX{tag}')
    a('global_load_dword v162, v[160:161], off')
    a.lab(f'K1_CPFX{tag}')
    a('s_mov_b64 exec, s[62:63]')
    a.lab(f'K1_NOCPF{tag}')

def wave_ids(a):
    a('v_lshrrev_b32 v1, 6, v0')
    a('v_and_b32 v2, 63, v0')
    a('s_nop 0')
    a('v_readfirstlane_b32 s3, v1')

def dbg_srd(a):
    a('s_mov_b32 s92, s96')
    a('s_mov_b32 s93, s97')
    a('s_mov_b32 s94, 256')
    a('s_mov_b32 s95, 0x00020000')

def gen_k1(a):
    name = KNAME if FUSE else 'prep_kernel'
    a.raw('.p2align 8')
    a.raw(f'.type {name},@function')
    a.lab(name)
    a('s_cmp_ge_u32 s2, 256')
    a('s_cbranch_scc1 K1_END')
    a('s_load_dwordx4 s[4:7], s[0:1], 0')
    a('s_load_dwordx4 s[8:11], s[0:1], 16')
    a('s_load_dwordx4 s[12:15], s[0:1], 32')
    a('s_load_dwordx4 s[16:19], s[0:1], 48')
    a('s_load_dwordx2 s[20:21], s[0:1], 80')
    a('s_load_dwordx2 s[96:97], s[0:1], 72     ; d_debug')
    if os.environ.get('DBG'): a('s_memrealtime s[70:71]')
    RM2 = os.environ.get('RM2','0')
    if RM2 == '0':
        a('s_mov_b32 s91, s2')
        a(f's_cmp_lt_u32 s2, {NBIN}')
        a('s_cbranch_scc1 K1_BIN')
    else:
        X0 = int(RM2) - 1
        a('s_and_b32 s61, s2, 7')
        if X0: a(f's_sub_u32 s61, s61, {X0}')
        a('s_lshr_b32 s62, s2, 3')
        a('s_lshl1_add_u32 s91, s62, s61         ; 2j + (x-X0)')
        a('s_cmp_lt_u32 s61, 2')
        a('s_cselect_b32 s63, s91, 99')
        a(f's_cmp_lt_u32 s63, {NBIN}')
        a('s_cbranch_scc1 K1_BIN')
        if X0:
            a(f's_add_u32 s61, s61, {X0}')
            a(f's_sub_i32 s61, s61, {X0}')
            a('s_max_i32 s61, s61, 0')
        a('s_min_u32 s61, s61, 2')
        a('s_lshl1_add_u32 s63, s62, s61')
        a(f's_min_u32 s63, s63, {NBIN}')
        a('s_sub_u32 s91, s2, s63')
        a(f's_add_u32 s91, s91, {NBIN}')
    gen_mlp(a)

def gen_k1_tail(a):
    gen_bin(a)
    if FUSE:
        a.lab('K1_DONE')
        a('s_waitcnt vmcnt(0) lgkmcnt(0)')
        a('s_barrier')
        if Asm.STAMPS:
            a('s_memrealtime s[84:85]')
            a('s_waitcnt lgkmcnt(0)')
            a('s_lshl_b32 s68, s3, 5')
            a('s_add_u32 s68, s68, 155712')
            a('v_mov_b32 v1, s68')
            for i in range(8):
                a(f'v_mov_b32 v2, s{70+2*i}')
                a(f'ds_write_b32 v1, v2 offset:{4*i}')
        a('s_cmp_lg_u32 s3, 0')
        a('s_cbranch_scc1 K2_START')
        get_nonce(a, 'D')
        publish(a, 0)
        a('s_branch K2_START')
    a.lab('K1_END')
    a('s_endpgm')
    a.lab('CODE_END')
```

```python
from asmlib import *
from k1 import *

OUTST = os.environ.get('OUTST', 'sc1')
RESLD = os.environ.get('RESLD', '')
WBASE = 18432
WREG = 5120
RES0 = WBASE + 12*WREG
O_SRC = 0; O_AOF = 1280; O_OH = 2560; O_RX = 3200; O_RY = 3840; O_RZ = 4480
K2_LDS = RES0 + 12*4096
SC = 'sc1' if FUSE else ''
SCG = os.environ.get('SCG', SC)
LBF = ZROW + 768

V_C = 0; V_SHL = 1; V_KQ8 = 2; V_A1 = 3; V_A2 = 4; V_A3 = 5
TMP = 6
WB = 10; ACC = 22; GA = 54; GB = 86; WF = 94; MSG = 118; SM = 138; SRC = 154; AOP = 162
T4 = 166; T5 = 167
MSGT = 54 + 24
NV = 168

def wb(seg, t): return WB + (seg*2+t)*2
def acc(comp, t): return ACC + (comp*2+t)*4
def gA(i, c): return GA + 4*i + c
def wf(seg, R, r=0): return WF + seg*8 + R*4 + r
def msg(comp, j=0): return MSG + comp*4 + j

def scan64(a, P):
    a('s_nop 1')
    for sh in (1, 2, 4, 8):
        a(f'v_add_u32_dpp v{P}, v{P}, v{P} row_shr:{sh} row_mask:0xf bank_mask:0xf')
        a('s_nop 1')
    a(f'v_add_u32_dpp v{P}, v{P}, v{P} row_bcast:15 row_mask:0xa bank_mask:0xf')
    a('s_nop 1')
    a(f'v_add_u32_dpp v{P}, v{P}, v{P} row_bcast:31 row_mask:0xc bank_mask:0xf')
    a('s_nop 1')

def gen_k2(a):
    LANE = T4
    if FUSE:
        a.lab('K2_START')
    else:
        a.raw('.p2align 8')
        a.raw(f'.type {KNAME},@function')
        a.lab(KNAME)
        a('s_cmp_ge_u32 s2, 256')
        a('s_cbranch_scc1 K2_END')
    if os.environ.get('PRIO','1') != '0': a('s_setprio 3')
    a('s_load_dwordx2 s[4:5], s[0:1], 0       ; sv')
    a('s_load_dwordx2 s[8:9], s[0:1], 64      ; out')
    a('s_load_dwordx2 s[10:11], s[0:1], 80    ; ws')
    if FUSE:
        a(f'v_mbcnt_lo_u32_b32 v{LANE}, -1, 0')
        a(f'v_mbcnt_hi_u32_b32 v{LANE}, -1, v{LANE}')
        a('s_and_b32 s12, s2, 7                   ; x')
    else:
        a(f'v_lshrrev_b32 v{T5}, 6, v0')
        a(f'v_and_b32 v{LANE}, 63, v0')
        a('s_and_b32 s12, s2, 7                   ; x')
        a(f'v_readfirstlane_b32 s3, v{T5}             ; wave')
    a('s_lshr_b32 s13, s12, 1                 ; slice')
    a('s_lshr_b32 s14, s2, 3')
    a('s_lshl_b32 s14, s14, 1')
    a('s_and_b32 s12, s12, 1')
    a('s_add_u32 s14, s14, s12                ; rank (0..63)')
    a('s_mul_i32 s14, s14, 12')
    a('s_add_u32 s14, s14, s3                 ; g')
    a('s_mul_i32 s15, s14, 853362')
    a('s_add_u32 s16, s15, 65000')
    a('s_lshr_b32 s15, s16, 16                ; start')
    a('s_add_u32 s16, s16, 853362')
    a('s_lshr_b32 s16, s16, 16')
    a(f's_min_u32 s16, s16, {N}')
    a('s_sub_u32 s16, s16, s15                ; size')
    a.stamp(0)
    if Asm.STAMPS: a('s_memtime s[88:89]')
    a(f'v_mul_u32_u24 v{TMP}, {NG*4}, v{LANE}        ; lane*3072')
    a('s_lshl_b32 s17, s14, 2')
    a('s_waitcnt lgkmcnt(0)')
    srd(a, 20, 10, NBIN*NG*4, off=WS_HDR)
    if not FUSE:
        a(f'buffer_load_dword v{TMP+1}, v{TMP}, s[20:23], s17 offen')
    srd(a, 24, 10, NBIN*65536, off=WS_TAILS)
    srd(a, 28, 10, 65536, off=WS_ATAB)
    srd(a, 40, 10, 12288, off=WS_WB)
    srd(a, 32, 4, 10240000)
    srd(a, 36, 8, 10240000)
    def wb_and_table():
        a(f'v_lshlrev_b32 v{TMP+2}, 4, v{LANE}')
        a('s_mul_i32 s17, s13, 3072')
        for seg in range(3):
            a(f'buffer_load_dwordx4 v[{wb(seg,0)}:{wb(seg,0)+3}], v{TMP+2}, s[40:43], s17 offen offset:{seg*1024} {SC}')
        a('s_lshl_b32 s17, s3, 10')
        if FUSE:
            a(f's_add_u32 s17, s17, {HOT0*32}')
            a(f'buffer_load_dwordx4 v[{GA}:{GA+3}], v{TMP+2}, s[28:31], s17 offen sc1')
            a(f's_cmp_ge_u32 s3, {NHOT_KB-12}')
            a('s_cbranch_scc1 K2_DMA_DONE')
            a('s_add_u32 s17, s17, 12288')
            a(f'buffer_load_dwordx4 v[{GA+4}:{GA+7}], v{TMP+2}, s[28:31], s17 offen sc1')
        else:
            a('s_mov_b32 s18, s17')
            a('s_mov_b32 m0, s18')
            a(f's_add_u32 s17, s17, {HOT0*32}')
            a(f'buffer_load_dwordx4 v{TMP+2}, s[28:31], s17 offen lds')
            a(f's_cmp_ge_u32 s3, {NHOT_KB-12}')
            a('s_cbranch_scc1 K2_DMA_DONE')
            a('s_add_u32 s18, s18, 12288')
            a('s_mov_b32 m0, s18')
            a('s_add_u32 s17, s17, 12288')
            a(f'buffer_load_dwordx4 v{TMP+2}, s[28:31], s17 offen lds')
        a.lab('K2_DMA_DONE')
    if not FUSE: wb_and_table()
    a('s_mul_i32 s17, s13, 2560000')
    a('s_add_u32 s44, s10, s17')
    a('s_addc_u32 s45, s11, 0')
    a('s_or_b32 s45, s45, 0x100000            ; stride 16')
    a('s_mov_b32 s46, 160000')
    a('s_mov_b32 s47, 0x00020000')
    a('s_mul_i32 s17, s13, 640000')
    a(f's_add_u32 s17, s17, {WS_TB}')
    a('s_add_u32 s48, s10, s17')
    a('s_addc_u32 s49, s11, 0')
    a('s_or_b32 s49, s49, 0x40000             ; stride 4')
    a('s_mov_b32 s50, 160000')
    a('s_mov_b32 s51, 0x00020000')
    a(f'v_and_b32 v{V_C}, 15, v{LANE}')
    a(f'v_lshrrev_b32 v{T5}, 4, v{LANE}           ; q')
    a(f'v_sub_u32 v{V_SHL}, 15, v{V_C}')
    a(f'v_lshl_or_b32 v{V_SHL}, v{V_SHL}, 16, v{V_SHL}')
    a(f'v_lshlrev_b32 v{V_KQ8}, 3, v{T5}')
    a(f'v_lshlrev_b32 v{TMP+2}, 2, v{LANE}')
    a(f'v_mov_b32 v{TMP+3}, 0')
    a(f'ds_write_b32 v{TMP+2}, v{TMP+3} offset:{ZROW}')
    if FUSE:
        a(f'ds_write_b32 v{TMP+2}, v{TMP+3} offset:{ZROW+768}')
    for r in range(ACC, ACC+32): a(f'v_mov_b32 v{r}, 0')
    for r in range(MSG, MSG+20): a(f'v_mov_b32 v{r}, 0')
    for r in range(SM, SM+16): a(f'v_mov_b32 v{r}, 0')
    a(f's_mul_i32 s18, s3, {WREG}')
    a(f's_add_u32 s18, s18, {WBASE}')
    a('s_mov_b32 s52, 0                          ; base')
    a('s_mov_b32 s60, 0')
    a('s_mov_b32 s97, s3')
    def res_dma(tag):
        a('s_cmp_lg_u32 s60, 0')
        a(f's_cbranch_scc1 K2_RESDONE{tag}')
        a('s_mov_b32 s60, 1')
        a(f'v_mbcnt_lo_u32_b32 v{T4}, -1, 0')
        a(f'v_mbcnt_hi_u32_b32 v{T4}, -1, v{T4}')
        a(f'v_and_b32 v{T5}, 3, v{T4}')
        a(f'v_lshlrev_b32 v{T5}, 4, v{T5}')
        a(f'v_lshrrev_b32 v{T4}, 2, v{T4}')
        a(f'v_lshl_add_u32 v{T5}, v{T4}, 8, v{T5}')
        a('s_lshl_b32 s61, s15, 10')
        a('s_lshl_b32 s62, s13, 6')
        a('s_add_u32 s61, s61, s62')
        a('s_lshl_b32 s62, s3, 12')
        a(f's_add_u32 s62, s62, {RES0}')
        for j in range(4):
            a('s_mov_b32 m0, s62')
            a('s_add_u32 s62, s62, 1024')
            a(f'buffer_load_dwordx4 v{T5}, s[32:35], s61 offen {RESLD} lds')
            a('s_add_u32 s61, s61, 4096')
        a.lab(f'K2_RESDONE{tag}')
    def poll_issue(reg, off=0):
        a(f'v_mbcnt_lo_u32_b32 v{T5}, -1, 0')
        a(f'v_mbcnt_hi_u32_b32 v{T5}, -1, v{T5}')
        a(f'v_lshlrev_b32 v{T5}, 4, v{T5}')
        a(f's_add_u32 s64, s10, 0x{WS_FLAGS:x}')
        a('s_addc_u32 s65, s11, 0')
        a('s_mov_b32 s66, 16384')
        a('s_mov_b32 s67, 0x00020000')
        a('s_and_b32 s62, s2, 7')
        a('s_lshl_b32 s62, s62, 11')
        a(f'buffer_load_dwordx4 v[{reg}:{reg+3}], v{T5}, s[64:67], s62 offen offset:{off} sc1')
    def poll_masks(reg):
        a(f'v_cmp_eq_u32 s[56:57], s100, v{reg}')
        a(f'v_cmp_eq_u32 s[62:63], s100, v{reg+1}')
        a(f'v_cmp_eq_u32 vcc, s100, v{reg+2}')
        a('s_and_b64 s[56:57], s[56:57], s[62:63]')
        a('s_and_b64 s[56:57], s[56:57], vcc')
        a(f'v_cmp_eq_u32 vcc, s100, v{reg+3}')
    def poll47(tag, off):
        a('s_cmp_lg_u32 s3, 0')
        a(f's_cbranch_scc1 K2_POLL{tag}_DONE')
        a('s_mov_b32 s59, 0x8000')
        R = [WF, WF+4, WF+8]
        def issue(k):
            a('s_mov_b64 exec, 0xfff')
            poll_issue(R[k], off)
            a('s_mov_b64 exec, -1')
        def test(k):
            poll_masks(R[k])
            a('s_and_b32 s56, s56, 0xfff')
            a('s_and_b32 s62, vcc_lo, 0x7ff')
            a('s_lshl_b32 s62, s62, 12')
            a('s_or_b32 s56, s56, s62')
            a('s_cmp_eq_u32 s56, 0x7fffff')
            a(f's_cbranch_scc1 K2_POLL{tag}_DONE')
        if os.environ.get('POLLP','0') == '1':
            issue(0)
            a('s_sleep 3')
            issue(1)
            a.lab(f'K2_POLL{tag}')
            for k in range(3):
                a('s_sleep 3')
                issue((k+2) % 3)
                a('s_waitcnt vmcnt(2)')
                test(k)
        else:
            a.lab(f'K2_POLL{tag}')
            issue(0)
            a('s_waitcnt vmcnt(0)')
            test(0)
            a('s_sleep 2')
        a('s_sub_u32 s59, s59, 1')
        a('s_cmp_lg_u32 s59, 0')
        a(f's_cbranch_scc1 K2_POLL{tag}')
        a.lab(f'K2_POLL{tag}_DONE')
    RESE = os.environ.get('RESE','0')
    if FUSE and RESE == 'S':
        res_dma('S')
    if FUSE:
        if os.environ.get('PUBD','0') == '1':
            a('s_cmp_eq_u32 s101, 0')
            a('s_cbranch_scc1 K2_NODRAIN')
            a('s_waitcnt vmcnt(0)')
            a('s_barrier')
            a(f'v_mbcnt_lo_u32_b32 v{LANE}, -1, 0')
            a(f'v_mbcnt_hi_u32_b32 v{LANE}, -1, v{LANE}')
            a('s_cmp_eq_u32 s3, 0')
            a('s_cselect_b32 s62, s101, 0')
            a('s_cmp_eq_u32 s62, 0')
            a('s_cbranch_scc1 K2_NOPUB')
            a(f's_add_u32 s64, s10, 0x{WS_FLAGS:x}')
            a('s_addc_u32 s65, s11, 0')
            a('s_mov_b32 s66, 16384')
            a('s_mov_b32 s67, 0x00020000')
            a(f'v_lshlrev_b32 v{WF}, 11, v{LANE}           ; replica*2048')
            a('s_lshl_b32 s68, s91, 2')
            a(f'v_mov_b32 v{WF+1}, s100')
            a('s_mov_b64 exec, 0xff')
            a(f'buffer_store_dword v{WF+1}, v{WF}, s[64:67], s68 offen sc1')
            a('s_mov_b64 exec, -1')
            a.lab('K2_NOPUB')
            a.lab('K2_NODRAIN')
        poll47('A', 0)
        a.stamp(2)
        a('s_waitcnt vmcnt(0) lgkmcnt(0)')
        a('s_barrier')
        a.stamp(3)
        if os.environ.get('DBG'): a('s_memrealtime s[72:73]')
        a(f'v_mbcnt_lo_u32_b32 v{LANE}, -1, 0')
        a(f'v_mbcnt_hi_u32_b32 v{LANE}, -1, v{LANE}')
        if os.environ.get('PUBD','0') != '1':
            a('s_cmp_eq_u32 s3, 0')
            a('s_cselect_b32 s62, s101, 0')
            a('s_cmp_eq_u32 s62, 0')
            a('s_cbranch_scc1 K2_NOPUB2')
            a(f's_add_u32 s64, s10, 0x{WS_FLAGS:x}')
            a('s_addc_u32 s65, s11, 0')
            a('s_mov_b32 s66, 16384')
            a('s_mov_b32 s67, 0x00020000')
            a(f'v_lshlrev_b32 v{WF}, 11, v{LANE}           ; replica*2048')
            a('s_lshl_b32 s68, s91, 2')
            a(f'v_mov_b32 v{WF+1}, s100')
            a('s_mov_b64 exec, 0xff')
            a(f'buffer_store_dword v{WF+1}, v{WF}, s[64:67], s68 offen sc1')
            a('s_mov_b64 exec, -1')
            a.lab('K2_NOPUB2')
        if RESE == 'A':
            res_dma('S')
            a(f'v_mbcnt_lo_u32_b32 v{LANE}, -1, 0')
            a(f'v_mbcnt_hi_u32_b32 v{LANE}, -1, v{LANE}')
        XCH = 131072
        a(f'v_lshlrev_b32 v{TMP+2}, 4, v{LANE}          ; lane*16')
        a('s_lshl_b32 s17, s3, 10')
        a(f's_add_u32 s17, s17, {HOT0*32}')
        a(f'buffer_load_dwordx4 v[{GA}:{GA+3}], v{TMP+2}, s[28:31], s17 offen sc1')
        a('s_cmp_lt_u32 s3, 5')
        a('s_cbranch_scc1 K2_JT')
        a('s_cmp_lt_u32 s3, 8')
        a('s_cbranch_scc1 K2_JW')
        a('s_cmp_lt_u32 s3, 11')
        a('s_cbranch_scc1 K2_JH')
        a('s_waitcnt vmcnt(0)')
        a('s_branch K2_JDONE')
        a.lab('K2_JT')
        a('s_add_u32 s17, s17, 12288')
        a(f'buffer_load_dwordx4 v[{GA+4}:{GA+7}], v{TMP+2}, s[28:31], s17 offen sc1')
        a('s_lshl_b32 s17, s3, 10')
        a('s_add_u32 s17, s17, 12288')
        a(f'v_add_u32 v{TMP+3}, s17, v{TMP+2}')
        a('s_waitcnt vmcnt(0)')
        a(f'ds_write_b128 v{TMP+3}, v[{GA+4}:{GA+7}]')
        a('s_branch K2_JDONE')
        a.lab('K2_JW')
        a('s_sub_u32 s62, s3, 5')
        a('s_lshl_b32 s62, s62, 10')
        a('s_mul_i32 s17, s13, 3072')
        a('s_add_u32 s17, s17, s62')
        a(f'buffer_load_dwordx4 v[{GA+4}:{GA+7}], v{TMP+2}, s[40:43], s17 offen sc1')
        a(f's_add_u32 s62, s62, {XCH}')
        a(f'v_add_u32 v{TMP+3}, s62, v{TMP+2}')
        a('s_waitcnt vmcnt(0)')
        a(f'ds_write_b128 v{TMP+3}, v[{GA+4}:{GA+7}]')
        a('s_branch K2_JDONE')
        a.lab('K2_JH')
        a('s_sub_u32 s62, s3, 8                  ; k')
        a('s_sub_u32 s17, s14, s3                ; g0')
        a('s_lshl_b32 s17, s17, 2')
        a('s_lshl_b32 s61, s62, 4')
        a('s_add_u32 s17, s17, s61')
        a(f'v_mul_u32_u24 v{TMP}, {NG*4}, v{LANE}')
        a(f'buffer_load_dwordx4 v[{GA+4}:{GA+7}], v{TMP}, s[20:23], s17 offen sc1')
        a('s_lshl_b32 s62, s62, 10')
        a(f's_add_u32 s62, s62, {XCH+4096}')
        a(f'v_lshlrev_b32 v{TMP+3}, 2, v{LANE}')
        a(f'v_add_u32 v{TMP+3}, s62, v{TMP+3}')
        a('s_waitcnt vmcnt(0)')
        for i in range(4):
            a(f'ds_write_b32 v{TMP+3}, v{GA+4+i} offset:{256*i}')
        if os.environ.get('BAL2','1') == '1':
            a(f'v_lshrrev_b32 v{GA+8}, 16, v{GA+4}')
            a(f'v_and_b32 v{GA+10}, 0xffff0000, v{GA+5}')
            a(f'v_or_b32 v{GA+8}, v{GA+8}, v{GA+10}')
            a(f'v_lshrrev_b32 v{GA+9}, 16, v{GA+6}')
            a(f'v_and_b32 v{GA+10}, 0xffff0000, v{GA+7}')
            a(f'v_or_b32 v{GA+9}, v{GA+9}, v{GA+10}')
            a('s_nop 1')
            for dpp in ('row_shr:1 row_mask:0xf', 'row_shr:2 row_mask:0xf', 'row_shr:4 row_mask:0xf', 'row_shr:8 row_mask:0xf', 'row_bcast:15 row_mask:0xa', 'row_bcast:31 row_mask:0xc'):
                a(f'v_add_u32_dpp v{GA+8}, v{GA+8}, v{GA+8} {dpp} bank_mask:0xf')
                a(f'v_add_u32_dpp v{GA+9}, v{GA+9}, v{GA+9} {dpp} bank_mask:0xf')
                a('s_nop 0')
            a(f'v_readlane_b32 s56, v{GA+8}, 63')
            a(f'v_readlane_b32 s57, v{GA+9}, 63')
            a('s_sub_u32 s61, s3, 8')
            a('s_lshl_b32 s61, s61, 2')
            for i in range(4):
                src = 's56' if i < 2 else 's57'
                if i % 2 == 0: a(f's_and_b32 s63, {src}, 0xffff')
                else: a(f's_lshr_b32 s63, {src}, 16')
                a('s_add_u32 s63, s63, 15')
                a('s_and_b32 s63, s63, 0xfffff0')
                a('s_add_u32 s63, s63, 15')
                a('s_sub_u32 s63, s63, s61')
                if i: a(f's_sub_u32 s63, s63, {i}')
                a(f'v_mov_b32 v{GA+8+i}, s63')
            a('s_lshl_b32 s61, s61, 2')
            a(f's_add_u32 s61, s61, {XCH+8192}')
            a(f'v_mov_b32 v{TMP+3}, s61')
            a('s_mov_b64 exec, 1')
            a(f'ds_write_b128 v{TMP+3}, v[{GA+8}:{GA+11}]')
            a('s_mov_b64 exec, -1')
        a.lab('K2_JDONE')
        if os.environ.get('ST7') == '1': a.stamp(7)
        a('s_lshl_b32 s17, s3, 10')
        a(f'v_add_u32 v{TMP+2}, s17, v{TMP+2}')
        a(f'ds_write_b128 v{TMP+2}, v[{GA}:{GA+3}]')
        a('s_waitcnt lgkmcnt(0)')
        a('s_barrier')
        if os.environ.get('DBG'): a('s_memrealtime s[74:75]')
        a(f'v_lshlrev_b32 v{TMP+2}, 2, v{LANE}')
        if os.environ.get('BAL2','1') == '1':
            a(f'v_add_u32 v{TMP+3}, {XCH+8192}, v{TMP+2}')
            a(f'ds_read_b32 v{TMP+1}, v{TMP+3}')
            a(f'v_mov_b32 v{TMP+3}, {XCH+8192}')
            for j in range(3):
                a(f'ds_read_b128 v[{GA+4*j}:{GA+4*j+3}], v{TMP+3} offset:{16*j}')
            a('s_sub_u32 s17, 11, s3')
            a('s_cmp_lt_u32 s3, 4')
            a('s_cselect_b32 s17, s3, s17')
            a('s_sub_u32 s19, 19, s3')
            a('s_cmp_ge_u32 s3, 8')
            a('s_cselect_b32 s17, s19, s17')
            a(f'v_mov_b32 v{TMP}, 0')
            a('s_waitcnt lgkmcnt(0)')
            for j in range(12): a(f'v_sub_u32 v{GA+j}, v{TMP+1}, v{GA+j}')
            for j in range(12): a(f'v_lshrrev_b32 v{GA+j}, 31, v{GA+j}')
            for j in range(0, 12, 2): a(f'v_add3_u32 v{TMP}, v{TMP}, v{GA+j}, v{GA+j+1}')
            a(f'v_cmp_eq_u32 vcc, s17, v{TMP}')
            a('s_and_b32 s17, vcc_lo, 0xfff')
            a('s_ff1_i32_b32 s17, s17')
            if RESE in ('S', 'A'): a('s_mov_b32 s97, s17')
            a('s_sub_u32 s14, s14, s3')
            a('s_add_u32 s14, s14, s17                   ; g')
            a('s_mul_i32 s15, s14, 853362')
            a('s_add_u32 s16, s15, 65000')
            a('s_lshr_b32 s15, s16, 16                ; start')
            a('s_add_u32 s16, s16, 853362')
            a('s_lshr_b32 s16, s16, 16')
            a(f's_min_u32 s16, s16, {N}')
            a('s_sub_u32 s16, s16, s15                ; size')
            a('s_lshl_b32 s17, s17, 8')
        else:
            a('s_lshl_b32 s17, s3, 8')
        a(f's_add_u32 s17, s17, {XCH+4096}')
        a(f'v_add_u32 v{TMP+2}, s17, v{TMP+2}')
        a(f'ds_read_b32 v{TMP+1}, v{TMP+2}')
        a(f'v_lshlrev_b32 v{TMP+2}, 4, v{LANE}')
        a(f'v_add_u32 v{TMP+2}, {XCH}, v{TMP+2}')
        for seg in range(3):
            a(f'ds_read_b128 v[{wb(seg,0)}:{wb(seg,0)+3}], v{TMP+2} offset:{seg*1024}')
        a('s_waitcnt lgkmcnt(3)')
    CNT = SRC; ST = SRC+1; P = SRC+2; LOCB = SRC+3; KK = SRC+4; POS = SRC+5; KHI = SRC+6
    H = TMP+1
    def header():
        a(f'v_lshrrev_b32 v{CNT}, 16, v{H}')
        a(f'v_and_b32 v{ST}, 0xffff, v{H}')
        a(f'v_mov_b32 v{P}, v{CNT}')
        scan64(a, P)
    PFPOS = os.environ.get('PFPOS','N')
    PFF = os.environ.get('PFF','sc1')
    def pf_setup():
        a('s_lshr_b32 s61, s2, 3')
        a('s_mul_i32 s61, s61, 12')
        a('s_add_u32 s61, s61, s3                ; chunk 0..383')
    def pf_A(lo, hi, reg):
        a('s_mul_i32 s17, s13, 2560000')
        a('s_add_u32 s64, s10, s17')
        a('s_addc_u32 s65, s11, 0')
        a('s_mov_b32 s66, 2560000')
        a('s_mov_b32 s67, 0x00020000')
        a(f's_mul_i32 s62, s61, {53*128}')
        a(f's_add_u32 s62, s62, {lo*128}')
        a(f'v_lshlrev_b32 v{reg}, 7, v{LANE}')
        a(f'v_add_u32 v{reg}, s62, v{reg}')
        a(f'v_cmp_gt_u32 vcc, {hi-lo}, v{LANE}')
        a('s_mov_b64 exec, vcc')
        a(f'buffer_load_dword v{reg+1}, v{reg}, s[64:67], 0 offen {PFF}')
        a('s_mov_b64 exec, -1')
    def pf_B(reg):
        a('s_mul_i32 s17, s13, 640000')
        a(f's_add_u32 s17, s17, {WS_TB}')
        a('s_add_u32 s64, s10, s17')
        a('s_addc_u32 s65, s11, 0')
        a('s_mov_b32 s66, 640000')
        a('s_mov_b32 s67, 0x00020000')
        a(f's_mul_i32 s62, s61, {14*128}')
        a(f'v_lshlrev_b32 v{reg}, 7, v{LANE}')
        a(f'v_add_u32 v{reg}, s62, v{reg}')
        a(f'v_cmp_gt_u32 vcc, 14, v{LANE}')
        a('s_mov_b64 exec, vcc')
        a(f'buffer_load_dword v{reg+1}, v{reg}, s[64:67], 0 offen {PFF}')
        a('s_mov_b64 exec, -1')
    PR = GA+24
    npf = 0
    if PFPOS in 'ABC': pf_setup()
    if PFPOS == 'A':
        pf_A(0, 53, PR); pf_B(PR+2); npf = 2
    if PFPOS == 'C':
        pf_B(PR+2); pf_A(0, 10, PR); npf = 2
    if not FUSE:
        a(f's_waitcnt vmcnt({npf}) lgkmcnt(0)')
        a('s_barrier')
    a.stamp(1)
    if os.environ.get('BAL','0') == '1':
        header()
        a(f'v_readlane_b32 s19, v{P}, 63')
        a(f'v_lshlrev_b32 v{KK}, 2, v{LANE}')
        a('s_lshl_b32 s17, s3, 8')
        a(f's_add_u32 s17, s17, {RES0}')
        a(f'v_add_u32 v{POS}, s17, v{KK}')
        a(f'ds_write_b32 v{POS}, v{H}')
        a('s_add_u32 s19, s19, 15')
        a('s_lshr_b32 s19, s19, 4')
        a('s_lshl_b32 s19, s19, 4')
        a('s_add_u32 s19, s19, 15')
        a('s_sub_u32 s19, s19, s3')
        a('s_lshl_b32 s17, s3, 2')
        a(f's_add_u32 s17, s17, {RES0+4096}')
        a(f'v_mov_b32 v{POS}, s17')
        a(f'v_mov_b32 v{KHI}, s19')
        a(f'ds_write_b32 v{POS}, v{KHI}')
        a('s_waitcnt lgkmcnt(0)')
        a('s_barrier')
        a(f'v_add_u32 v{POS}, {RES0+4096}, v{KK}')
        a(f'ds_read_b32 v{KHI}, v{POS}')
        a(f'v_mov_b32 v{POS}, {RES0+4096}')
        for j in range(3):
            a(f'ds_read_b128 v[{GA+4*j}:{GA+4*j+3}], v{POS} offset:{16*j}')
        a(f'v_mov_b32 v{CNT}, 0                      ; rank')
        a('s_waitcnt lgkmcnt(0)')
        for j in range(12):
            a(f'v_sub_u32 v{GA+j}, v{KHI}, v{GA+j}')
        for j in range(12):
            a(f'v_lshrrev_b32 v{GA+j}, 31, v{GA+j}')
        for j in range(0, 12, 2):
            a(f'v_add3_u32 v{CNT}, v{CNT}, v{GA+j}, v{GA+j+1}')
        a('s_sub_u32 s17, 11, s3')
        a('s_cmp_lt_u32 s3, 4')
        a('s_cselect_b32 s17, s3, s17')
        a('s_sub_u32 s19, 19, s3')
        a('s_cmp_ge_u32 s3, 8')
        a('s_cselect_b32 s17, s19, s17')
        a(f'v_cmp_eq_u32 vcc, s17, v{CNT}')
        a('s_and_b32 s17, vcc_lo, 0xfff')
        a('s_ff1_i32_b32 s17, s17')
        a('s_sub_u32 s14, s14, s3')
        a('s_add_u32 s14, s14, s17                   ; g')
        a('s_mul_i32 s15, s14, 853362')
        a('s_add_u32 s16, s15, 65000')
        a('s_lshr_b32 s15, s16, 16                ; start')
        a('s_add_u32 s16, s16, 853362')
        a('s_lshr_b32 s16, s16, 16')
        a(f's_min_u32 s16, s16, {N}')
        a('s_sub_u32 s16, s16, s15                ; size')
        a('s_lshl_b32 s17, s17, 8')
        a(f's_add_u32 s17, s17, {RES0}')
        a(f'v_add_u32 v{POS}, s17, v{KK}')
        a(f'ds_read_b32 v{H}, v{POS}')
        a('s_waitcnt lgkmcnt(0)')
    header()
    a(f'v_readlane_b32 s19, v{P}, 63             ; M')
    a(f'v_sub_u32 v{P}, v{P}, v{CNT}')
    a(f'v_lshl_add_u32 v{LOCB}, v{LANE}, 12, v{ST}   ; w*4096 + start')
    if not FUSE: a.stamp(2)
    a.lab('K2_CHUNK')
    a(f'v_sub_u32 v{KK}, s52, v{P}')
    a(f'v_max_i32 v{KK}, 0, v{KK}')
    NFAST = 12
    a('s_cmp_gt_u32 s19, 256')
    a('s_cbranch_scc1 K2_FILL')
    a(f'v_lshlrev_b32 v{POS}, 2, v{P}')
    a(f'v_add_u32 v{POS}, s18, v{POS}')
    a(f'v_mov_b32 v{KHI}, v{LOCB}')
    for k in range(NFAST):
        a(f'v_cmp_lt_u32 vcc, {k}, v{CNT}')
        a('s_cbranch_vccz K2_FILL_DONE')
        a('s_mov_b64 exec, vcc')
        a(f'ds_write_b32 v{POS}, v{KHI} offset:{4*k}')
        a(f'v_add_u32 v{KHI}, 1, v{KHI}')
    a('s_mov_b64 exec, -1')
    a(f'v_mov_b32 v{KK}, {NFAST}')
    a.lab('K2_FILL')
    a(f'v_add_u32 v{POS}, v{P}, v{KK}')
    a(f'v_subrev_u32 v{POS}, s52, v{POS}')
    a(f'v_cmp_lt_u32 s[56:57], v{KK}, v{CNT}')
    a(f'v_cmp_gt_u32 vcc, 256, v{POS}')
    a('s_and_b64 vcc, vcc, s[56:57]')
    a('s_cbranch_vccz K2_FILL_DONE')
    a(f'v_lshlrev_b32 v{POS}, 2, v{POS}')
    a(f'v_add_u32 v{POS}, s18, v{POS}')
    a(f'v_add_u32 v{KHI}, v{LOCB}, v{KK}')
    a('s_mov_b64 exec, vcc')
    a(f'ds_write_b32 v{POS}, v{KHI}')
    a('s_mov_b64 exec, -1')
    a(f'v_add_u32 v{KK}, 1, v{KK}')
    a('s_branch K2_FILL')
    a.lab('K2_FILL_DONE')
    a('s_mov_b64 exec, -1')
    if not FUSE: a.stamp(3)
    a('s_sub_u32 s55, s19, s52')
    a('s_min_u32 s55, s55, 256                   ; n_c')
    a('s_add_u32 s58, s55, 31')
    a('s_lshr_b32 s58, s58, 5')
    a('s_lshl_b32 s59, s58, 5')
    a('s_add_u32 s59, s59, 32                    ; npad')
    a('s_and_b32 s54, s55, 31')
    a('s_sub_u32 s54, s54, 1')
    a('s_cmp_lt_u32 s54, 16')
    a('s_cselect_b32 s54, 1, 0')
    a('s_sub_u32 s58, s58, s54')
    RC = WF; LA = GB
    a(f'v_lshlrev_b32 v{TMP}, 2, v{LANE}')
    a(f'v_add_u32 v{TMP}, s18, v{TMP}')
    for j in range(5):
        a(f'ds_read_b32 v{LA+j}, v{TMP} offset:{256*j}')
    a(f'v_mov_b32 v{TMP+2}, 0x80000000')
    for j in range(5):
        if j >= 1:
            a(f's_cmp_le_u32 s59, {64*j}')
            a('s_cbranch_scc1 K2_REC_ISSUED')
        a(f'v_add_u32 v{TMP+1}, {64*j}, v{LANE}')
        a(f'v_cmp_gt_u32 vcc, s55, v{TMP+1}')
        a(f's_waitcnt lgkmcnt({4-j})')
        a(f'v_lshlrev_b32 v{LA+j}, 4, v{LA+j}')
        a(f'v_cndmask_b32 v{LA+j}, v{TMP+2}, v{LA+j}, vcc')
        a(f'buffer_load_dwordx4 v[{RC+4*j}:{RC+4*j+3}], v{LA+j}, s[24:27], 0 offen {SC}')
    a.lab('K2_REC_ISSUED')
    if FUSE:
        a('s_or_b32 s62, s3, s52')
        a('s_cmp_lg_u32 s62, 0')
        a('s_cbranch_scc1 K2_NOPB')
        poll_issue(AOP)
        a.lab('K2_NOPB')
        a(f'v_mbcnt_lo_u32_b32 v{LANE}, -1, 0')
        a(f'v_mbcnt_hi_u32_b32 v{LANE}, -1, v{LANE}')
    a(f'v_and_b32 v{TMP}, 3, v{LANE}')
    a(f'v_lshlrev_b32 v{TMP}, 3, v{TMP}')
    a(f'v_bfe_u32 v{TMP+1}, v{LANE}, 2, 3')
    a(f'v_or_b32 v{TMP}, v{TMP}, v{TMP+1}')
    a(f'v_and_b32 v{TMP+1}, 32, v{LANE}')
    a(f'v_or_b32 v{TMP+3}, v{TMP}, v{TMP+1}')
    a(f'v_lshlrev_b32 v{TMP}, 2, v{TMP+3}')
    a(f'v_add_u32 v{TMP}, s18, v{TMP}')
    a(f'v_lshrrev_b32 v{SRC+6}, 4, v{LANE}          ; q')
    a(f'v_lshlrev_b32 v{V_A1}, 5, v{SRC+6}            ; q*8*4')
    a(f'v_add_u32 v{V_A1}, s18, v{V_A1}')
    a(f'v_lshlrev_b32 v{V_A2}, 4, v{SRC+6}            ; q*8*2')
    a(f'v_add_u32 v{V_A2}, s18, v{V_A2}')
    a(f'v_lshrrev_b32 v{SRC+6}, 2, v{V_C}             ; rho>>2')
    a(f'v_and_b32 v{SRC+7}, 3, v{V_C}')
    a(f'v_lshl_add_u32 v{SRC+6}, v{SRC+6}, 3, v{SRC+7}   ; 8*(rho>>2)+(rho&3)')
    a(f'v_lshlrev_b32 v{V_A3}, 2, v{SRC+6}')
    a(f'v_add_u32 v{V_A3}, s18, v{V_A3}')
    npf2 = 0
    if PFPOS in 'BC':
        a('s_cmp_lg_u32 s52, 0')
        a('s_cbranch_scc1 K2_NOPF')
        if PFPOS == 'B':
            pf_A(0, 53, PR); pf_B(PR+2); npf2 = 2
        else:
            pf_A(10, 53, PR+4); npf2 = 1
        a.lab('K2_NOPF')
    a(f'v_lshlrev_b32 v{TMP+1}, 1, v{TMP+3}')
    a(f'v_add_u32 v{TMP+1}, s18, v{TMP+1}')
    if npf2:
        a('s_cmp_lg_u32 s52, 0')
        a('s_cbranch_scc1 K2_RW0')
        a(f's_waitcnt vmcnt({npf2}) lgkmcnt(0)')
        a('s_branch K2_RW1')
        a.lab('K2_RW0')
        a('s_waitcnt vmcnt(0) lgkmcnt(0)')
        a.lab('K2_RW1')
    else:
        a('s_waitcnt vmcnt(0) lgkmcnt(0)')
    a.stamp(4)
    if FUSE:
        a('s_or_b32 s62, s3, s52')
        a('s_cmp_lg_u32 s62, 0')
        a('s_cbranch_scc1 K2_PB_DONE')
        a('s_mov_b32 s61, 0x8000')
        poll_masks(AOP)
        a('s_and_b64 s[56:57], s[56:57], vcc')
        a('s_cmp_eq_u64 s[56:57], -1')
        a('s_cbranch_scc1 K2_PB_OK')
        RB = [AOP, MSGT, MSGT+4]
        poll_issue(RB[0])
        a('s_sleep 3')
        poll_issue(RB[1])
        a.lab('K2_POLLB')
        for k in range(3):
            a('s_sleep 3')
            poll_issue(RB[(k+2) % 3])
            a('s_waitcnt vmcnt(2)')
            poll_masks(RB[k])
            a('s_and_b64 s[56:57], s[56:57], vcc')
            a('s_cmp_eq_u64 s[56:57], -1')
            a('s_cbranch_scc1 K2_PB_OK0')
        a('s_sub_u32 s61, s61, 1')
        a('s_cmp_lg_u32 s61, 0')
        a('s_cbranch_scc1 K2_POLLB')
        a.lab('K2_PB_OK0')
        a('s_waitcnt vmcnt(0)')
        a.lab('K2_PB_OK')
        a(f'v_mov_b32 v{AOP}, {LBF}')
        a(f'v_mov_b32 v{AOP+1}, 1')
        a(f'ds_write_b32 v{AOP}, v{AOP+1}')
        a.lab('K2_PB_DONE')
    a(f'v_xor_b32 v{RC}, v{TMP+2}, v{RC}')
    a(f'v_add_u32 v{RC+3}, {ZROW}, v{RC+3}')
    a(f'ds_write_b32 v{TMP}, v{RC} offset:{O_SRC}')
    a(f'ds_write_b32 v{TMP}, v{RC+3} offset:{O_AOF}')
    X = os.environ.get('X','')
    def issue_row(i):
        t = T4 + (i & 1)
        a(f'v_add_u32 v{t}, v{SRC+i}, v{V_C}')
        if 'L' in X: return
        a(f'buffer_load_dwordx4 v[{gA(i,0)}:{gA(i,3)}], v{t}, s[44:47], 0 idxen {SCG}')
        if not os.environ.get('NOB'): a(f'buffer_load_dword v{GB+i}, v{t}, s[48:51], 0 idxen {SCG}')
    def read_src(off):
        a(f'ds_read_b128 v[{SRC}:{SRC+3}], v{V_A1} offset:{O_SRC+off}')
        a(f'ds_read_b128 v[{SRC+4}:{SRC+7}], v{V_A1} offset:{O_SRC+off+16}')
    read_src(0)
    if FUSE:
        a(f'v_mov_b32 v{AOP}, {LBF}')
        a('s_mov_b32 s61, 0x200000')
        a.lab('K2_TSPIN')
        a(f'ds_read_b32 v{AOP+1}, v{AOP}')
        a('s_waitcnt lgkmcnt(0)')
        a(f'v_readfirstlane_b32 s62, v{AOP+1}')
        a('s_cmp_lg_u32 s62, 0')
        a('s_cbranch_scc1 K2_TOK')
        a('s_sub_u32 s61, s61, 1')
        a('s_cmp_lg_u32 s61, 0')
        a('s_cbranch_scc1 K2_TSPIN')
        a.lab('K2_TOK')
        if os.environ.get('ST7') == '2': a.stamp(7)
    else:
        a('s_waitcnt lgkmcnt(0)')
    a('s_add_u32 s53, s58, s54')
    a('s_cmp_eq_u32 s53, 0')
    a('s_cbranch_scc1 K2_NOTILES')
    for i in range(4): issue_row(i)
    a(f'ds_write_b16 v{TMP+1}, v{RC+1} offset:{O_RX}')
    a(f'ds_write_b16_d16_hi v{TMP+1}, v{RC+1} offset:{O_RY}')
    a(f'ds_write_b16 v{TMP+1}, v{RC+2} offset:{O_RZ}')
    a(f'ds_write_b16_d16_hi v{TMP+1}, v{RC+2} offset:{O_OH}')
    for j in range(1, 5):
        a(f's_cmp_le_u32 s59, {64*j}')
        a('s_cbranch_scc1 K2_SOA_DONE')
        r = RC+4*j
        a(f'v_xor_b32 v{r}, v{TMP+2}, v{r}')
        a(f'v_add_u32 v{r+3}, {ZROW}, v{r+3}')
        a(f'ds_write_b32 v{TMP}, v{r} offset:{O_SRC+256*j}')
        a(f'ds_write_b32 v{TMP}, v{r+3} offset:{O_AOF+256*j}')
        a(f'ds_write_b16 v{TMP+1}, v{r+1} offset:{O_RX+128*j}')
        a(f'ds_write_b16_d16_hi v{TMP+1}, v{r+1} offset:{O_RY+128*j}')
        a(f'ds_write_b16 v{TMP+1}, v{r+2} offset:{O_RZ+128*j}')
        a(f'ds_write_b16_d16_hi v{TMP+1}, v{r+2} offset:{O_OH+128*j}')
    a.lab('K2_SOA_DONE')
    rare_id = [0]
    def load_A(ao0, ao1, tmp):
        k = rare_id[0]; rare_id[0] += 1
        a(f'v_or_b32 v{tmp}, v{ao0}, v{ao1}')
        a(f'v_cmp_gt_i32 vcc, 0, v{tmp}')
        a(f's_cbranch_vccnz K2_RARE{k}')
        a(f'v_add_u32 v{ao0}, v{ao0}, v{V_KQ8}')
        a(f'v_add_u32 v{ao1}, v{ao1}, v{V_KQ8}')
        a(f'ds_read_b64 v[{AOP}:{AOP+1}], v{ao0}')
        a(f'ds_read_b64 v[{AOP+2}:{AOP+3}], v{ao1}')
        a.lab(f'K2_RARE_BACK{k}')
        return (k, ao0, ao1)
    rares = []
    a(f'ds_read_b32 v{TMP+2}, v{V_A3} offset:{O_AOF}')
    a(f'ds_read_b32 v{TMP+3}, v{V_A3} offset:{O_AOF+16}')
    for i in range(4, 8): issue_row(i)
    a.stamp(5)
    a('s_waitcnt lgkmcnt(0)')
    rares.append(load_A(TMP+2, TMP+3, T4))
    a('s_waitcnt lgkmcnt(0)')
    def wf1(t, R, seg):
        if 'M' in X: return
        a(f'v_mfma_f32_16x16x16_bf16 v[{wf(seg,R)}:{wf(seg,R)+3}], v[{AOP+2*R}:{AOP+2*R+1}], v[{wb(seg,t)}:{wb(seg,t)+1}], 0')
    def seg1(t, ac, m, mc):
        if 'M' in X: return
        a(f'v_mfma_f32_16x16x32_bf16 v[{acc(ac,t)}:{acc(ac,t)+3}], v[{SM+4*m}:{SM+4*m+3}], v[{msg(mc)}:{msg(mc)+3}], v[{acc(ac,t)}:{acc(ac,t)+3}]')
    for seg in (1, 2, 0): wf1(0, 0, seg)
    for r in range(TMP, TMP+4): a(f'v_mov_b32 v{r}, 0')
    a.nop(4)
    if Asm.STAMPS:
        a('s_lshl_b32 s69, s3, 6')
        a(f's_add_u32 s69, s69, {K2_LDS}')
    if os.environ.get('DBG'): a('s_memrealtime s[76:77]')
    a('s_mov_b32 s53, 0')
    a('s_cmp_eq_u32 s58, 0')
    a('s_cbranch_scc1 K2_HALF')
    a.lab('K2_TILE')
    if Asm.STAMPS:
        a('s_memrealtime s[90:91]')
        a('s_waitcnt lgkmcnt(0)')
        a(f'v_mov_b32 v{T4}, s90')
        a(f'v_mov_b32 v{T5}, s69')
        a(f'ds_write_b32 v{T5}, v{T4}')
        a('s_add_u32 s69, s69, 4')
    PRIO = os.environ.get('PRIO','1')
    if PRIO == '1':
        a('s_cmp_ge_u32 s58, 4')
        a('s_cbranch_scc1 K2_P2')
        a('s_cmp_ge_u32 s58, 2')
        a('s_cbranch_scc1 K2_P1')
        a('s_setprio 0')
        a('s_branch K2_PDONE')
        a.lab('K2_P1'); a('s_setprio 1'); a('s_branch K2_PDONE')
        a.lab('K2_P2'); a('s_setprio 2')
        a.lab('K2_PDONE')
    if PRIO == '2':
        a('s_cmp_ge_u32 s58, 4')
        a('s_cbranch_scc1 K2_P3')
        a('s_cmp_eq_u32 s58, 3')
        a('s_cbranch_scc1 K2_P2')
        a('s_cmp_eq_u32 s58, 2')
        a('s_cbranch_scc1 K2_P1')
        a('s_setprio 0')
        a('s_branch K2_PDONE')
        a.lab('K2_P1'); a('s_setprio 1'); a('s_branch K2_PDONE')
        a.lab('K2_P2'); a('s_setprio 2'); a('s_branch K2_PDONE')
        a.lab('K2_P3'); a('s_setprio 3')
        a.lab('K2_PDONE')
    if os.environ.get('SKIP','0') == '1':
        a('s_cmp_gt_u32 s58, 1')
        a('s_cselect_b32 s99, 2, s54')
    SEG = [1, 1, 1, 2, 0]
    X_, Y_, Z_, VR_, S_ = 0, 1, 2, 3, 4
    groups = []
    for c in range(5): groups.append((0, (0, c), (2, c)))
    for c in range(5): groups.append((0, (4, c), (6, c)))
    pm = [(0, 0), (0, 1), (0, 2), (0, 3), (0, 4), (2, 0), (2, 1), (2, 2), (2, 3), (2, 4)]
    for k in range(5): groups.append((1, pm[2*k], pm[2*k+1]))
    for c in range(5): groups.append((1, (4, c), (6, c)))
    def unpack(t, i, comp, u):
        s0 = gA(i, comp) if comp < 4 else GB+i
        s1 = gA(i+1, comp) if comp < 4 else GB+i+1
        if 'V' in X: return
        if t == 0:
            a(f'v_lshlrev_b32 v{u}, 16, v{s0}'); a(f'v_lshlrev_b32 v{u+1}, 16, v{s1}')
        else:
            a(f'v_and_b32 v{u}, 0xffff0000, v{s0}'); a(f'v_and_b32 v{u+1}, 0xffff0000, v{s1}')
    def pk(t, i, comp, u):
        R = i >> 2; r = i & 3; seg = SEG[comp]
        if 'V' in X: return
        a(f'v_pk_mul_f32 v[{u}:{u+1}], v[{u}:{u+1}], v[{wf(seg,R,r)}:{wf(seg,R,r+1)}]')
    def cvt(g):
        t, (i0_, c0), (i1_, c1) = groups[g]
        if 'V' in X: return
        a(f'v_cvt_pk_bf16_f32 v{msg(c0,i0_//2)}, v{TMP}, v{TMP+1}')
        a(f'v_cvt_pk_bf16_f32 v{msg(c1,i1_//2)}, v{TMP+2}, v{TMP+3}')
    def block(g, slot):
        t, (i0_, c0), (i1_, c1) = groups[g]
        if slot: slot()
        cvt((g-1) % 20)
        unpack(t, i0_, c0, TMP); unpack(t, i1_, c1, TMP+2)
        pk(t, i0_, c0, TMP); pk(t, i1_, c1, TMP+2)
    SS = {X_: (1, 0, 0), Y_: (2, 0, 1), Z_: (3, 0, 2), S_: (0, 0, 4), 'vx': (1, 1, 3), 'vy': (2, 2, 3), 'vz': (3, 3, 3)}
    def sg(t, k): return lambda: seg1(t, *SS[k])
    def wfl(t, R, seg): return lambda: wf1(t, R, seg)
    slots = {0: sg(1,'vx'), 1: sg(1,'vy'), 2: sg(1,'vz'), 3: sg(1,S_),
             4: wfl(0,1,1), 5: wfl(0,1,2), 6: wfl(0,1,0),
             7: sg(0,X_), 8: sg(0,Y_), 9: sg(0,Z_), 10: sg(0,'vx'), 11: sg(0,'vy'), 12: sg(0,'vz'), 13: sg(0,S_),
             14: wfl(1,1,1), 15: wfl(1,1,2), 16: wfl(1,1,0), 17: sg(1,X_), 18: sg(1,Y_), 19: sg(1,Z_)}
    VW = (lambda n: n//2) if os.environ.get('NOB') else (lambda n: n)
    for g in range(20):
        if g == 0: a(f's_waitcnt vmcnt({VW(8)})')
        if g == 5:
            a('s_waitcnt vmcnt(0)')
            RESPOS = int(os.environ.get('RESPOS','3'))
            a(f's_cmp_lt_u32 s53, {RESPOS}')
            a('s_cbranch_scc1 K2_RESSKIP')
            res_dma('A')
            a.lab('K2_RESSKIP')
        block(g, slots[g])
        if g == 3:
            wf1(1, 0, 1)
            a(f'ds_read_b128 v[{SM}:{SM+3}], v{V_A2} offset:{O_OH}')
            a(f'ds_read_b128 v[{SM+4}:{SM+7}], v{V_A2} offset:{O_RX}')
            a(f'ds_read_b128 v[{SM+8}:{SM+11}], v{V_A2} offset:{O_RY}')
            a(f'ds_read_b128 v[{SM+12}:{SM+15}], v{V_A2} offset:{O_RZ}')
            read_src(128)
        if g == 6:
            a('s_waitcnt lgkmcnt(2)')
            wf1(1, 0, 2)
            for j in range(4): a(f'v_pk_lshlrev_b16 v{SM+j}, v{V_SHL}, v{SM+j}')
            for j in range(4): a(f'v_pk_ashrrev_i16 v{SM+j}, 15, v{SM+j} op_sel_hi:[0,1]')
            wf1(1, 0, 0)
            for m in (1, 2, 3):
                for j in range(4): a(f'v_and_b32 v{SM+4*m+j}, v{SM+j}, v{SM+4*m+j}')
            for j in range(4): a(f'v_and_b32 v{SM+j}, 0x3f803f80, v{SM+j}')
            a(f'v_add_u32 v{V_A1}, 128, v{V_A1}')
            a(f'v_add_u32 v{V_A2}, 64, v{V_A2}')
        if g == 9: a('s_waitcnt lgkmcnt(0)')
        def guarded(rows, need, tag):
            if os.environ.get('SKIP','0') == '1':
                a(f's_cmp_lt_u32 s99, {need}')
                a(f's_cbranch_scc1 K2_SK{tag}')
            for r_ in rows: issue_row(r_)
            if os.environ.get('SKIP','0') == '1':
                a.lab(f'K2_SK{tag}')
        if g == 12:
            guarded((0, 1), 1, 'a')
            a(f'ds_read_b32 v{SRC}, v{V_A3} offset:{O_AOF+128}')
            a(f'ds_read_b32 v{SRC+1}, v{V_A3} offset:{O_AOF+128+16}')
        if g == 14:
            guarded((2, 3), 1, 'b')
        if g == 16:
            a('s_waitcnt lgkmcnt(0)')
            rares.append(load_A(SRC, SRC+1, T4))
        if g == 19:
            guarded((4,), 2, 'c')
            a('s_waitcnt lgkmcnt(0)')
            wf1(0, 0, 1)
            guarded((5,), 2, 'd')
            wf1(0, 0, 2)
            guarded((6,), 2, 'e')
            wf1(0, 0, 0)
            guarded((7,), 2, 'f')
    a(f'v_add_u32 v{V_A3}, 128, v{V_A3}')
    a('s_add_u32 s53, s53, 1')
    a('s_sub_u32 s58, s58, 1')
    a('s_cmp_lg_u32 s58, 0')
    a('s_cbranch_scc1 K2_TILE')
    a('s_cmp_eq_u32 s54, 0')
    a('s_cbranch_scc1 K2_FLUSH')
    a.lab('K2_HALF')
    a('s_setprio 0')
    hslots = {0: sg(1,'vx'), 1: sg(1,'vy'), 2: sg(1,'vz'), 3: sg(1,S_), 4: None}
    for g in range(5):
        if g == 0: a('s_waitcnt vmcnt(0)')
        block(g, hslots[g])
        if g == 3:
            wf1(1, 0, 1)
            a(f'ds_read_b128 v[{SM}:{SM+3}], v{V_A2} offset:{O_OH}')
            a(f'ds_read_b128 v[{SM+4}:{SM+7}], v{V_A2} offset:{O_RX}')
            a(f'ds_read_b128 v[{SM+8}:{SM+11}], v{V_A2} offset:{O_RY}')
            a(f'ds_read_b128 v[{SM+12}:{SM+15}], v{V_A2} offset:{O_RZ}')
    cvt(4)
    for c in range(5):
        a(f'v_mov_b32 v{msg(c,2)}, 0'); a(f'v_mov_b32 v{msg(c,3)}, 0')
    a('s_waitcnt lgkmcnt(0)')
    wf1(1, 0, 2)
    for j in range(4): a(f'v_pk_lshlrev_b16 v{SM+j}, v{V_SHL}, v{SM+j}')
    for j in range(4): a(f'v_pk_ashrrev_i16 v{SM+j}, 15, v{SM+j} op_sel_hi:[0,1]')
    wf1(1, 0, 0)
    for m in (1, 2, 3):
        for j in range(4): a(f'v_and_b32 v{SM+4*m+j}, v{SM+j}, v{SM+4*m+j}')
    for j in range(4): a(f'v_and_b32 v{SM+j}, 0x3f803f80, v{SM+j}')
    a('s_nop 1')
    seg1(0, *SS[X_]); seg1(0, *SS[Y_]); seg1(0, *SS[Z_])
    def block_nocvt(g, slot):
        t, (i0_, c0), (i1_, c1) = groups[g]
        if slot: slot()
        unpack(t, i0_, c0, TMP); unpack(t, i1_, c1, TMP+2)
        pk(t, i0_, c0, TMP); pk(t, i1_, c1, TMP+2)
    block_nocvt(10, sg(0,'vx'))
    seg1(0, *SS['vy'])
    block(11, sg(0,'vz'))
    block(12, sg(0,S_))
    block(13, None)
    block(14, None)
    cvt(14)
    a('s_nop 1')
    for k in (X_, Y_, Z_, 'vx', 'vy', 'vz', S_): seg1(1, *SS[k])
    a('s_waitcnt vmcnt(0) lgkmcnt(0)')
    a('s_branch K2_TILES_DONE')
    a.lab('K2_FLUSH')
    cvt(19)
    for k in ('vx', 'vy', 'vz'): seg1(1, *SS[k])
    seg1(1, *SS[S_])
    a('s_waitcnt vmcnt(0) lgkmcnt(0)')
    a('s_branch K2_TILES_DONE')
    a.lab('K2_NOTILES')
    a.lab('K2_TILES_DONE')
    a.stamp(6)
    a('s_add_u32 s52, s52, 256')
    a('s_cmp_lt_u32 s52, s19')
    a('s_cbranch_scc1 K2_MORE')
    a.lab('K2_EPI')
    res_dma('B')
    a('s_waitcnt vmcnt(0)')
    LN = T4
    a(f'v_mbcnt_lo_u32_b32 v{LN}, -1, 0')
    a(f'v_mbcnt_hi_u32_b32 v{LN}, -1, v{LN}')
    a('s_lshl_b32 s62, s97, 12')
    a(f's_add_u32 s62, s62, {RES0}')
    a(f'v_lshrrev_b32 v{T5}, 4, v{LN}')
    a(f'v_lshlrev_b32 v{T5}, 10, v{T5}')
    a(f'v_lshl_add_u32 v{T5}, v{V_C}, 2, v{T5}')
    a(f'v_add_u32 v{T5}, s62, v{T5}')
    for r in range(4):
        for comp in range(4):
            a(f'ds_read_b32 v{GA+r*4+comp}, v{T5} offset:{r*256+comp*64}')
    a('s_waitcnt lgkmcnt(0)')
    for r in range(4):
        for comp in range(4):
            x = GA+r*4+comp
            a(f'v_lshlrev_b32 v{TMP}, 16, v{x}')
            a(f'v_and_b32 v{TMP+1}, 0xffff0000, v{x}')
            a(f'v_add_f32 v{TMP}, v{TMP}, v{acc(comp,0)+r}')
            a(f'v_add_f32 v{TMP+1}, v{TMP+1}, v{acc(comp,1)+r}')
            a(f'v_cvt_pk_bf16_f32 v{x}, v{TMP}, v{TMP+1}')
            a(f'ds_write_b32 v{T5}, v{x} offset:{r*256+comp*64}')
    a(f'v_lshlrev_b32 v{TMP}, 4, v{LN}')
    a(f'v_add_u32 v{TMP}, s62, v{TMP}')
    for j in range(4):
        a(f'ds_read_b128 v[{MSG+4*j}:{MSG+4*j+3}], v{TMP} offset:{1024*j}')
    a(f'v_lshrrev_b32 v{T5}, 4, v{LN}')
    a(f'v_lshlrev_b32 v{TMP+1}, 10, v{T5}')
    a(f'v_bfe_u32 v{TMP+2}, v{LN}, 2, 2')
    a(f'v_lshl_add_u32 v{TMP+1}, v{TMP+2}, 8, v{TMP+1}')
    a(f'v_and_b32 v{TMP+2}, 3, v{LN}')
    a(f'v_lshl_add_u32 v{TMP+1}, v{TMP+2}, 4, v{TMP+1}')
    a('s_lshl_b32 s61, s15, 10')
    a('s_lshl_b32 s62, s13, 6')
    a('s_add_u32 s61, s61, s62')
    a(f'v_mov_b32 v{TMP+2}, 0x80000000')
    for j in range(4):
        a(f'v_add_u32 v{TMP+3}, {4*j}, v{T5}')
        a(f'v_cmp_gt_u32 vcc, s16, v{TMP+3}')
        a('s_nop 1')
        a(f'v_cndmask_b32 v{WF+j}, v{TMP+2}, v{TMP+1}, vcc')
    for j in range(4):
        a(f's_waitcnt lgkmcnt({3-j})')
        a(f'buffer_store_dwordx4 v[{MSG+4*j}:{MSG+4*j+3}], v{WF+j}, s[36:39], s61 offen {OUTST}')
        a('s_add_u32 s61, s61, 4096')
    if not os.environ.get('ST7'): a.stamp(7)
    if Asm.STAMPS and not os.environ.get('ST7'):
        a('s_memtime s[86:87]')
        a('s_waitcnt lgkmcnt(0)')
        a('s_sub_u32 s84, s86, s88')
    if Asm.STAMPS:
        a('s_lshl_b32 s68, s3, 6')
        a(f's_add_u32 s68, s68, {K2_LDS}')
        a(f'v_lshlrev_b32 v2, 2, v{LN}')
        a('v_add_u32 v3, s68, v2')
        a('ds_read_b32 v4, v3')
        a('s_add_u32 s64, s10, 0x1A00000')
        a('s_addc_u32 s65, s11, 0')
        a('s_mov_b32 s66, 0x100000')
        a('s_mov_b32 s67, 0x00020000')
        a('s_lshl_b32 s68, s2, 4')
        a('s_add_u32 s68, s68, s3')
        a('s_lshl_b32 s68, s68, 6')
        a('s_waitcnt lgkmcnt(0)')
        a('s_mov_b64 exec, 0xffff')
        a('buffer_store_dword v4, v2, s[64:67], s68 offen')
        a('s_mov_b64 exec, -1')
    if Asm.STAMPS and FUSE:
        a('s_lshl_b32 s68, s3, 5')
        a('s_add_u32 s68, s68, 155712')
        a(f'v_mbcnt_lo_u32_b32 v2, -1, 0')
        a(f'v_mbcnt_hi_u32_b32 v2, -1, v2')
        a('v_lshlrev_b32 v2, 2, v2')
        a('v_add_u32 v3, s68, v2')
        a('ds_read_b32 v4, v3')
        a('s_add_u32 s64, s10, 0x1800000')
        a('s_addc_u32 s65, s11, 0')
        a('s_mov_b32 s66, 0x100000')
        a('s_mov_b32 s67, 0x00020000')
        a('s_lshl_b32 s68, s2, 4')
        a('s_add_u32 s68, s68, s3')
        a('s_lshl_b32 s68, s68, 6')
        a('s_waitcnt lgkmcnt(0)')
        a('s_mov_b64 exec, 0xff')
        a('buffer_store_dword v4, v2, s[64:67], s68 offen')
        a('s_mov_b64 exec, -1')
    a.stamp_flush(1, 10, 8, 3)
    if os.environ.get('DBG'):
        a('s_memrealtime s[78:79]')
        a('s_load_dwordx2 s[80:81], s[0:1], 72')
        a('s_waitcnt lgkmcnt(0)')
        a('s_cmp_lg_u32 s3, 0')
        a('s_cbranch_scc1 K2_END')
        a('s_mov_b32 s64, s80')
        a('s_mov_b32 s65, s81')
        a('s_mov_b32 s66, 256')
        a('s_mov_b32 s67, 0x00020000')
        a('s_mov_b64 exec, 1')
        vals = [('s70', True), ('s70', False), ('s72', True), ('s72', False), ('s74', False), ('s76', True), ('s76', False), ('s78', True), ('s78', False)]
        for i, (r, inv) in enumerate(vals):
            a(f'v_mov_b32 v1, {r}')
            if inv: a('v_not_b32 v1, v1')
            a(f'v_mov_b32 v2, {4*(i+1)}')
            a('buffer_atomic_umax v1, v2, s[64:67], 0 offen sc1')
            a('s_nop 1')
        a('s_mov_b64 exec, -1')
    a.lab('K2_END')
    a('s_endpgm')
    a.lab('K2_MORE')
    for r in range(SM, SM+16): a(f'v_mov_b32 v{r}, 0')
    a(f'v_mbcnt_lo_u32_b32 v{LANE}, -1, 0')
    a(f'v_mbcnt_hi_u32_b32 v{LANE}, -1, v{LANE}')
    a(f'v_mul_u32_u24 v{TMP}, {NG*4}, v{LANE}')
    a('s_lshl_b32 s17, s14, 2')
    a(f'buffer_load_dword v{TMP+1}, v{TMP}, s[20:23], s17 offen {SC}')
    a('s_waitcnt vmcnt(0)')
    header()
    a(f'v_sub_u32 v{P}, v{P}, v{CNT}')
    a(f'v_lshl_add_u32 v{LOCB}, v{LANE}, 12, v{ST}')
    a('s_branch K2_CHUNK')
    for (k, ao0, ao1) in rares:
        a.lab(f'K2_RARE{k}')
        a(f'v_max_i32 v{T4}, 0, v{ao0}')
        a(f'v_max_i32 v{T5}, 0, v{ao1}')
        a(f'v_add_u32 v{T4}, v{T4}, v{V_KQ8}')
        a(f'v_add_u32 v{T5}, v{T5}, v{V_KQ8}')
        a(f'ds_read_b64 v[{AOP}:{AOP+1}], v{T4}')
        a(f'ds_read_b64 v[{AOP+2}:{AOP+3}], v{T5}')
        a('s_waitcnt lgkmcnt(0)')
        for h, ao in ((0, ao0), (1, ao1)):
            a(f'v_cmp_gt_i32 vcc, 0, v{ao}')
            a(f'v_add_u32 v{T4}, {HOT0*32}, v{ao}')
            a(f'v_add_u32 v{T4}, v{T4}, v{V_KQ8}')
            a('s_and_saveexec_b64 s[62:63], vcc')
            a(f's_cbranch_execz K2_RSK{k}_{h}')
            a(f'buffer_load_dwordx2 v[{AOP+2*h}:{AOP+2*h+1}], v{T4}, s[28:31], 0 offen {SC}')
            a('s_waitcnt vmcnt(0)')
            a.lab(f'K2_RSK{k}_{h}')
            a('s_mov_b64 exec, s[62:63]')
        a(f's_branch K2_RARE_BACK{k}')
```
